```python
import torch

def _softmax(x, axis=-1):
    return torch.softmax(x, dim=axis)
def _gelu(x):
    return torch.nn.functional.gelu(x, approximate="tanh")
def _silu(x):
    return torch.nn.functional.silu(x)
def _sigmoid(x):
    return torch.sigmoid(x)
def _layernorm(x, axis=-1, eps=1e-5):
    m = x.mean(dim=axis, keepdim=True)
    v = x.var(dim=axis, keepdim=True, unbiased=False)
    return (x - m) / torch.sqrt(v + eps)
def _scatter_add(tgt, idx, src, axis=0):
    return tgt.clone().index_add_(axis, idx, src)
def _segment_sum(src, seg, n):
    out = torch.zeros((n,) + src.shape[1:], dtype=src.dtype)
    return out.index_add_(0, seg, src)
def _pad(x, pw):
    flat = tuple(v for pair in reversed(pw) for v in pair)
    return torch.nn.functional.pad(x, flat)

kernel_name = 'concat_heads__softmax_full_mha__sliding_block__prompt'

def setup_inputs():

    _w = (lambda a: (lambda t: t.to(torch.bfloat16) if t.is_floating_point() else t)(torch.as_tensor(a)))
    def _A_setup():
        B, S, D = 1, 2048, 512
        return {
            "x": _w((lambda *s: torch.randn(*s, dtype=torch.bfloat16) * 0.2)(B, S, D)),
            "wqkv": _w((lambda *s: torch.randn(*s, dtype=torch.bfloat16) * 0.4)(D, 3 * D)),
            "wo": _w((lambda *s: torch.randn(*s, dtype=torch.bfloat16) * 0.1)(D, D)),
        }
    _A_in = _A_setup()

    def _B_setup():
        B, S, D = 1, 2048, 512
        return {
            "x": _w((lambda *s: torch.randn(*s, dtype=torch.bfloat16) * 0.4)(B, S, D)),
            "wqkv": _w((lambda *s: torch.randn(*s, dtype=torch.bfloat16) * 0.4)(D, 3 * D)),
            "wo": _w((lambda *s: torch.randn(*s, dtype=torch.bfloat16) * 0.05)(D, D)),
        }
    _B_in = _B_setup()

    return {
        "A_x": _A_in["x"],
        "A_wqkv": _A_in["wqkv"],
        "A_wo": _A_in["wo"],
        "B_x": _B_in["x"],
        "B_wqkv": _B_in["wqkv"],
        "B_wo": _B_in["wo"],
    }

def reference(A_x, A_wqkv, A_wo, B_x, B_wqkv, B_wo):
    def _A_ref(x, wqkv, wo):
        B, S, D = x.shape
        H = 32; Dh = D // H
        qkv = (lambda x, *d: x.permute(*d))((x @ wqkv).reshape(B, S, 3, H, Dh), 2, 0, 3, 1, 4)
        q, k, v = qkv[0], qkv[1], qkv[2]
        scale = Dh ** -0.5
        scores = torch.einsum("bhqd,bhkd->bhqk", q, k) * scale
        p = _softmax(scores, axis=-1)
        o = torch.einsum("bhqk,bhkd->bhqd", p, v)
        return (lambda x, *d: x.permute(*d))(o, 0, 2, 1, 3).reshape(B, S, D) @ wo

    def _B_ref(x, wqkv, wo):
        B, S, D = x.shape
        H = 32; Dh = D // H; W = 256
        qkv = (lambda x, *d: x.permute(*d))((x @ wqkv).reshape(B, S, 3, H, Dh), 2, 0, 3, 1, 4)
        q, k, v = qkv[0], qkv[1], qkv[2]
        scores = torch.einsum("bhqd,bhkd->bhqk", q, k) * (Dh ** -0.5)
        idx = torch.arange(S)
        mask = (idx[:, None] - idx[None, :] >= 0) & (idx[:, None] - idx[None, :] < W)
        scores = torch.where(mask[None, None], scores, -1e9)
        p = _softmax(scores, axis=-1)
        o = torch.einsum("bhqk,bhkd->bhqd", p, v)
        return (lambda x, *d: x.permute(*d))(o, 0, 2, 1, 3).reshape(B, S, D) @ wo

    a = _A_ref(A_x, A_wqkv, A_wo)
    b = _B_ref(B_x, B_wqkv, B_wo)
    return torch.concatenate([a, b], axis=-1)
```

```python
import sys, os

NAME = "concat_heads__softmax_full_mha__sliding_block__prompt"

class Asm:
    def __init__(self):
        self.lines = []
    def __call__(self, s):
        self.lines.append("  " + s)
    def label(self, s):
        self.lines.append(s + ":")
    def raw(self, s):
        self.lines.append(s)
    def text(self):
        return "\n".join(self.lines) + "\n"

def vr(b, n=1):
    return f"v{b}" if n == 1 else f"v[{b}:{b+n-1}]"
def sr(b, n=1):
    return f"s{b}" if n == 1 else f"s[{b}:{b+n-1}]"

HEAD_STRIDE = 196608
PROB_STRIDE = 32 * HEAD_STRIDE
O_BASE = 2 * PROB_STRIDE
O_PROB = 32 * 65536
QSCALE = 0.25 * 1.4426950408889634

import struct
def f32bits(x):
    return struct.unpack("<I", struct.pack("<f", x))[0]

def srd(a, d, lo, hi, nrec):
    a(f"s_mov_b32 s{d}, s{lo}")
    a(f"s_and_b32 s{d+1}, s{hi}, 0xffff")
    a(f"s_mov_b32 s{d+2}, {nrec}")
    a(f"s_mov_b32 s{d+3}, 0x00020000")

def gen_proj(a):
    a.raw(".p2align 8")
    a.raw(".type proj_kernel,@function")
    a.label("proj_kernel")
    a("s_cmp_ge_u32 s2, 256")
    a("s_cbranch_scc1 Lproj_end")
    a("s_load_dwordx2 s[4:5], s[0:1], 0")
    a("s_load_dwordx2 s[6:7], s[0:1], 8")
    a("s_load_dwordx2 s[26:27], s[0:1], 24")
    a("s_load_dwordx2 s[28:29], s[0:1], 32")
    a("s_load_dwordx2 s[30:31], s[0:1], 64")
    a("s_and_b32 s32, s2, 7")
    a("s_lshr_b32 s33, s2, 3")
    a("s_lshr_b32 s23, s32, 2")
    a("s_bfe_u32 s34, s32, 0x10001")
    a("s_lshl_b32 s34, s34, 3")
    a("s_and_b32 s35, s33, 7")
    a("s_add_u32 s24, s34, s35")
    a("s_and_b32 s34, s32, 1")
    a("s_lshl_b32 s34, s34, 2")
    a("s_lshr_b32 s35, s33, 3")
    a("s_add_u32 s25, s34, s35")
    a("v_and_b32 v1, 63, v0")
    a("v_lshrrev_b32 v2, 6, v0")
    a("s_nop 0")
    a("v_readfirstlane_b32 s20, v2")
    a("v_lshrrev_b32 v2, 3, v1")
    a("v_lshlrev_b32 v2, 10, v2")
    a("v_and_b32 v3, 7, v1")
    a("v_lshrrev_b32 v6, 4, v1")
    a("v_xor_b32 v3, v3, v6")
    a("v_lshlrev_b32 v3, 4, v3")
    a("v_add_u32 v4, v2, v3")
    a("v_xor_b32 v5, 64, v4")
    a("s_movk_i32 s36, 171")
    a("s_movk_i32 s37, 3072")
    for v in range(3):
        a(f"v_add_u32 v2, {64*v}, v1")
        a("v_mul_lo_u32 v3, v2, s36")
        a("v_lshrrev_b32 v3, 12, v3")
        a("v_mul_u32_u24 v9, 24, v3")
        a("v_sub_u32 v9, v2, v9")
        a("v_bfe_u32 v10, v3, 1, 1")
        a("v_lshlrev_b32 v10, 2, v10")
        a("v_xor_b32 v9, v9, v10")
        a("v_mul_lo_u32 v3, v3, s37")
        a("v_lshrrev_b32 v10, 3, v9")
        a("v_lshlrev_b32 v10, 10, v10")
        a("v_add_u32 v3, v3, v10")
        a("v_and_b32 v9, 7, v9")
        a("v_lshlrev_b32 v9, 4, v9")
        a(f"v_add_u32 v{6+v}, v3, v9")
    a("s_lshr_b32 s21, s20, 1")
    a("s_and_b32 s22, s20, 1")
    a("v_and_b32 v2, 31, v1")
    a("v_lshrrev_b32 v3, 5, v1")
    a("v_bfe_u32 v9, v2, 1, 3")
    a("v_xor_b32 v9, v9, v3")
    a("s_lshl_b32 s36, s21, 13")
    a("v_lshlrev_b32 v14, 7, v2")
    a("v_add_u32 v14, s36, v14")
    for s in range(4):
        a(f"v_xor_b32 v15, {2*s}, v9")
        a("v_lshlrev_b32 v15, 4, v15")
        a(f"v_add_u32 v{10+s}, v14, v15")
    a("v_lshlrev_b32 v20, 3, v3")
    a("v_bfe_u32 v21, v1, 2, 2")
    a("v_add_u32 v20, v20, v21")
    a("s_movk_i32 s36, 384")
    a("v_mul_lo_u32 v20, v20, s36")
    a("v_bfe_u32 v21, v1, 4, 1")
    a("v_lshlrev_b32 v21, 5, v21")
    a("v_add_u32 v20, v20, v21")
    a("v_and_b32 v21, 3, v1")
    a("v_lshlrev_b32 v21, 3, v21")
    a("v_add_u32 v20, v20, v21")
    a("v_add_u32 v20, 0x10000, v20")
    a("v_bfe_u32 v21, v1, 3, 1")
    a("s_mul_i32 s36, s22, 3")
    for ct in range(3):
        a(f"s_add_u32 s37, s36, {ct}")
        a("v_xor_b32 v22, s37, v21")
        a("v_lshlrev_b32 v22, 6, v22")
        a(f"v_add_u32 v{14+ct}, v20, v22")
        a(f"v_add_u32 v{17+ct}, 0xc000, v{14+ct}")
    a("v_lshlrev_b32 v20, 4, v1")
    a("v_bfe_u32 v21, v1, 4, 1")
    a(f"s_mov_b32 s36, {HEAD_STRIDE}")
    a("v_mul_lo_u32 v21, v21, s36")
    a("v_lshlrev_b32 v22, 8, v3")
    a("v_add_u32 v21, v21, v22")
    a("v_and_b32 v22, 15, v1")
    a("v_lshlrev_b32 v22, 4, v22")
    a("v_add_u32 v21, v21, v22")
    ACC = 64
    for r in range(96):
        a(f"v_mov_b32 v{ACC+r}, 0")
    a("s_waitcnt lgkmcnt(0)")
    a("s_cmp_eq_u32 s23, 0")
    a("s_cselect_b32 s4, s4, s26")
    a("s_cselect_b32 s5, s5, s27")
    a("s_cselect_b32 s6, s6, s28")
    a("s_cselect_b32 s7, s7, s29")
    srd(a, 8, 4, 5, 2048*1024)
    srd(a, 12, 6, 7, 512*3072)
    a(f"s_mul_i32 s36, s23, {PROB_STRIDE}")
    a("s_add_u32 s30, s30, s36")
    a("s_addc_u32 s31, s31, 0")
    srd(a, 16, 30, 31, PROB_STRIDE)
    a("s_lshl_b32 s40, s24, 7")
    a("s_lshl_b32 s36, s20, 5")
    a("s_add_u32 s40, s40, s36")
    a("s_lshl_b32 s40, s40, 10")
    a("s_lshl_b32 s41, s20, 12")
    a("s_mul_i32 s42, s20, 49152")
    a("s_lshl_b32 s36, s25, 7")
    a("s_add_u32 s42, s42, s36")
    a("s_mul_i32 s43, s20, 6144")
    a("s_add_u32 s43, s43, 0x10000")

    def dma_chunk(c):
        slot = c % 4
        for u in range(4):
            a(f"s_add_u32 m0, s41, {slot*16384 + u*1024}")
            a(f"s_add_u32 s44, s40, {u*8192 + c*128}")
            a(f"buffer_load_dwordx4 v{4 + (u & 1)}, s[8:11], s44 offen lds")
        for u in range(6):
            up, v = divmod(u, 3)
            a(f"s_add_u32 m0, s43, {slot*24576 + u*1024}")
            a(f"s_add_u32 s44, s42, {(c*64 + 8*up)*3072}")
            a(f"buffer_load_dwordx4 v{6 + v}, s[12:15], s44 offen lds")

    for c in range(4):
        dma_chunk(c)

    XF = [24, 32]
    WF = [40, 52]
    def read_frags(c, s, buf):
        slot = c % 4
        for tt in range(2):
            a(f"ds_read_b128 {vr(XF[buf]+4*tt,4)}, v{10+s} offset:{slot*16384 + tt*4096}")
        for ct in range(3):
            reg = (14 if slot < 2 else 17) + ct
            off = (slot % 2) * 24576 + s * 6144
            a(f"ds_read_b64_tr_b16 {vr(WF[buf]+4*ct,2)}, v{reg} offset:{off}")
            a(f"ds_read_b64_tr_b16 {vr(WF[buf]+4*ct+2,2)}, v{reg} offset:{off+1536}")

    def body(types, tag):
        a("s_waitcnt vmcnt(30)")
        a("s_barrier")
        read_frags(0, 0, 0)
        step = 0
        for c in range(8):
            for s in range(4):
                buf = step % 2
                last = (c == 7 and s == 3)
                if s == 3 and c < 7:
                    issued = min(c + 3, 7)
                    outstanding_ok = (issued - (c + 1)) * 10
                    a(f"s_waitcnt vmcnt({outstanding_ok}) lgkmcnt(0)")
                    a("s_barrier")
                    if c + 4 <= 7:
                        dma_chunk(c + 4)
                    read_frags(c + 1, 0, buf ^ 1)
                elif not last:
                    a("s_waitcnt lgkmcnt(0)")
                    read_frags(c, s + 1, buf ^ 1)
                else:
                    a("s_waitcnt lgkmcnt(0)")
                for tt in range(2):
                    for ct in range(3):
                        acc = vr(ACC + (tt*3+ct)*16, 16)
                        xf = vr(XF[buf] + 4*tt, 4)
                        wf = vr(WF[buf] + 4*ct, 4)
                        if types[ct] == 'V':
                            a(f"v_mfma_f32_32x32x16_bf16 {acc}, {xf}, {wf}, {acc}")
                        else:
                            a(f"v_mfma_f32_32x32x16_bf16 {acc}, {wf}, {xf}, {acc}")
                step += 1
        a("s_nop 15")
        a("s_nop 3")
        a(f"s_mov_b32 s46, {f32bits(QSCALE):#x}")
        PK = 24
        n = 0
        for tt in range(2):
            for ct in range(3):
                acc = ACC + (tt*3+ct)*16
                c = tag * 3 + ct
                ty = types[ct]
                for e in range(2):
                    pk = PK + (n % 4) * 4
                    n += 1
                    if ty == 'Q':
                        for r in range(8):
                            a(f"v_mul_f32 v{acc+8*e+r}, s46, v{acc+8*e+r}")
                    for r in range(4):
                        a(f"v_cvt_pk_bf16_f32 v{pk+r}, v{acc+8*e+2*r}, v{acc+8*e+2*r+1}")
                    a(f"s_lshl_b32 s44, s25, 2")
                    if ty == 'V':
                        a(f"s_add_u32 s44, s44, {2*(c%2)}")
                    else:
                        a(f"s_add_u32 s44, s44, {2*(c%2)+e}")
                    a(f"s_mul_i32 s44, s44, {HEAD_STRIDE}")
                    a("s_lshl_b32 s45, s24, 2")
                    a("s_lshl_b32 s47, s21, 1")
                    a("s_add_u32 s45, s45, s47")
                    a(f"s_add_u32 s45, s45, {tt}")
                    if ty == 'Q':
                        a("s_lshl_b32 s45, s45, 10")
                        a("s_add_u32 s44, s44, s45")
                        a(f"buffer_store_dwordx4 {vr(pk,4)}, v20, s[16:19], s44 offen")
                    elif ty == 'K':
                        a("s_lshl_b32 s45, s45, 11")
                        a("s_add_u32 s44, s44, s45")
                        a("s_add_u32 s44, s44, 65536")
                        a(f"buffer_store_dwordx4 {vr(pk,4)}, v20, s[16:19], s44 offen")
                    else:
                        a("s_lshl_b32 s45, s45, 11")
                        a("s_add_u32 s44, s44, s45")
                        a(f"s_add_u32 s44, s44, {65536+1024+512*e}")
                        a(f"buffer_store_dwordx4 {vr(pk,4)}, v21, s[16:19], s44 offen")
        a("s_endpgm")

    a("s_cmp_eq_u32 s22, 0")
    a("s_cbranch_scc0 Lproj_wn1")
    body(['Q', 'Q', 'K'], 0)
    a.label("Lproj_wn1")
    body(['K', 'V', 'V'], 1)
    a.label("Lproj_end")
    a("s_endpgm")

QA, QB = 4, 8
OACC = 16
CNEG = 32
SB = [48, 64, 80, 96]
PP = 112
VF = [120, 128]
KF = 136
MHI, MLO = 172, 188
VKA, VVA = 1, 2
TMP = 3
def mfma(a, d, x, y, c):
    cs = c if isinstance(c, str) else vr(c, 16)
    a(f"v_mfma_f32_32x32x16_bf16 {vr(d,16)}, {vr(x,4)}, {vr(y,4)}, {cs}")

def attn_step(a, cur, nxt, q, knext, cnext, vbuf, pre_qk, post_qk, pre_pv0, v_reads, pre_pv1):
    E = lambda i: a(f"v_exp_f32 v{cur+i}, v{cur+i}")
    C = lambda j: a(f"v_cvt_pk_bf16_f32 v{PP+j}, v{cur+2*j}, v{cur+2*j+1}")
    E(0); E(1); E(2); E(3); C(0); E(4); C(1); E(5)
    if knext is not None:
        pre_qk()
        mfma(a, nxt, knext, q, cnext)
        post_qk()
    E(6); E(7); C(2); E(8); C(3); E(9); E(10)
    pre_pv0()
    mfma(a, OACC, vbuf, PP, OACC)
    E(11); C(4); E(12); C(5); E(13); E(14); E(15); C(6); C(7)
    v_reads()
    pre_pv1()
    mfma(a, OACC, vbuf + 4, PP + 4, OACC)

def read_v(a, buf, off):
    a("s_mov_b64 exec, s[40:41]")
    a(f"ds_read_b128 {vr(buf,4)}, v{VVA} offset:{off}")
    a(f"ds_read_b128 {vr(buf+4,4)}, v{VVA} offset:{off+512}")
    a("s_mov_b64 exec, -1")

def halves_max(a, m, t):
    a(f"v_mov_b32 v{t}, v{m}")
    a("s_nop 1")
    a(f"v_permlane32_swap_b32 v{m}, v{t}")
    a("s_nop 1")
    a(f"v_max_f32 v{m}, v{m}, v{t}")

def finish_o(a, soff):
    a("s_nop 15")
    a(f"v_rcp_f32 v{TMP}, v{OACC+8}")
    a("s_nop 1")
    for r in range(8):
        a(f"v_mul_f32 v{OACC+r}, v{OACC+r}, v{TMP}")
    for r in range(4):
        a(f"v_cvt_pk_bf16_f32 v{PP+r}, v{OACC+2*r}, v{OACC+2*r+1}")
    a(f"buffer_store_dwordx4 {vr(PP,4)}, v{VKA+211}, s[16:19], {soff} offen")

def gen_attn(a):
    LIN = VKA + 211
    a.raw(".p2align 8")
    a.raw(".type attn_kernel,@function")
    a.label("attn_kernel")
    a("s_cmp_ge_u32 s2, 256")
    a("s_cbranch_scc1 Lattn_end")
    a("s_load_dwordx2 s[4:5], s[0:1], 64")
    a("s_and_b32 s20, s2, 31")
    a("s_lshr_b32 s21, s2, 5")
    a("v_and_b32 v205, 63, v0")
    a("v_lshrrev_b32 v206, 6, v0")
    a("s_nop 0")
    a("v_readfirstlane_b32 s22, v206")
    a(f"v_lshlrev_b32 v{LIN}, 4, v205")
    a(f"v_mov_b32 v{VKA}, v{LIN}")
    a("v_lshrrev_b32 v206, 5, v205")
    a(f"v_lshlrev_b32 v{VVA}, 8, v206")
    a("v_and_b32 v207, 15, v205")
    a("v_lshlrev_b32 v207, 4, v207")
    a(f"v_add_u32 v{VVA}, v{VVA}, v207")
    a(f"v_add_u32 v{VVA}, 1024, v{VVA}")
    a("s_mov_b32 s40, 0x0000ffff")
    a("s_mov_b32 s41, 0x0000ffff")
    a("s_mov_b32 s33, 0")
    a("s_lshl_b32 s23, s21, 3")
    a("s_add_u32 s23, s23, s22")
    a("s_waitcnt lgkmcnt(0)")
    a(f"s_mul_i32 s24, s20, {HEAD_STRIDE}")
    a("s_add_u32 s6, s4, s24")
    a("s_addc_u32 s7, s5, 0")
    srd(a, 8, 6, 7, HEAD_STRIDE)
    a(f"s_add_u32 s6, s6, {PROB_STRIDE}")
    a("s_addc_u32 s7, s7, 0")
    srd(a, 12, 6, 7, HEAD_STRIDE)
    a(f"s_add_u32 s6, s4, {O_BASE}")
    a("s_addc_u32 s7, s5, 0")
    srd(a, 16, 6, 7, 2 * O_PROB)
    a("s_lshl_b32 s24, s23, 10")
    a(f"buffer_load_dwordx4 {vr(QB,4)}, v{LIN}, s[12:15], s24 offen")
    a("s_lshl_b32 s25, s21, 14")
    a("s_lshl_b32 s26, s22, 10")
    a("s_add_u32 s25, s25, s26")
    a("s_sub_u32 s25, s25, 16384")
    for u in range(4):
        a(f"s_add_u32 s27, s25, {u*8192}")
        a("s_max_i32 s27, s27, 0")
        a("s_add_u32 s27, s27, 65536")
        a(f"s_add_u32 m0, s26, {131072 + u*8192}")
        a(f"buffer_load_dwordx4 v{LIN}, s[12:15], s27 offen lds")
    a(f"buffer_load_dwordx4 {vr(QA,4)}, v{LIN}, s[8:11], s24 offen")
    for u in range(16):
        a(f"s_add_u32 s27, s26, {65536 + u*8192}")
        a(f"s_add_u32 m0, s26, {u*8192}")
        a(f"buffer_load_dwordx4 v{LIN}, s[8:11], s27 offen lds")
    a("v_and_b32 v207, 31, v205")
    a("v_lshlrev_b32 v206, 2, v206")
    a("v_sub_u32 v207, v207, v206")
    a("v_mov_b32 v208, 0xff800000")
    a("v_mov_b32 v209, 0")
    for r in range(16):
        cr = 8*(r//4) + r % 4
        a(f"v_cmp_le_i32 s[{44+2*r}:{45+2*r}], {cr}, v207")
    a("s_nop 1")
    for r in range(16):
        a(f"v_cndmask_b32 v{MHI+r}, v208, v209, s[{44+2*r}:{45+2*r}]")
        a(f"v_cndmask_b32 v{MLO+r}, v209, v208, s[{44+2*r}:{45+2*r}]")
    for r in range(16):
        a(f"v_mov_b32 v{VF[0]+r}, 0x3f803f80")
    a("s_min_u32 s28, s23, 8")
    a("s_lshl_b32 s29, s22, 11")
    a("s_add_u32 s29, s29, 131072")
    a(f"v_add_u32 v{VKA}, s29, v{VKA}")
    a(f"v_add_u32 v{VVA}, s29, v{VVA}")
    a("s_waitcnt vmcnt(17)")
    a("s_barrier")
    for i in range(8, -1, -1):
        a(f"ds_read_b128 {vr(KF+4*i,4)}, v{VKA} offset:{i*2048}")
    MX = 210
    def qk1(i):
        c = MHI if i == 8 else (MLO if i == 0 else "0")
        mfma(a, SB[(8-i) % 4], KF+4*i, QB, c)
    a("s_waitcnt lgkmcnt(6)")
    qk1(8); qk1(7); qk1(6)
    a("s_waitcnt lgkmcnt(0)")
    a("s_nop 8")
    a("s_mov_b32 s30, s28")
    for i in range(8, -1, -1):
        s = SB[(8-i) % 4]
        if i == 8:
            a(f"v_max_f32 v{MX}, v{s}, v{s+1}")
            for r in range(1, 8):
                a(f"v_max3_f32 v{MX}, v{s+2*r}, v{s+2*r+1}, v{MX}")
        else:
            for r in range(8):
                a(f"v_max3_f32 v{MX}, v{s+2*r}, v{s+2*r+1}, v{MX}")
        if i > 0:
            a("s_cmp_eq_u32 s30, 0")
            a("s_cbranch_scc1 Lb_p1_done")
            a("s_sub_u32 s30, s30, 1")
        if i - 3 >= 0:
            qk1(i - 3)
    a.label("Lb_p1_done")
    halves_max(a, MX, TMP)
    a("s_nop 7")
    a("s_nop 7")
    for r in range(16):
        a(f"v_sub_f32 v{CNEG+r}, 0, v{MX}")
        a(f"v_sub_f32 v{MHI+r}, v{MHI+r}, v{MX}")
        a(f"v_sub_f32 v{MLO+r}, v{MLO+r}, v{MX}")
        a(f"v_mov_b32 v{OACC+r}, 0")
    read_v(a, VF[0], 8*2048)
    mfma(a, SB[0], KF+4*8, QB, MHI)
    a("s_nop 15")
    a("s_mov_b32 s30, s28")
    for n, i in enumerate(range(8, -1, -1)):
        cur, nxt = SB[n % 2], SB[(n+1) % 2]
        vb = VF[n % 2]
        if i > 0:
            cn = MLO if i - 1 == 0 else CNEG
            attn_step(a, cur, nxt, QB, KF+4*(i-1), cn, vb,
                      lambda: None, lambda: None,
                      lambda: a("s_waitcnt lgkmcnt(1)"),
                      lambda: read_v(a, VF[(n+1) % 2], (i-1)*2048),
                      lambda: a("s_waitcnt lgkmcnt(2)"))
            a("s_cmp_eq_u32 s30, 0")
            a("s_cbranch_scc1 Lb_p2_done")
            a("s_sub_u32 s30, s30, 1")
        else:
            attn_step(a, cur, None, QB, None, None, vb,
                      None, None,
                      lambda: a("s_waitcnt lgkmcnt(1)"),
                      lambda: a("s_nop 1"),
                      lambda: a("s_waitcnt lgkmcnt(0)"))
    a.label("Lb_p2_done")
    a("s_waitcnt vmcnt(0) lgkmcnt(0)")
    a("s_barrier")
    a(f"s_mul_i32 s31, s20, 65536")
    a("s_lshl_b32 s24, s23, 10")
    a("s_add_u32 s31, s31, s24")
    a(f"s_add_u32 s32, s31, {O_PROB}")
    finish_o(a, "s32")
    a(f"v_mov_b32 v{VKA}, v{LIN}")
    a(f"v_subrev_u32 v{VVA}, s29, v{VVA}")
    a(f"ds_read_b128 {vr(KF,4)}, v{VKA}")
    a("s_waitcnt lgkmcnt(0)")
    mfma(a, SB[0], KF, QA, "0")
    a("s_nop 15")
    s = SB[0]
    a(f"v_max_f32 v{MX}, v{s}, v{s+1}")
    for r in range(1, 8):
        a(f"v_max3_f32 v{MX}, v{s+2*r}, v{s+2*r+1}, v{MX}")
    a.label("La_main")
    halves_max(a, MX, TMP)
    for r in range(16):
        a(f"v_sub_f32 v{CNEG+r}, 0, v{MX}")
        a(f"v_mov_b32 v{OACC+r}, 0")
    a(f"v_mov_b32 v213, v{VKA}")
    a(f"v_mov_b32 v214, v{VVA}")
    a(f"ds_read_b128 {vr(KF,4)}, v{VKA}")
    a(f"ds_read_b128 {vr(KF+4,4)}, v{VKA} offset:2048")
    read_v(a, VF[0], 0)
    a("s_waitcnt lgkmcnt(3)")
    mfma(a, SB[0], KF, QA, CNEG)
    a("s_nop 15")
    U = 8
    a(f"s_mov_b32 s30, {64//U}")
    a.raw(".p2align 6")
    a.label("La_loop")
    for n in range(U):
        cur, nxt = SB[n % 2], SB[(n+1) % 2]
        vb = VF[n % 2]
        attn_step(a, cur, nxt, QA, KF+4*((n+1) % 2), CNEG, vb,
                  lambda: a("s_waitcnt lgkmcnt(2)"),
                  lambda: a(f"ds_read_b128 {vr(KF+4*(n % 2),4)}, v{VKA} offset:{(n+2)*2048}"),
                  lambda: a("s_waitcnt lgkmcnt(2)"),
                  lambda: read_v(a, VF[(n+1) % 2], (n+1)*2048),
                  lambda: a("s_waitcnt lgkmcnt(3)"))
    a(f"v_add_u32 v{VKA}, {U*2048}, v{VKA}")
    a(f"v_add_u32 v{VVA}, {U*2048}, v{VVA}")
    a("s_sub_u32 s30, s30, 1")
    a("s_cmp_lg_u32 s30, 0")
    a("s_cbranch_scc1 La_loop")
    a("s_waitcnt lgkmcnt(0)")
    a("s_nop 15")
    a(f"v_mov_b32 v{VKA}, v213")
    a(f"v_mov_b32 v{VVA}, v214")
    a("s_cmp_eq_u32 s33, 1")
    a("s_cbranch_scc1 La_done")
    a(f"v_mov_b32 v{TMP}, 0x71800000")
    a(f"v_cmp_lt_f32 vcc, v{OACC+8}, v{TMP}")
    a("s_nop 4")
    a("s_cmp_eq_u64 vcc, -1")
    a("s_cbranch_scc1 La_done")
    a("s_mov_b32 s33, 1")
    a(f"v_mov_b32 v{MX}, 0xff800000")
    a("s_mov_b32 s30, 64")
    a.label("La_fb")
    a(f"ds_read_b128 {vr(KF,4)}, v{VKA}")
    a("s_waitcnt lgkmcnt(0)")
    mfma(a, SB[0], KF, QA, "0")
    a("s_nop 15")
    for r in range(8):
        a(f"v_max3_f32 v{MX}, v{s+2*r}, v{s+2*r+1}, v{MX}")
    a(f"v_add_u32 v{VKA}, 2048, v{VKA}")
    a("s_sub_u32 s30, s30, 1")
    a("s_cmp_lg_u32 s30, 0")
    a("s_cbranch_scc1 La_fb")
    a(f"v_mov_b32 v{VKA}, v213")
    a("s_branch La_main")
    a.label("La_done")
    finish_o(a, "s31")
    a.label("Lattn_end")
    a("s_endpgm")

def gen_oproj(a):
    a.raw(".p2align 8")
    a.raw(".type oproj_kernel,@function")
    a.label("oproj_kernel")
    a("s_cmp_ge_u32 s2, 256")
    a("s_cbranch_scc1 Lop_end")
    a("s_load_dwordx2 s[4:5], s[0:1], 16")
    a("s_load_dwordx2 s[26:27], s[0:1], 40")
    a("s_load_dwordx2 s[28:29], s[0:1], 48")
    a("s_load_dwordx2 s[30:31], s[0:1], 64")
    a("s_and_b32 s32, s2, 7")
    a("s_lshr_b32 s33, s2, 3")
    a("s_lshr_b32 s23, s32, 2")
    a("s_and_b32 s34, s32, 3")
    a("s_lshl_b32 s34, s34, 2")
    a("s_and_b32 s35, s33, 3")
    a("s_add_u32 s24, s34, s35")
    a("s_lshr_b32 s25, s33, 2")
    a("v_and_b32 v1, 63, v0")
    a("v_lshrrev_b32 v2, 6, v0")
    a("s_nop 0")
    a("v_readfirstlane_b32 s20, v2")
    a("v_lshrrev_b32 v2, 3, v1")
    a("v_lshlrev_b32 v2, 10, v2")
    a("v_bfe_u32 v3, v1, 4, 1")
    a("v_lshlrev_b32 v3, 2, v3")
    a("v_and_b32 v5, 7, v1")
    a("v_xor_b32 v3, v3, v5")
    a("v_lshlrev_b32 v3, 4, v3")
    a("v_add_u32 v4, v2, v3")
    a("v_lshlrev_b32 v5, 4, v1")
    a("v_lshrrev_b32 v2, 5, v1")
    a("v_lshlrev_b32 v3, 2, v2")
    a("v_bfe_u32 v8, v1, 2, 2")
    a("v_add_u32 v3, v3, v8")
    a("v_lshlrev_b32 v3, 7, v3")
    a("v_bfe_u32 v8, v1, 4, 1")
    a("v_lshlrev_b32 v8, 5, v8")
    a("v_add_u32 v3, v3, v8")
    a("v_and_b32 v8, 3, v1")
    a("v_lshlrev_b32 v8, 3, v8")
    a("v_add_u32 v3, v3, v8")
    a("v_bfe_u32 v8, v1, 3, 1")
    a("v_lshlrev_b32 v8, 6, v8")
    a("v_add_u32 v6, v3, v8")
    a("v_xor_b32 v8, 64, v8")
    a("v_add_u32 v7, v3, v8")
    a("v_and_b32 v8, 31, v1")
    a("v_lshlrev_b32 v8, 11, v8")
    a("v_lshlrev_b32 v9, 4, v2")
    a("v_add_u32 v8, v8, v9")
    ACC = 16
    for r in range(32):
        a(f"v_mov_b32 v{ACC+r}, 0")
    a("s_waitcnt lgkmcnt(0)")
    a("s_cmp_eq_u32 s23, 0")
    a("s_cselect_b32 s4, s4, s26")
    a("s_cselect_b32 s5, s5, s27")
    srd(a, 8, 4, 5, 512*1024)
    a(f"s_mul_i32 s36, s23, {O_PROB}")
    a(f"s_add_u32 s36, s36, {O_BASE}")
    a("s_add_u32 s30, s30, s36")
    a("s_addc_u32 s31, s31, 0")
    srd(a, 12, 30, 31, O_PROB)
    srd(a, 16, 28, 29, 2048*2048)
    a("s_lshl_b32 s40, s20, 13")
    a("s_lshl_b32 s36, s25, 7")
    a("s_add_u32 s40, s40, s36")
    a("s_lshl_b32 s41, s20, 10")
    for u in range(16):
        a(f"s_add_u32 m0, s41, {u*4096}")
        a(f"s_add_u32 s44, s40, {u*32768}")
        a("buffer_load_dwordx4 v4, s[8:11], s44 offen lds")
    OF = 64
    a("s_lshl_b32 s42, s24, 2")
    a("s_add_u32 s42, s42, s20")
    a("s_lshl_b32 s43, s42, 10")
    for H in range(32):
        a(f"s_add_u32 s44, s43, {H*65536}")
        a(f"buffer_load_dwordx4 {vr(OF+4*H,4)}, v5, s[12:15], s44 offen")
    a("s_waitcnt vmcnt(32)")
    a("s_barrier")
    WF = [48, 56]
    def rd(H, buf):
        for ct in range(2):
            a(f"ds_read_b64_tr_b16 {vr(WF[buf]+4*ct,2)}, v{6+ct} offset:{H*2048}")
            a(f"ds_read_b64_tr_b16 {vr(WF[buf]+4*ct+2,2)}, v{6+ct} offset:{H*2048+1024}")
    rd(0, 0)
    for H in range(32):
        buf = H % 2
        if H < 31:
            rd(H+1, buf ^ 1)
            a(f"s_waitcnt vmcnt({31-H}) lgkmcnt(4)")
        else:
            a("s_waitcnt vmcnt(0) lgkmcnt(0)")
        for ct in range(2):
            acc = vr(ACC+16*ct, 16)
            a(f"v_mfma_f32_32x32x16_bf16 {acc}, {vr(WF[buf]+4*ct,4)}, {vr(OF+4*H,4)}, {acc}")
    a("s_nop 15")
    a("s_nop 3")
    a("s_lshl_b32 s44, s42, 16")
    a("s_lshl_b32 s45, s23, 10")
    a("s_add_u32 s44, s44, s45")
    a("s_lshl_b32 s45, s25, 7")
    a("s_add_u32 s44, s44, s45")
    for ct in range(2):
        for pr in range(2):
            b = ACC + 16*ct + 8*pr
            pk = 48 + (ct*2+pr)*4
            for r in range(4):
                a(f"v_cvt_pk_bf16_f32 v{pk+r}, v{b+2*r}, v{b+2*r+1}")
            a("s_nop 1")
            a(f"v_permlane32_swap_b32 v{pk}, v{pk+2}")
            a(f"v_permlane32_swap_b32 v{pk+1}, v{pk+3}")
            a("s_nop 1")
            a(f"buffer_store_dwordx4 {vr(pk,4)}, v8, s[16:19], s44 offen offset:{ct*64+pr*32}")
    a.label("Lop_end")
    a("s_endpgm")

def kd(name, vgpr, sgpr=102):
    acc = (vgpr + 3)//4*4
    return f""".section .rodata,"a"
.p2align 6
.amdhsa_kernel {name}
  .amdhsa_next_free_vgpr {vgpr}
  .amdhsa_next_free_sgpr {sgpr}
  .amdhsa_accum_offset {acc}
  .amdhsa_group_segment_fixed_size 0
  .amdhsa_kernarg_size 72
  .amdhsa_user_sgpr_count 2
  .amdhsa_user_sgpr_kernarg_segment_ptr 1
  .amdhsa_system_sgpr_workgroup_id_x 1
.end_amdhsa_kernel
"""

HEADER = """; Kernarg layout for this problem (72 bytes, ptrs only, base s[0:1]):
; @launch kernel=proj_kernel grid=(256,1,1) block=(256,1,1) lds=163840
; @launch kernel=attn_kernel grid=(256,1,1) block=(512,1,1) lds=163840
; @launch kernel=oproj_kernel grid=(256,1,1) block=(256,1,1) lds=65536
.amdgcn_target "amdgcn-amd-amdhsa--gfx950"
.text
.globl proj_kernel
.globl attn_kernel
.globl oproj_kernel
"""

def main(path):
    a = Asm()
    gen_proj(a)
    gen_attn(a)
    gen_oproj(a)
    txt = HEADER + a.text() + kd("proj_kernel", 160) + kd("attn_kernel", 216) + kd("oproj_kernel", 192)
    open(path, "w").write(txt)

if __name__ == "__main__":
    main(sys.argv[1] if len(sys.argv) > 1 else f"cdna_kernels/{NAME}.s")
```

```python
import sys, os, struct

NAME = "concat_heads__softmax_full_mha__sliding_block__prompt"
STAMPS = os.environ.get("STAMPS", "")

class Asm:
    def __init__(self): self.lines = []
    def __call__(self, s): self.lines.append("  " + s)
    def label(self, s): self.lines.append(s + ":")
    def raw(self, s): self.lines.append(s)
    def text(self): return "\n".join(self.lines) + "\n"

def vr(b, n=1): return f"v{b}" if n == 1 else f"v[{b}:{b+n-1}]"
def f32bits(x): return struct.unpack("<I", struct.pack("<f", x))[0]

HEAD_STRIDE = 196608
PROB_STRIDE = 32 * HEAD_STRIDE
O_BASE = 2 * PROB_STRIDE
O_PROB = 32 * 65536
F_BASE = 16 << 20
WS_SIZE = 17 << 20
QSCALE = 0.25 * 1.4426950408889634
SPIN = 1 << 16

def srd(a, d, lo, hi, nrec):
    a(f"s_mov_b32 s{d}, s{lo}")
    a(f"s_and_b32 s{d+1}, s{hi}, 0xffff")
    a(f"s_mov_b32 s{d+2}, {nrec}")
    a(f"s_mov_b32 s{d+3}, 0x00020000")

class Stamper:
    def __init__(self, a, kname, kidx, wavereg, base=76):
        self.a=a; self.on=(STAMPS==kname or (STAMPS=="fp" and kname=="fa")); self.fp=(STAMPS=="fp"); self.rt=(STAMPS=="rt"); self.n=0; self.base=base; self.wavereg=wavereg; self.kidx=kidx
        if self.rt:
            a("s_memrealtime s[76:77]"); a("s_memtime s[78:79]")
    def p(self, idx):
        if self.fp: self._st(idx)
    def __call__(self, idx=None):
        if not self.on: return
        if self.fp and idx not in (0,): return
        self._st(idx)
    def _st(self, idx=None):
        if idx is not None: self.n = idx
        assert self.base+2*self.n+1 < 102
        self.a(f"s_memtime s[{self.base+2*self.n}:{self.base+2*self.n+1}]")
        self.a("s_waitcnt lgkmcnt(0)")
        self.n+=1
    def flush(self, nw, n=None):
        if not (self.on or self.rt): return
        a=self.a
        n = n or self.n
        if self.rt:
            a("s_waitcnt vmcnt(0)"); a("s_memrealtime s[80:81]"); a("s_memtime s[82:83]"); n=4
        a("s_load_dwordx2 s[4:5], s[0:1], 64")
        a("s_waitcnt vmcnt(0) lgkmcnt(0)")
        a(f"s_add_u32 s4, s4, {(64<<20) + (self.kidx<<20 if self.rt else 0)}")
        a("s_addc_u32 s5, s5, 0")
        srd(a, 8, 4, 5, 1<<20)
        a(f"s_mul_i32 s6, s2, {nw}")
        a(f"s_add_u32 s6, s6, {self.wavereg}")
        a("s_lshl_b32 s6, s6, 6")
        a("v_mov_b32 v1, s6")
        for i in range(n):
            a(f"v_mov_b32 v2, s{self.base+2*i}")
            a(f"buffer_store_dword v2, v1, s[8:11], 0 offen offset:{4*i}")
        a("s_waitcnt vmcnt(0)")

def mfma(a, d, x, y, c):
    cs = c if isinstance(c, str) else vr(c, 16)
    a(f"v_mfma_f32_32x32x16_bf16 {vr(d,16)}, {vr(x,4)}, {vr(y,4)}, {cs}")

WS, XB, WB, XA, WA, DBG = 4, 8, 12, 16, 20, 24
NONCE = 28
S_H, S_QB, S_G, S_TB = 30, 31, 32, 33
SLOT = 32768
BKV = 131072

def gen_fused(a):
    a.raw(".p2align 8")
    a.raw(".type fa_kernel,@function")
    a.label("fa_kernel")
    a("s_cmp_ge_u32 s2, 256")
    a("s_cbranch_scc1 Lfa_end")
    st = Stamper(a, "fa", 0, "s3")
    st(0)
    a("s_load_dwordx2 s[34:35], s[0:1], 24")
    a("s_load_dwordx2 s[36:37], s[0:1], 32")
    a("s_load_dwordx2 s[38:39], s[0:1], 0")
    a("s_load_dwordx2 s[42:43], s[0:1], 8")
    a("s_load_dwordx2 s[44:45], s[0:1], 64")
    a("s_load_dwordx2 s[46:47], s[0:1], 56")
    a("v_and_b32 v1, 63, v0")
    a("v_lshrrev_b32 v2, 6, v0")
    a(f"s_and_b32 s{S_H}, s2, 31")
    a("v_readfirstlane_b32 s3, v2")
    a(f"s_lshr_b32 s{S_QB}, s2, 5")
    a(f"s_lshr_b32 s{S_G}, s2, 5")
    a(f"s_and_b32 s{S_TB}, s2, 31")
    a("s_cmp_lt_u32 s3, 4")
    a("s_cbranch_scc1 Lfa_compute")

    a("s_sub_u32 s48, s3, 4")
    a("v_lshrrev_b32 v2, 3, v1")
    a("v_lshlrev_b32 v2, 10, v2")
    a("v_and_b32 v3, 7, v1")
    a("v_lshrrev_b32 v6, 4, v1")
    a("v_xor_b32 v3, v3, v6")
    a("v_lshlrev_b32 v3, 4, v3")
    a("v_add_u32 v4, v2, v3")
    a("v_xor_b32 v5, 64, v4")
    a("s_movk_i32 s49, 171")
    a("s_movk_i32 s50, 3072")
    for v in range(3):
        a(f"v_add_u32 v2, {64*v}, v1")
        a("v_mul_lo_u32 v3, v2, s49")
        a("v_lshrrev_b32 v3, 12, v3")
        a("v_mul_u32_u24 v9, 24, v3")
        a("v_sub_u32 v9, v2, v9")
        a("v_bfe_u32 v10, v3, 1, 1")
        a("v_lshlrev_b32 v10, 2, v10")
        a("v_xor_b32 v9, v9, v10")
        a("v_mul_lo_u32 v3, v3, s50")
        a("v_lshrrev_b32 v10, 3, v9")
        a("v_lshlrev_b32 v10, 10, v10")
        a("v_add_u32 v3, v3, v10")
        a("v_and_b32 v9, 7, v9")
        a("v_lshlrev_b32 v9, 4, v9")
        a(f"v_add_u32 v{6+v}, v3, v9")
    a(f"s_lshl_b32 s50, s{S_TB}, 6")
    a("s_lshl_b32 s49, s48, 4")
    a("s_add_u32 s50, s50, s49")
    a("s_lshl_b32 s50, s50, 10")
    a("s_lshl_b32 s51, s48, 11")
    a("s_mul_i32 s52, s48, 49152")
    a(f"s_lshl_b32 s49, s{S_G}, 7")
    a("s_add_u32 s52, s52, s49")
    a("s_mul_i32 s53, s48, 6144")
    a("s_add_u32 s53, s53, 8192")
    a("s_waitcnt lgkmcnt(0)")
    srd(a, XB, 34, 35, 2048*1024)
    srd(a, WB, 36, 37, 512*3072)
    def dma_chunk(i):
        slot = i % 4; c = i % 8
        xs, wsr = (XB, WB) if i < 8 else (XA, WA)
        for u in range(2):
            a(f"s_add_u32 m0, s51, {slot*SLOT + u*1024}")
            a(f"s_add_u32 s54, s50, {u*8192 + c*128}")
            a(f"buffer_load_dwordx4 v{4 + u}, s[{xs}:{xs+3}], s54 offen lds")
        for u in range(6):
            up, v = divmod(u, 3)
            a(f"s_add_u32 m0, s53, {slot*SLOT + u*1024}")
            a(f"s_add_u32 s54, s52, {(c*64 + 8*up)*3072}")
            a(f"buffer_load_dwordx4 v{6 + v}, s[{wsr}:{wsr+3}], s54 offen lds")
    dma_chunk(0)
    srd(a, XA, 38, 39, 2048*1024)
    srd(a, WA, 42, 43, 512*3072)
    srd(a, WS, 44, 45, WS_SIZE)
    srd(a, DBG, 46, 47, 256)
    dma_chunk(1)
    dma_chunk(2)
    a("s_cmp_eq_u32 s2, 0")
    a("s_cselect_b32 s49, s48, 1")
    a("s_cmp_eq_u32 s49, 0")
    a("s_cbranch_scc0 Lfa_nononce")
    a("s_memrealtime s[56:57]")
    a("s_waitcnt lgkmcnt(0)")
    a("s_or_b32 s56, s56, 1")
    a("v_mov_b32 v10, s56")
    a("v_mov_b32 v11, 0")
    a(f"buffer_store_dword v10, v11, s[{DBG}:{DBG+3}], 0 offen sc1")
    a.label("Lfa_nononce")
    st(1)
    for i in range(16):
        issued = min(i + 2, 15)
        a(f"s_waitcnt vmcnt({(issued - i) * 8})")
        if i == 7:
            a("s_cmp_eq_u32 s48, 0")
            a("s_cbranch_scc0 Lfa_nn2")
            a(f"s_mov_b32 s55, {SPIN}")
            a.label("Lfa_nspin")
            a("v_readfirstlane_b32 s56, v10")
            a("s_cmp_lg_u32 s56, 0")
            a("s_cbranch_scc1 Lfa_ngot")
            a("s_sleep 1")
            a(f"buffer_load_dword v10, v11, s[{DBG}:{DBG+3}], 0 offen sc1")
            a("s_waitcnt vmcnt(0)")
            a("s_sub_u32 s55, s55, 1")
            a("s_cmp_lg_u32 s55, 0")
            a("s_cbranch_scc1 Lfa_nspin")
            a.label("Lfa_ngot")
            a(f"v_mov_b32 v11, {BKV}")
            a("ds_write_b32 v11, v10")
            a("s_waitcnt lgkmcnt(0)")
            a.label("Lfa_nn2")
        a("s_barrier")
        if i in (0,1,2,4,6,8,10,12,14,15): st.p({0:1,1:2,2:3,4:4,6:5,8:6,10:7,12:8,14:9,15:10}[i])
        if i == 4:
            a("v_mov_b32 v11, 0")
            a("s_cmp_eq_u32 s48, 0")
            a("s_cbranch_scc0 Lfa_nn1")
            a(f"buffer_load_dword v10, v11, s[{DBG}:{DBG+3}], 0 offen sc1")
            a.label("Lfa_nn1")
        if i + 3 <= 15:
            dma_chunk(i + 3)
        if i == 7:
            a(f"v_mov_b32 v12, {BKV}")
            a("ds_read_b32 v12, v12")
            a("s_waitcnt lgkmcnt(0)")
            a(f"v_readfirstlane_b32 s{NONCE}, v12")
    st(2)
    a("v_lshrrev_b32 v2, 2, v1")
    a(f"s_lshl_b32 s49, s{S_QB}, 2")
    a("s_sub_u32 s49, s49, 4")
    a("v_add_u32 v2, s49, v2")
    a("v_max_i32 v2, 0, v2")
    a(f"s_lshr_b32 s49, s{S_H}, 2")
    a("s_lshl_b32 s49, s49, 5")
    a("v_add_u32 v2, s49, v2")
    a("v_lshlrev_b32 v2, 2, v2")
    a("v_and_b32 v3, 3, v1")
    a("v_add_u32 v2, v2, v3")
    a("v_lshlrev_b32 v2, 7, v2")
    a(f"v_add_u32 v2, {F_BASE + 0*131072}, v2")
    a("s_mov_b64 exec, 0xffffffff")
    a(f"s_mov_b32 s55, {SPIN}")
    a.label("Lfa_bspin")
    a(f"buffer_load_dword v10, v2, s[{WS}:{WS+3}], 0 offen sc1")
    a("s_waitcnt vmcnt(0)")
    a(f"v_cmp_eq_u32 vcc, s{NONCE}, v10")
    a("s_nop 4")
    a("s_cmp_eq_u64 vcc, exec")
    a("s_cbranch_scc1 Lfa_bgot")
    a("s_sleep 1")
    a("s_sub_u32 s55, s55, 1")
    a("s_cmp_lg_u32 s55, 0")
    a("s_cbranch_scc1 Lfa_bspin")
    a.label("Lfa_bgot")
    a("s_mov_b64 exec, -1")
    st(3)
    a("v_lshlrev_b32 v4, 4, v1")
    a(f"s_mul_i32 s49, s{S_H}, {HEAD_STRIDE}")
    a(f"s_add_u32 s49, s49, {PROB_STRIDE}")
    a(f"s_lshl_b32 s50, s{S_QB}, 13")
    a("s_lshl_b32 s51, s48, 10")
    for u in range(2):
        a(f"s_add_u32 m0, s51, {u*4096}")
        a("s_add_u32 s54, s49, s50")
        a("s_add_u32 s54, s54, s51")
        a(f"s_add_u32 s54, s54, {u*4096}")
        a(f"buffer_load_dwordx4 v4, s[{WS}:{WS+3}], s54 offen sc1 lds")
    a(f"s_lshl_b32 s50, s{S_QB}, 14")
    a("s_add_u32 s50, s50, s51")
    a("s_sub_u32 s50, s50, 16384")
    for u in range(8):
        a(f"s_add_u32 s54, s50, {u*4096}")
        a("s_max_i32 s54, s54, 0")
        a("s_add_u32 s54, s54, s49")
        a("s_add_u32 s54, s54, 65536")
        a(f"s_add_u32 m0, s51, {BKV + u*4096}")
        a(f"buffer_load_dwordx4 v4, s[{WS}:{WS+3}], s54 offen sc1 lds")
    a("s_waitcnt vmcnt(0)")
    a("s_branch Lfa_attn")

    a.label("Lfa_compute")
    a("s_lshr_b32 s48, s3, 1")
    a("s_and_b32 s49, s3, 1")
    a("v_and_b32 v2, 31, v1")
    a("v_lshrrev_b32 v3, 5, v1")
    a("v_bfe_u32 v9, v2, 1, 3")
    a("v_xor_b32 v9, v9, v3")
    a("s_lshl_b32 s50, s48, 12")
    a("v_lshlrev_b32 v18, 7, v2")
    a("v_add_u32 v18, s50, v18")
    for s in range(4):
        a(f"v_xor_b32 v19, {2*s}, v9")
        a("v_lshlrev_b32 v19, 4, v19")
        a(f"v_add_u32 v{10+s}, v18, v19")
        a(f"v_add_u32 v{14+s}, 0x10000, v{10+s}")
    a("v_lshlrev_b32 v24, 3, v3")
    a("v_bfe_u32 v25, v1, 2, 2")
    a("v_add_u32 v24, v24, v25")
    a("s_movk_i32 s50, 384")
    a("v_mul_lo_u32 v24, v24, s50")
    a("v_bfe_u32 v25, v1, 4, 1")
    a("v_lshlrev_b32 v25, 5, v25")
    a("v_add_u32 v24, v24, v25")
    a("v_and_b32 v25, 3, v1")
    a("v_lshlrev_b32 v25, 3, v25")
    a("v_add_u32 v24, v24, v25")
    a("v_add_u32 v24, 8192, v24")
    a("v_bfe_u32 v25, v1, 3, 1")
    a("s_mul_i32 s50, s49, 3")
    for ct in range(3):
        a(f"s_add_u32 s51, s50, {ct}")
        a("v_xor_b32 v26, s51, v25")
        a("v_lshlrev_b32 v26, 6, v26")
        a(f"v_add_u32 v{18+ct}, v24, v26")
        a(f"v_add_u32 v{21+ct}, 0x10000, v{18+ct}")
    a("v_lshlrev_b32 v24, 4, v1")
    a("v_bfe_u32 v25, v1, 4, 1")
    a(f"s_mov_b32 s50, {HEAD_STRIDE}")
    a("v_mul_lo_u32 v25, v25, s50")
    a("v_lshlrev_b32 v26, 8, v3")
    a("v_add_u32 v25, v25, v26")
    a("v_and_b32 v26, 15, v1")
    a("v_lshlrev_b32 v26, 4, v26")
    a("v_add_u32 v25, v25, v26")
    a(f"s_mul_i32 s52, s{S_G}, {4*HEAD_STRIDE}")
    a(f"s_lshl_b32 s53, s{S_TB}, 1")
    a("s_add_u32 s53, s53, s48")
    a("s_lshl_b32 s54, s53, 11")
    a("s_add_u32 s54, s54, 65536")
    a("s_lshl_b32 s53, s53, 10")
    a(f"s_mov_b32 s55, {f32bits(QSCALE):#x}")
    a("s_lshl_b32 s56, s2, 2")
    a("s_add_u32 s56, s56, s3")
    a("s_lshl_b32 s56, s56, 7")
    a(f"s_add_u32 s56, s56, {F_BASE}")
    a("v_mov_b32 v26, s56")
    a("s_waitcnt lgkmcnt(0)")
    srd(a, WS, 44, 45, WS_SIZE)
    srd(a, DBG, 46, 47, 256)
    ACC = 64
    XF = [28, 32]; WF = [36, 48]; PK = 112
    def read_frags(i, s, buf):
        slot = i % 4
        xr = (10 if slot < 2 else 14) + s
        a(f"ds_read_b128 {vr(XF[buf],4)}, v{xr} offset:{(slot%2)*SLOT}")
        for ct in range(3):
            reg = (18 if slot < 2 else 21) + ct
            off = (slot % 2) * SLOT + s * 6144
            a(f"ds_read_b64_tr_b16 {vr(WF[buf]+4*ct,2)}, v{reg} offset:{off}")
            a(f"ds_read_b64_tr_b16 {vr(WF[buf]+4*ct+2,2)}, v{reg} offset:{off+1536}")
    def publish_flag(phase):
        a("s_waitcnt vmcnt(0)")
        a(f"v_mov_b32 v27, s{NONCE}")
        a("s_mov_b64 exec, 1")
        a(f"buffer_store_dword v27, v26, s[{WS}:{WS+3}], 0 offen offset:0 sc1" if phase == 0 else
          f"buffer_store_dword v27, v26, s[{WS}:{WS+3}], s57 offen sc1")
        a("s_mov_b64 exec, -1")
    def body(types, tag):
        st(1)
        for tile in range(2):
            for c in range(8):
                i = tile*8 + c
                a("s_barrier")
                if i in (0,1,2,4,6,8,10,12,14,15): st.p({0:1,1:2,2:3,4:4,6:5,8:6,10:7,12:8,14:9,15:10}[i])
                if i == 7:
                    a(f"v_mov_b32 v27, {BKV}")
                    a("ds_read_b32 v27, v27")
                    a("s_waitcnt lgkmcnt(0)")
                    a(f"v_readfirstlane_b32 s{NONCE}, v27")
                if i == 11:
                    publish_flag(0)
                read_frags(i, 0, 0)
                for s in range(4):
                    buf = s % 2
                    if s < 3:
                        read_frags(i, s+1, buf ^ 1)
                        a("s_waitcnt lgkmcnt(7)")
                    else:
                        a("s_waitcnt lgkmcnt(0)")
                    for ct in range(3):
                        acc = ACC + ct*16
                        cin = "0" if (c == 0 and s == 0) else acc
                        if types[ct] == 'V':
                            mfma(a, acc, XF[buf], WF[buf]+4*ct, cin)
                        else:
                            mfma(a, acc, WF[buf]+4*ct, XF[buf], cin)
            a("s_nop 15")
            pbase = PROB_STRIDE if tile == 0 else 0
            n = 0
            for ct in range(3):
                acc = ACC + ct*16
                c = tag*3 + ct
                ty = types[ct]
                for e in range(2):
                    pk = PK + (n % 4)*4; n += 1
                    if ty == 'Q':
                        for r in range(8):
                            a(f"v_mul_f32 v{acc+8*e+r}, s55, v{acc+8*e+r}")
                    for r in range(4):
                        a(f"v_cvt_pk_bf16_f32 v{pk+r}, v{acc+8*e+2*r}, v{acc+8*e+2*r+1}")
                    if ty == 'Q':
                        a(f"s_add_u32 s58, s52, {pbase + (2*(c%2)+e)*HEAD_STRIDE}")
                        a("s_add_u32 s58, s58, s53")
                        a(f"buffer_store_dwordx4 {vr(pk,4)}, v24, s[{WS}:{WS+3}], s58 offen sc1")
                    elif ty == 'K':
                        a(f"s_add_u32 s58, s52, {pbase + (2*(c%2)+e)*HEAD_STRIDE}")
                        a("s_add_u32 s58, s58, s54")
                        a(f"buffer_store_dwordx4 {vr(pk,4)}, v24, s[{WS}:{WS+3}], s58 offen sc1")
                    else:
                        a(f"s_add_u32 s58, s52, {pbase + (2*(c%2))*HEAD_STRIDE + 1024 + 512*e}")
                        a("s_add_u32 s58, s58, s54")
                        a(f"buffer_store_dwordx4 {vr(pk,4)}, v25, s[{WS}:{WS+3}], s58 offen sc1")
        st(2); st(3)
        a("s_branch Lfa_attn")
    a("s_cmp_eq_u32 s49, 0")
    a("s_cbranch_scc0 Lfa_wn1")
    body(['Q', 'Q', 'K'], 0)
    a.label("Lfa_wn1")
    body(['K', 'V', 'V'], 1)

    QA = [4, 8]; QB = 12
    OACC = [16, 32]
    CNEG = [48, 64]
    SB = [[80, 96], [112, 128]]
    PP = [144, 152]
    VF = [160, 168]
    KF = 176
    MHI, MLO = 212, 228
    VKA, VVA, TMP, LIN, MX, MX1 = 244, 245, 246, 247, 248, 249
    T0, T1, T2, T3 = 250, 251, 252, 253
    a.label("Lfa_attn")
    a(f"v_lshlrev_b32 v{LIN}, 4, v1")
    a(f"v_lshrrev_b32 v{T0}, 5, v1")
    a(f"v_lshlrev_b32 v{VVA}, 8, v{T0}")
    a(f"v_and_b32 v{T1}, 15, v1")
    a(f"v_lshlrev_b32 v{T1}, 4, v{T1}")
    a(f"v_add_u32 v{VVA}, v{VVA}, v{T1}")
    a(f"v_add_u32 v{VVA}, 1024, v{VVA}")
    a("s_mov_b32 s40, 0x0000ffff")
    a("s_mov_b32 s41, 0x0000ffff")
    a(f"s_lshl_b32 s34, s{S_QB}, 3")
    a("s_add_u32 s34, s34, s3")
    a(f"v_and_b32 v{T1}, 31, v1")
    a(f"v_lshlrev_b32 v{T0}, 2, v{T0}")
    a(f"v_sub_u32 v{T1}, v{T1}, v{T0}")
    a(f"v_mov_b32 v{T2}, 0xff800000")
    a(f"v_mov_b32 v{T3}, 0")
    for r in range(16):
        cr = 8*(r//4) + r % 4
        a(f"v_cmp_le_i32 s[{44+2*r}:{45+2*r}], {cr}, v{T1}")
    a("s_nop 1")
    for r in range(16):
        a(f"v_cndmask_b32 v{MHI+r}, v{T2}, v{T3}, s[{44+2*r}:{45+2*r}]")
        a(f"v_cndmask_b32 v{MLO+r}, v{T3}, v{T2}, s[{44+2*r}:{45+2*r}]")
    a(f"v_and_b32 v{T1}, 27, v1")
    a(f"v_cmp_eq_u32 vcc, 16, v{T1}")
    a(f"v_mov_b32 v{T2}, 0x3f803f80")
    a("s_nop 0")
    for r in range(16):
        a(f"v_cndmask_b32 v{VF[0]+r}, v{T3}, v{T2}, vcc")
    a("s_min_u32 s35, s34, 8")
    a("s_lshl_b32 s36, s3, 11")
    a(f"s_add_u32 s36, s36, {BKV}")
    a(f"v_add_u32 v{VKA}, s36, v{LIN}")
    a(f"v_add_u32 v{VVA}, s36, v{VVA}")
    st(4)
    a("s_barrier")
    st(5)
    a("s_lshl_b32 s37, s3, 10")
    a(f"v_add_u32 v{T0}, s37, v{LIN}")
    a(f"ds_read_b128 {vr(QB,4)}, v{T0}")
    for i in range(8, -1, -1):
        a(f"ds_read_b128 {vr(KF+4*i,4)}, v{VKA} offset:{i*2048}")
    a("s_waitcnt lgkmcnt(9)")
    a("s_barrier")
    SP = [80, 96, 112, 128]
    def qk1(i):
        c = MHI if i == 8 else (MLO if i == 0 else "0")
        mfma(a, SP[(8-i) % 4], KF+4*i, QB, c)
    a("s_waitcnt lgkmcnt(6)")
    qk1(8); qk1(7); qk1(6)
    a("s_waitcnt lgkmcnt(0)")
    a("s_nop 8")
    a("s_mov_b32 s38, s35")
    for i in range(8, -1, -1):
        s = SP[(8-i) % 4]
        if i == 8:
            a(f"v_max_f32 v{MX}, v{s}, v{s+1}")
            for r in range(1, 8):
                a(f"v_max3_f32 v{MX}, v{s+2*r}, v{s+2*r+1}, v{MX}")
        else:
            for r in range(8):
                a(f"v_max3_f32 v{MX}, v{s+2*r}, v{s+2*r+1}, v{MX}")
        if i > 0:
            a("s_cmp_eq_u32 s38, 0")
            a("s_cbranch_scc1 Lb_p1_done")
            a("s_sub_u32 s38, s38, 1")
        if i - 3 >= 0:
            qk1(i - 3)
    a.label("Lb_p1_done")
    def halves_max(m, t):
        a(f"v_mov_b32 v{t}, v{m}")
        a("s_nop 1")
        a(f"v_permlane32_swap_b32 v{m}, v{t}")
        a("s_nop 1")
        a(f"v_max_f32 v{m}, v{m}, v{t}")
    halves_max(MX, TMP)
    st(6)
    a("s_cmp_lt_u32 s3, 4")
    a("s_cbranch_scc0 Lb_nopub")
    a("s_waitcnt vmcnt(0)")
    a("s_lshl_b32 s56, s2, 2")
    a("s_add_u32 s56, s56, s3")
    a("s_lshl_b32 s56, s56, 7")
    a(f"s_add_u32 s56, s56, {F_BASE + 131072}")
    a(f"v_mov_b32 v{T0}, s56")
    a(f"v_mov_b32 v{T1}, s{NONCE}")
    a("s_mov_b64 exec, 1")
    a(f"buffer_store_dword v{T1}, v{T0}, s[{WS}:{WS+3}], 0 offen sc1")
    a("s_mov_b64 exec, -1")
    a.label("Lb_nopub")
    a(f"s_lshr_b32 s56, s{S_H}, 2")
    a("s_lshl_b32 s56, s56, 14")
    a(f"s_add_u32 s56, s56, {F_BASE + 131072}")
    a(f"v_lshlrev_b32 v{T0}, 7, v1")
    a(f"v_add_u32 v{T0}, s56, v{T0}")
    a("s_movk_i32 s57, 8192")
    def poll_issue():
        a(f"buffer_load_dword v{T1}, v{T0}, s[{WS}:{WS+3}], 0 offen sc1")
        a(f"buffer_load_dword v{T2}, v{T0}, s[{WS}:{WS+3}], s57 offen sc1")
    def poll_check(lab_ready):
        a(f"v_cmp_eq_u32 vcc, s{NONCE}, v{T1}")
        a(f"v_cmp_eq_u32 s[58:59], s{NONCE}, v{T2}")
        a("s_nop 4")
        a("s_and_b64 s[58:59], s[58:59], vcc")
        a("s_cmp_eq_u64 s[58:59], -1")
    poll_issue()
    a("s_movk_i32 s60, 100")
    a(f"s_mul_i32 s62, s{S_H}, {HEAD_STRIDE}")
    a("s_lshl_b32 s63, s3, 10")
    for r in range(16):
        a(f"v_sub_f32 v{CNEG[0]+r}, 0, v{MX}")
        a(f"v_sub_f32 v{MHI+r}, v{MHI+r}, v{MX}")
        a(f"v_sub_f32 v{MLO+r}, v{MLO+r}, v{MX}")
        a(f"v_mov_b32 v{OACC[0]+r}, 0")
    uid = [0]
    def start_a_loads():
        a("s_and_b32 s64, s3, 3")
        a("s_lshl_b32 s64, s64, 11")
        a(f"s_lshl_b32 s65, s{S_QB}, 13")
        a("s_add_u32 s64, s64, s65")
        a("s_add_u32 s64, s64, s62")
        a(f"buffer_load_dwordx4 {vr(QA[0],4)}, v{LIN}, s[{WS}:{WS+3}], s64 offen sc1")
        a(f"buffer_load_dwordx4 {vr(QA[1],4)}, v{LIN}, s[{WS}:{WS+3}], s64 offen offset:1024 sc1")
        a("s_mov_b32 s60, 0")
    def dma_group():
        uid[0] += 1
        lab = f"Ldg{uid[0]}"
        a("s_cmp_lt_u32 s60, 4")
        a(f"s_cbranch_scc0 {lab}")
        a("s_lshl_b32 s64, s60, 14")
        a("s_add_u32 s64, s64, s63")
        a("s_add_u32 s65, s64, s62")
        for u in range(4):
            off = (u & 1)*8192 + (u >> 1)*65536
            a(f"s_add_u32 m0, s64, {off}")
            a(f"s_add_u32 s66, s65, {off + 65536}")
            a(f"buffer_load_dwordx4 v{LIN}, s[{WS}:{WS+3}], s66 offen sc1 lds")
        a("s_add_u32 s60, s60, 1")
        a.label(lab)
    def poll_point(reissue):
        uid[0] += 1
        lab = f"Lpp{uid[0]}"; lab2 = f"Lpq{uid[0]}"
        a("s_cmp_eq_u32 s60, 100")
        a(f"s_cbranch_scc0 {lab}")
        a("s_waitcnt vmcnt(0)")
        poll_check(None)
        a(f"s_cbranch_scc0 {lab2}")
        start_a_loads()
        a(f"s_branch {lab}")
        a.label(lab2)
        if reissue: poll_issue()
        a.label(lab)
    def read_v(buf, off):
        a("s_mov_b64 exec, s[40:41]")
        a(f"ds_read_b128 {vr(buf,4)}, v{VVA} offset:{off}")
        a(f"ds_read_b128 {vr(buf+4,4)}, v{VVA} offset:{off+512}")
        a("s_mov_b64 exec, -1")
    def step(cur, p, o, qk, pre_pv0, mid, pre_pv1, vb):
        E = lambda i: a(f"v_exp_f32 v{cur+i}, v{cur+i}")
        C = lambda j: a(f"v_cvt_pk_bf16_f32 v{p+j}, v{cur+2*j}, v{cur+2*j+1}")
        E(0); E(1); E(2); E(3); C(0); E(4); C(1); E(5)
        qk()
        E(6); E(7); C(2); E(8); C(3); E(9); E(10)
        pre_pv0()
        mfma(a, o, vb, p, o)
        E(11); C(4); E(12); C(5); E(13); E(14); E(15); C(6); C(7)
        mid()
        pre_pv1()
        mfma(a, o, vb+4, p+4, o)
    read_v(VF[0], 8*2048)
    mfma(a, SP[0], KF+4*8, QB, MHI)
    a("s_nop 15")
    a("s_mov_b32 s38, s35")
    for n, i in enumerate(range(8, -1, -1)):
        cur, nxt = SP[n % 2], SP[(n+1) % 2]
        vb = VF[n % 2]
        if i > 0:
            cn = MLO if i - 1 == 0 else CNEG[0]
            step(cur, PP[0], OACC[0],
                 lambda: mfma(a, nxt, KF+4*(i-1), QB, cn),
                 lambda: a("s_waitcnt lgkmcnt(1)"),
                 lambda: read_v(VF[(n+1) % 2], (i-1)*2048),
                 lambda: a("s_waitcnt lgkmcnt(2)"), vb)
            if n in (3, 5): poll_point(True)
            if n >= 3: dma_group()
            a("s_cmp_eq_u32 s38, 0")
            a("s_cbranch_scc1 Lb_p2_done")
            a("s_sub_u32 s38, s38, 1")
        else:
            step(cur, PP[0], OACC[0], lambda: None,
                 lambda: a("s_waitcnt lgkmcnt(1)"),
                 lambda: a("s_nop 1"),
                 lambda: a("s_waitcnt lgkmcnt(0)"), vb)
    a.label("Lb_p2_done")
    st(7)
    a("s_cmp_eq_u32 s60, 100")
    a("s_cbranch_scc0 Lb_rdy")
    a(f"s_mov_b32 s67, {SPIN}")
    a.label("Lb_aspin")
    a("s_waitcnt vmcnt(0)")
    poll_check(None)
    a("s_cbranch_scc1 Lb_agot")
    a("s_sleep 1")
    poll_issue()
    a("s_sub_u32 s67, s67, 1")
    a("s_cmp_lg_u32 s67, 0")
    a("s_cbranch_scc1 Lb_aspin")
    a("s_waitcnt vmcnt(0)")
    a.label("Lb_agot")
    start_a_loads()
    a.label("Lb_rdy")
    for _ in range(4): dma_group()
    def finish_o(o, lreg, soff):
        a(f"v_rcp_f32 v{TMP}, v{lreg}")
        a("s_nop 1")
        for r in range(8):
            a(f"v_mul_f32 v{o+r}, v{o+r}, v{TMP}")
        for r in range(4):
            a(f"v_cvt_pk_bf16_f32 v{PP[0]+r}, v{o+2*r}, v{o+2*r+1}")
        a(f"buffer_store_dwordx4 {vr(PP[0],4)}, v{LIN}, s[{WS}:{WS+3}], {soff} offen")
    a("s_waitcnt lgkmcnt(0)")
    a("s_nop 7")
    a(f"s_lshl_b32 s68, s{S_H}, 16")
    a("s_lshl_b32 s69, s34, 10")
    a("s_add_u32 s68, s68, s69")
    a(f"s_add_u32 s68, s68, {O_BASE + O_PROB}")
    finish_o(OACC[0], OACC[0]+8, "s68")
    st(8)
    a("s_lshr_b32 s70, s3, 2")
    a("s_lshl_b32 s71, s70, 16")
    a(f"v_subrev_u32 v{VVA}, s36, v{VVA}")
    a(f"v_add_u32 v{VVA}, s71, v{VVA}")
    a(f"v_add_u32 v{VKA}, s71, v{LIN}")
    a("s_mov_b32 s72, 0")
    a("s_waitcnt vmcnt(13)")
    a("s_barrier")
    st(9)
    a(f"ds_read_b128 {vr(KF,4)}, v{LIN}")
    a("s_waitcnt lgkmcnt(0)")
    mfma(a, SB[0][0], KF, QA[0], "0")
    mfma(a, SB[1][0], KF, QA[1], "0")
    a("s_nop 15")
    for q, m in ((0, MX), (1, MX1)):
        s = SB[q][0]
        a(f"v_max_f32 v{m}, v{s}, v{s+1}")
        for r in range(1, 8):
            a(f"v_max3_f32 v{m}, v{s+2*r}, v{s+2*r+1}, v{m}")
    a.label("La_main")
    halves_max(MX, TMP)
    halves_max(MX1, TMP)
    for q, m in ((0, MX), (1, MX1)):
        for r in range(16):
            a(f"v_sub_f32 v{CNEG[q]+r}, 0, v{m}")
            a(f"v_mov_b32 v{OACC[q]+r}, 0")
    a(f"ds_read_b128 {vr(KF,4)}, v{VKA}")
    a(f"ds_read_b128 {vr(KF+4,4)}, v{VKA} offset:2048")
    read_v(VF[0], 0)
    a("s_waitcnt lgkmcnt(3)")
    mfma(a, SB[0][0], KF, QA[0], CNEG[0])
    mfma(a, SB[1][0], KF, QA[1], CNEG[1])
    a("s_nop 15")
    U = 8
    a("s_mov_b32 s38, 0")
    a.raw(".p2align 6")
    a.label("La_loop")
    for n in range(U):
        vb = VF[n % 2]
        if n == 5:
            a("s_cmp_lg_u32 s72, 0")
            a("s_cbranch_scc1 La_nowait")
            a("s_cmp_eq_u32 s38, 0")
            a("s_cbranch_scc1 La_w0")
            a("s_cmp_eq_u32 s38, 1")
            a("s_cbranch_scc1 La_w1")
            a("s_waitcnt vmcnt(0)")
            a("s_branch La_wd")
            a.label("La_w0")
            a("s_waitcnt vmcnt(9)")
            a("s_branch La_wd")
            a.label("La_w1")
            a("s_waitcnt vmcnt(5)")
            a.label("La_wd")
            a("s_barrier")
            a.label("La_nowait")
        for q in range(2):
            cur, nxt = SB[q][n % 2], SB[q][(n+1) % 2]
            def qk(q=q, nxt=nxt, n=n):
                if q == 0: a("s_waitcnt lgkmcnt(2)")
                mfma(a, nxt, KF+4*((n+1) % 2), QA[q], CNEG[q])
                if q == 1: a(f"ds_read_b128 {vr(KF+4*(n % 2),4)}, v{VKA} offset:{(n+2)*2048}")
            step(cur, PP[q], OACC[q], qk,
                 (lambda: a("s_waitcnt lgkmcnt(1)")) if q == 0 else (lambda: None),
                 (lambda: a("s_nop 0")) if q == 0 else (lambda n=n: read_v(VF[(n+1) % 2], (n+1)*2048)),
                 (lambda: a("s_waitcnt lgkmcnt(0)")) if q == 0 else (lambda: None), vb)
    a(f"v_add_u32 v{VKA}, {U*2048}, v{VKA}")
    a(f"v_add_u32 v{VVA}, {U*2048}, v{VVA}")
    a("s_add_u32 s38, s38, 1")
    a("s_cmp_lg_u32 s38, 4")
    a("s_cbranch_scc1 La_loop")
    st(10)
    a("s_waitcnt lgkmcnt(0)")
    a(f"v_subrev_u32 v{VKA}, {4*U*2048}, v{VKA}")
    a(f"v_subrev_u32 v{VVA}, {4*U*2048}, v{VVA}")
    a("s_nop 7")
    a(f"v_mov_b32 v{TMP}, 0x71800000")
    a(f"v_cmp_lt_f32 vcc, v{OACC[0]+8}, v{TMP}")
    a(f"v_cmp_lt_f32 s[58:59], v{OACC[1]+8}, v{TMP}")
    a("s_nop 4")
    a("s_and_b64 s[58:59], s[58:59], vcc")
    a("s_cmp_eq_u64 s[58:59], -1")
    a("s_cselect_b32 s64, 0, 1")
    a("s_cmp_lg_u32 s72, 0")
    a("s_cselect_b32 s64, 0, s64")
    a("s_lshl_b32 s65, s3, 2")
    a(f"s_add_u32 s65, s65, {BKV}")
    a(f"v_mov_b32 v{T0}, s65")
    a(f"v_mov_b32 v{T1}, s64")
    a(f"ds_write_b32 v{T0}, v{T1}")
    a("s_mul_i32 s65, s3, 2560")
    a(f"s_add_u32 s65, s65, {BKV + 1024}")
    a(f"v_add_u32 v{T0}, s65, v{LIN}")
    a(f"v_lshrrev_b32 v{T1}, 2, v{LIN}")
    a(f"v_add_u32 v{T1}, s65, v{T1}")
    a("s_cmp_eq_u32 s70, 0")
    a("s_cbranch_scc0 La_sendq0")
    for lab, qs in (("La_sendq1", 1), ("La_sendq0", 0)):
        if qs == 0: a.label(lab)
        a(f"ds_write_b128 v{T0}, {vr(OACC[qs],4)}")
        a(f"ds_write_b128 v{T0}, {vr(OACC[qs]+4,4)} offset:1024")
        a(f"ds_write_b32 v{T1}, v{OACC[qs]+8} offset:2048")
        if qs == 1:
            a("s_branch La_sent")
        else:
            for r in range(9):
                a(f"v_mov_b32 v{OACC[0]+r}, v{OACC[1]+r}")
    a.label("La_sent")
    a("s_waitcnt lgkmcnt(0)")
    a("s_barrier")
    a(f"v_and_b32 v{T2}, 7, v1")
    a(f"v_lshlrev_b32 v{T2}, 2, v{T2}")
    a(f"v_add_u32 v{T2}, {BKV}, v{T2}")
    a(f"ds_read_b32 v{T2}, v{T2}")
    a("s_xor_b32 s64, s3, 4")
    a("s_mul_i32 s65, s64, 2560")
    a(f"s_add_u32 s65, s65, {BKV + 1024}")
    a(f"v_add_u32 v{T0}, s65, v{LIN}")
    a(f"v_lshrrev_b32 v{T1}, 2, v{LIN}")
    a(f"v_add_u32 v{T1}, s65, v{T1}")
    a(f"ds_read_b128 {vr(SB[0][0],4)}, v{T0}")
    a(f"ds_read_b128 {vr(SB[0][0]+4,4)}, v{T0} offset:1024")
    a(f"ds_read_b32 v{SB[0][0]+8}, v{T1} offset:2048")
    a("s_waitcnt lgkmcnt(0)")
    a(f"v_cmp_ne_u32 vcc, 0, v{T2}")
    a("s_nop 4")
    a("s_cmp_eq_u64 vcc, 0")
    a("s_cbranch_scc1 La_done")
    a("s_barrier")
    a("s_mov_b32 s72, 1")
    a(f"v_mov_b32 v{MX}, 0xff800000")
    a(f"v_mov_b32 v{MX1}, 0xff800000")
    a(f"v_mov_b32 v{T0}, v{LIN}")
    a("s_mov_b32 s38, 64")
    a.label("La_fb")
    a(f"ds_read_b128 {vr(KF,4)}, v{T0}")
    a("s_waitcnt lgkmcnt(0)")
    mfma(a, SB[0][0], KF, QA[0], "0")
    mfma(a, SB[1][0], KF, QA[1], "0")
    a("s_nop 15")
    for q, m in ((0, MX), (1, MX1)):
        s = SB[q][0]
        for r in range(8):
            a(f"v_max3_f32 v{m}, v{s+2*r}, v{s+2*r+1}, v{m}")
    a(f"v_add_u32 v{T0}, 2048, v{T0}")
    a("s_sub_u32 s38, s38, 1")
    a("s_cmp_lg_u32 s38, 0")
    a("s_cbranch_scc1 La_fb")
    a("s_branch La_main")
    a.label("La_done")
    for r in range(9):
        a(f"v_add_f32 v{OACC[0]+r}, v{OACC[0]+r}, v{SB[0][0]+r}")
    a("s_and_b32 s64, s3, 3")
    a("s_lshl_b32 s64, s64, 1")
    a("s_add_u32 s64, s64, s70")
    a(f"s_lshl_b32 s65, s{S_QB}, 3")
    a("s_add_u32 s64, s64, s65")
    a("s_lshl_b32 s64, s64, 10")
    a(f"s_lshl_b32 s68, s{S_H}, 16")
    a("s_add_u32 s68, s68, s64")
    a(f"s_add_u32 s68, s68, {O_BASE}")
    finish_o(OACC[0], OACC[0]+8, "s68")
    st(11)
    st.p(11)
    st.flush(8, 12)
    a.label("Lfa_end")
    a("s_endpgm")

def gen_oproj(a):
    a.raw(".p2align 8")
    a.raw(".type oproj_kernel,@function")
    a.label("oproj_kernel")
    a("s_cmp_ge_u32 s2, 256")
    a("s_cbranch_scc1 Lop_end")
    st = Stamper(a, "oproj", 1, "s20")
    st()
    a("s_load_dwordx2 s[4:5], s[0:1], 16")
    a("s_load_dwordx2 s[26:27], s[0:1], 40")
    a("s_load_dwordx2 s[28:29], s[0:1], 48")
    a("s_load_dwordx2 s[30:31], s[0:1], 64")
    a("s_and_b32 s32, s2, 7")
    a("s_lshr_b32 s33, s2, 3")
    a("s_lshr_b32 s23, s32, 2")
    a("s_and_b32 s34, s32, 3")
    a("s_lshl_b32 s34, s34, 2")
    a("s_and_b32 s35, s33, 3")
    a("s_add_u32 s24, s34, s35")
    a("s_lshr_b32 s25, s33, 2")
    a("v_and_b32 v1, 63, v0")
    a("v_lshrrev_b32 v2, 6, v0")
    a("s_nop 0")
    a("v_readfirstlane_b32 s20, v2")
    a("v_lshrrev_b32 v2, 3, v1")
    a("v_lshlrev_b32 v2, 10, v2")
    a("v_bfe_u32 v3, v1, 4, 1")
    a("v_lshlrev_b32 v3, 2, v3")
    a("v_and_b32 v5, 7, v1")
    a("v_xor_b32 v3, v3, v5")
    a("v_lshlrev_b32 v3, 4, v3")
    a("v_add_u32 v4, v2, v3")
    a("v_lshlrev_b32 v5, 4, v1")
    a("s_waitcnt lgkmcnt(0)")
    a("s_cmp_eq_u32 s23, 0")
    a("s_cselect_b32 s4, s4, s26")
    a("s_cselect_b32 s5, s5, s27")
    srd(a, 8, 4, 5, 512*1024)
    a(f"s_mul_i32 s36, s23, {O_PROB}")
    a(f"s_add_u32 s36, s36, {O_BASE}")
    a("s_add_u32 s30, s30, s36")
    a("s_addc_u32 s31, s31, 0")
    srd(a, 12, 30, 31, O_PROB)
    a("s_lshl_b32 s40, s20, 13")
    a("s_lshl_b32 s36, s25, 7")
    a("s_add_u32 s40, s40, s36")
    a("s_lshl_b32 s41, s20, 10")
    OF = 64
    a("s_lshl_b32 s42, s24, 2")
    a("s_add_u32 s42, s42, s20")
    a("s_lshl_b32 s43, s42, 10")
    def wdma(u):
        a(f"s_add_u32 m0, s41, {u*4096}")
        a(f"s_add_u32 s44, s40, {u*32768}")
        a("buffer_load_dwordx4 v4, s[8:11], s44 offen lds")
    def oload(H):
        a(f"s_add_u32 s44, s43, {H*65536}")
        a(f"buffer_load_dwordx4 {vr(OF+4*H,4)}, v5, s[12:15], s44 offen")
    for q in range(4):
        for u in range(4): wdma(4*q+u)
        for H in range(8): oload(8*q+H)
    srd(a, 16, 28, 29, 2048*2048)
    a("v_lshrrev_b32 v2, 5, v1")
    a("v_lshlrev_b32 v3, 2, v2")
    a("v_bfe_u32 v8, v1, 2, 2")
    a("v_add_u32 v3, v3, v8")
    a("v_lshlrev_b32 v3, 7, v3")
    a("v_bfe_u32 v8, v1, 4, 1")
    a("v_lshlrev_b32 v8, 5, v8")
    a("v_add_u32 v3, v3, v8")
    a("v_and_b32 v8, 3, v1")
    a("v_lshlrev_b32 v8, 3, v8")
    a("v_add_u32 v3, v3, v8")
    a("v_bfe_u32 v8, v1, 3, 1")
    a("v_lshlrev_b32 v8, 6, v8")
    a("v_add_u32 v6, v3, v8")
    a("v_xor_b32 v8, 64, v8")
    a("v_add_u32 v7, v3, v8")
    a("v_and_b32 v8, 31, v1")
    a("v_lshlrev_b32 v8, 11, v8")
    a("v_lshlrev_b32 v9, 4, v2")
    a("v_add_u32 v8, v8, v9")
    ACC = 16
    st()
    WF = [48, 56]
    def rd(H, buf):
        for ct in range(2):
            a(f"ds_read_b64_tr_b16 {vr(WF[buf]+4*ct,2)}, v{6+ct} offset:{H*2048}")
            a(f"ds_read_b64_tr_b16 {vr(WF[buf]+4*ct+2,2)}, v{6+ct} offset:{H*2048+1024}")
    for q in range(4):
        a(f"s_waitcnt vmcnt({8 + 12*(3-q)})")
        a("s_barrier")
        rd(8*q, 0)
        for hh in range(8):
            H = 8*q + hh
            buf = hh % 2
            if hh < 7:
                rd(H+1, buf ^ 1)
                a(f"s_waitcnt vmcnt({7-hh + 12*(3-q)}) lgkmcnt(4)")
            else:
                a(f"s_waitcnt vmcnt({12*(3-q)}) lgkmcnt(0)")
            for ct in range(2):
                acc = ACC+16*ct
                mfma(a, acc, WF[buf]+4*ct, OF+4*H, "0" if H == 0 else acc)
    a("s_nop 15")
    st()
    a("s_lshl_b32 s44, s42, 16")
    a("s_lshl_b32 s45, s23, 10")
    a("s_add_u32 s44, s44, s45")
    a("s_lshl_b32 s45, s25, 7")
    a("s_add_u32 s44, s44, s45")
    for ct in range(2):
        for pr in range(2):
            b = ACC + 16*ct + 8*pr
            pk = 48 + (ct*2+pr)*4
            for r in range(4):
                a(f"v_cvt_pk_bf16_f32 v{pk+r}, v{b+2*r}, v{b+2*r+1}")
            a("s_nop 1")
            a(f"v_permlane32_swap_b32 v{pk}, v{pk+2}")
            a(f"v_permlane32_swap_b32 v{pk+1}, v{pk+3}")
            a("s_nop 1")
            a(f"buffer_store_dwordx4 {vr(pk,4)}, v8, s[16:19], s44 offen offset:{ct*64+pr*32}")
    st()
    st.flush(4)
    a.label("Lop_end")
    a("s_endpgm")

def kd(name, vgpr, sgpr=102):
    acc = (vgpr + 3)//4*4
    return f""".section .rodata,"a"
.p2align 6
.amdhsa_kernel {name}
  .amdhsa_next_free_vgpr {vgpr}
  .amdhsa_next_free_sgpr {sgpr}
  .amdhsa_accum_offset {acc}
  .amdhsa_group_segment_fixed_size 0
  .amdhsa_kernarg_size 72
  .amdhsa_user_sgpr_count 2
  .amdhsa_user_sgpr_kernarg_segment_ptr 1
  .amdhsa_system_sgpr_workgroup_id_x 1
.end_amdhsa_kernel
"""

HEADER = """; Kernarg layout for this problem (72 bytes, ptrs only, base s[0:1]):
; @launch kernel=fa_kernel grid=(256,1,1) block=(512,1,1) lds=163840
; @launch kernel=oproj_kernel grid=(256,1,1) block=(256,1,1) lds=65536
.amdgcn_target "amdgcn-amd-amdhsa--gfx950"
.text
.globl fa_kernel
.globl oproj_kernel
"""

def main(path):
    a = Asm()
    gen_fused(a)
    gen_oproj(a)
    txt = HEADER + a.text() + kd("fa_kernel", 256) + kd("oproj_kernel", 192)
    open(path, "w").write(txt)

if __name__ == "__main__":
    main(sys.argv[1] if len(sys.argv) > 1 else f"cdna_kernels/{NAME}.s")
```

```python
import sys, os, struct

NAME = "concat_heads__softmax_full_mha__sliding_block__prompt"
STAMPS = os.environ.get("STAMPS", "")

class Asm:
    def __init__(self): self.lines = []
    def __call__(self, s): self.lines.append("  " + s)
    def label(self, s): self.lines.append(s + ":")
    def raw(self, s): self.lines.append(s)
    def text(self): return "\n".join(self.lines) + "\n"

def vr(b, n=1): return f"v{b}" if n == 1 else f"v[{b}:{b+n-1}]"
def f32bits(x): return struct.unpack("<I", struct.pack("<f", x))[0]

HEAD_STRIDE = 196608
PROB_STRIDE = 32 * HEAD_STRIDE
O_BASE = 2 * PROB_STRIDE
O_PROB = 32 * 65536
F_BASE = 16 << 20
WS_SIZE = 17 << 20
QSCALE = 0.25 * 1.4426950408889634
SPIN = 1 << 16

def srd(a, d, lo, hi, nrec):
    a(f"s_mov_b32 s{d}, s{lo}")
    a(f"s_and_b32 s{d+1}, s{hi}, 0xffff")
    a(f"s_mov_b32 s{d+2}, {nrec}")
    a(f"s_mov_b32 s{d+3}, 0x00020000")

class Stamper:
    def __init__(self, a, kname, kidx, wavereg, base=76):
        self.a=a; self.on=(STAMPS==kname or (STAMPS in ("fp","fs") and kname=="fa")); self.fp=(STAMPS in ("fp","fs")); self.fs=(STAMPS=="fs"); self.rt=(STAMPS=="rt"); self.n=0; self.base=base; self.wavereg=wavereg; self.kidx=kidx
        if self.rt:
            a("s_memrealtime s[76:77]"); a("s_memtime s[78:79]")
    def p(self, idx):
        if self.fp and (not self.fs or idx==11): self._st(idx)
    def f(self, idx):
        if self.fs: self._st(idx)
    def __call__(self, idx=None):
        if not self.on: return
        if self.fp and idx not in (0,): return
        self._st(idx)
    def _st(self, idx=None):
        if idx is not None: self.n = idx
        assert self.base+2*self.n+1 < 102
        self.a(f"s_memtime s[{self.base+2*self.n}:{self.base+2*self.n+1}]")
        self.a("s_waitcnt lgkmcnt(0)")
        self.n+=1
    def flush(self, nw, n=None):
        if not (self.on or self.rt): return
        a=self.a
        n = n or self.n
        if self.rt:
            a("s_waitcnt vmcnt(0)"); a("s_memrealtime s[80:81]"); a("s_memtime s[82:83]"); n=4
        a("s_load_dwordx2 s[4:5], s[0:1], 64")
        a("s_waitcnt vmcnt(0) lgkmcnt(0)")
        a(f"s_add_u32 s4, s4, {(64<<20) + (self.kidx<<20 if self.rt else 0)}")
        a("s_addc_u32 s5, s5, 0")
        srd(a, 8, 4, 5, 1<<20)
        a(f"s_mul_i32 s6, s2, {nw}")
        a(f"s_add_u32 s6, s6, {self.wavereg}")
        a("s_lshl_b32 s6, s6, 6")
        a("v_mov_b32 v1, s6")
        for i in range(n):
            a(f"v_mov_b32 v2, s{self.base+2*i}")
            a(f"buffer_store_dword v2, v1, s[8:11], 0 offen offset:{4*i}")
        a("s_waitcnt vmcnt(0)")

def mfma(a, d, x, y, c):
    cs = c if isinstance(c, str) else vr(c, 16)
    a(f"v_mfma_f32_32x32x16_bf16 {vr(d,16)}, {vr(x,4)}, {vr(y,4)}, {cs}")

WS, XB, WB, XA, WA, DBG = 4, 8, 12, 16, 20, 24
NONCE = 28
S_H, S_QB, S_G, S_TB = 30, 31, 32, 33
SLOT = 32768
BKV = 131072

def gen_fused(a):
    a.raw(".p2align 8")
    a.raw(".type fa_kernel,@function")
    a.label("fa_kernel")
    a("s_cmp_ge_u32 s2, 256")
    a("s_cbranch_scc1 Lfa_end")
    st = Stamper(a, "fa", 0, "s3")
    st(0)
    a("s_load_dwordx4 s[36:39], s[0:1], 0")
    a("s_load_dwordx2 s[34:35], s[0:1], 24")
    a("s_load_dwordx2 s[42:43], s[0:1], 32")
    a("s_load_dwordx4 s[44:47], s[0:1], 56")
    a("v_and_b32 v1, 63, v0")
    a("v_lshrrev_b32 v2, 6, v0")
    a(f"s_and_b32 s{S_H}, s2, 31")
    a("v_readfirstlane_b32 s3, v2")
    a(f"s_lshr_b32 s{S_QB}, s2, 5")
    a("s_lshr_b32 s48, s2, 3")
    a("s_and_b32 s49, s2, 1")
    a("s_lshl_b32 s49, s49, 2")
    a("s_and_b32 s50, s48, 3")
    a(f"s_add_u32 s{S_G}, s49, s50")
    a("s_bfe_u32 s49, s2, 0x20001")
    a("s_lshl_b32 s49, s49, 3")
    a("s_lshr_b32 s50, s48, 2")
    a(f"s_add_u32 s{S_TB}, s49, s50")
    a(f"s_and_b32 s29, s{S_G}, 3")
    a("s_lshl_b32 s29, s29, 1")
    a(f"s_add_u32 s29, s29, s{S_TB}")
    ROT = os.environ.get("ROT", "full")
    if ROT == "full":
        a("s_and_b32 s29, s29, 7")
    elif ROT == "none":
        a("s_mov_b32 s29, 0")
    elif ROT == "two":
        a(f"s_and_b32 s29, s{S_TB}, 1")
        a("s_lshl_b32 s29, s29, 2")
    elif ROT == "four":
        a(f"s_and_b32 s29, s{S_TB}, 3")
        a("s_lshl_b32 s29, s29, 1")
    elif ROT == "tb":
        a(f"s_and_b32 s29, s{S_TB}, 7")
    a("s_cmp_lt_u32 s3, 4")
    a("s_cbranch_scc1 Lfa_compute")

    a("s_sub_u32 s48, s3, 4")
    a("v_lshrrev_b32 v2, 3, v1")
    a("v_lshlrev_b32 v2, 10, v2")
    a("v_and_b32 v3, 7, v1")
    a("v_lshrrev_b32 v6, 4, v1")
    a("v_xor_b32 v3, v3, v6")
    a("v_lshlrev_b32 v3, 4, v3")
    a("v_add_u32 v4, v2, v3")
    a("v_xor_b32 v5, 64, v4")
    a(f"s_lshl_b32 s50, s{S_TB}, 6")
    a("s_lshl_b32 s49, s48, 4")
    a("s_add_u32 s50, s50, s49")
    a("s_lshl_b32 s50, s50, 10")
    a("s_lshl_b32 s51, s48, 11")
    a("s_mul_i32 s52, s48, 49152")
    a(f"s_lshl_b32 s49, s{S_G}, 7")
    a("s_add_u32 s52, s52, s49")
    a("s_mul_i32 s53, s48, 6144")
    a("s_add_u32 s53, s53, 8192")
    a("s_movk_i32 s49, 171")
    a("s_movk_i32 s55, 3072")
    for v in range(3):
        a(f"v_add_u32 v2, {64*v}, v1")
        a("v_mul_lo_u32 v3, v2, s49")
        a("v_lshrrev_b32 v3, 12, v3")
        a("v_mul_u32_u24 v9, 24, v3")
        a("v_sub_u32 v9, v2, v9")
        a("v_bfe_u32 v10, v3, 1, 1")
        a("v_lshlrev_b32 v10, 2, v10")
        a("v_xor_b32 v9, v9, v10")
        a("v_mul_lo_u32 v3, v3, s55")
        a("v_lshrrev_b32 v10, 3, v9")
        a("v_lshlrev_b32 v10, 10, v10")
        a("v_add_u32 v3, v3, v10")
        a("v_and_b32 v9, 7, v9")
        a("v_lshlrev_b32 v9, 4, v9")
        a(f"v_add_u32 v{6+v}, v3, v9")
    st.f(1)
    a("s_waitcnt lgkmcnt(0)")
    st.f(2)
    srd(a, XA, 36, 37, 2048*1024)
    srd(a, WA, 38, 39, 512*3072)
    def dma_chunk(i):
        slot = i % 4; c = i % 8
        xs, wsr = (XA, WA) if i < 8 else (XB, WB)
        a(f"s_add_u32 s58, s29, {c}")
        a("s_and_b32 s58, s58, 7")
        a("s_lshl_b32 s59, s58, 7")
        a("s_add_u32 s59, s59, s50")
        a(f"s_mul_i32 s58, s58, {64*3072}")
        a("s_add_u32 s58, s58, s52")
        for u in range(2):
            a(f"s_add_u32 m0, s51, {slot*SLOT + u*1024}")
            a(f"s_add_u32 s54, s59, {u*8192}")
            a(f"buffer_load_dwordx4 v{4 + u}, s[{xs}:{xs+3}], s54 offen lds")
        for u in range(6):
            up, v = divmod(u, 3)
            a(f"s_add_u32 m0, s53, {slot*SLOT + u*1024}")
            a(f"s_add_u32 s54, s58, {8*up*3072}")
            a(f"buffer_load_dwordx4 v{6 + v}, s[{wsr}:{wsr+3}], s54 offen lds")
    dma_chunk(0)
    st.f(3)
    dma_chunk(1)
    st.f(4)
    st.f(5)
    srd(a, XB, 34, 35, 2048*1024)
    srd(a, WB, 42, 43, 512*3072)
    srd(a, WS, 46, 47, WS_SIZE)
    srd(a, DBG, 44, 45, 256)
    a("s_cmp_eq_u32 s2, 0")
    a("s_cselect_b32 s49, s48, 1")
    a("s_cmp_eq_u32 s49, 0")
    a("s_cbranch_scc0 Lfa_nononce")
    a("s_memrealtime s[56:57]")
    a("s_waitcnt lgkmcnt(0)")
    a("s_or_b32 s56, s56, 1")
    a("v_mov_b32 v10, s56")
    a("v_mov_b32 v11, 0")
    a(f"buffer_store_dword v10, v11, s[{DBG}:{DBG+3}], 0 offen sc1")
    a.label("Lfa_nononce")
    a(f"s_lshr_b32 s56, s{S_H}, 2")
    a("s_lshl_b32 s56, s56, 14")
    a(f"s_add_u32 s56, s56, {F_BASE}")
    a("v_lshlrev_b32 v12, 7, v1")
    a("v_add_u32 v12, s56, v12")
    a("s_movk_i32 s57, 8192")
    a("v_lshlrev_b32 v15, 4, v1")
    a("s_movk_i32 s60, 100")
    st(1)
    def poll_issue():
        a(f"buffer_load_dword v13, v12, s[{WS}:{WS+3}], 0 offen sc1")
        a(f"buffer_load_dword v14, v12, s[{WS}:{WS+3}], s57 offen sc1")
    def poll_check():
        a(f"v_cmp_eq_u32 vcc, s{NONCE}, v13")
        a(f"v_cmp_eq_u32 s[62:63], s{NONCE}, v14")
        a("s_nop 4")
        a("s_and_b64 s[62:63], s[62:63], vcc")
        a("s_cmp_eq_u64 s[62:63], -1")
    def a_loads(with_c1):
        a(f"s_mul_i32 s64, s{S_H}, {HEAD_STRIDE}")
        a("s_lshl_b32 s65, s48, 10")
        a("s_add_u32 s64, s64, s65")
        for u in range(8):
            a(f"s_add_u32 m0, s65, {BKV + (u&3)*4096 + (u>>2)*16384}")
            a(f"s_add_u32 s66, s64, {65536 + (u&3)*4096 + (u>>2)*65536}")
            a(f"buffer_load_dwordx4 v15, s[{WS}:{WS+3}], s66 offen sc1 lds")
        a(f"s_lshl_b32 s67, s{S_QB}, 13")
        a("s_add_u32 s67, s67, s64")
        for u in range(2):
            a(f"s_add_u32 m0, s65, {32768 + u*4096}")
            a(f"s_add_u32 s66, s67, {u*4096}")
            a(f"buffer_load_dwordx4 v15, s[{WS}:{WS+3}], s66 offen sc1 lds")
        for u in range(8):
            a(f"s_add_u32 m0, s65, {(u&3)*4096 + (u>>2)*16384}")
            a(f"s_add_u32 s66, s64, {65536 + 16384 + (u&3)*4096 + (u>>2)*65536}")
            a(f"buffer_load_dwordx4 v15, s[{WS}:{WS+3}], s66 offen sc1 lds")
        a("s_mov_b32 s60, 0")
    for i in range(16):
        if i in (5, 6):
            a("s_waitcnt vmcnt(9)")
        elif i <= 12:
            a("s_waitcnt vmcnt(8)")
        elif i == 13:
            a("s_waitcnt vmcnt(8)")
        elif i == 14:
            a("s_waitcnt vmcnt(10)")
        else:
            a("s_waitcnt vmcnt(2)")
        if i == 7:
            a("s_cmp_eq_u32 s48, 0")
            a("s_cbranch_scc0 Lfa_nn2")
            a(f"s_mov_b32 s55, {SPIN}")
            a.label("Lfa_nspin")
            a("v_readfirstlane_b32 s56, v10")
            a("s_cmp_lg_u32 s56, 0")
            a("s_cbranch_scc1 Lfa_ngot")
            a("s_sleep 1")
            a(f"buffer_load_dword v10, v11, s[{DBG}:{DBG+3}], 0 offen sc1")
            a("s_waitcnt vmcnt(0)")
            a("s_sub_u32 s55, s55, 1")
            a("s_cmp_lg_u32 s55, 0")
            a("s_cbranch_scc1 Lfa_nspin")
            a.label("Lfa_ngot")
            a(f"v_mov_b32 v11, {BKV}")
            a("ds_write_b32 v11, v10")
            a("s_waitcnt lgkmcnt(0)")
            a.label("Lfa_nn2")
        if i in (0,1,2): st.f(6+i)
        a("s_barrier")
        if i in (0,1): st.f(9+i)
        if i in (0,1,2,4,6,8,10,12,14,15): st.p({0:1,1:2,2:3,4:4,6:5,8:6,10:7,12:8,14:9,15:10}[i])
        if i + 2 <= 15:
            dma_chunk(i + 2)
        if i == 4:
            a("v_mov_b32 v11, 0")
            a(f"buffer_load_dword v10, v11, s[{DBG}:{DBG+3}], 0 offen sc1")
        if i == 13:
            poll_issue()
        if i == 7:
            a(f"v_mov_b32 v16, {BKV}")
            a("ds_read_b32 v16, v16")
            a("s_waitcnt lgkmcnt(0)")
            a(f"v_readfirstlane_b32 s{NONCE}, v16")
    st(2)
    a("s_cmp_eq_u32 s60, 100")
    a("s_cbranch_scc0 Lfa_ardy")
    a(f"s_mov_b32 s55, {SPIN}")
    a.label("Lfa_aspin")
    a("s_waitcnt vmcnt(0)")
    poll_check()
    a("s_cbranch_scc1 Lfa_agot")
    a("s_sleep 1")
    poll_issue()
    a("s_sub_u32 s55, s55, 1")
    a("s_cmp_lg_u32 s55, 0")
    a("s_cbranch_scc1 Lfa_aspin")
    a("s_waitcnt vmcnt(0)")
    a.label("Lfa_agot")
    a_loads(True)
    a.label("Lfa_ardy")
    st(3)
    a("s_branch Lfa_attn")

    a.label("Lfa_compute")
    if os.environ.get("LTOUCH", "0") == "1":
        a("v_lshlrev_b32 v133, 7, v1")
        a("s_lshl_b32 s62, s2, 13")
        a("s_mul_i32 s63, s2, 6144")
        a("s_bitcmp1_b32 s3, 0")
        a("s_cselect_b32 s62, s63, s62")
        a("s_waitcnt lgkmcnt(0)")
        a("s_cmp_lt_u32 s3, 2")
        a("s_cselect_b32 s64, s36, s34")
        a("s_cselect_b32 s65, s37, s35")
        a("s_cselect_b32 s66, s38, s42")
        a("s_cselect_b32 s67, s39, s43")
        a("s_bitcmp1_b32 s3, 0")
        a("s_cselect_b32 s64, s66, s64")
        a("s_cselect_b32 s65, s67, s65")
        a(f"s_mov_b32 s70, {2048*1024}")
        a(f"s_cselect_b32 s70, {512*3072}, s70")
        a("s_mov_b32 s68, s64")
        a("s_and_b32 s69, s65, 0xffff")
        a("s_mov_b32 s71, 0x00020000")
        a("buffer_load_dword v134, v133, s[68:71], s62 offen")
        if os.environ.get("TLBW", "1") == "1":
            srd(a, WS, 46, 47, WS_SIZE)
            srd(a, DBG, 44, 45, 256)
            a("v_lshlrev_b32 v135, 20, v1")
            a("v_mov_b32 v136, 0")
            a(f"buffer_load_dword v137, v135, s[{WS}:{WS+3}], 0 offen")
            a(f"buffer_load_dword v138, v136, s[{DBG}:{DBG+3}], 0 offen")
    a("s_lshr_b32 s48, s3, 1")
    a("s_and_b32 s49, s3, 1")
    a("v_and_b32 v2, 31, v1")
    a("v_lshrrev_b32 v3, 5, v1")
    a("v_bfe_u32 v9, v2, 1, 3")
    a("v_xor_b32 v9, v9, v3")
    a("s_lshl_b32 s50, s48, 12")
    a("v_lshlrev_b32 v18, 7, v2")
    a("v_add_u32 v18, s50, v18")
    for s in range(4):
        a(f"v_xor_b32 v19, {2*s}, v9")
        a("v_lshlrev_b32 v19, 4, v19")
        a(f"v_add_u32 v{10+s}, v18, v19")
        a(f"v_add_u32 v{14+s}, 0x10000, v{10+s}")
    a("v_lshlrev_b32 v24, 3, v3")
    a("v_bfe_u32 v25, v1, 2, 2")
    a("v_add_u32 v24, v24, v25")
    a("s_movk_i32 s50, 384")
    a("v_mul_lo_u32 v24, v24, s50")
    a("v_bfe_u32 v25, v1, 4, 1")
    a("v_lshlrev_b32 v25, 5, v25")
    a("v_add_u32 v24, v24, v25")
    a("v_and_b32 v25, 3, v1")
    a("v_lshlrev_b32 v25, 3, v25")
    a("v_add_u32 v24, v24, v25")
    a("v_add_u32 v24, 8192, v24")
    a("v_bfe_u32 v25, v1, 3, 1")
    a("s_mul_i32 s50, s49, 3")
    for ct in range(3):
        a(f"s_add_u32 s51, s50, {ct}")
        a("v_xor_b32 v26, s51, v25")
        a("v_lshlrev_b32 v26, 6, v26")
        a(f"v_add_u32 v{18+ct}, v24, v26")
        a(f"v_add_u32 v{21+ct}, 0x10000, v{18+ct}")
    a("v_lshlrev_b32 v24, 4, v1")
    a("v_bfe_u32 v25, v1, 4, 1")
    a(f"s_mov_b32 s50, {HEAD_STRIDE}")
    a("v_mul_lo_u32 v25, v25, s50")
    a("v_lshlrev_b32 v26, 8, v3")
    a("v_add_u32 v25, v25, v26")
    a("v_and_b32 v26, 15, v1")
    a("v_lshlrev_b32 v26, 4, v26")
    a("v_add_u32 v25, v25, v26")
    a(f"s_mul_i32 s52, s{S_G}, {4*HEAD_STRIDE}")
    a(f"s_lshl_b32 s53, s{S_TB}, 1")
    a("s_add_u32 s53, s53, s48")
    a("s_lshl_b32 s54, s53, 11")
    a("s_add_u32 s54, s54, 65536")
    a("s_lshl_b32 s53, s53, 10")
    a(f"s_mov_b32 s55, {f32bits(QSCALE):#x}")
    a(f"s_lshl_b32 s56, s{S_G}, 5")
    a(f"s_add_u32 s56, s56, s{S_TB}")
    a("s_lshl_b32 s56, s56, 2")
    a("s_add_u32 s56, s56, s3")
    a("s_lshl_b32 s56, s56, 7")
    a(f"s_add_u32 s56, s56, {F_BASE}")
    a("v_mov_b32 v26, s56")
    ACC = 64
    for r in range(48): a(f"v_mov_b32 v{ACC+r}, 0")
    a("s_waitcnt lgkmcnt(0)")
    srd(a, WS, 46, 47, WS_SIZE)
    srd(a, XB, 34, 35, 2048*1024)
    srd(a, WB, 42, 43, 512*3072)
    a("v_mul_u32_u24 v128, 3072, v1")
    a("v_lshrrev_b32 v129, 3, v1")
    a("v_lshlrev_b32 v129, 10, v129")
    a("v_and_b32 v130, 7, v1")
    a("v_lshlrev_b32 v130, 7, v130")
    a("v_add_u32 v129, v129, v130")
    a(f"s_and_b32 s59, s{S_TB}, 7")
    a(f"s_mul_i32 s59, s59, {64*3072}")
    a("s_lshl_b32 s60, s3, 10")
    a("s_add_u32 s59, s59, s60")
    a(f"s_lshl_b32 s60, s{S_G}, 7")
    a("s_add_u32 s59, s59, s60")
    a(f"s_lshl_b32 s60, s{S_TB}, 16")
    a(f"s_and_b32 s61, s{S_G}, 3")
    a("s_lshl_b32 s61, s61, 14")
    a("s_add_u32 s60, s60, s61")
    a("s_add_u32 s61, s60, 8192")
    XF = [28, 32]; WF = [36, 48]; PK = 112
    def read_frags(slot, s, buf):
        xr = (10 if slot < 2 else 14) + s
        a(f"ds_read_b128 {vr(XF[buf],4)}, v{xr} offset:{(slot%2)*SLOT}")
        for ct in range(3):
            reg = (18 if slot < 2 else 21) + ct
            off = (slot % 2) * SLOT + s * 6144
            a(f"ds_read_b64_tr_b16 {vr(WF[buf]+4*ct,2)}, v{reg} offset:{off}")
            a(f"ds_read_b64_tr_b16 {vr(WF[buf]+4*ct+2,2)}, v{reg} offset:{off+1536}")
    def body(types, tag):
        L = f"Lpj{tag}"
        st(1)
        a("s_mov_b32 s57, 0")
        a("s_add_u32 s62, s3, 1")
        a.label(L + "_loop")
        for slot in range(4):
            a("s_barrier")
            if os.environ.get("BTOUCH", "1") == "1":
                a(f"s_cmp_eq_u32 s62, {slot}")
                a(f"s_cbranch_scc0 {L}_nt{slot}")
                if slot == 0:
                    a(f"buffer_load_dword v131, v129, s[{XB}:{XB+3}], s60 offen")
                    a("s_mov_b32 s62, 1")
                elif slot == 1:
                    a("s_cmp_eq_u32 s3, 3")
                    a(f"s_cbranch_scc1 {L}_tx")
                    a(f"buffer_load_dword v131, v128, s[{WB}:{WB+3}], s59 offen")
                    a(f"s_branch {L}_nt1")
                    a.label(L + "_tx")
                    a(f"buffer_load_dword v132, v129, s[{XB}:{XB+3}], s61 offen")
                else:
                    a(f"buffer_load_dword v131, v128, s[{WB}:{WB+3}], s59 offen")
                a.label(f"{L}_nt{slot}")
            if slot == 3:
                a("s_cmp_eq_u32 s57, 1")
                a(f"s_cbranch_scc0 {L}_nn")
                a(f"v_mov_b32 v27, {BKV}")
                a("ds_read_b32 v27, v27")
                a("s_waitcnt lgkmcnt(0)")
                a(f"v_readfirstlane_b32 s{NONCE}, v27")
                a.label(L + "_nn")
            if slot == 2:
                a("s_cmp_eq_u32 s57, 2")
                a(f"s_cbranch_scc0 {L}_np")
                a("s_waitcnt vmcnt(0)")
                a(f"v_mov_b32 v27, s{NONCE}")
                a("s_mov_b64 exec, 1")
                a(f"buffer_store_dword v27, v26, s[{WS}:{WS+3}], 0 offen sc1")
                a("s_mov_b64 exec, -1")
                a.label(L + "_np")
            read_frags(slot, 0, 0)
            for s in range(4):
                buf = s % 2
                if s < 3:
                    read_frags(slot, s+1, buf ^ 1)
                    a("s_waitcnt lgkmcnt(7)")
                else:
                    a("s_waitcnt lgkmcnt(0)")
                for ct in range(3):
                    acc = ACC + ct*16
                    if types[ct] == 'V':
                        mfma(a, acc, XF[buf], WF[buf]+4*ct, acc)
                    else:
                        mfma(a, acc, WF[buf]+4*ct, XF[buf], acc)
        a("s_movk_i32 s62, 99")
        a("s_cmp_eq_u32 s57, 0")
        a("s_cselect_b32 s63, s3, 0")
        a("s_cmp_eq_u32 s63, 3")
        a("s_cselect_b32 s62, 0, s62")
        a("s_add_u32 s57, s57, 1")
        a("s_bitcmp1_b32 s57, 0")
        a(f"s_cbranch_scc1 {L}_loop")
        a("s_nop 15")
        n = 0
        for ct in range(3):
            acc = ACC + ct*16
            c = tag*3 + ct
            ty = types[ct]
            for e in range(2):
                pk = PK + (n % 4)*4; n += 1
                if ty == 'Q':
                    for r in range(8):
                        a(f"v_mul_f32 v{acc+8*e+r}, s55, v{acc+8*e+r}")
                for r in range(4):
                    a(f"v_cvt_pk_bf16_f32 v{pk+r}, v{acc+2*r+8*e}, v{acc+8*e+2*r+1}")
                if ty == 'Q':
                    a(f"s_add_u32 s58, s52, {(2*(c%2)+e)*HEAD_STRIDE}")
                    a("s_add_u32 s58, s58, s53")
                    a(f"buffer_store_dwordx4 {vr(pk,4)}, v24, s[{WS}:{WS+3}], s58 offen sc1")
                elif ty == 'K':
                    a(f"s_add_u32 s58, s52, {(2*(c%2)+e)*HEAD_STRIDE}")
                    a("s_add_u32 s58, s58, s54")
                    a(f"buffer_store_dwordx4 {vr(pk,4)}, v24, s[{WS}:{WS+3}], s58 offen sc1")
                else:
                    a(f"s_add_u32 s58, s52, {(2*(c%2))*HEAD_STRIDE + 1024 + 512*e}")
                    a("s_add_u32 s58, s58, s54")
                    a(f"buffer_store_dwordx4 {vr(pk,4)}, v25, s[{WS}:{WS+3}], s58 offen sc1")
        for r in range(48): a(f"v_mov_b32 v{ACC+r}, 0")
        a(f"s_add_u32 s52, s52, {PROB_STRIDE}")
        a("s_cmp_lt_u32 s57, 4")
        a(f"s_cbranch_scc1 {L}_loop")
        st(2); st(3)
        a("s_branch Lfa_attn")
    a("s_cmp_eq_u32 s49, 0")
    a("s_cbranch_scc0 Lfa_wn1")
    body(['Q', 'Q', 'K'], 0)
    a.label("Lfa_wn1")
    body(['K', 'V', 'V'], 1)

    QA = [4, 8]; QB = 12
    OACC = [16, 32]
    CNEG = [48, 64]
    SB = [[80, 96], [112, 128]]
    PP = [144, 152]
    VF = [160, 168]
    KF = 176
    MHI, MLO = 212, 228
    VKA, VVA, TMP, LIN, MX, MX1 = 244, 245, 246, 247, 248, 249
    T0, T1, T2, T3 = 250, 251, 252, 253
    VKN, VVN = 254, 255
    XCH = 98304
    a.label("Lfa_attn")
    a(f"v_lshlrev_b32 v{LIN}, 4, v1")
    a(f"v_lshrrev_b32 v{T0}, 5, v1")
    a(f"v_lshlrev_b32 v{VVA}, 8, v{T0}")
    a(f"v_and_b32 v{T1}, 15, v1")
    a(f"v_lshlrev_b32 v{T1}, 4, v{T1}")
    a(f"v_add_u32 v{VVA}, v{VVA}, v{T1}")
    a(f"v_add_u32 v{VVA}, 1024, v{VVA}")
    a(f"v_mov_b32 v3, v{VVA}")
    a("s_mov_b32 s40, 0x0000ffff")
    a("s_mov_b32 s41, 0x0000ffff")
    a(f"v_and_b32 v{T1}, 27, v1")
    a(f"v_cmp_eq_u32 vcc, 16, v{T1}")
    a(f"v_mov_b32 v{T2}, 0x3f803f80")
    a(f"v_mov_b32 v{T3}, 0")
    a("s_lshr_b32 s70, s3, 2")
    for r in range(16):
        a(f"v_cndmask_b32 v{VF[0]+r}, v{T3}, v{T2}, vcc")
    a("s_lshl_b32 s71, s70, 14")
    a(f"s_add_u32 s72, s71, {BKV}")
    a(f"v_add_u32 v{VKN}, s71, v{LIN}")
    a(f"v_add_u32 v{VVN}, s71, v{VVA}")
    a(f"v_add_u32 v{VKA}, s72, v{LIN}")
    a(f"v_add_u32 v{VVA}, s72, v{VVA}")
    a("s_and_b32 s64, s3, 3")
    a("s_lshl_b32 s64, s64, 11")
    a(f"s_add_u32 s64, s64, 32768")
    a(f"v_add_u32 v{T0}, s64, v{LIN}")
    a(f"v_add_u32 v{T1}, {BKV}, v{LIN}")
    a("s_mov_b32 s73, 0")
    st(4)
    a("s_waitcnt vmcnt(8)")
    a("s_barrier")
    st(5)
    a(f"ds_read_b128 {vr(QA[0],4)}, v{T0}")
    a(f"ds_read_b128 {vr(QA[1],4)}, v{T0} offset:1024")
    a(f"ds_read_b128 {vr(KF,4)}, v{T1}")
    a("s_waitcnt lgkmcnt(0)")
    a("s_barrier")
    a(f"s_mul_i32 s62, s{S_H}, {HEAD_STRIDE}")
    a("s_lshl_b32 s63, s3, 10")
    a("s_add_u32 s62, s62, s63")
    for j in (2, 3):
        for u in range(4):
            a(f"s_add_u32 m0, s63, {(j-1)*32768 + (u&1)*8192 + (u>>1)*16384}")
            a(f"s_add_u32 s66, s62, {65536 + j*16384 + (u&1)*8192 + (u>>1)*65536}")
            a(f"buffer_load_dwordx4 v{LIN}, s[{WS}:{WS+3}], s66 offen sc1 lds")
    mfma(a, SB[0][0], KF, QA[0], "0")
    mfma(a, SB[1][0], KF, QA[1], "0")
    a(f"v_and_b32 v{T1}, 31, v1")
    a(f"v_lshrrev_b32 v{T0}, 5, v1")
    a(f"v_lshlrev_b32 v{T0}, 2, v{T0}")
    a(f"v_sub_u32 v{T1}, v{T1}, v{T0}")
    a(f"v_mov_b32 v{T2}, 0xff800000")
    for r in range(16):
        cr = 8*(r//4) + r % 4
        a(f"v_cmp_le_i32 s[{44+2*(r%8)}:{45+2*(r%8)}], {cr}, v{T1}")
        if r % 8 == 7:
            a("s_nop 1")
            for q in range(r-7, r+1):
                a(f"v_cndmask_b32 v{MHI+q}, v{T2}, v{T3}, s[{44+2*(q%8)}:{45+2*(q%8)}]")
                a(f"v_cndmask_b32 v{MLO+q}, v{T3}, v{T2}, s[{44+2*(q%8)}:{45+2*(q%8)}]")
    for q, m in ((0, MX), (1, MX1)):
        s = SB[q][0]
        a(f"v_max_f32 v{m}, v{s}, v{s+1}")
        for r in range(1, 8):
            a(f"v_max3_f32 v{m}, v{s+2*r}, v{s+2*r+1}, v{m}")
    def halves_max(m, t):
        a(f"v_mov_b32 v{t}, v{m}")
        a("s_nop 1")
        a(f"v_permlane32_swap_b32 v{m}, v{t}")
        a("s_nop 1")
        a(f"v_max_f32 v{m}, v{m}, v{t}")
    def read_v(buf, areg, off):
        a("s_mov_b64 exec, s[40:41]")
        a(f"ds_read_b128 {vr(buf,4)}, v{areg} offset:{off}")
        a(f"ds_read_b128 {vr(buf+4,4)}, v{areg} offset:{off+512}")
        a("s_mov_b64 exec, -1")
    def step(cur, p, o, qk, pre_pv0, mid, pre_pv1, vb):
        E = lambda i: a(f"v_exp_f32 v{cur+i}, v{cur+i}")
        C = lambda j: a(f"v_cvt_pk_bf16_f32 v{p+j}, v{cur+2*j}, v{cur+2*j+1}")
        E(0); E(1); E(2); E(3); C(0); E(4); C(1); E(5)
        qk()
        E(6); E(7); C(2); E(8); C(3); E(9); E(10)
        pre_pv0()
        mfma(a, o, vb, p, o)
        E(11); C(4); E(12); C(5); E(13); E(14); E(15); C(6); C(7)
        mid()
        pre_pv1()
        mfma(a, o, vb+4, p+4, o)
    a.label("La_main")
    halves_max(MX, TMP)
    halves_max(MX1, TMP)
    a(f"ds_read_b128 {vr(KF,4)}, v{VKA}")
    a(f"ds_read_b128 {vr(KF+4,4)}, v{VKA} offset:2048")
    read_v(VF[0], VVA, 0)
    for q, m in ((0, MX), (1, MX1)):
        for r in range(16):
            a(f"v_sub_f32 v{CNEG[q]+r}, 0, v{m}")
            a(f"v_mov_b32 v{OACC[q]+r}, 0")
    a("s_waitcnt lgkmcnt(3)")
    mfma(a, SB[0][0], KF, QA[0], CNEG[0])
    mfma(a, SB[1][0], KF, QA[1], CNEG[1])
    a(f"s_lshl_b32 s34, s{S_QB}, 3")
    a("s_add_u32 s34, s34, s3")
    a("s_min_u32 s35, s34, 8")
    a(f"s_mul_i32 s36, s{S_H}, {HEAD_STRIDE}")
    a(f"s_add_u32 s36, s36, {PROB_STRIDE}")
    a(f"v_bfe_u32 v{T0}, v1, 2, 3")
    a(f"s_lshl_b32 s49, s{S_QB}, 2")
    a("s_sub_u32 s49, s49, 4")
    a(f"v_add_u32 v{T0}, s49, v{T0}")
    a(f"v_max_i32 v{T0}, 0, v{T0}")
    a(f"s_lshr_b32 s49, s{S_H}, 2")
    a("s_lshl_b32 s49, s49, 5")
    a(f"v_add_u32 v{T0}, s49, v{T0}")
    a(f"v_lshlrev_b32 v{T0}, 2, v{T0}")
    a(f"v_and_b32 v{T1}, 3, v1")
    a(f"v_add_u32 v{T0}, v{T0}, v{T1}")
    a(f"v_lshlrev_b32 v{T0}, 7, v{T0}")
    a(f"v_add_u32 v2, {F_BASE + 131072}, v{T0}")
    a("s_nop 7")
    U = 8
    a("s_mov_b32 s38, 0")
    a.raw(".p2align 6")
    a.label("La_loop")
    for n in range(U):
        vb = VF[n % 2]
        if n == 1:
            a("s_cmp_lg_u32 s73, 0")
            a("s_cbranch_scc1 La_sd")
            a("s_cmp_eq_u32 s38, 0")
            a("s_cbranch_scc0 La_s1")
            a("s_cmp_lt_u32 s3, 4")
            a("s_cbranch_scc0 La_sd")
            a("s_waitcnt vmcnt(8)")
            a(f"s_lshl_b32 s56, s{S_G}, 5")
            a(f"s_add_u32 s56, s56, s{S_TB}")
            a("s_lshl_b32 s56, s56, 2")
            a("s_add_u32 s56, s56, s3")
            a("s_lshl_b32 s56, s56, 7")
            a(f"s_add_u32 s56, s56, {F_BASE + 131072}")
            a(f"v_mov_b32 v{T0}, s56")
            a(f"v_mov_b32 v{T1}, s{NONCE}")
            a("s_mov_b64 exec, 1")
            a(f"buffer_store_dword v{T1}, v{T0}, s[{WS}:{WS+3}], 0 offen sc1")
            a("s_mov_b64 exec, -1")
            a("s_branch La_sd")
            a.label("La_s1")
            a("s_cmp_eq_u32 s38, 2")
            a("s_cbranch_scc0 La_s3")
            a(f"buffer_load_dword v{T2}, v2, s[{WS}:{WS+3}], 0 offen sc1")
            a("s_branch La_sd")
            a.label("La_s3")
            a("s_cmp_eq_u32 s38, 3")
            a("s_cbranch_scc0 La_sd")
            a(f"s_mov_b32 s67, {SPIN}")
            a.label("La_bspin")
            a("s_waitcnt vmcnt(0)")
            a(f"v_cmp_eq_u32 vcc, s{NONCE}, v{T2}")
            a("s_nop 4")
            a("s_cmp_eq_u64 vcc, -1")
            a("s_cbranch_scc1 La_bgot")
            a("s_sleep 1")
            a(f"buffer_load_dword v{T2}, v2, s[{WS}:{WS+3}], 0 offen sc1")
            a("s_sub_u32 s67, s67, 1")
            a("s_cmp_lg_u32 s67, 0")
            a("s_cbranch_scc1 La_bspin")
            a("s_waitcnt vmcnt(0)")
            a.label("La_bgot")
            a(f"s_lshl_b32 s50, s{S_QB}, 14")
            a("s_lshl_b32 s51, s3, 10")
            a("s_add_u32 s50, s50, s51")
            a("s_sub_u32 s50, s50, 16384")
            for u in range(4):
                a(f"s_add_u32 s54, s50, {u*8192}")
                a("s_max_i32 s54, s54, 0")
                a("s_add_u32 s54, s54, s36")
                a("s_add_u32 s54, s54, 65536")
                a(f"s_add_u32 m0, s51, {BKV + u*8192}")
                a(f"buffer_load_dwordx4 v{LIN}, s[{WS}:{WS+3}], s54 offen sc1 lds")
            a("s_lshl_b32 s54, s34, 10")
            a("s_add_u32 s54, s54, s36")
            a(f"buffer_load_dwordx4 {vr(QB,4)}, v{LIN}, s[{WS}:{WS+3}], s54 offen sc1")
            a.label("La_sd")
        if n == 5:
            a("s_cmp_lg_u32 s73, 0")
            a("s_cbranch_scc1 La_nowait")
            a("s_cmp_eq_u32 s38, 0")
            a("s_cbranch_scc1 La_w0")
            a("s_cmp_eq_u32 s38, 1")
            a("s_cbranch_scc1 La_w1")
            a("s_cmp_eq_u32 s38, 2")
            a("s_cbranch_scc0 La_nowait")
            a("s_waitcnt vmcnt(1)")
            a("s_branch La_wd")
            a.label("La_w0")
            a("s_waitcnt vmcnt(8)")
            a("s_branch La_wd")
            a.label("La_w1")
            a("s_waitcnt vmcnt(4)")
            a.label("La_wd")
            a("s_barrier")
            a.label("La_nowait")
        for q in range(2):
            cur, nxt = SB[q][n % 2], SB[q][(n+1) % 2]
            def qk(q=q, nxt=nxt, n=n):
                if q == 0: a("s_waitcnt lgkmcnt(2)")
                mfma(a, nxt, KF+4*((n+1) % 2), QA[q], CNEG[q])
                if q == 1:
                    if n + 2 < U: a(f"ds_read_b128 {vr(KF+4*(n % 2),4)}, v{VKA} offset:{(n+2)*2048}")
                    else: a(f"ds_read_b128 {vr(KF+4*(n % 2),4)}, v{VKN} offset:{(n+2-U)*2048}")
            def mid1(n=n):
                if n + 1 < U: read_v(VF[(n+1) % 2], VVA, (n+1)*2048)
                else: read_v(VF[(n+1) % 2], VVN, 0)
            step(cur, PP[q], OACC[q], qk,
                 (lambda: a("s_waitcnt lgkmcnt(1)")) if q == 0 else (lambda: None),
                 (lambda: a("s_nop 0")) if q == 0 else mid1,
                 (lambda: a("s_waitcnt lgkmcnt(0)")) if q == 0 else (lambda: None), vb)
    a(f"v_mov_b32 v{VKA}, v{VKN}")
    a(f"v_mov_b32 v{VVA}, v{VVN}")
    a(f"v_add_u32 v{VKN}, 32768, v{VKN}")
    a(f"v_add_u32 v{VVN}, 32768, v{VVN}")
    a("s_add_u32 s38, s38, 1")
    a("s_cmp_lg_u32 s38, 4")
    a("s_cbranch_scc1 La_loop")
    st(6)
    a("s_waitcnt lgkmcnt(0)")
    a("s_nop 7")
    a(f"v_mov_b32 v{TMP}, 0x71800000")
    a(f"v_cmp_lt_f32 vcc, v{OACC[0]+8}, v{TMP}")
    a(f"v_cmp_lt_f32 s[58:59], v{OACC[1]+8}, v{TMP}")
    a("s_nop 4")
    a("s_and_b64 s[58:59], s[58:59], vcc")
    a("s_cmp_eq_u64 s[58:59], -1")
    a("s_cselect_b32 s64, 0, 1")
    a("s_cmp_lg_u32 s73, 0")
    a("s_cselect_b32 s64, 0, s64")
    a("s_lshl_b32 s65, s3, 2")
    a(f"s_add_u32 s65, s65, {XCH}")
    a(f"v_mov_b32 v{T0}, s65")
    a(f"v_mov_b32 v{T1}, s64")
    a(f"ds_write_b32 v{T0}, v{T1}")
    a("s_mul_i32 s65, s3, 2560")
    a(f"s_add_u32 s65, s65, {XCH + 1024}")
    a(f"v_add_u32 v{T0}, s65, v{LIN}")
    a(f"v_lshrrev_b32 v{T1}, 2, v{LIN}")
    a(f"v_add_u32 v{T1}, s65, v{T1}")
    a("s_cmp_eq_u32 s70, 0")
    a("s_cbranch_scc0 La_sendq0")
    for lab, qs in (("La_sendq1", 1), ("La_sendq0", 0)):
        if qs == 0: a.label(lab)
        a(f"ds_write_b128 v{T0}, {vr(OACC[qs],4)}")
        a(f"ds_write_b128 v{T0}, {vr(OACC[qs]+4,4)} offset:1024")
        a(f"ds_write_b32 v{T1}, v{OACC[qs]+8} offset:2048")
        if qs == 1:
            a("s_branch La_sent")
        else:
            for r in range(9):
                a(f"v_mov_b32 v{OACC[0]+r}, v{OACC[1]+r}")
    a.label("La_sent")
    a("s_waitcnt vmcnt(0) lgkmcnt(0)")
    a("s_barrier")
    a(f"v_and_b32 v{T2}, 7, v1")
    a(f"v_lshlrev_b32 v{T2}, 2, v{T2}")
    a(f"v_add_u32 v{T2}, {XCH}, v{T2}")
    a(f"ds_read_b32 v{T2}, v{T2}")
    a("s_xor_b32 s64, s3, 4")
    a("s_mul_i32 s65, s64, 2560")
    a(f"s_add_u32 s65, s65, {XCH + 1024}")
    a(f"v_add_u32 v{T0}, s65, v{LIN}")
    a(f"v_lshrrev_b32 v{T1}, 2, v{LIN}")
    a(f"v_add_u32 v{T1}, s65, v{T1}")
    a(f"ds_read_b128 {vr(SB[0][0],4)}, v{T0}")
    a(f"ds_read_b128 {vr(SB[0][0]+4,4)}, v{T0} offset:1024")
    a(f"ds_read_b32 v{SB[0][0]+8}, v{T1} offset:2048")
    a("s_lshl_b32 s37, s3, 11")
    a(f"s_add_u32 s37, s37, {BKV}")
    a("s_waitcnt lgkmcnt(0)")
    a(f"v_cmp_ne_u32 vcc, 0, v{T2}")
    a("s_nop 4")
    a("s_cmp_eq_u64 vcc, 0")
    a("s_cbranch_scc1 La_done")
    a("s_barrier")
    a("s_mov_b32 s73, 1")
    a(f"s_mul_i32 s62, s{S_H}, {HEAD_STRIDE}")
    a("s_lshl_b32 s63, s3, 10")
    a("s_add_u32 s62, s62, s63")
    for u in range(4):
        a(f"s_add_u32 m0, s63, {BKV + (u&1)*8192 + (u>>1)*16384}")
        a(f"s_add_u32 s66, s62, {65536 + (u&1)*8192 + (u>>1)*65536}")
        a(f"buffer_load_dwordx4 v{LIN}, s[{WS}:{WS+3}], s66 offen sc1 lds")
    a("s_waitcnt vmcnt(0)")
    a("s_barrier")
    a(f"v_mov_b32 v{MX}, 0xff800000")
    a(f"v_mov_b32 v{MX1}, 0xff800000")
    a("s_mov_b32 s38, 0")
    a.label("La_fb")
    a("s_bfe_u32 s64, s38, 0x20003")
    a("s_sub_u32 s65, s64, 1")
    a("s_lshl_b32 s65, s65, 15")
    a("s_cmp_eq_u32 s64, 0")
    a(f"s_cselect_b32 s65, {BKV}, s65")
    a("s_lshr_b32 s64, s38, 5")
    a("s_lshl_b32 s64, s64, 14")
    a("s_add_u32 s65, s65, s64")
    a("s_and_b32 s64, s38, 7")
    a("s_lshl_b32 s64, s64, 11")
    a("s_add_u32 s65, s65, s64")
    a(f"v_add_u32 v{T0}, s65, v{LIN}")
    a(f"ds_read_b128 {vr(KF,4)}, v{T0}")
    a("s_waitcnt lgkmcnt(0)")
    mfma(a, SB[0][0], KF, QA[0], "0")
    mfma(a, SB[1][0], KF, QA[1], "0")
    a("s_nop 15")
    for q, m in ((0, MX), (1, MX1)):
        s = SB[q][0]
        for r in range(8):
            a(f"v_max3_f32 v{m}, v{s+2*r}, v{s+2*r+1}, v{m}")
    a("s_add_u32 s38, s38, 1")
    a("s_cmp_lg_u32 s38, 64")
    a("s_cbranch_scc1 La_fb")
    a(f"v_add_u32 v{VKN}, s71, v{LIN}")
    a(f"v_add_u32 v{VVN}, s71, v3")
    a(f"v_add_u32 v{VKA}, s72, v{LIN}")
    a(f"v_add_u32 v{VVA}, s72, v3")
    a("s_mov_b32 s74, 1")
    a("s_branch La_main")
    a.label("La_done")
    a("s_cmp_eq_u32 s73, 0")
    a("s_cbranch_scc1 La_bok")
    a("s_barrier")
    a(f"s_lshl_b32 s50, s{S_QB}, 14")
    a("s_lshl_b32 s51, s3, 10")
    a("s_add_u32 s50, s50, s51")
    a("s_sub_u32 s50, s50, 16384")
    for u in range(4):
        a(f"s_add_u32 s54, s50, {u*8192}")
        a("s_max_i32 s54, s54, 0")
        a("s_add_u32 s54, s54, s36")
        a("s_add_u32 s54, s54, 65536")
        a(f"s_add_u32 m0, s51, {BKV + u*8192}")
        a(f"buffer_load_dwordx4 v{LIN}, s[{WS}:{WS+3}], s54 offen sc1 lds")
    a("s_waitcnt vmcnt(0)")
    a("s_barrier")
    a.label("La_bok")
    a(f"v_add_u32 v{VKA}, s37, v{LIN}")
    a(f"v_add_u32 v{VVA}, s37, v3")
    for i in range(8, -1, -1):
        a(f"ds_read_b128 {vr(KF+4*i,4)}, v{VKA} offset:{i*2048}")
    for r in range(9):
        a(f"v_add_f32 v{OACC[0]+r}, v{OACC[0]+r}, v{SB[0][0]+r}")
    a("s_and_b32 s64, s3, 3")
    a("s_lshl_b32 s64, s64, 1")
    a("s_add_u32 s64, s64, s70")
    a(f"s_lshl_b32 s65, s{S_QB}, 3")
    a("s_add_u32 s64, s64, s65")
    a("s_lshl_b32 s64, s64, 10")
    a(f"s_lshl_b32 s68, s{S_H}, 16")
    a("s_add_u32 s68, s68, s64")
    a(f"s_add_u32 s68, s68, {O_BASE}")
    def finish_o(o, lreg, soff):
        a(f"v_rcp_f32 v{TMP}, v{lreg}")
        a("s_nop 1")
        for r in range(8):
            a(f"v_mul_f32 v{o+r}, v{o+r}, v{TMP}")
        for r in range(4):
            a(f"v_cvt_pk_bf16_f32 v{PP[1]+r}, v{o+2*r}, v{o+2*r+1}")
        a(f"buffer_store_dwordx4 {vr(PP[1],4)}, v{LIN}, s[{WS}:{WS+3}], {soff} offen")
    finish_o(OACC[0], OACC[0]+8, "s68")
    st(7)
    SP = [80, 96, 112, 128]
    def qk1(i):
        c = MHI if i == 8 else (MLO if i == 0 else "0")
        mfma(a, SP[(8-i) % 4], KF+4*i, QB, c)
    a("s_waitcnt lgkmcnt(6)")
    qk1(8); qk1(7); qk1(6)
    a("s_waitcnt lgkmcnt(0)")
    read_v(VF[0], VVA, 8*2048)
    a("s_nop 4")
    a("s_mov_b32 s38, s35")
    for i in range(8, -1, -1):
        s = SP[(8-i) % 4]
        if i == 8:
            a(f"v_max_f32 v{MX}, v{s}, v{s+1}")
            for r in range(1, 8):
                a(f"v_max3_f32 v{MX}, v{s+2*r}, v{s+2*r+1}, v{MX}")
        else:
            for r in range(8):
                a(f"v_max3_f32 v{MX}, v{s+2*r}, v{s+2*r+1}, v{MX}")
        if i > 0:
            a("s_cmp_eq_u32 s38, 0")
            a("s_cbranch_scc1 Lb_p1_done")
            a("s_sub_u32 s38, s38, 1")
        if i - 3 >= 0:
            qk1(i - 3)
    a.label("Lb_p1_done")
    halves_max(MX, TMP)
    st(8)
    a("s_nop 7")
    for r in range(16):
        a(f"v_sub_f32 v{CNEG[0]+r}, 0, v{MX}")
        a(f"v_sub_f32 v{MHI+r}, v{MHI+r}, v{MX}")
        a(f"v_sub_f32 v{MLO+r}, v{MLO+r}, v{MX}")
        a(f"v_mov_b32 v{OACC[0]+r}, 0")
    a("s_nop 1")
    mfma(a, SP[0], KF+4*8, QB, MHI)
    a("s_nop 15")
    a("s_mov_b32 s38, s35")
    for n, i in enumerate(range(8, -1, -1)):
        cur, nxt = SP[n % 2], SP[(n+1) % 2]
        vb = VF[n % 2]
        if i > 0:
            cn = MLO if i - 1 == 0 else CNEG[0]
            step(cur, PP[0], OACC[0],
                 lambda: mfma(a, nxt, KF+4*(i-1), QB, cn),
                 lambda: a("s_waitcnt lgkmcnt(1)"),
                 lambda: read_v(VF[(n+1) % 2], VVA, (i-1)*2048),
                 lambda: a("s_waitcnt lgkmcnt(2)"), vb)
            a("s_cmp_eq_u32 s38, 0")
            a("s_cbranch_scc1 Lb_p2_done")
            a("s_sub_u32 s38, s38, 1")
        else:
            step(cur, PP[0], OACC[0], lambda: None,
                 lambda: a("s_waitcnt lgkmcnt(1)"),
                 lambda: a("s_nop 1"),
                 lambda: a("s_waitcnt lgkmcnt(0)"), vb)
    a.label("Lb_p2_done")
    st(9)
    a("s_nop 15")
    a(f"s_lshl_b32 s68, s{S_H}, 16")
    a("s_lshl_b32 s69, s34, 10")
    a("s_add_u32 s68, s68, s69")
    a(f"s_add_u32 s68, s68, {O_BASE + O_PROB}")
    finish_o(OACC[0], OACC[0]+8, "s68")
    st(10)
    st(11)
    st.p(11)
    st.flush(8, 12)
    a.label("Lfa_end")
    a("s_endpgm")

def gen_oproj(a):
    a.raw(".p2align 8")
    a.raw(".type oproj_kernel,@function")
    a.label("oproj_kernel")
    a("s_cmp_ge_u32 s2, 256")
    a("s_cbranch_scc1 Lop_end")
    st = Stamper(a, "oproj", 1, "s20")
    st()
    a("s_load_dwordx2 s[4:5], s[0:1], 16")
    a("s_load_dwordx2 s[26:27], s[0:1], 40")
    a("s_load_dwordx2 s[28:29], s[0:1], 48")
    a("s_load_dwordx2 s[30:31], s[0:1], 64")
    a("s_and_b32 s32, s2, 7")
    a("s_lshr_b32 s33, s2, 3")
    a("s_lshr_b32 s23, s32, 2")
    a("s_and_b32 s34, s32, 3")
    a("s_lshl_b32 s34, s34, 2")
    a("s_and_b32 s35, s33, 3")
    a("s_add_u32 s24, s34, s35")
    a("s_lshr_b32 s25, s33, 2")
    a("v_and_b32 v1, 63, v0")
    a("v_lshrrev_b32 v2, 6, v0")
    a("s_nop 0")
    a("v_readfirstlane_b32 s20, v2")
    a("v_lshrrev_b32 v2, 3, v1")
    a("v_lshlrev_b32 v2, 10, v2")
    a("v_bfe_u32 v3, v1, 4, 1")
    a("v_lshlrev_b32 v3, 2, v3")
    a("v_and_b32 v5, 7, v1")
    a("v_xor_b32 v3, v3, v5")
    a("v_lshlrev_b32 v3, 4, v3")
    a("v_add_u32 v4, v2, v3")
    a("v_lshlrev_b32 v5, 4, v1")
    a("s_waitcnt lgkmcnt(0)")
    a("s_cmp_eq_u32 s23, 0")
    a("s_cselect_b32 s4, s4, s26")
    a("s_cselect_b32 s5, s5, s27")
    srd(a, 8, 4, 5, 512*1024)
    a(f"s_mul_i32 s36, s23, {O_PROB}")
    a(f"s_add_u32 s36, s36, {O_BASE}")
    a("s_add_u32 s30, s30, s36")
    a("s_addc_u32 s31, s31, 0")
    srd(a, 12, 30, 31, O_PROB)
    a("s_lshl_b32 s40, s20, 13")
    a("s_lshl_b32 s36, s25, 7")
    a("s_add_u32 s40, s40, s36")
    a("s_lshl_b32 s41, s20, 10")
    OF = 64
    a("s_lshl_b32 s42, s24, 2")
    a("s_add_u32 s42, s42, s20")
    a("s_lshl_b32 s43, s42, 10")
    def wdma(u):
        a(f"s_add_u32 m0, s41, {u*4096}")
        a(f"s_add_u32 s44, s40, {u*32768}")
        a("buffer_load_dwordx4 v4, s[8:11], s44 offen lds")
    def oload(H):
        a(f"s_add_u32 s44, s43, {H*65536}")
        a(f"buffer_load_dwordx4 {vr(OF+4*H,4)}, v5, s[12:15], s44 offen")
    for q in range(4):
        for u in range(4): wdma(4*q+u)
        for H in range(8): oload(8*q+H)
    srd(a, 16, 28, 29, 2048*2048)
    a("v_lshrrev_b32 v2, 5, v1")
    a("v_lshlrev_b32 v3, 2, v2")
    a("v_bfe_u32 v8, v1, 2, 2")
    a("v_add_u32 v3, v3, v8")
    a("v_lshlrev_b32 v3, 7, v3")
    a("v_bfe_u32 v8, v1, 4, 1")
    a("v_lshlrev_b32 v8, 5, v8")
    a("v_add_u32 v3, v3, v8")
    a("v_and_b32 v8, 3, v1")
    a("v_lshlrev_b32 v8, 3, v8")
    a("v_add_u32 v3, v3, v8")
    a("v_bfe_u32 v8, v1, 3, 1")
    a("v_lshlrev_b32 v8, 6, v8")
    a("v_add_u32 v6, v3, v8")
    a("v_xor_b32 v8, 64, v8")
    a("v_add_u32 v7, v3, v8")
    a("v_and_b32 v8, 31, v1")
    a("v_lshlrev_b32 v8, 11, v8")
    a("v_lshlrev_b32 v9, 4, v2")
    a("v_add_u32 v8, v8, v9")
    ACC = 16
    st()
    WF = [48, 56]
    def rd(H, buf):
        for ct in range(2):
            a(f"ds_read_b64_tr_b16 {vr(WF[buf]+4*ct,2)}, v{6+ct} offset:{H*2048}")
            a(f"ds_read_b64_tr_b16 {vr(WF[buf]+4*ct+2,2)}, v{6+ct} offset:{H*2048+1024}")
    for q in range(4):
        a(f"s_waitcnt vmcnt({8 + 12*(3-q)})")
        a("s_barrier")
        rd(8*q, 0)
        for hh in range(8):
            H = 8*q + hh
            buf = hh % 2
            if hh < 7:
                rd(H+1, buf ^ 1)
                a(f"s_waitcnt vmcnt({7-hh + 12*(3-q)}) lgkmcnt(4)")
            else:
                a(f"s_waitcnt vmcnt({12*(3-q)}) lgkmcnt(0)")
            for ct in range(2):
                acc = ACC+16*ct
                mfma(a, acc, WF[buf]+4*ct, OF+4*H, "0" if H == 0 else acc)
    a("s_nop 15")
    st()
    a("s_lshl_b32 s44, s42, 16")
    a("s_lshl_b32 s45, s23, 10")
    a("s_add_u32 s44, s44, s45")
    a("s_lshl_b32 s45, s25, 7")
    a("s_add_u32 s44, s44, s45")
    for ct in range(2):
        for pr in range(2):
            b = ACC + 16*ct + 8*pr
            pk = 48 + (ct*2+pr)*4
            for r in range(4):
                a(f"v_cvt_pk_bf16_f32 v{pk+r}, v{b+2*r}, v{b+2*r+1}")
            a("s_nop 1")
            a(f"v_permlane32_swap_b32 v{pk}, v{pk+2}")
            a(f"v_permlane32_swap_b32 v{pk+1}, v{pk+3}")
            a("s_nop 1")
            a(f"buffer_store_dwordx4 {vr(pk,4)}, v8, s[16:19], s44 offen offset:{ct*64+pr*32}")
    st()
    st.flush(4)
    a.label("Lop_end")
    a("s_endpgm")

def kd(name, vgpr, sgpr=102):
    acc = (vgpr + 3)//4*4
    return f""".section .rodata,"a"
.p2align 6
.amdhsa_kernel {name}
  .amdhsa_next_free_vgpr {vgpr}
  .amdhsa_next_free_sgpr {sgpr}
  .amdhsa_accum_offset {acc}
  .amdhsa_group_segment_fixed_size 0
  .amdhsa_kernarg_size 72
  .amdhsa_user_sgpr_count 2
  .amdhsa_user_sgpr_kernarg_segment_ptr 1
  .amdhsa_system_sgpr_workgroup_id_x 1
.end_amdhsa_kernel
"""

HEADER = """; Kernarg layout for this problem (72 bytes, ptrs only, base s[0:1]):
;   offset   0: d_in[0] A_x  shape=(1, 2048, 512) dtype=bfloat16
;   offset   8: d_in[1] A_wqkv  shape=(512, 1536) dtype=bfloat16
;   offset  16: d_in[2] A_wo  shape=(512, 512) dtype=bfloat16
;   offset  24: d_in[3] B_x  shape=(1, 2048, 512) dtype=bfloat16
;   offset  32: d_in[4] B_wqkv  shape=(512, 1536) dtype=bfloat16
;   offset  40: d_in[5] B_wo  shape=(512, 512) dtype=bfloat16
;   offset  48: d_out     shape=(1, 2048, 1024) dtype=bfloat16
;   offset  56: d_debug   256 bytes
;   offset  64: d_ws      268435456 bytes workspace
; @launch kernel=fa_kernel grid=(256,1,1) block=(512,1,1) lds=163840
; @launch kernel=oproj_kernel grid=(256,1,1) block=(256,1,1) lds=65536
.amdgcn_target "amdgcn-amd-amdhsa--gfx950"
.text
.globl fa_kernel
.globl oproj_kernel
"""

def main(path):
    a = Asm()
    gen_fused(a)
    gen_oproj(a)
    txt = HEADER + a.text() + kd("fa_kernel", 256) + kd("oproj_kernel", 192)
    open(path, "w").write(txt)

if __name__ == "__main__":
    main(sys.argv[1] if len(sys.argv) > 1 else f"cdna_kernels/{NAME}.s")
```

```python
import sys, os, struct

NAME = "concat_heads__softmax_full_mha__sliding_block__prompt"
STAMPS = os.environ.get("STAMPS", "")

class Asm:
    def __init__(self): self.lines = []
    def __call__(self, s): self.lines.append("  " + s)
    def label(self, s): self.lines.append(s + ":")
    def raw(self, s): self.lines.append(s)
    def text(self): return "\n".join(self.lines) + "\n"

def vr(b, n=1): return f"v{b}" if n == 1 else f"v[{b}:{b+n-1}]"
def f32bits(x): return struct.unpack("<I", struct.pack("<f", x))[0]

HEAD_STRIDE = 196608
PROB_STRIDE = 32 * HEAD_STRIDE
O_BASE = 2 * PROB_STRIDE
O_PROB = 32 * 65536
F_BASE = 16 << 20
WS_SIZE = 17 << 20
QSCALE = 0.25 * 1.4426950408889634
SPIN = 1 << 16

def srd(a, d, lo, hi, nrec):
    a(f"s_mov_b32 s{d}, s{lo}")
    a(f"s_and_b32 s{d+1}, s{hi}, 0xffff")
    a(f"s_mov_b32 s{d+2}, {nrec}")
    a(f"s_mov_b32 s{d+3}, 0x00020000")

class Stamper:
    def __init__(self, a, kname, kidx, wavereg, base=76):
        self.a=a; self.on=(STAMPS==kname or (STAMPS in ("fp","fs","fl") and kname=="fa")); self.fp=(STAMPS in ("fp","fs","fl")); self.fs=(STAMPS=="fs"); self.fl=(STAMPS=="fl"); self.rt=(STAMPS=="rt"); self.n=0; self.base=base; self.wavereg=wavereg; self.kidx=kidx
        if self.rt:
            a("s_memrealtime s[76:77]"); a("s_memtime s[78:79]")
    def p(self, idx):
        if self.fp and ((not self.fs and not self.fl) or idx==11): self._st(idx)
    def l(self, idx):
        if self.fl: self._st(idx)
    def ldyn(self, base, uid):
        if not self.fl: return
        a=self.a
        for j in range(4):
            a(f"s_cmp_eq_u32 s38, {j}")
            a(f"s_cbranch_scc0 Lst{uid}_{j}")
            self._st(base+j)
            a.label(f"Lst{uid}_{j}")
    def f(self, idx):
        if self.fs: self._st(idx)
    def __call__(self, idx=None):
        if not self.on: return
        if self.fp and idx not in (0,): return
        self._st(idx)
    def _st(self, idx=None):
        if idx is not None: self.n = idx
        assert self.base+2*self.n+1 < 102
        self.a(f"s_memtime s[{self.base+2*self.n}:{self.base+2*self.n+1}]")
        self.a("s_waitcnt lgkmcnt(0)")
        self.n+=1
    def flush(self, nw, n=None):
        if not (self.on or self.rt): return
        a=self.a
        n = n or self.n
        if self.rt:
            a("s_waitcnt vmcnt(0)"); a("s_memrealtime s[80:81]"); a("s_memtime s[82:83]"); n=4
        a("s_load_dwordx2 s[4:5], s[0:1], 64")
        a("s_waitcnt vmcnt(0) lgkmcnt(0)")
        a(f"s_add_u32 s4, s4, {(64<<20) + (self.kidx<<20 if self.rt else 0)}")
        a("s_addc_u32 s5, s5, 0")
        srd(a, 8, 4, 5, 1<<20)
        a(f"s_mul_i32 s6, s2, {nw}")
        a(f"s_add_u32 s6, s6, {self.wavereg}")
        a("s_lshl_b32 s6, s6, 6")
        a("v_mov_b32 v1, s6")
        for i in range(n):
            a(f"v_mov_b32 v2, s{self.base+2*i}")
            a(f"buffer_store_dword v2, v1, s[8:11], 0 offen offset:{4*i}")
        a("s_waitcnt vmcnt(0)")

def mfma(a, d, x, y, c):
    cs = c if isinstance(c, str) else vr(c, 16)
    a(f"v_mfma_f32_32x32x16_bf16 {vr(d,16)}, {vr(x,4)}, {vr(y,4)}, {cs}")

WS, XB, WB, XA, WA, DBG = 4, 8, 12, 16, 20, 24
NONCE = 28
S_H, S_QB, S_G, S_TB = 30, 31, 32, 33
SLOT = 32768
BKV = 131072

def gen_fused(a):
    QA = [4, 8]; QB = 12
    OACC = [16, 32]
    CNEG = [48, 64]
    SB = [[80, 96], [112, 128]]
    PP = [144, 152]
    VF = [160, 168]
    KF = 176
    MHI, MLO = 212, 228
    VKA, VVA, TMP, LIN, MX, MX1 = 244, 245, 246, 247, 248, 249
    T0, T1, T2, T3 = 250, 251, 252, 253
    VKN, VVN = 254, 255
    VLO = 3
    XCH = 98304
    QBL = 122880
    FA, FB = F_BASE, F_BASE + 65536
    PUB = int(os.environ.get("PUB", "9"))
    FO = F_BASE + 131072
    WOA, WOB, OUT = 8, 12, 16

    a.raw(".p2align 8")
    a.raw(".type fa_kernel,@function")
    a.label("fa_kernel")
    a("s_cmp_ge_u32 s2, 256")
    a("s_cbranch_scc1 Lfa_end")
    st = Stamper(a, "fa", 0, "s3")
    st(0)
    a("s_load_dwordx4 s[36:39], s[0:1], 0")
    a("s_load_dwordx2 s[34:35], s[0:1], 24")
    a("s_load_dwordx2 s[42:43], s[0:1], 32")
    a("s_load_dwordx4 s[44:47], s[0:1], 56")
    a("v_and_b32 v1, 63, v0")
    a("v_lshrrev_b32 v2, 6, v0")
    a(f"s_and_b32 s{S_H}, s2, 31")
    a("v_readfirstlane_b32 s3, v2")
    a(f"s_lshr_b32 s{S_QB}, s2, 5")
    a("s_lshr_b32 s48, s2, 3")
    a("s_and_b32 s49, s2, 1")
    a("s_lshl_b32 s49, s49, 2")
    a("s_and_b32 s50, s48, 3")
    a(f"s_add_u32 s{S_G}, s49, s50")
    a("s_bfe_u32 s49, s2, 0x20001")
    a("s_lshl_b32 s49, s49, 3")
    a("s_lshr_b32 s50, s48, 2")
    a(f"s_add_u32 s{S_TB}, s49, s50")
    a(f"s_and_b32 s29, s{S_G}, 3")
    a("s_lshl_b32 s29, s29, 1")
    a(f"s_add_u32 s29, s29, s{S_TB}")
    a("s_and_b32 s29, s29, 7")
    a("s_cmp_lt_u32 s3, 4")
    a("s_cbranch_scc1 Lfa_compute")

    def early_setup():
        a(f"v_lshlrev_b32 v{LIN}, 4, v1")
        a(f"v_lshrrev_b32 v{T0}, 5, v1")
        a(f"v_lshlrev_b32 v{VLO}, 8, v{T0}")
        a(f"v_and_b32 v{T1}, 15, v1")
        a(f"v_lshlrev_b32 v{T1}, 4, v{T1}")
        a(f"v_add_u32 v{VLO}, v{VLO}, v{T1}")
        a(f"v_add_u32 v{VLO}, 1024, v{VLO}")
        a(f"v_and_b32 v{T1}, 27, v1")
        a(f"v_cmp_eq_u32 vcc, 16, v{T1}")
        a(f"v_mov_b32 v{T2}, 0x3f803f80")
        a(f"v_mov_b32 v{T3}, 0")
        a("s_nop 0")
        for r in range(16):
            a(f"v_cndmask_b32 v{VF[0]+r}, v{T3}, v{T2}, vcc")
        a(f"v_and_b32 v{T1}, 31, v1")
        a(f"v_lshlrev_b32 v{T0}, 2, v{T0}")
        a(f"v_sub_u32 v{T1}, v{T1}, v{T0}")
        a(f"v_mov_b32 v{T2}, 0xff800000")
        for r in range(16):
            cr = 8*(r//4) + r % 4
            a(f"v_cmp_le_i32 s[{62+2*(r%4)}:{63+2*(r%4)}], {cr}, v{T1}")
            if r % 4 == 3:
                a("s_nop 1")
                for q in range(r-3, r+1):
                    a(f"v_cndmask_b32 v{MHI+q}, v{T2}, v{T3}, s[{62+2*(q%4)}:{63+2*(q%4)}]")
                    a(f"v_cndmask_b32 v{MLO+q}, v{T3}, v{T2}, s[{62+2*(q%4)}:{63+2*(q%4)}]")
        a("s_lshr_b32 s70, s3, 2")
        a("s_lshl_b32 s71, s70, 14")
        a(f"s_add_u32 s72, s71, {BKV}")
        a(f"v_add_u32 v{VKN}, s71, v{LIN}")
        a(f"v_add_u32 v{VVN}, s71, v{VLO}")
        a(f"v_add_u32 v{VKA}, s72, v{LIN}")
        a(f"v_add_u32 v{VVA}, s72, v{VLO}")
        a("s_mov_b32 s73, 0")
        a("s_mov_b32 s40, 0x0000ffff")
        a("s_mov_b32 s41, 0x0000ffff")

    a("s_sub_u32 s48, s3, 4")
    a("v_lshrrev_b32 v2, 3, v1")
    a("v_lshlrev_b32 v2, 10, v2")
    a("v_and_b32 v3, 7, v1")
    a("v_lshrrev_b32 v6, 4, v1")
    a("v_xor_b32 v3, v3, v6")
    a("v_lshlrev_b32 v3, 4, v3")
    a("v_add_u32 v4, v2, v3")
    a("v_xor_b32 v5, 64, v4")
    a(f"s_lshl_b32 s50, s{S_TB}, 6")
    a("s_lshl_b32 s49, s48, 4")
    a("s_add_u32 s50, s50, s49")
    a("s_lshl_b32 s50, s50, 10")
    a("s_lshl_b32 s51, s48, 11")
    a("s_mul_i32 s52, s48, 49152")
    a(f"s_lshl_b32 s49, s{S_G}, 7")
    a("s_add_u32 s52, s52, s49")
    a("s_mul_i32 s53, s48, 6144")
    a("s_add_u32 s53, s53, 8192")
    a("s_movk_i32 s49, 171")
    a("s_movk_i32 s55, 3072")
    for v in range(3):
        a(f"v_add_u32 v2, {64*v}, v1")
        a("v_mul_lo_u32 v3, v2, s49")
        a("v_lshrrev_b32 v3, 12, v3")
        a("v_mul_u32_u24 v9, 24, v3")
        a("v_sub_u32 v9, v2, v9")
        a("v_bfe_u32 v10, v3, 1, 1")
        a("v_lshlrev_b32 v10, 2, v10")
        a("v_xor_b32 v9, v9, v10")
        a("v_mul_lo_u32 v3, v3, s55")
        a("v_lshrrev_b32 v10, 3, v9")
        a("v_lshlrev_b32 v10, 10, v10")
        a("v_add_u32 v3, v3, v10")
        a("v_and_b32 v9, 7, v9")
        a("v_lshlrev_b32 v9, 4, v9")
        a(f"v_add_u32 v{6+v}, v3, v9")
    a("s_waitcnt lgkmcnt(0)")
    srd(a, XA, 36, 37, 2048*1024)
    srd(a, WA, 38, 39, 512*3072)
    def dma_chunk(i, ldsbase=None):
        c = i % 8
        base = (i % 4)*SLOT if ldsbase is None else ldsbase
        xs, wsr = (XA, WA) if i < 8 else (XB, WB)
        a(f"s_add_u32 s58, s29, {c}")
        a("s_and_b32 s58, s58, 7")
        a("s_lshl_b32 s59, s58, 7")
        a("s_add_u32 s59, s59, s50")
        a(f"s_mul_i32 s58, s58, {64*3072}")
        a("s_add_u32 s58, s58, s52")
        for u in range(2):
            a(f"s_add_u32 m0, s51, {base + u*1024}")
            a(f"s_add_u32 s54, s59, {u*8192}")
            a(f"buffer_load_dwordx4 v{4 + u}, s[{xs}:{xs+3}], s54 offen lds")
        for u in range(6):
            up, v = divmod(u, 3)
            a(f"s_add_u32 m0, s53, {base + u*1024}")
            a(f"s_add_u32 s54, s58, {8*up*3072}")
            a(f"buffer_load_dwordx4 v{6 + v}, s[{wsr}:{wsr+3}], s54 offen lds")
    dma_chunk(0)
    dma_chunk(1)
    srd(a, XB, 34, 35, 2048*1024)
    srd(a, WB, 42, 43, 512*3072)
    srd(a, WS, 46, 47, WS_SIZE)
    srd(a, DBG, 44, 45, 256)
    a("s_cmp_eq_u32 s2, 0")
    a("s_cselect_b32 s49, s48, 1")
    a("s_cmp_eq_u32 s49, 0")
    a("s_cbranch_scc0 Lfa_nononce")
    a("s_memrealtime s[56:57]")
    a("s_waitcnt lgkmcnt(0)")
    a("s_or_b32 s56, s56, 1")
    a("v_mov_b32 v10, s56")
    a("v_mov_b32 v11, 0")
    a(f"buffer_store_dword v10, v11, s[{DBG}:{DBG+3}], 0 offen sc1")
    a.label("Lfa_nononce")
    dma_chunk(8, BKV)
    early_setup()
    a(f"s_lshr_b32 s56, s{S_H}, 2")
    a("s_lshl_b32 s56, s56, 12")
    a(f"s_add_u32 s56, s56, {FA}")
    a("v_and_b32 v12, 31, v1")
    a("v_lshlrev_b32 v12, 7, v12")
    a("v_add_u32 v12, s56, v12")
    a(f"s_lshl_b32 s56, s{S_G}, 5")
    a(f"s_add_u32 s56, s56, s{S_TB}")
    a("s_lshl_b32 s74, s56, 7")
    a("v_and_b32 v2, 7, v1")
    a(f"s_lshl_b32 s49, s{S_QB}, 2")
    a("s_sub_u32 s49, s49, 4")
    a("v_add_u32 v2, s49, v2")
    a("v_max_i32 v2, 0, v2")
    a(f"s_lshr_b32 s49, s{S_H}, 2")
    a("s_lshl_b32 s49, s49, 5")
    a("v_add_u32 v2, s49, v2")
    a("v_lshlrev_b32 v2, 7, v2")
    a(f"v_add_u32 v2, {FB}, v2")
    a("v_mov_b32 v11, 0")
    st(1)
    def write_flag(base):
        a(f"s_add_u32 s56, s74, {base}")
        a("v_mov_b32 v14, s56")
        a(f"v_mov_b32 v15, s{NONCE}")
        a("s_mov_b64 exec, 1")
        a(f"buffer_store_dword v15, v14, s[{WS}:{WS+3}], 0 offen sc1")
        a("s_mov_b64 exec, -1")
    def a_loads():
        a(f"s_mul_i32 s64, s{S_H}, {HEAD_STRIDE}")
        a("s_lshl_b32 s65, s48, 10")
        a("s_add_u32 s64, s64, s65")
        for u in range(8):
            a(f"s_add_u32 m0, s65, {BKV + (u&3)*4096 + (u>>2)*16384}")
            a(f"s_add_u32 s66, s64, {65536 + (u&3)*4096 + (u>>2)*65536}")
            a(f"buffer_load_dwordx4 v{LIN}, s[{WS}:{WS+3}], s66 offen sc1 lds")
        a(f"s_lshl_b32 s67, s{S_QB}, 13")
        a("s_add_u32 s67, s67, s64")
        for u in range(2):
            a(f"s_add_u32 m0, s65, {32768 + u*4096}")
            a(f"s_add_u32 s66, s67, {u*4096}")
            a(f"buffer_load_dwordx4 v{LIN}, s[{WS}:{WS+3}], s66 offen sc1 lds")
        for u in range(8):
            a(f"s_add_u32 m0, s65, {(u&3)*4096 + (u>>2)*16384}")
            a(f"s_add_u32 s66, s64, {65536 + 16384 + (u&3)*4096 + (u>>2)*65536}")
            a(f"buffer_load_dwordx4 v{LIN}, s[{WS}:{WS+3}], s66 offen sc1 lds")
    for i in range(16):
        if i == 0:   w = 16
        elif i == 1: w = 17
        elif i == 2: w = 8
        elif i <= 6: w = 8
        elif i == 7: w = 0
        elif i == 8: w = 8
        elif i <= 13: w = 8
        elif i == 14: w = 9
        else: w = 1
        a(f"s_waitcnt vmcnt({w})")
        if i == 2:
            a(f"s_mov_b32 s55, {SPIN}")
            a.label("Lfa_nspin")
            a(f"v_readfirstlane_b32 s{NONCE}, v10")
            a(f"s_cmp_lg_u32 s{NONCE}, 0")
            a("s_cbranch_scc1 Lfa_ngot")
            a("s_sleep 1")
            a(f"buffer_load_dword v10, v11, s[{DBG}:{DBG+3}], 0 offen sc1")
            a("s_waitcnt vmcnt(0)")
            a("s_sub_u32 s55, s55, 1")
            a("s_cmp_lg_u32 s55, 0")
            a("s_cbranch_scc1 Lfa_nspin")
            a.label("Lfa_ngot")
        a("s_barrier")
        if i in (0,1,2,4,6,8,10,12,14,15): st.p({0:1,1:2,2:3,4:4,6:5,8:6,10:7,12:8,14:9,15:10}[i])
        if i == 0:
            a(f"buffer_load_dword v10, v11, s[{DBG}:{DBG+3}], 0 offen sc1")
        if i + 2 <= 15 and i + 2 != 8:
            dma_chunk(i + 2)
        if i == PUB + 1:
            a("s_cmp_eq_u32 s48, 0")
            a("s_cbranch_scc0 Lfa_nf")
            write_flag(FA)
            a.label("Lfa_nf")
        if i == 13:
            a(f"buffer_load_dword v13, v12, s[{WS}:{WS+3}], 0 offen sc1")
    st(2)
    a(f"s_mov_b32 s55, {SPIN}")
    a.label("Lfa_aspin")
    a("s_waitcnt vmcnt(0)")
    a(f"v_cmp_eq_u32 vcc, s{NONCE}, v13")
    a("s_nop 4")
    a("s_cmp_eq_u64 vcc, -1")
    a("s_cbranch_scc1 Lfa_agot")
    a("s_sleep 1")
    a(f"buffer_load_dword v13, v12, s[{WS}:{WS+3}], 0 offen sc1")
    a("s_sub_u32 s55, s55, 1")
    a("s_cmp_lg_u32 s55, 0")
    a("s_cbranch_scc1 Lfa_aspin")
    a("s_waitcnt vmcnt(0)")
    a.label("Lfa_agot")
    a_loads()
    st(3)
    a("s_branch Lfa_attn")

    a.label("Lfa_compute")
    a("s_lshr_b32 s48, s3, 1")
    a("s_and_b32 s49, s3, 1")
    a("v_and_b32 v2, 31, v1")
    a("v_lshrrev_b32 v3, 5, v1")
    a("v_bfe_u32 v9, v2, 1, 3")
    a("v_xor_b32 v9, v9, v3")
    a("s_lshl_b32 s50, s48, 12")
    a("v_lshlrev_b32 v18, 7, v2")
    a("v_add_u32 v18, s50, v18")
    for s in range(4):
        a(f"v_xor_b32 v19, {2*s}, v9")
        a("v_lshlrev_b32 v19, 4, v19")
        a(f"v_add_u32 v{10+s}, v18, v19")
        a(f"v_add_u32 v{14+s}, 0x10000, v{10+s}")
    a("v_lshlrev_b32 v24, 3, v3")
    a("v_bfe_u32 v25, v1, 2, 2")
    a("v_add_u32 v24, v24, v25")
    a("s_movk_i32 s50, 384")
    a("v_mul_lo_u32 v24, v24, s50")
    a("v_bfe_u32 v25, v1, 4, 1")
    a("v_lshlrev_b32 v25, 5, v25")
    a("v_add_u32 v24, v24, v25")
    a("v_and_b32 v25, 3, v1")
    a("v_lshlrev_b32 v25, 3, v25")
    a("v_add_u32 v24, v24, v25")
    a("v_add_u32 v24, 8192, v24")
    a("v_bfe_u32 v25, v1, 3, 1")
    a("s_mul_i32 s50, s49, 3")
    for ct in range(3):
        a(f"s_add_u32 s51, s50, {ct}")
        a("v_xor_b32 v26, s51, v25")
        a("v_lshlrev_b32 v26, 6, v26")
        a(f"v_add_u32 v{18+ct}, v24, v26")
        a(f"v_add_u32 v{21+ct}, 0x10000, v{18+ct}")
    a("v_lshlrev_b32 v24, 4, v1")
    a("v_bfe_u32 v25, v1, 4, 1")
    a(f"s_mov_b32 s50, {HEAD_STRIDE}")
    a("v_mul_lo_u32 v25, v25, s50")
    a("v_lshlrev_b32 v26, 8, v3")
    a("v_add_u32 v25, v25, v26")
    a("v_and_b32 v26, 15, v1")
    a("v_lshlrev_b32 v26, 4, v26")
    a("v_add_u32 v25, v25, v26")
    a(f"s_mul_i32 s52, s{S_G}, {4*HEAD_STRIDE}")
    a(f"s_lshl_b32 s53, s{S_TB}, 1")
    a("s_add_u32 s53, s53, s48")
    a("s_lshl_b32 s54, s53, 11")
    a("s_add_u32 s54, s54, 65536")
    a("s_lshl_b32 s53, s53, 10")
    a(f"s_mov_b32 s55, {f32bits(QSCALE):#x}")
    ACC = 64
    for r in range(48): a(f"v_mov_b32 v{ACC+r}, 0")
    early_setup()
    a("s_waitcnt lgkmcnt(0)")
    srd(a, WS, 46, 47, WS_SIZE)
    if os.environ.get("XTOUCH", "0") == "1":
        a("s_cmp_eq_u32 s3, 3")
        a("s_cbranch_scc0 Lfa_nxt")
        srd(a, XB, 34, 35, 2048*1024)
        a("v_lshrrev_b32 v129, 3, v1")
        a("v_lshlrev_b32 v129, 10, v129")
        a("v_and_b32 v130, 7, v1")
        a("v_lshlrev_b32 v130, 7, v130")
        a("v_add_u32 v129, v129, v130")
        a(f"s_lshl_b32 s60, s{S_TB}, 16")
        a(f"s_and_b32 s61, s{S_G}, 3")
        a("s_lshl_b32 s61, s61, 14")
        a("s_add_u32 s60, s60, s61")
        a("s_add_u32 s61, s60, 8192")
        a(f"buffer_load_dword v131, v129, s[{XB}:{XB+3}], s60 offen")
        a(f"buffer_load_dword v132, v129, s[{XB}:{XB+3}], s61 offen")
        a.label("Lfa_nxt")
    XF = [28, 32]; WF = [36, 48]; PK = 112
    def read_frags(slot, s, buf):
        xr = (10 if slot < 2 else 14) + s
        a(f"ds_read_b128 {vr(XF[buf],4)}, v{xr} offset:{(slot%2)*SLOT}")
        for ct in range(3):
            reg = (18 if slot < 2 else 21) + ct
            off = (slot % 2) * SLOT + s * 6144
            a(f"ds_read_b64_tr_b16 {vr(WF[buf]+4*ct,2)}, v{reg} offset:{off}")
            a(f"ds_read_b64_tr_b16 {vr(WF[buf]+4*ct+2,2)}, v{reg} offset:{off+1536}")
    def body(types, tag):
        L = f"Lpj{tag}"
        st(1)
        a("s_mov_b32 s57, 0")
        a.label(L + "_loop")
        for slot in range(4):
            a("s_barrier")
            if slot == 0:
                a("s_cmp_eq_u32 s57, 2")
                a(f"s_cselect_b32 s58, {BKV}, 0")
                for r in (10, 11, 12, 13, 18, 19, 20):
                    a(f"v_add_u32 v{r}, s58, v{r}")
            if slot == PUB % 4:
                a(f"s_cmp_eq_u32 s57, {PUB // 4}")
                a(f"s_cbranch_scc0 {L}_np")
                a("s_waitcnt vmcnt(0)")
                a.label(L + "_np")
            read_frags(slot, 0, 0)
            for s in range(4):
                buf = s % 2
                if s < 3:
                    read_frags(slot, s+1, buf ^ 1)
                    a("s_waitcnt lgkmcnt(7)")
                else:
                    a("s_waitcnt lgkmcnt(0)")
                for ct in range(3):
                    acc = ACC + ct*16
                    if types[ct] == 'V':
                        mfma(a, acc, XF[buf], WF[buf]+4*ct, acc)
                    else:
                        mfma(a, acc, WF[buf]+4*ct, XF[buf], acc)
            if slot == 0:
                for r in (10, 11, 12, 13, 18, 19, 20):
                    a(f"v_subrev_u32 v{r}, s58, v{r}")
        a("s_add_u32 s57, s57, 1")
        a("s_bitcmp1_b32 s57, 0")
        a(f"s_cbranch_scc1 {L}_loop")
        a("s_nop 15")
        n = 0
        for ct in range(3):
            acc = ACC + ct*16
            c = tag*3 + ct
            ty = types[ct]
            for e in range(2):
                pk = PK + (n % 4)*4; n += 1
                if ty == 'Q':
                    for r in range(8):
                        a(f"v_mul_f32 v{acc+8*e+r}, s55, v{acc+8*e+r}")
                for r in range(4):
                    a(f"v_cvt_pk_bf16_f32 v{pk+r}, v{acc+2*r+8*e}, v{acc+8*e+2*r+1}")
                if ty == 'Q':
                    a(f"s_add_u32 s59, s52, {(2*(c%2)+e)*HEAD_STRIDE}")
                    a("s_add_u32 s59, s59, s53")
                    a(f"buffer_store_dwordx4 {vr(pk,4)}, v24, s[{WS}:{WS+3}], s59 offen sc1")
                elif ty == 'K':
                    a(f"s_add_u32 s59, s52, {(2*(c%2)+e)*HEAD_STRIDE}")
                    a("s_add_u32 s59, s59, s54")
                    a(f"buffer_store_dwordx4 {vr(pk,4)}, v24, s[{WS}:{WS+3}], s59 offen sc1")
                else:
                    a(f"s_add_u32 s59, s52, {(2*(c%2))*HEAD_STRIDE + 1024 + 512*e}")
                    a("s_add_u32 s59, s59, s54")
                    a(f"buffer_store_dwordx4 {vr(pk,4)}, v25, s[{WS}:{WS+3}], s59 offen sc1")
        for r in range(48): a(f"v_mov_b32 v{ACC+r}, 0")
        a(f"s_add_u32 s52, s52, {PROB_STRIDE}")
        a("s_cmp_lt_u32 s57, 4")
        a(f"s_cbranch_scc1 {L}_loop")
        st(2); st(3)
        a("s_branch Lfa_attn")
    a("s_cmp_eq_u32 s49, 0")
    a("s_cbranch_scc0 Lfa_wn1")
    body(['Q', 'Q', 'K'], 0)
    a.label("Lfa_wn1")
    body(['K', 'V', 'V'], 1)

    a.label("Lfa_attn")
    a("s_and_b32 s64, s3, 3")
    a("s_lshl_b32 s64, s64, 11")
    a(f"s_add_u32 s64, s64, 32768")
    a(f"v_add_u32 v{T0}, s64, v{LIN}")
    a(f"v_add_u32 v{T1}, {BKV}, v{LIN}")
    a(f"s_mul_i32 s62, s{S_H}, {HEAD_STRIDE}")
    a("s_lshl_b32 s63, s3, 10")
    a("s_add_u32 s62, s62, s63")
    WOV = 0
    a("v_lshrrev_b32 v0, 3, v1")
    a("v_lshlrev_b32 v0, 10, v0")
    a(f"v_bfe_u32 v{T2}, v1, 4, 1")
    a(f"v_lshlrev_b32 v{T2}, 2, v{T2}")
    a(f"v_and_b32 v{T3}, 7, v1")
    a(f"v_xor_b32 v{T2}, v{T2}, v{T3}")
    a(f"v_lshlrev_b32 v{T2}, 4, v{T2}")
    a(f"v_add_u32 v0, v0, v{T2}")
    a(f"s_lshl_b32 s34, s{S_QB}, 3")
    a("s_add_u32 s34, s34, s3")
    a("s_min_u32 s35, s34, 8")
    a(f"s_mul_i32 s36, s{S_H}, {HEAD_STRIDE}")
    a(f"s_add_u32 s36, s36, {PROB_STRIDE}")
    a("s_load_dwordx2 s[44:45], s[0:1], 16")
    a("s_load_dwordx4 s[48:51], s[0:1], 40")
    a("s_bfe_u32 s75, s2, 0x20001")
    a("s_and_b32 s52, s2, 1")
    a("s_lshl_b32 s52, s52, 2")
    a("s_bfe_u32 s53, s2, 0x20003")
    a("s_add_u32 s39, s52, s53")
    a("s_lshl_b32 s42, s3, 13")
    a("s_lshl_b32 s52, s39, 7")
    a("s_add_u32 s42, s42, s52")
    a("s_waitcnt lgkmcnt(0)")
    srd(a, WOA, 44, 45, 512*1024)
    srd(a, WOB, 48, 49, 512*1024)
    srd(a, OUT, 50, 51, 2048*2048)
    st(4)
    st.l(1)
    a("s_waitcnt vmcnt(8)")
    a("s_barrier")
    st(5)
    st.l(2)
    a(f"ds_read_b128 {vr(QA[0],4)}, v{T0}")
    a(f"ds_read_b128 {vr(QA[1],4)}, v{T0} offset:1024")
    a(f"ds_read_b128 {vr(KF,4)}, v{T1}")
    a("s_waitcnt lgkmcnt(0)")
    mfma(a, SB[0][0], KF, QA[0], "0")
    mfma(a, SB[1][0], KF, QA[1], "0")
    a("s_cmp_eq_u32 s3, 4")
    a("s_cbranch_scc0 La_nnw")
    a(f"v_mov_b32 v{T0}, {XCH + 512}")
    a(f"v_mov_b32 v{T1}, s{NONCE}")
    a(f"ds_write_b32 v{T0}, v{T1}")
    a("s_waitcnt lgkmcnt(0)")
    a.label("La_nnw")
    a("s_barrier")
    a(f"v_mov_b32 v{T0}, {XCH + 512}")
    a(f"ds_read_b32 v{T0}, v{T0}")
    a("s_waitcnt lgkmcnt(0)")
    a(f"v_readfirstlane_b32 s{NONCE}, v{T0}")
    for q in range(2):
        for r in range(16):
            a(f"v_mov_b32 v{OACC[q]+r}, 0") if r < 6 else None
    for q, m in ((0, MX), (1, MX1)):
        s = SB[q][0]
        a(f"v_max_f32 v{m}, v{s}, v{s+1}")
        for r in range(1, 8):
            a(f"v_max3_f32 v{m}, v{s+2*r}, v{s+2*r+1}, v{m}")
    def halves_max(m, t):
        a(f"v_mov_b32 v{t}, v{m}")
        a("s_nop 1")
        a(f"v_permlane32_swap_b32 v{m}, v{t}")
        a("s_nop 1")
        a(f"v_max_f32 v{m}, v{m}, v{t}")
    def read_v(buf, areg, off):
        a("s_mov_b64 exec, s[40:41]")
        a(f"ds_read_b128 {vr(buf,4)}, v{areg} offset:{off}")
        a(f"ds_read_b128 {vr(buf+4,4)}, v{areg} offset:{off+512}")
        a("s_mov_b64 exec, -1")
    def step(cur, p, o, early, qk, pre_pv0, mid, pre_pv1, vb):
        E = lambda i: a(f"v_exp_f32 v{cur+i}, v{cur+i}")
        C = lambda j: a(f"v_cvt_pk_bf16_f32 v{p+j}, v{cur+2*j}, v{cur+2*j+1}")
        E(0); E(1)
        early()
        E(2); E(3); C(0); E(4); C(1); E(5)
        qk()
        E(6); E(7); C(2); E(8); C(3); E(9); E(10)
        pre_pv0()
        mfma(a, o, vb, p, o)
        E(11); C(4); E(12); C(5); E(13); E(14); E(15); C(6); C(7)
        mid()
        pre_pv1()
        mfma(a, o, vb+4, p+4, o)
    nop = lambda: None
    a.label("La_main")
    a(f"ds_read_b128 {vr(KF,4)}, v{VKA}")
    read_v(VF[0], VVA, 0)
    a(f"ds_read_b128 {vr(KF+4,4)}, v{VKA} offset:2048")
    halves_max(MX, TMP)
    halves_max(MX1, TMP)
    for q, m in ((0, MX), (1, MX1)):
        for r in range(16):
            a(f"v_sub_f32 v{CNEG[q]+r}, 0, v{m}")
    a("s_waitcnt lgkmcnt(3)")
    mfma(a, SB[0][0], KF, QA[0], CNEG[0])
    mfma(a, SB[1][0], KF, QA[1], CNEG[1])
    for q in range(2):
        for r in range(16):
            a(f"v_mov_b32 v{OACC[q]+r}, 0")
    U = 8
    a("s_mov_b32 s38, 0")
    a.raw(".p2align 6")
    a.label("La_loop")
    st.ldyn(3, "a")
    def kv_dma(j):
        for u in range(4):
            a(f"s_add_u32 m0, s63, {(j-1)*32768 + (u&1)*8192 + (u>>1)*16384}")
            a(f"s_add_u32 s66, s62, {65536 + j*16384 + (u&1)*8192 + (u>>1)*65536}")
            a(f"buffer_load_dwordx4 v{LIN}, s[{WS}:{WS+3}], s66 offen sc1 lds")
    def wo_dma(srdr, half, ldsbase):
        for u in range(4):
            a(f"s_add_u32 m0, s63, {ldsbase + u*8192}")
            a(f"s_add_u32 s66, s42, {(256*half + 64*u)*1024}")
            a(f"buffer_load_dwordx4 v{WOV}, s[{srdr}:{srdr+3}], s66 offen lds")
    for n in range(U):
        vb = VF[n % 2]
        if n == 3:
            a("s_cmp_eq_u32 s38, 3")
            a("s_cselect_b32 s64, s73, 1")
            a("s_cmp_eq_u32 s64, 0")
            a("s_cbranch_scc0 La_ng0")
            wo_dma(WOA, 0, 0)
            a.label("La_ng0")
        if n == 1:
            a("s_cmp_lg_u32 s73, 0")
            a("s_cbranch_scc1 La_sd")
            a("s_cmp_eq_u32 s38, 0")
            a("s_cbranch_scc0 La_s1")
            kv_dma(2)
            a("s_branch La_sd")
            a.label("La_s1")
            a("s_cmp_eq_u32 s38, 1")
            a("s_cbranch_scc0 La_s2")
            kv_dma(3)
            a("s_branch La_sd")
            a.label("La_s2")
            a("s_cmp_lt_u32 s3, 4")
            a("s_cbranch_scc1 La_sd")
            a("s_cmp_eq_u32 s38, 2")
            a("s_cbranch_scc0 La_s3")
            a(f"buffer_load_dword v{T2}, v2, s[{WS}:{WS+3}], 0 offen sc1")
            a("s_branch La_sd")
            a.label("La_s3")
            a(f"s_mov_b32 s67, {SPIN}")
            a.label("La_bspin")
            a("s_waitcnt vmcnt(0)")
            a(f"v_cmp_eq_u32 vcc, s{NONCE}, v{T2}")
            a("s_nop 4")
            a("s_cmp_eq_u64 vcc, -1")
            a("s_cbranch_scc1 La_bgot")
            a("s_sleep 1")
            a(f"buffer_load_dword v{T2}, v2, s[{WS}:{WS+3}], 0 offen sc1")
            a("s_sub_u32 s67, s67, 1")
            a("s_cmp_lg_u32 s67, 0")
            a("s_cbranch_scc1 La_bspin")
            a("s_waitcnt vmcnt(0)")
            a.label("La_bgot")
            b_loads(a, LIN, QBL)
            a.label("La_sd")
        if n == 5:
            a("s_cmp_lg_u32 s73, 0")
            a("s_cbranch_scc1 La_nowait")
            a("s_cmp_eq_u32 s38, 3")
            a("s_cbranch_scc1 La_nowait")
            a("s_cmp_eq_u32 s38, 2")
            a("s_cbranch_scc1 La_w2")
            a("s_waitcnt vmcnt(4)")
            a("s_branch La_wd")
            a.label("La_w2")
            a("s_waitcnt vmcnt(1)")
            a.label("La_wd")
            a("s_barrier")
            a("s_cmp_eq_u32 s38, 0")
            a("s_cselect_b32 s64, s3, 0")
            a("s_cmp_eq_u32 s64, 4")
            a("s_cbranch_scc0 La_nowait")
            a(f"s_add_u32 s56, s74, {FB}")
            a(f"v_mov_b32 v{T0}, s56")
            a(f"v_mov_b32 v{T1}, s{NONCE}")
            a("s_mov_b64 exec, 1")
            a(f"buffer_store_dword v{T1}, v{T0}, s[{WS}:{WS+3}], 0 offen sc1")
            a("s_mov_b64 exec, -1")
            a.label("La_nowait")
        for q in range(2):
            cur, nxt = SB[q][n % 2], SB[q][(n+1) % 2]
            def early(n=n):
                if n + 1 < U: read_v(VF[(n+1) % 2], VVA, (n+1)*2048)
                else: read_v(VF[(n+1) % 2], VVN, 0)
            def qk(q=q, nxt=nxt, n=n):
                if q == 0: a("s_waitcnt lgkmcnt(2)")
                mfma(a, nxt, KF+4*((n+1) % 2), QA[q], CNEG[q])
                if q == 1:
                    if n + 2 < U: a(f"ds_read_b128 {vr(KF+4*(n % 2),4)}, v{VKA} offset:{(n+2)*2048}")
                    else: a(f"ds_read_b128 {vr(KF+4*(n % 2),4)}, v{VKN} offset:{(n+2-U)*2048}")
            step(cur, PP[q], OACC[q], early if q == 0 else nop, qk, nop,
                 lambda: a("s_nop 1"), nop, vb)
    a(f"v_mov_b32 v{VKA}, v{VKN}")
    a(f"v_mov_b32 v{VVA}, v{VVN}")
    a(f"v_add_u32 v{VKN}, 32768, v{VKN}")
    a(f"v_add_u32 v{VVN}, 32768, v{VVN}")
    a("s_add_u32 s38, s38, 1")
    a("s_cmp_lg_u32 s38, 4")
    a("s_cbranch_scc1 La_loop")
    st(6)
    st.l(7)
    a("s_waitcnt lgkmcnt(0)")
    a("s_nop 7")
    a(f"v_mov_b32 v{TMP}, 0x71800000")
    a(f"v_cmp_lt_f32 vcc, v{OACC[0]+8}, v{TMP}")
    a(f"v_cmp_lt_f32 s[58:59], v{OACC[1]+8}, v{TMP}")
    a("s_nop 4")
    a("s_and_b64 s[58:59], s[58:59], vcc")
    a("s_cmp_eq_u64 s[58:59], -1")
    a("s_cselect_b32 s64, 0, 1")
    a("s_cmp_lg_u32 s73, 0")
    a("s_cselect_b32 s64, 0, s64")
    a("s_lshl_b32 s65, s3, 2")
    a(f"s_add_u32 s65, s65, {XCH}")
    a(f"v_mov_b32 v{T0}, s65")
    a(f"v_mov_b32 v{T1}, s64")
    a(f"ds_write_b32 v{T0}, v{T1}")
    a("s_mul_i32 s65, s3, 2560")
    a(f"s_add_u32 s65, s65, {XCH + 1024}")
    a(f"v_add_u32 v{T0}, s65, v{LIN}")
    a(f"v_lshrrev_b32 v{T1}, 2, v{LIN}")
    a(f"v_add_u32 v{T1}, s65, v{T1}")
    a("s_cmp_eq_u32 s70, 0")
    a("s_cbranch_scc0 La_sendq0")
    for lab, qs in (("La_sendq1", 1), ("La_sendq0", 0)):
        if qs == 0: a.label(lab)
        a(f"ds_write_b128 v{T0}, {vr(OACC[qs],4)}")
        a(f"ds_write_b128 v{T0}, {vr(OACC[qs]+4,4)} offset:1024")
        a(f"ds_write_b32 v{T1}, v{OACC[qs]+8} offset:2048")
        if qs == 1:
            a("s_branch La_sent")
        else:
            for r in range(9):
                a(f"v_mov_b32 v{OACC[0]+r}, v{OACC[1]+r}")
    a.label("La_sent")
    a("s_waitcnt vmcnt(0) lgkmcnt(0)")
    a("s_barrier")
    a(f"v_and_b32 v{T2}, 7, v1")
    a(f"v_lshlrev_b32 v{T2}, 2, v{T2}")
    a(f"v_add_u32 v{T2}, {XCH}, v{T2}")
    a(f"ds_read_b32 v{T2}, v{T2}")
    a("s_xor_b32 s64, s3, 4")
    a("s_mul_i32 s65, s64, 2560")
    a(f"s_add_u32 s65, s65, {XCH + 1024}")
    a(f"v_add_u32 v{T0}, s65, v{LIN}")
    a(f"v_lshrrev_b32 v{T1}, 2, v{LIN}")
    a(f"v_add_u32 v{T1}, s65, v{T1}")
    a(f"ds_read_b128 {vr(SB[0][0],4)}, v{T0}")
    a(f"ds_read_b128 {vr(SB[0][0]+4,4)}, v{T0} offset:1024")
    a(f"ds_read_b32 v{SB[0][0]+8}, v{T1} offset:2048")
    a("s_lshl_b32 s37, s3, 11")
    a(f"s_add_u32 s37, s37, {BKV}")
    a("s_waitcnt lgkmcnt(0)")
    a(f"v_cmp_ne_u32 vcc, 0, v{T2}")
    a("s_nop 4")
    a("s_cmp_eq_u64 vcc, 0")
    a("s_cbranch_scc1 La_done")
    a("s_barrier")
    a("s_mov_b32 s73, 1")
    for u in range(4):
        a(f"s_add_u32 m0, s63, {BKV + (u&1)*8192 + (u>>1)*16384}")
        a(f"s_add_u32 s66, s62, {65536 + (u&1)*8192 + (u>>1)*65536}")
        a(f"buffer_load_dwordx4 v{LIN}, s[{WS}:{WS+3}], s66 offen sc1 lds")
    kv_dma(1)
    a("s_waitcnt vmcnt(0)")
    a("s_barrier")
    a(f"v_mov_b32 v{MX}, 0xff800000")
    a(f"v_mov_b32 v{MX1}, 0xff800000")
    a("s_mov_b32 s38, 0")
    a.label("La_fb")
    a("s_bfe_u32 s64, s38, 0x20003")
    a("s_sub_u32 s65, s64, 1")
    a("s_lshl_b32 s65, s65, 15")
    a("s_cmp_eq_u32 s64, 0")
    a(f"s_cselect_b32 s65, {BKV}, s65")
    a("s_lshr_b32 s64, s38, 5")
    a("s_lshl_b32 s64, s64, 14")
    a("s_add_u32 s65, s65, s64")
    a("s_and_b32 s64, s38, 7")
    a("s_lshl_b32 s64, s64, 11")
    a("s_add_u32 s65, s65, s64")
    a(f"v_add_u32 v{T0}, s65, v{LIN}")
    a(f"ds_read_b128 {vr(KF,4)}, v{T0}")
    a("s_waitcnt lgkmcnt(0)")
    mfma(a, SB[0][0], KF, QA[0], "0")
    mfma(a, SB[1][0], KF, QA[1], "0")
    a("s_nop 15")
    for q, m in ((0, MX), (1, MX1)):
        s = SB[q][0]
        for r in range(8):
            a(f"v_max3_f32 v{m}, v{s+2*r}, v{s+2*r+1}, v{m}")
    a("s_add_u32 s38, s38, 1")
    a("s_cmp_lg_u32 s38, 64")
    a("s_cbranch_scc1 La_fb")
    a(f"v_add_u32 v{VKN}, s71, v{LIN}")
    a(f"v_add_u32 v{VVN}, s71, v{VLO}")
    a(f"v_add_u32 v{VKA}, s72, v{LIN}")
    a(f"v_add_u32 v{VVA}, s72, v{VLO}")
    a("s_branch La_main")
    a.label("La_done")
    a("s_cmp_eq_u32 s73, 0")
    a("s_cbranch_scc1 La_bok")
    a("s_barrier")
    wo_dma(WOA, 0, 0)
    a("s_cmp_lt_u32 s3, 4")
    a("s_cbranch_scc1 La_brl")
    b_loads(a, LIN, QBL)
    a.label("La_brl")
    a("s_waitcnt vmcnt(0)")
    a("s_barrier")
    a.label("La_bok")
    a(f"v_add_u32 v{VKA}, s37, v{LIN}")
    a(f"v_add_u32 v{VVA}, s37, v{VLO}")
    a("s_lshl_b32 s64, s3, 10")
    a(f"s_add_u32 s64, s64, {QBL}")
    a(f"v_add_u32 v{T0}, s64, v{LIN}")
    a(f"ds_read_b128 {vr(QB,4)}, v{T0}")
    for i in range(8, -1, -1):
        a(f"ds_read_b128 {vr(KF+4*i,4)}, v{VKA} offset:{i*2048}")
    for r in range(9):
        a(f"v_add_f32 v{OACC[0]+r}, v{OACC[0]+r}, v{SB[0][0]+r}")
    a("s_and_b32 s64, s3, 3")
    a("s_lshl_b32 s64, s64, 1")
    a("s_add_u32 s64, s64, s70")
    a(f"s_lshl_b32 s65, s{S_QB}, 3")
    a("s_add_u32 s64, s64, s65")
    a("s_lshl_b32 s64, s64, 10")
    a(f"s_lshl_b32 s68, s{S_H}, 16")
    a("s_add_u32 s68, s68, s64")
    a(f"s_add_u32 s68, s68, {O_BASE}")
    def finish_o(o, lreg, soff):
        a(f"v_rcp_f32 v{TMP}, v{lreg}")
        a("s_nop 1")
        for r in range(8):
            a(f"v_mul_f32 v{o+r}, v{o+r}, v{TMP}")
        for r in range(4):
            a(f"v_cvt_pk_bf16_f32 v{PP[1]+r}, v{o+2*r}, v{o+2*r+1}")
        a(f"buffer_store_dwordx4 {vr(PP[1],4)}, v{LIN}, s[{WS}:{WS+3}], {soff} offen sc1")
    def o_flag(p):
        a("s_lshl_b32 s56, s2, 3")
        a("s_add_u32 s56, s56, s3")
        a("s_lshl_b32 s56, s56, 7")
        a(f"s_add_u32 s56, s56, {FO + p*262144}")
        a(f"v_mov_b32 v{T0}, s56")
        a(f"v_mov_b32 v{T1}, s{NONCE}")
        a("s_mov_b64 exec, 1")
        a(f"buffer_store_dword v{T1}, v{T0}, s[{WS}:{WS+3}], 0 offen sc1")
        a("s_mov_b64 exec, -1")
    a("s_waitcnt lgkmcnt(6)")
    SP = [80, 96, 112, 128]
    def qk1(i):
        c = MHI if i == 8 else (MLO if i == 0 else "0")
        mfma(a, SP[(8-i) % 4], KF+4*i, QB, c)
    qk1(8); qk1(7); qk1(6)
    finish_o(OACC[0], OACC[0]+8, "s68")
    st(7)
    st.l(8)
    a("s_waitcnt lgkmcnt(0)")
    a("s_barrier")
    read_v(VF[0], VVA, 8*2048)
    wo_dma(WOA, 1, 32768)
    a("s_mov_b32 s38, s35")
    for i in range(8, -1, -1):
        s = SP[(8-i) % 4]
        if i == 8:
            a(f"v_max_f32 v{MX}, v{s}, v{s+1}")
            for r in range(1, 8):
                a(f"v_max3_f32 v{MX}, v{s+2*r}, v{s+2*r+1}, v{MX}")
        else:
            for r in range(8):
                a(f"v_max3_f32 v{MX}, v{s+2*r}, v{s+2*r+1}, v{MX}")
        if i > 0:
            a("s_cmp_eq_u32 s38, 0")
            a("s_cbranch_scc1 Lb_p1_done")
            a("s_sub_u32 s38, s38, 1")
        if i - 3 >= 0:
            qk1(i - 3)
    a.label("Lb_p1_done")
    halves_max(MX, TMP)
    st(8)
    st.l(9)
    wo_dma(WOB, 0, 65536)
    for r in range(16):
        a(f"v_sub_f32 v{MHI+r}, v{MHI+r}, v{MX}")
    a("s_nop 1")
    mfma(a, SP[0], KF+4*8, QB, MHI)
    for r in range(16):
        a(f"v_sub_f32 v{CNEG[0]+r}, 0, v{MX}")
        a(f"v_sub_f32 v{MLO+r}, v{MLO+r}, v{MX}")
        a(f"v_mov_b32 v{OACC[0]+r}, 0")
    a("s_waitcnt vmcnt(8)")
    o_flag(0)
    wo_dma(WOB, 1, 98304)
    a("s_mov_b32 s38, s35")
    for n, i in enumerate(range(8, -1, -1)):
        cur, nxt = SP[n % 2], SP[(n+1) % 2]
        vb = VF[n % 2]
        if i > 0:
            cn = MLO if i - 1 == 0 else CNEG[0]
            step(cur, PP[0], OACC[0],
                 lambda: read_v(VF[(n+1) % 2], VVA, (i-1)*2048),
                 lambda: mfma(a, nxt, KF+4*(i-1), QB, cn),
                 lambda: a("s_waitcnt lgkmcnt(2)"),
                 lambda: a("s_nop 1"), nop, vb)
            a("s_cmp_eq_u32 s38, 0")
            a("s_cbranch_scc1 Lb_p2_done")
            a("s_sub_u32 s38, s38, 1")
        else:
            step(cur, PP[0], OACC[0], nop, nop,
                 lambda: a("s_waitcnt lgkmcnt(0)"),
                 lambda: a("s_nop 1"), nop, vb)
    a.label("Lb_p2_done")
    st(9)
    st.l(10)
    a("s_nop 15")
    a(f"s_lshl_b32 s68, s{S_H}, 16")
    a("s_lshl_b32 s69, s34, 10")
    a("s_add_u32 s68, s68, s69")
    a(f"s_add_u32 s68, s68, {O_BASE + O_PROB}")
    finish_o(OACC[0], OACC[0]+8, "s68")
    OF, ACC2, WF2 = 16, 80, 112
    a("s_lshr_b32 s52, s3, 2")
    a("s_and_b32 s53, s3, 1")
    a("s_bfe_u32 s54, s3, 0x10001")
    a("s_lshl_b32 s55, s75, 1")
    a("s_add_u32 s55, s55, s53")
    a("s_lshl_b32 s56, s53, 2")
    a("s_add_u32 s56, s56, s75")
    a("s_cmp_eq_u32 s52, 0")
    a("s_cselect_b32 s56, s56, s55")
    a(f"s_lshl_b32 s57, s{S_QB}, 5")
    a("s_lshl_b32 s58, s54, 4")
    a("s_add_u32 s57, s57, s58")
    a("s_lshl_b32 s57, s57, 3")
    a("s_add_u32 s57, s57, s56")
    a("s_lshl_b32 s57, s57, 7")
    a("s_lshl_b32 s58, s52, 18")
    a("s_add_u32 s57, s57, s58")
    a(f"s_add_u32 s57, s57, {FO}")
    a(f"v_and_b32 v{T2}, 15, v1")
    a(f"v_lshlrev_b32 v{T2}, 10, v{T2}")
    a(f"v_add_u32 v{T2}, s57, v{T2}")
    a(f"s_lshl_b32 s59, s{S_QB}, 3")
    a("s_add_u32 s59, s59, s55")
    a("s_lshl_b32 s60, s59, 10")
    a(f"s_mul_i32 s61, s52, {O_PROB}")
    a("s_add_u32 s60, s60, s61")
    a(f"s_add_u32 s60, s60, {O_BASE}")
    a("s_bfe_u32 s61, s2, 0x20003")
    a("s_lshl_b32 s61, s61, 2")
    a(f"v_lshrrev_b32 v{T0}, 5, v1")
    a(f"v_lshlrev_b32 v{T1}, 2, v{T0}")
    a(f"v_bfe_u32 v{T3}, v1, 2, 2")
    a(f"v_add_u32 v{T1}, v{T1}, v{T3}")
    a(f"v_lshlrev_b32 v{T1}, 7, v{T1}")
    a(f"v_bfe_u32 v{T3}, v1, 4, 1")
    a(f"v_lshlrev_b32 v{T3}, 5, v{T3}")
    a(f"v_add_u32 v{T1}, v{T1}, v{T3}")
    a(f"v_and_b32 v{T3}, 3, v1")
    a(f"v_lshlrev_b32 v{T3}, 3, v{T3}")
    a(f"v_add_u32 v{T1}, v{T1}, v{T3}")
    a(f"v_bfe_u32 v{T3}, v1, 3, 1")
    a(f"v_lshlrev_b32 v{T3}, 6, v{T3}")
    a("s_lshl_b32 s62, s52, 16")
    a("s_lshl_b32 s63, s54, 15")
    a("s_add_u32 s62, s62, s63")
    a(f"v_add_u32 v{T1}, s62, v{T1}")
    a(f"v_add_u32 v{VKA}, v{T1}, v{T3}")
    a(f"v_xor_b32 v{T3}, 64, v{T3}")
    a(f"v_add_u32 v{VVA}, v{T1}, v{T3}")
    a(f"v_and_b32 v{VKN}, 31, v1")
    a(f"v_lshlrev_b32 v{VKN}, 11, v{VKN}")
    a(f"v_lshlrev_b32 v{T0}, 4, v{T0}")
    a(f"v_add_u32 v{VKN}, v{VKN}, v{T0}")
    a("s_waitcnt vmcnt(0)")
    o_flag(1)
    st(10)
    a("s_barrier")
    a(f"s_mov_b32 s67, {SPIN}")
    a.label("Lo_spin")
    a(f"buffer_load_dword v{T3}, v{T2}, s[{WS}:{WS+3}], 0 offen sc1")
    a("s_waitcnt vmcnt(0)")
    a(f"v_cmp_eq_u32 vcc, s{NONCE}, v{T3}")
    a("s_nop 4")
    a("s_cmp_eq_u64 vcc, -1")
    a("s_cbranch_scc1 Lo_got")
    a("s_sleep 1")
    a("s_sub_u32 s67, s67, 1")
    a("s_cmp_lg_u32 s67, 0")
    a("s_cbranch_scc1 Lo_spin")
    a.label("Lo_got")
    for sidx in range(16):
        pass
    a("s_lshl_b32 s63, s54, 20")
    a("s_add_u32 s60, s60, s63")
    for hh in range(16):
        a(f"s_add_u32 s64, s60, {hh*65536}")
        a(f"buffer_load_dwordx4 {vr(OF+4*hh,4)}, v{LIN}, s[{WS}:{WS+3}], s64 offen sc1")
    def rd(hh, buf):
        for ct, reg in ((0, VKA), (1, VVA)):
            a(f"ds_read_b64_tr_b16 {vr(WF2+8*buf+4*ct,2)}, v{reg} offset:{hh*2048}")
            a(f"ds_read_b64_tr_b16 {vr(WF2+8*buf+4*ct+2,2)}, v{reg} offset:{hh*2048+1024}")
    rd(0, 0)
    for hh in range(16):
        buf = hh % 2
        if hh < 15:
            rd(hh+1, buf ^ 1)
            a(f"s_waitcnt vmcnt({15-hh}) lgkmcnt(4)")
        else:
            a("s_waitcnt vmcnt(0) lgkmcnt(0)")
        for ct in range(2):
            acc = ACC2 + 16*ct
            mfma(a, acc, WF2+8*buf+4*ct, OF+4*hh, "0" if hh == 0 else acc)
    a("s_lshl_b32 s64, s3, 12")
    a(f"s_add_u32 s64, s64, {BKV}")
    a(f"v_add_u32 v{T0}, s64, v{LIN}")
    a("s_xor_b32 s65, s3, 2")
    a("s_lshl_b32 s65, s65, 12")
    a(f"s_add_u32 s65, s65, {BKV}")
    a(f"v_add_u32 v{T1}, s65, v{LIN}")
    a("s_nop 15")
    a("s_cmp_eq_u32 s54, 0")
    a("s_cbranch_scc0 Lo_send0")
    for r in range(4):
        a(f"ds_write_b128 v{T0}, {vr(ACC2+16+4*r,4)} offset:{r*1024}")
    a("s_branch Lo_sent")
    a.label("Lo_send0")
    for r in range(4):
        a(f"ds_write_b128 v{T0}, {vr(ACC2+4*r,4)} offset:{r*1024}")
    for r in range(16):
        a(f"v_mov_b32 v{ACC2+r}, v{ACC2+16+r}")
    a.label("Lo_sent")
    a("s_waitcnt lgkmcnt(0)")
    a("s_barrier")
    for r in range(4):
        a(f"ds_read_b128 {vr(OF+4*r,4)}, v{T1} offset:{r*1024}")
    a("s_lshl_b32 s64, s59, 16")
    a("s_lshl_b32 s65, s52, 10")
    a("s_add_u32 s64, s64, s65")
    a("s_lshl_b32 s65, s39, 7")
    a("s_add_u32 s64, s64, s65")
    a("s_lshl_b32 s65, s54, 6")
    a("s_add_u32 s64, s64, s65")
    a("s_waitcnt lgkmcnt(0)")
    for r in range(16):
        a(f"v_add_f32 v{ACC2+r}, v{ACC2+r}, v{OF+r}")
    for pr in range(2):
        b = ACC2 + 8*pr
        pk = WF2 + 4*pr
        for r in range(4):
            a(f"v_cvt_pk_bf16_f32 v{pk+r}, v{b+2*r}, v{b+2*r+1}")
        a("s_nop 1")
        a(f"v_permlane32_swap_b32 v{pk}, v{pk+2}")
        a(f"v_permlane32_swap_b32 v{pk+1}, v{pk+3}")
        a("s_nop 1")
        a(f"buffer_store_dwordx4 {vr(pk,4)}, v{VKN}, s[{OUT}:{OUT+3}], s64 offen offset:{pr*32}")
    st(11)
    st.p(11)
    st.flush(8, 12)
    a.label("Lfa_end")
    a("s_endpgm")

def b_loads(a, LIN, QBL):
    a("s_sub_u32 s51, s3, 4")
    a("s_lshl_b32 s51, s51, 10")
    a(f"s_lshl_b32 s50, s{S_QB}, 14")
    a("s_add_u32 s50, s50, s51")
    a("s_sub_u32 s50, s50, 16384")
    for u in range(8):
        a(f"s_add_u32 s54, s50, {u*4096}")
        a("s_max_i32 s54, s54, 0")
        a("s_add_u32 s54, s54, s36")
        a("s_add_u32 s54, s54, 65536")
        a(f"s_add_u32 m0, s51, {BKV + u*4096}")
        a(f"buffer_load_dwordx4 v{LIN}, s[{WS}:{WS+3}], s54 offen sc1 lds")
    a(f"s_lshl_b32 s50, s{S_QB}, 13")
    a("s_add_u32 s50, s50, s36")
    a("s_add_u32 s50, s50, s51")
    for u in range(2):
        a(f"s_add_u32 m0, s51, {QBL + u*4096}")
        a(f"s_add_u32 s54, s50, {u*4096}")
        a(f"buffer_load_dwordx4 v{LIN}, s[{WS}:{WS+3}], s54 offen sc1 lds")

def gen_oproj(a):
    a.raw(".p2align 8")
    a.raw(".type oproj_kernel,@function")
    a.label("oproj_kernel")
    a("s_cmp_ge_u32 s2, 256")
    a("s_cbranch_scc1 Lop_end")
    st = Stamper(a, "oproj", 1, "s20")
    st()
    a("s_load_dwordx2 s[4:5], s[0:1], 16")
    a("s_load_dwordx2 s[26:27], s[0:1], 40")
    a("s_load_dwordx2 s[28:29], s[0:1], 48")
    a("s_load_dwordx2 s[30:31], s[0:1], 64")
    a("s_and_b32 s32, s2, 7")
    a("s_lshr_b32 s33, s2, 3")
    a("s_lshr_b32 s23, s32, 2")
    a("s_and_b32 s34, s32, 3")
    a("s_lshl_b32 s34, s34, 2")
    a("s_and_b32 s35, s33, 3")
    a("s_add_u32 s24, s34, s35")
    a("s_lshr_b32 s25, s33, 2")
    a("v_and_b32 v1, 63, v0")
    a("v_lshrrev_b32 v2, 6, v0")
    a("s_nop 0")
    a("v_readfirstlane_b32 s20, v2")
    a("v_lshrrev_b32 v2, 3, v1")
    a("v_lshlrev_b32 v2, 10, v2")
    a("v_bfe_u32 v3, v1, 4, 1")
    a("v_lshlrev_b32 v3, 2, v3")
    a("v_and_b32 v5, 7, v1")
    a("v_xor_b32 v3, v3, v5")
    a("v_lshlrev_b32 v3, 4, v3")
    a("v_add_u32 v4, v2, v3")
    a("v_lshlrev_b32 v5, 4, v1")
    a("s_waitcnt lgkmcnt(0)")
    a("s_cmp_eq_u32 s23, 0")
    a("s_cselect_b32 s4, s4, s26")
    a("s_cselect_b32 s5, s5, s27")
    srd(a, 8, 4, 5, 512*1024)
    a(f"s_mul_i32 s36, s23, {O_PROB}")
    a(f"s_add_u32 s36, s36, {O_BASE}")
    a("s_add_u32 s30, s30, s36")
    a("s_addc_u32 s31, s31, 0")
    srd(a, 12, 30, 31, O_PROB)
    a("s_lshl_b32 s40, s20, 13")
    a("s_lshl_b32 s36, s25, 7")
    a("s_add_u32 s40, s40, s36")
    a("s_lshl_b32 s41, s20, 10")
    OF = 64
    a("s_lshl_b32 s42, s24, 2")
    a("s_add_u32 s42, s42, s20")
    a("s_lshl_b32 s43, s42, 10")
    a("s_lshl_b32 s49, s25, 2")
    a("s_and_b32 s47, s24, 3")
    a("s_lshl_b32 s47, s47, 3")
    a("s_add_u32 s49, s49, s47")
    a("s_lshl_b32 s46, s49, 4")
    a("s_lshl_b32 s47, s20, 3")
    a("s_add_u32 s46, s46, s47")
    a("s_lshl_b32 s48, s25, 7")
    def wdma(u):
        a(f"s_add_u32 m0, s41, {u*4096}")
        a(f"s_add_u32 s44, s46, {u*32}")
        a("s_and_b32 s44, s44, 511")
        a("s_lshl_b32 s44, s44, 10")
        a("s_add_u32 s44, s44, s48")
        a("buffer_load_dwordx4 v4, s[8:11], s44 offen lds")
    def oload(H):
        a(f"s_add_u32 s44, s49, {H}")
        a("s_and_b32 s44, s44, 31")
        a("s_lshl_b32 s44, s44, 16")
        a("s_add_u32 s44, s44, s43")
        a(f"buffer_load_dwordx4 {vr(OF+4*H,4)}, v5, s[12:15], s44 offen")
    for q in range(4):
        for u in range(4): wdma(4*q+u)
        for H in range(8): oload(8*q+H)
    srd(a, 16, 28, 29, 2048*2048)
    a("v_lshrrev_b32 v2, 5, v1")
    a("v_lshlrev_b32 v3, 2, v2")
    a("v_bfe_u32 v8, v1, 2, 2")
    a("v_add_u32 v3, v3, v8")
    a("v_lshlrev_b32 v3, 7, v3")
    a("v_bfe_u32 v8, v1, 4, 1")
    a("v_lshlrev_b32 v8, 5, v8")
    a("v_add_u32 v3, v3, v8")
    a("v_and_b32 v8, 3, v1")
    a("v_lshlrev_b32 v8, 3, v8")
    a("v_add_u32 v3, v3, v8")
    a("v_bfe_u32 v8, v1, 3, 1")
    a("v_lshlrev_b32 v8, 6, v8")
    a("v_add_u32 v6, v3, v8")
    a("v_xor_b32 v8, 64, v8")
    a("v_add_u32 v7, v3, v8")
    a("v_and_b32 v8, 31, v1")
    a("v_lshlrev_b32 v8, 11, v8")
    a("v_lshlrev_b32 v9, 4, v2")
    a("v_add_u32 v8, v8, v9")
    ACC = 16
    st()
    WF = [48, 56]
    def rd(H, buf):
        for ct in range(2):
            a(f"ds_read_b64_tr_b16 {vr(WF[buf]+4*ct,2)}, v{6+ct} offset:{H*2048}")
            a(f"ds_read_b64_tr_b16 {vr(WF[buf]+4*ct+2,2)}, v{6+ct} offset:{H*2048+1024}")
    for q in range(4):
        a(f"s_waitcnt vmcnt({8 + 12*(3-q)})")
        a("s_barrier")
        rd(8*q, 0)
        for hh in range(8):
            H = 8*q + hh
            buf = hh % 2
            if hh < 7:
                rd(H+1, buf ^ 1)
                a(f"s_waitcnt vmcnt({7-hh + 12*(3-q)}) lgkmcnt(4)")
            else:
                a(f"s_waitcnt vmcnt({12*(3-q)}) lgkmcnt(0)")
            for ct in range(2):
                acc = ACC+16*ct
                mfma(a, acc, WF[buf]+4*ct, OF+4*H, "0" if H == 0 else acc)
    a("s_nop 15")
    st()
    a("s_lshl_b32 s44, s42, 16")
    a("s_lshl_b32 s45, s23, 10")
    a("s_add_u32 s44, s44, s45")
    a("s_lshl_b32 s45, s25, 7")
    a("s_add_u32 s44, s44, s45")
    for ct in range(2):
        for pr in range(2):
            b = ACC + 16*ct + 8*pr
            pk = 48 + (ct*2+pr)*4
            for r in range(4):
                a(f"v_cvt_pk_bf16_f32 v{pk+r}, v{b+2*r}, v{b+2*r+1}")
            a("s_nop 1")
            a(f"v_permlane32_swap_b32 v{pk}, v{pk+2}")
            a(f"v_permlane32_swap_b32 v{pk+1}, v{pk+3}")
            a("s_nop 1")
            a(f"buffer_store_dwordx4 {vr(pk,4)}, v8, s[16:19], s44 offen offset:{ct*64+pr*32}")
    st()
    st.flush(4)
    a.label("Lop_end")
    a("s_endpgm")

def kd(name, vgpr, sgpr=102):
    acc = (vgpr + 3)//4*4
    return f""".section .rodata,"a"
.p2align 6
.amdhsa_kernel {name}
  .amdhsa_next_free_vgpr {vgpr}
  .amdhsa_next_free_sgpr {sgpr}
  .amdhsa_accum_offset {acc}
  .amdhsa_group_segment_fixed_size 0
  .amdhsa_kernarg_size 72
  .amdhsa_user_sgpr_count 2
  .amdhsa_user_sgpr_kernarg_segment_ptr 1
  .amdhsa_system_sgpr_workgroup_id_x 1
.end_amdhsa_kernel
"""

HEADER = """; Kernarg layout for this problem (72 bytes, ptrs only, base s[0:1]):
;   offset   0: d_in[0] A_x  shape=(1, 2048, 512) dtype=bfloat16
;   offset   8: d_in[1] A_wqkv  shape=(512, 1536) dtype=bfloat16
;   offset  16: d_in[2] A_wo  shape=(512, 512) dtype=bfloat16
;   offset  24: d_in[3] B_x  shape=(1, 2048, 512) dtype=bfloat16
;   offset  32: d_in[4] B_wqkv  shape=(512, 1536) dtype=bfloat16
;   offset  40: d_in[5] B_wo  shape=(512, 512) dtype=bfloat16
;   offset  48: d_out     shape=(1, 2048, 1024) dtype=bfloat16
;   offset  56: d_debug   256 bytes
;   offset  64: d_ws      268435456 bytes workspace
; @launch kernel=fa_kernel grid=(256,1,1) block=(512,1,1) lds=163840
.amdgcn_target "amdgcn-amd-amdhsa--gfx950"
.text
.globl fa_kernel
"""

def main(path):
    a = Asm()
    gen_fused(a)
    txt = HEADER + a.text() + kd("fa_kernel", 256)
    open(path, "w").write(txt)

if __name__ == "__main__":
    main(sys.argv[1] if len(sys.argv) > 1 else f"cdna_kernels/{NAME}.s")
```

```python
import sys, os, struct

NAME = "concat_heads__softmax_full_mha__sliding_block__prompt"
STAMPS = os.environ.get("STAMPS", "")

class Asm:
    def __init__(self): self.lines = []
    def __call__(self, s): self.lines.append("  " + s)
    def label(self, s): self.lines.append(s + ":")
    def raw(self, s): self.lines.append(s)
    def text(self): return "\n".join(self.lines) + "\n"

def vr(b, n=1): return f"v{b}" if n == 1 else f"v[{b}:{b+n-1}]"
def f32bits(x): return struct.unpack("<I", struct.pack("<f", x))[0]

HEAD_STRIDE = 196608
PROB_STRIDE = 32 * HEAD_STRIDE
O_BASE = 2 * PROB_STRIDE
O_PROB = 32 * 65536
F_BASE = 16 << 20
WS_SIZE = 17 << 20
QSCALE = 0.25 * 1.4426950408889634
SPIN = 1 << 16

def srd(a, d, lo, hi, nrec):
    a(f"s_mov_b32 s{d}, s{lo}")
    a(f"s_and_b32 s{d+1}, s{hi}, 0xffff")
    a(f"s_mov_b32 s{d+2}, {nrec}")
    a(f"s_mov_b32 s{d+3}, 0x00020000")

class Stamper:
    def __init__(self, a, kname, kidx, wavereg, base=76):
        self.a=a; self.on=(STAMPS==kname or (STAMPS in ("fp","fs","fl") and kname=="fa")); self.fp=(STAMPS in ("fp","fs","fl")); self.fs=(STAMPS=="fs"); self.fl=(STAMPS=="fl"); self.rt=(STAMPS=="rt"); self.n=0; self.base=base; self.wavereg=wavereg; self.kidx=kidx
        if self.rt:
            a("s_memrealtime s[76:77]"); a("s_memtime s[78:79]")
    def p(self, idx):
        if self.fp and ((not self.fs and not self.fl) or idx==11): self._st(idx)
    def l(self, idx):
        if self.fl: self._st(idx)
    def ldyn(self, base, uid):
        if not self.fl: return
        a=self.a
        for j in range(4):
            a(f"s_cmp_eq_u32 s38, {j}")
            a(f"s_cbranch_scc0 Lst{uid}_{j}")
            self._st(base+j)
            a.label(f"Lst{uid}_{j}")
    def f(self, idx):
        if self.fs: self._st(idx)
    def __call__(self, idx=None):
        if not self.on: return
        if self.fp and idx not in (0,): return
        self._st(idx)
    def _st(self, idx=None):
        if idx is not None: self.n = idx
        assert self.base+2*self.n+1 < 102
        self.a(f"s_memtime s[{self.base+2*self.n}:{self.base+2*self.n+1}]")
        self.a("s_waitcnt lgkmcnt(0)")
        self.n+=1
    def flush(self, nw, n=None):
        if not (self.on or self.rt): return
        a=self.a
        n = n or self.n
        if self.rt:
            a("s_waitcnt vmcnt(0)"); a("s_memrealtime s[80:81]"); a("s_memtime s[82:83]"); n=4
        a("s_load_dwordx2 s[4:5], s[0:1], 64")
        a("s_waitcnt vmcnt(0) lgkmcnt(0)")
        a(f"s_add_u32 s4, s4, {(64<<20) + (self.kidx<<20 if self.rt else 0)}")
        a("s_addc_u32 s5, s5, 0")
        srd(a, 8, 4, 5, 1<<20)
        a(f"s_mul_i32 s6, s2, {nw}")
        a(f"s_add_u32 s6, s6, {self.wavereg}")
        a("s_lshl_b32 s6, s6, 6")
        a("v_mov_b32 v1, s6")
        for i in range(n):
            a(f"v_mov_b32 v2, s{self.base+2*i}")
            a(f"buffer_store_dword v2, v1, s[8:11], 0 offen offset:{4*i}")
        a("s_waitcnt vmcnt(0)")

def mfma(a, d, x, y, c):
    cs = c if isinstance(c, str) else vr(c, 16)
    a(f"v_mfma_f32_32x32x16_bf16 {vr(d,16)}, {vr(x,4)}, {vr(y,4)}, {cs}")

WS, XB, WB, XA, WA, DBG = 4, 8, 12, 16, 20, 24
NONCE = 28
S_H, S_QB, S_G, S_TB = 30, 31, 32, 33
SLOT = 32768
BKV = 131072

def gen_fused(a):
    QA = [4, 8]; QB = 12
    OACC = [16, 32]
    CNEG = [48, 64]
    SB = [[80, 96], [112, 128]]
    PP = [144, 152]
    VF = [160, 168]
    KF = 176
    MHI, MLO = 212, 228
    VKA, VVA, TMP, LIN, MX, MX1 = 244, 245, 246, 247, 248, 249
    T0, T1, T2, T3 = 250, 251, 252, 253
    VKN, VVN = 254, 255
    VLO = 3
    XCH = 98304
    QBL = 122880
    FA, FB = F_BASE, F_BASE + 65536
    PUB = int(os.environ.get("PUB", "9"))
    FO = F_BASE + 131072
    WOA, WOB, OUT = 8, 12, 16

    a.raw(".p2align 8")
    a.raw(".type concat_heads__softmax_full_mha__sliding_block__prompt_kernel,@function")
    a.label("concat_heads__softmax_full_mha__sliding_block__prompt_kernel")
    a("s_cmp_ge_u32 s2, 256")
    a("s_cbranch_scc1 Lfa_end")
    st = Stamper(a, "fa", 0, "s3")
    st(0)
    a("s_load_dwordx4 s[36:39], s[0:1], 0")
    a("s_load_dwordx2 s[34:35], s[0:1], 24")
    a("s_load_dwordx2 s[42:43], s[0:1], 32")
    a("s_load_dwordx4 s[44:47], s[0:1], 56")
    a("v_and_b32 v1, 63, v0")
    a("v_lshrrev_b32 v2, 6, v0")
    a(f"s_and_b32 s{S_H}, s2, 31")
    a("v_readfirstlane_b32 s3, v2")
    a(f"s_lshr_b32 s{S_QB}, s2, 5")
    a("s_lshr_b32 s48, s2, 3")
    a("s_and_b32 s49, s2, 1")
    a("s_lshl_b32 s49, s49, 2")
    a("s_and_b32 s50, s48, 3")
    a(f"s_add_u32 s{S_G}, s49, s50")
    a("s_bfe_u32 s49, s2, 0x20001")
    a("s_lshl_b32 s49, s49, 3")
    a("s_lshr_b32 s50, s48, 2")
    a(f"s_add_u32 s{S_TB}, s49, s50")
    a(f"s_and_b32 s29, s{S_G}, 3")
    a("s_lshl_b32 s29, s29, 1")
    a(f"s_add_u32 s29, s29, s{S_TB}")
    a("s_and_b32 s29, s29, 7")
    a("s_cmp_lt_u32 s3, 4")
    a("s_cbranch_scc1 Lfa_compute")

    def early_setup():
        a(f"v_lshlrev_b32 v{LIN}, 4, v1")
        a(f"v_lshrrev_b32 v{T0}, 5, v1")
        a(f"v_lshlrev_b32 v{VLO}, 8, v{T0}")
        a(f"v_and_b32 v{T1}, 15, v1")
        a(f"v_lshlrev_b32 v{T1}, 4, v{T1}")
        a(f"v_add_u32 v{VLO}, v{VLO}, v{T1}")
        a(f"v_add_u32 v{VLO}, 1024, v{VLO}")
        a(f"v_and_b32 v{T1}, 27, v1")
        a(f"v_cmp_eq_u32 vcc, 16, v{T1}")
        a(f"v_mov_b32 v{T2}, 0x3f803f80")
        a(f"v_mov_b32 v{T3}, 0")
        a("s_nop 0")
        for r in range(16):
            a(f"v_cndmask_b32 v{VF[0]+r}, v{T3}, v{T2}, vcc")
        a(f"v_and_b32 v{T1}, 31, v1")
        a(f"v_lshlrev_b32 v{T0}, 2, v{T0}")
        a(f"v_sub_u32 v{T1}, v{T1}, v{T0}")
        a(f"v_mov_b32 v{T2}, 0xff800000")
        for r in range(16):
            cr = 8*(r//4) + r % 4
            a(f"v_cmp_le_i32 s[{62+2*(r%4)}:{63+2*(r%4)}], {cr}, v{T1}")
            if r % 4 == 3:
                a("s_nop 1")
                for q in range(r-3, r+1):
                    a(f"v_cndmask_b32 v{MHI+q}, v{T2}, v{T3}, s[{62+2*(q%4)}:{63+2*(q%4)}]")
                    a(f"v_cndmask_b32 v{MLO+q}, v{T3}, v{T2}, s[{62+2*(q%4)}:{63+2*(q%4)}]")
        a("s_lshr_b32 s70, s3, 2")
        a("s_lshl_b32 s71, s70, 14")
        a(f"s_add_u32 s72, s71, {BKV}")
        a(f"v_add_u32 v{VKN}, s71, v{LIN}")
        a(f"v_add_u32 v{VVN}, s71, v{VLO}")
        a(f"v_add_u32 v{VKA}, s72, v{LIN}")
        a(f"v_add_u32 v{VVA}, s72, v{VLO}")
        a("s_mov_b32 s73, 0")
        a("s_mov_b32 s40, 0x0000ffff")
        a("s_mov_b32 s41, 0x0000ffff")

    a("s_sub_u32 s48, s3, 4")
    a("v_lshrrev_b32 v2, 3, v1")
    a("v_lshlrev_b32 v2, 10, v2")
    a("v_and_b32 v3, 7, v1")
    a("v_lshrrev_b32 v6, 4, v1")
    a("v_xor_b32 v3, v3, v6")
    a("v_lshlrev_b32 v3, 4, v3")
    a("v_add_u32 v4, v2, v3")
    a("v_xor_b32 v5, 64, v4")
    a(f"s_lshl_b32 s50, s{S_TB}, 6")
    a("s_lshl_b32 s49, s48, 4")
    a("s_add_u32 s50, s50, s49")
    a("s_lshl_b32 s50, s50, 10")
    a("s_lshl_b32 s51, s48, 11")
    a("s_mul_i32 s52, s48, 49152")
    a(f"s_lshl_b32 s49, s{S_G}, 7")
    a("s_add_u32 s52, s52, s49")
    a("s_mul_i32 s53, s48, 6144")
    a("s_add_u32 s53, s53, 8192")
    a("s_movk_i32 s49, 171")
    a("s_movk_i32 s55, 3072")
    for v in range(3):
        a(f"v_add_u32 v2, {64*v}, v1")
        a("v_mul_lo_u32 v3, v2, s49")
        a("v_lshrrev_b32 v3, 12, v3")
        a("v_mul_u32_u24 v9, 24, v3")
        a("v_sub_u32 v9, v2, v9")
        a("v_bfe_u32 v10, v3, 1, 1")
        a("v_lshlrev_b32 v10, 2, v10")
        a("v_xor_b32 v9, v9, v10")
        a("v_mul_lo_u32 v3, v3, s55")
        a("v_lshrrev_b32 v10, 3, v9")
        a("v_lshlrev_b32 v10, 10, v10")
        a("v_add_u32 v3, v3, v10")
        a("v_and_b32 v9, 7, v9")
        a("v_lshlrev_b32 v9, 4, v9")
        a(f"v_add_u32 v{6+v}, v3, v9")
    a("s_waitcnt lgkmcnt(0)")
    srd(a, XA, 36, 37, 2048*1024)
    srd(a, WA, 38, 39, 512*3072)
    def dma_chunk(i, ldsbase=None):
        c = i % 8
        base = (i % 4)*SLOT if ldsbase is None else ldsbase
        xs, wsr = (XA, WA) if i < 8 else (XB, WB)
        a(f"s_add_u32 s58, s29, {c}")
        a("s_and_b32 s58, s58, 7")
        a("s_lshl_b32 s59, s58, 7")
        a("s_add_u32 s59, s59, s50")
        a(f"s_mul_i32 s58, s58, {64*3072}")
        a("s_add_u32 s58, s58, s52")
        for u in range(2):
            a(f"s_add_u32 m0, s51, {base + u*1024}")
            a(f"s_add_u32 s54, s59, {u*8192}")
            a(f"buffer_load_dwordx4 v{4 + u}, s[{xs}:{xs+3}], s54 offen lds")
        for u in range(6):
            up, v = divmod(u, 3)
            a(f"s_add_u32 m0, s53, {base + u*1024}")
            a(f"s_add_u32 s54, s58, {8*up*3072}")
            a(f"buffer_load_dwordx4 v{6 + v}, s[{wsr}:{wsr+3}], s54 offen lds")
    dma_chunk(0)
    dma_chunk(1)
    srd(a, XB, 34, 35, 2048*1024)
    srd(a, WB, 42, 43, 512*3072)
    srd(a, WS, 46, 47, WS_SIZE)
    srd(a, DBG, 44, 45, 256)
    a("s_cmp_eq_u32 s2, 0")
    a("s_cselect_b32 s49, s48, 1")
    a("s_cmp_eq_u32 s49, 0")
    a("s_cbranch_scc0 Lfa_nononce")
    a("s_memrealtime s[56:57]")
    a("s_waitcnt lgkmcnt(0)")
    a("s_or_b32 s56, s56, 1")
    a("v_mov_b32 v10, s56")
    a("v_mov_b32 v11, 0")
    a(f"buffer_store_dword v10, v11, s[{DBG}:{DBG+3}], 0 offen sc1")
    a.label("Lfa_nononce")
    dma_chunk(8, BKV)
    early_setup()
    a(f"s_lshr_b32 s56, s{S_H}, 2")
    a("s_lshl_b32 s56, s56, 12")
    a(f"s_add_u32 s56, s56, {FA}")
    a("v_and_b32 v12, 31, v1")
    a("v_lshlrev_b32 v12, 7, v12")
    a("v_add_u32 v12, s56, v12")
    a(f"s_lshl_b32 s56, s{S_G}, 5")
    a(f"s_add_u32 s56, s56, s{S_TB}")
    a("s_lshl_b32 s74, s56, 7")
    a("v_and_b32 v2, 7, v1")
    a(f"s_lshl_b32 s49, s{S_QB}, 2")
    a("s_sub_u32 s49, s49, 4")
    a("v_add_u32 v2, s49, v2")
    a("v_max_i32 v2, 0, v2")
    a(f"s_lshr_b32 s49, s{S_H}, 2")
    a("s_lshl_b32 s49, s49, 5")
    a("v_add_u32 v2, s49, v2")
    a("v_lshlrev_b32 v2, 7, v2")
    a(f"v_add_u32 v2, {FB}, v2")
    a("v_mov_b32 v11, 0")
    st(1)
    def write_flag(base):
        a(f"s_add_u32 s56, s74, {base}")
        a("v_mov_b32 v14, s56")
        a(f"v_mov_b32 v15, s{NONCE}")
        a("s_mov_b64 exec, 1")
        a(f"buffer_store_dword v15, v14, s[{WS}:{WS+3}], 0 offen sc1")
        a("s_mov_b64 exec, -1")
    def a_loads():
        a(f"s_mul_i32 s64, s{S_H}, {HEAD_STRIDE}")
        a("s_lshl_b32 s65, s48, 10")
        a("s_add_u32 s64, s64, s65")
        for u in range(8):
            a(f"s_add_u32 m0, s65, {BKV + (u&3)*4096 + (u>>2)*16384}")
            a(f"s_add_u32 s66, s64, {65536 + (u&3)*4096 + (u>>2)*65536}")
            a(f"buffer_load_dwordx4 v{LIN}, s[{WS}:{WS+3}], s66 offen sc1 lds")
        a(f"s_lshl_b32 s67, s{S_QB}, 13")
        a("s_add_u32 s67, s67, s64")
        for u in range(2):
            a(f"s_add_u32 m0, s65, {32768 + u*4096}")
            a(f"s_add_u32 s66, s67, {u*4096}")
            a(f"buffer_load_dwordx4 v{LIN}, s[{WS}:{WS+3}], s66 offen sc1 lds")
        for u in range(8):
            a(f"s_add_u32 m0, s65, {(u&3)*4096 + (u>>2)*16384}")
            a(f"s_add_u32 s66, s64, {65536 + 16384 + (u&3)*4096 + (u>>2)*65536}")
            a(f"buffer_load_dwordx4 v{LIN}, s[{WS}:{WS+3}], s66 offen sc1 lds")
    for i in range(16):
        if i == 0:   w = 16
        elif i == 1: w = 17
        elif i == 2: w = 8
        elif i <= 6: w = 8
        elif i == 7: w = 0
        elif i == 8: w = 8
        elif i <= 13: w = 8
        elif i == 14: w = 9
        else: w = 1
        a(f"s_waitcnt vmcnt({w})")
        if i == 2:
            a(f"s_mov_b32 s55, {SPIN}")
            a.label("Lfa_nspin")
            a(f"v_readfirstlane_b32 s{NONCE}, v10")
            a(f"s_cmp_lg_u32 s{NONCE}, 0")
            a("s_cbranch_scc1 Lfa_ngot")
            a("s_sleep 1")
            a(f"buffer_load_dword v10, v11, s[{DBG}:{DBG+3}], 0 offen sc1")
            a("s_waitcnt vmcnt(0)")
            a("s_sub_u32 s55, s55, 1")
            a("s_cmp_lg_u32 s55, 0")
            a("s_cbranch_scc1 Lfa_nspin")
            a.label("Lfa_ngot")
        a("s_barrier")
        if i in (0,1,2,4,6,8,10,12,14,15): st.p({0:1,1:2,2:3,4:4,6:5,8:6,10:7,12:8,14:9,15:10}[i])
        if i == 0:
            a(f"buffer_load_dword v10, v11, s[{DBG}:{DBG+3}], 0 offen sc1")
        if i + 2 <= 15 and i + 2 != 8:
            dma_chunk(i + 2)
        if i == PUB + 1:
            a("s_cmp_eq_u32 s48, 0")
            a("s_cbranch_scc0 Lfa_nf")
            write_flag(FA)
            a.label("Lfa_nf")
        if i == 13:
            a(f"buffer_load_dword v13, v12, s[{WS}:{WS+3}], 0 offen sc1")
    st(2)
    a(f"s_mov_b32 s55, {SPIN}")
    a.label("Lfa_aspin")
    a("s_waitcnt vmcnt(0)")
    a(f"v_cmp_eq_u32 vcc, s{NONCE}, v13")
    a("s_nop 4")
    a("s_cmp_eq_u64 vcc, -1")
    a("s_cbranch_scc1 Lfa_agot")
    a("s_sleep 1")
    a(f"buffer_load_dword v13, v12, s[{WS}:{WS+3}], 0 offen sc1")
    a("s_sub_u32 s55, s55, 1")
    a("s_cmp_lg_u32 s55, 0")
    a("s_cbranch_scc1 Lfa_aspin")
    a("s_waitcnt vmcnt(0)")
    a.label("Lfa_agot")
    a_loads()
    st(3)
    a("s_branch Lfa_attn")

    a.label("Lfa_compute")
    a("s_lshr_b32 s48, s3, 1")
    a("s_and_b32 s49, s3, 1")
    a("v_and_b32 v2, 31, v1")
    a("v_lshrrev_b32 v3, 5, v1")
    a("v_bfe_u32 v9, v2, 1, 3")
    a("v_xor_b32 v9, v9, v3")
    a("s_lshl_b32 s50, s48, 12")
    a("v_lshlrev_b32 v18, 7, v2")
    a("v_add_u32 v18, s50, v18")
    for s in range(4):
        a(f"v_xor_b32 v19, {2*s}, v9")
        a("v_lshlrev_b32 v19, 4, v19")
        a(f"v_add_u32 v{10+s}, v18, v19")
        a(f"v_add_u32 v{14+s}, 0x10000, v{10+s}")
    a("v_lshlrev_b32 v24, 3, v3")
    a("v_bfe_u32 v25, v1, 2, 2")
    a("v_add_u32 v24, v24, v25")
    a("s_movk_i32 s50, 384")
    a("v_mul_lo_u32 v24, v24, s50")
    a("v_bfe_u32 v25, v1, 4, 1")
    a("v_lshlrev_b32 v25, 5, v25")
    a("v_add_u32 v24, v24, v25")
    a("v_and_b32 v25, 3, v1")
    a("v_lshlrev_b32 v25, 3, v25")
    a("v_add_u32 v24, v24, v25")
    a("v_add_u32 v24, 8192, v24")
    a("v_bfe_u32 v25, v1, 3, 1")
    a("s_mul_i32 s50, s49, 3")
    for ct in range(3):
        a(f"s_add_u32 s51, s50, {ct}")
        a("v_xor_b32 v26, s51, v25")
        a("v_lshlrev_b32 v26, 6, v26")
        a(f"v_add_u32 v{18+ct}, v24, v26")
        a(f"v_add_u32 v{21+ct}, 0x10000, v{18+ct}")
    a("v_lshlrev_b32 v24, 4, v1")
    a("v_bfe_u32 v25, v1, 4, 1")
    a(f"s_mov_b32 s50, {HEAD_STRIDE}")
    a("v_mul_lo_u32 v25, v25, s50")
    a("v_lshlrev_b32 v26, 8, v3")
    a("v_add_u32 v25, v25, v26")
    a("v_and_b32 v26, 15, v1")
    a("v_lshlrev_b32 v26, 4, v26")
    a("v_add_u32 v25, v25, v26")
    a(f"s_mul_i32 s52, s{S_G}, {4*HEAD_STRIDE}")
    a(f"s_lshl_b32 s53, s{S_TB}, 1")
    a("s_add_u32 s53, s53, s48")
    a("s_lshl_b32 s54, s53, 11")
    a("s_add_u32 s54, s54, 65536")
    a("s_lshl_b32 s53, s53, 10")
    a(f"s_mov_b32 s55, {f32bits(QSCALE):#x}")
    ACC = 64
    for r in range(48): a(f"v_mov_b32 v{ACC+r}, 0")
    early_setup()
    a("s_waitcnt lgkmcnt(0)")
    srd(a, WS, 46, 47, WS_SIZE)
    if os.environ.get("XTOUCH", "0") == "1":
        a("s_cmp_eq_u32 s3, 3")
        a("s_cbranch_scc0 Lfa_nxt")
        srd(a, XB, 34, 35, 2048*1024)
        a("v_lshrrev_b32 v129, 3, v1")
        a("v_lshlrev_b32 v129, 10, v129")
        a("v_and_b32 v130, 7, v1")
        a("v_lshlrev_b32 v130, 7, v130")
        a("v_add_u32 v129, v129, v130")
        a(f"s_lshl_b32 s60, s{S_TB}, 16")
        a(f"s_and_b32 s61, s{S_G}, 3")
        a("s_lshl_b32 s61, s61, 14")
        a("s_add_u32 s60, s60, s61")
        a("s_add_u32 s61, s60, 8192")
        a(f"buffer_load_dword v131, v129, s[{XB}:{XB+3}], s60 offen")
        a(f"buffer_load_dword v132, v129, s[{XB}:{XB+3}], s61 offen")
        a.label("Lfa_nxt")
    XF = [28, 32]; WF = [36, 48]; PK = 112
    def read_frags(slot, s, buf):
        xr = (10 if slot < 2 else 14) + s
        a(f"ds_read_b128 {vr(XF[buf],4)}, v{xr} offset:{(slot%2)*SLOT}")
        for ct in range(3):
            reg = (18 if slot < 2 else 21) + ct
            off = (slot % 2) * SLOT + s * 6144
            a(f"ds_read_b64_tr_b16 {vr(WF[buf]+4*ct,2)}, v{reg} offset:{off}")
            a(f"ds_read_b64_tr_b16 {vr(WF[buf]+4*ct+2,2)}, v{reg} offset:{off+1536}")
    def body(types, tag):
        L = f"Lpj{tag}"
        st(1)
        a("s_mov_b32 s57, 0")
        a.label(L + "_loop")
        for slot in range(4):
            a("s_barrier")
            if slot == 0:
                a("s_cmp_eq_u32 s57, 2")
                a(f"s_cselect_b32 s58, {BKV}, 0")
                for r in (10, 11, 12, 13, 18, 19, 20):
                    a(f"v_add_u32 v{r}, s58, v{r}")
            if slot == PUB % 4:
                a(f"s_cmp_eq_u32 s57, {PUB // 4}")
                a(f"s_cbranch_scc0 {L}_np")
                a("s_waitcnt vmcnt(0)")
                a.label(L + "_np")
            read_frags(slot, 0, 0)
            for s in range(4):
                buf = s % 2
                if s < 3:
                    read_frags(slot, s+1, buf ^ 1)
                    a("s_waitcnt lgkmcnt(7)")
                else:
                    a("s_waitcnt lgkmcnt(0)")
                for ct in range(3):
                    acc = ACC + ct*16
                    if types[ct] == 'V':
                        mfma(a, acc, XF[buf], WF[buf]+4*ct, acc)
                    else:
                        mfma(a, acc, WF[buf]+4*ct, XF[buf], acc)
            if slot == 0:
                for r in (10, 11, 12, 13, 18, 19, 20):
                    a(f"v_subrev_u32 v{r}, s58, v{r}")
        a("s_add_u32 s57, s57, 1")
        a("s_bitcmp1_b32 s57, 0")
        a(f"s_cbranch_scc1 {L}_loop")
        a("s_nop 15")
        n = 0
        for ct in range(3):
            acc = ACC + ct*16
            c = tag*3 + ct
            ty = types[ct]
            for e in range(2):
                pk = PK + (n % 4)*4; n += 1
                if ty == 'Q':
                    for r in range(8):
                        a(f"v_mul_f32 v{acc+8*e+r}, s55, v{acc+8*e+r}")
                for r in range(4):
                    a(f"v_cvt_pk_bf16_f32 v{pk+r}, v{acc+2*r+8*e}, v{acc+8*e+2*r+1}")
                if ty == 'Q':
                    a(f"s_add_u32 s59, s52, {(2*(c%2)+e)*HEAD_STRIDE}")
                    a("s_add_u32 s59, s59, s53")
                    a(f"buffer_store_dwordx4 {vr(pk,4)}, v24, s[{WS}:{WS+3}], s59 offen sc1")
                elif ty == 'K':
                    a(f"s_add_u32 s59, s52, {(2*(c%2)+e)*HEAD_STRIDE}")
                    a("s_add_u32 s59, s59, s54")
                    a(f"buffer_store_dwordx4 {vr(pk,4)}, v24, s[{WS}:{WS+3}], s59 offen sc1")
                else:
                    a(f"s_add_u32 s59, s52, {(2*(c%2))*HEAD_STRIDE + 1024 + 512*e}")
                    a("s_add_u32 s59, s59, s54")
                    a(f"buffer_store_dwordx4 {vr(pk,4)}, v25, s[{WS}:{WS+3}], s59 offen sc1")
        for r in range(48): a(f"v_mov_b32 v{ACC+r}, 0")
        a(f"s_add_u32 s52, s52, {PROB_STRIDE}")
        a("s_cmp_lt_u32 s57, 4")
        a(f"s_cbranch_scc1 {L}_loop")
        st(2); st(3)
        a("s_branch Lfa_attn")
    a("s_cmp_eq_u32 s49, 0")
    a("s_cbranch_scc0 Lfa_wn1")
    body(['Q', 'Q', 'K'], 0)
    a.label("Lfa_wn1")
    body(['K', 'V', 'V'], 1)

    a.label("Lfa_attn")
    a("s_and_b32 s64, s3, 3")
    a("s_lshl_b32 s64, s64, 11")
    a(f"s_add_u32 s64, s64, 32768")
    a(f"v_add_u32 v{T0}, s64, v{LIN}")
    a(f"v_add_u32 v{T1}, {BKV}, v{LIN}")
    a(f"s_mul_i32 s62, s{S_H}, {HEAD_STRIDE}")
    a("s_lshl_b32 s63, s3, 10")
    a("s_add_u32 s62, s62, s63")
    WOV = 0
    a("v_lshrrev_b32 v0, 3, v1")
    a("v_lshlrev_b32 v0, 10, v0")
    a(f"v_bfe_u32 v{T2}, v1, 4, 1")
    a(f"v_lshlrev_b32 v{T2}, 2, v{T2}")
    a(f"v_and_b32 v{T3}, 7, v1")
    a(f"v_xor_b32 v{T2}, v{T2}, v{T3}")
    a(f"v_lshlrev_b32 v{T2}, 4, v{T2}")
    a(f"v_add_u32 v0, v0, v{T2}")
    a(f"s_lshl_b32 s34, s{S_QB}, 3")
    a("s_add_u32 s34, s34, s3")
    a("s_min_u32 s35, s34, 8")
    a(f"s_mul_i32 s36, s{S_H}, {HEAD_STRIDE}")
    a(f"s_add_u32 s36, s36, {PROB_STRIDE}")
    a("s_load_dwordx2 s[44:45], s[0:1], 16")
    a("s_load_dwordx4 s[48:51], s[0:1], 40")
    a("s_bfe_u32 s75, s2, 0x20001")
    a("s_and_b32 s52, s2, 1")
    a("s_lshl_b32 s52, s52, 2")
    a("s_bfe_u32 s53, s2, 0x20003")
    a("s_add_u32 s39, s52, s53")
    a("s_lshl_b32 s42, s3, 13")
    a("s_lshl_b32 s52, s39, 7")
    a("s_add_u32 s42, s42, s52")
    a("s_waitcnt lgkmcnt(0)")
    srd(a, WOA, 44, 45, 512*1024)
    srd(a, WOB, 48, 49, 512*1024)
    srd(a, OUT, 50, 51, 2048*2048)
    st(4)
    st.l(1)
    a("s_waitcnt vmcnt(8)")
    a("s_barrier")
    st(5)
    st.l(2)
    a(f"ds_read_b128 {vr(QA[0],4)}, v{T0}")
    a(f"ds_read_b128 {vr(QA[1],4)}, v{T0} offset:1024")
    a(f"ds_read_b128 {vr(KF,4)}, v{T1}")
    a("s_waitcnt lgkmcnt(0)")
    mfma(a, SB[0][0], KF, QA[0], "0")
    mfma(a, SB[1][0], KF, QA[1], "0")
    a("s_cmp_eq_u32 s3, 4")
    a("s_cbranch_scc0 La_nnw")
    a(f"v_mov_b32 v{T0}, {XCH + 512}")
    a(f"v_mov_b32 v{T1}, s{NONCE}")
    a(f"ds_write_b32 v{T0}, v{T1}")
    a("s_waitcnt lgkmcnt(0)")
    a.label("La_nnw")
    a("s_barrier")
    a(f"v_mov_b32 v{T0}, {XCH + 512}")
    a(f"ds_read_b32 v{T0}, v{T0}")
    a("s_waitcnt lgkmcnt(0)")
    a(f"v_readfirstlane_b32 s{NONCE}, v{T0}")
    for q in range(2):
        for r in range(16):
            a(f"v_mov_b32 v{OACC[q]+r}, 0") if r < 6 else None
    for q, m in ((0, MX), (1, MX1)):
        s = SB[q][0]
        a(f"v_max_f32 v{m}, v{s}, v{s+1}")
        for r in range(1, 8):
            a(f"v_max3_f32 v{m}, v{s+2*r}, v{s+2*r+1}, v{m}")
    def halves_max(m, t):
        a(f"v_mov_b32 v{t}, v{m}")
        a("s_nop 1")
        a(f"v_permlane32_swap_b32 v{m}, v{t}")
        a("s_nop 1")
        a(f"v_max_f32 v{m}, v{m}, v{t}")
    def read_v(buf, areg, off):
        a("s_mov_b64 exec, s[40:41]")
        a(f"ds_read_b128 {vr(buf,4)}, v{areg} offset:{off}")
        a(f"ds_read_b128 {vr(buf+4,4)}, v{areg} offset:{off+512}")
        a("s_mov_b64 exec, -1")
    def step(cur, p, o, early, qk, pre_pv0, mid, pre_pv1, vb):
        E = lambda i: a(f"v_exp_f32 v{cur+i}, v{cur+i}")
        C = lambda j: a(f"v_cvt_pk_bf16_f32 v{p+j}, v{cur+2*j}, v{cur+2*j+1}")
        E(0); E(1)
        early()
        E(2); E(3); C(0); E(4); C(1); E(5)
        qk()
        E(6); E(7); C(2); E(8); C(3); E(9); E(10)
        pre_pv0()
        mfma(a, o, vb, p, o)
        E(11); C(4); E(12); C(5); E(13); E(14); E(15); C(6); C(7)
        mid()
        pre_pv1()
        mfma(a, o, vb+4, p+4, o)
    nop = lambda: None
    a.label("La_main")
    a(f"ds_read_b128 {vr(KF,4)}, v{VKA}")
    read_v(VF[0], VVA, 0)
    a(f"ds_read_b128 {vr(KF+4,4)}, v{VKA} offset:2048")
    halves_max(MX, TMP)
    halves_max(MX1, TMP)
    for q, m in ((0, MX), (1, MX1)):
        for r in range(16):
            a(f"v_sub_f32 v{CNEG[q]+r}, 0, v{m}")
    a("s_waitcnt lgkmcnt(3)")
    mfma(a, SB[0][0], KF, QA[0], CNEG[0])
    mfma(a, SB[1][0], KF, QA[1], CNEG[1])
    for q in range(2):
        for r in range(16):
            a(f"v_mov_b32 v{OACC[q]+r}, 0")
    U = 8
    a("s_mov_b32 s38, 0")
    a.raw(".p2align 6")
    a.label("La_loop")
    st.ldyn(3, "a")
    def kv_dma(j):
        for u in range(4):
            a(f"s_add_u32 m0, s63, {(j-1)*32768 + (u&1)*8192 + (u>>1)*16384}")
            a(f"s_add_u32 s66, s62, {65536 + j*16384 + (u&1)*8192 + (u>>1)*65536}")
            a(f"buffer_load_dwordx4 v{LIN}, s[{WS}:{WS+3}], s66 offen sc1 lds")
    def wo_dma(srdr, half, ldsbase):
        for u in range(4):
            a(f"s_add_u32 m0, s63, {ldsbase + u*8192}")
            a(f"s_add_u32 s66, s42, {(256*half + 64*u)*1024}")
            a(f"buffer_load_dwordx4 v{WOV}, s[{srdr}:{srdr+3}], s66 offen lds")
    for n in range(U):
        vb = VF[n % 2]
        if n == 3:
            a("s_cmp_eq_u32 s38, 3")
            a("s_cselect_b32 s64, s73, 1")
            a("s_cmp_eq_u32 s64, 0")
            a("s_cbranch_scc0 La_ng0")
            wo_dma(WOA, 0, 0)
            a.label("La_ng0")
        if n == 1:
            a("s_cmp_lg_u32 s73, 0")
            a("s_cbranch_scc1 La_sd")
            a("s_cmp_eq_u32 s38, 0")
            a("s_cbranch_scc0 La_s1")
            kv_dma(2)
            a("s_branch La_sd")
            a.label("La_s1")
            a("s_cmp_eq_u32 s38, 1")
            a("s_cbranch_scc0 La_s2")
            kv_dma(3)
            a("s_branch La_sd")
            a.label("La_s2")
            a("s_cmp_lt_u32 s3, 4")
            a("s_cbranch_scc1 La_sd")
            a("s_cmp_eq_u32 s38, 2")
            a("s_cbranch_scc0 La_s3")
            a(f"buffer_load_dword v{T2}, v2, s[{WS}:{WS+3}], 0 offen sc1")
            a("s_branch La_sd")
            a.label("La_s3")
            a(f"s_mov_b32 s67, {SPIN}")
            a.label("La_bspin")
            a("s_waitcnt vmcnt(0)")
            a(f"v_cmp_eq_u32 vcc, s{NONCE}, v{T2}")
            a("s_nop 4")
            a("s_cmp_eq_u64 vcc, -1")
            a("s_cbranch_scc1 La_bgot")
            a("s_sleep 1")
            a(f"buffer_load_dword v{T2}, v2, s[{WS}:{WS+3}], 0 offen sc1")
            a("s_sub_u32 s67, s67, 1")
            a("s_cmp_lg_u32 s67, 0")
            a("s_cbranch_scc1 La_bspin")
            a("s_waitcnt vmcnt(0)")
            a.label("La_bgot")
            b_loads(a, LIN, QBL)
            a.label("La_sd")
        if n == 5:
            a("s_cmp_lg_u32 s73, 0")
            a("s_cbranch_scc1 La_nowait")
            a("s_cmp_eq_u32 s38, 3")
            a("s_cbranch_scc1 La_nowait")
            a("s_cmp_eq_u32 s38, 2")
            a("s_cbranch_scc1 La_w2")
            a("s_waitcnt vmcnt(4)")
            a("s_branch La_wd")
            a.label("La_w2")
            a("s_waitcnt vmcnt(1)")
            a.label("La_wd")
            a("s_barrier")
            a("s_cmp_eq_u32 s38, 0")
            a("s_cselect_b32 s64, s3, 0")
            a("s_cmp_eq_u32 s64, 4")
            a("s_cbranch_scc0 La_nowait")
            a(f"s_add_u32 s56, s74, {FB}")
            a(f"v_mov_b32 v{T0}, s56")
            a(f"v_mov_b32 v{T1}, s{NONCE}")
            a("s_mov_b64 exec, 1")
            a(f"buffer_store_dword v{T1}, v{T0}, s[{WS}:{WS+3}], 0 offen sc1")
            a("s_mov_b64 exec, -1")
            a.label("La_nowait")
        for q in range(2):
            cur, nxt = SB[q][n % 2], SB[q][(n+1) % 2]
            def early(n=n):
                if n + 1 < U: read_v(VF[(n+1) % 2], VVA, (n+1)*2048)
                else: read_v(VF[(n+1) % 2], VVN, 0)
            def qk(q=q, nxt=nxt, n=n):
                if q == 0: a("s_waitcnt lgkmcnt(2)")
                mfma(a, nxt, KF+4*((n+1) % 2), QA[q], CNEG[q])
                if q == 1:
                    if n + 2 < U: a(f"ds_read_b128 {vr(KF+4*(n % 2),4)}, v{VKA} offset:{(n+2)*2048}")
                    else: a(f"ds_read_b128 {vr(KF+4*(n % 2),4)}, v{VKN} offset:{(n+2-U)*2048}")
            step(cur, PP[q], OACC[q], early if q == 0 else nop, qk, nop,
                 lambda: a("s_nop 1"), nop, vb)
    a(f"v_mov_b32 v{VKA}, v{VKN}")
    a(f"v_mov_b32 v{VVA}, v{VVN}")
    a(f"v_add_u32 v{VKN}, 32768, v{VKN}")
    a(f"v_add_u32 v{VVN}, 32768, v{VVN}")
    a("s_add_u32 s38, s38, 1")
    a("s_cmp_lg_u32 s38, 4")
    a("s_cbranch_scc1 La_loop")
    st(6)
    st.l(7)
    a("s_waitcnt lgkmcnt(0)")
    a("s_nop 7")
    a(f"v_mov_b32 v{TMP}, 0x71800000")
    a(f"v_cmp_lt_f32 vcc, v{OACC[0]+8}, v{TMP}")
    a(f"v_cmp_lt_f32 s[58:59], v{OACC[1]+8}, v{TMP}")
    a("s_nop 4")
    a("s_and_b64 s[58:59], s[58:59], vcc")
    a("s_cmp_eq_u64 s[58:59], -1")
    a("s_cselect_b32 s64, 0, 1")
    a("s_cmp_lg_u32 s73, 0")
    a("s_cselect_b32 s64, 0, s64")
    a("s_lshl_b32 s65, s3, 2")
    a(f"s_add_u32 s65, s65, {XCH}")
    a(f"v_mov_b32 v{T0}, s65")
    a(f"v_mov_b32 v{T1}, s64")
    a(f"ds_write_b32 v{T0}, v{T1}")
    a("s_mul_i32 s65, s3, 2560")
    a(f"s_add_u32 s65, s65, {XCH + 1024}")
    a(f"v_add_u32 v{T0}, s65, v{LIN}")
    a(f"v_lshrrev_b32 v{T1}, 2, v{LIN}")
    a(f"v_add_u32 v{T1}, s65, v{T1}")
    a("s_cmp_eq_u32 s70, 0")
    a("s_cbranch_scc0 La_sendq0")
    for lab, qs in (("La_sendq1", 1), ("La_sendq0", 0)):
        if qs == 0: a.label(lab)
        a(f"ds_write_b128 v{T0}, {vr(OACC[qs],4)}")
        a(f"ds_write_b128 v{T0}, {vr(OACC[qs]+4,4)} offset:1024")
        a(f"ds_write_b32 v{T1}, v{OACC[qs]+8} offset:2048")
        if qs == 1:
            a("s_branch La_sent")
        else:
            for r in range(9):
                a(f"v_mov_b32 v{OACC[0]+r}, v{OACC[1]+r}")
    a.label("La_sent")
    a("s_waitcnt vmcnt(0) lgkmcnt(0)")
    a("s_barrier")
    a(f"v_and_b32 v{T2}, 7, v1")
    a(f"v_lshlrev_b32 v{T2}, 2, v{T2}")
    a(f"v_add_u32 v{T2}, {XCH}, v{T2}")
    a(f"ds_read_b32 v{T2}, v{T2}")
    a("s_xor_b32 s64, s3, 4")
    a("s_mul_i32 s65, s64, 2560")
    a(f"s_add_u32 s65, s65, {XCH + 1024}")
    a(f"v_add_u32 v{T0}, s65, v{LIN}")
    a(f"v_lshrrev_b32 v{T1}, 2, v{LIN}")
    a(f"v_add_u32 v{T1}, s65, v{T1}")
    a(f"ds_read_b128 {vr(SB[0][0],4)}, v{T0}")
    a(f"ds_read_b128 {vr(SB[0][0]+4,4)}, v{T0} offset:1024")
    a(f"ds_read_b32 v{SB[0][0]+8}, v{T1} offset:2048")
    a("s_lshl_b32 s37, s3, 11")
    a(f"s_add_u32 s37, s37, {BKV}")
    a("s_waitcnt lgkmcnt(0)")
    a(f"v_cmp_ne_u32 vcc, 0, v{T2}")
    a("s_nop 4")
    a("s_cmp_eq_u64 vcc, 0")
    a("s_cbranch_scc1 La_done")
    a("s_barrier")
    a("s_mov_b32 s73, 1")
    for u in range(4):
        a(f"s_add_u32 m0, s63, {BKV + (u&1)*8192 + (u>>1)*16384}")
        a(f"s_add_u32 s66, s62, {65536 + (u&1)*8192 + (u>>1)*65536}")
        a(f"buffer_load_dwordx4 v{LIN}, s[{WS}:{WS+3}], s66 offen sc1 lds")
    kv_dma(1)
    a("s_waitcnt vmcnt(0)")
    a("s_barrier")
    a(f"v_mov_b32 v{MX}, 0xff800000")
    a(f"v_mov_b32 v{MX1}, 0xff800000")
    a("s_mov_b32 s38, 0")
    a.label("La_fb")
    a("s_bfe_u32 s64, s38, 0x20003")
    a("s_sub_u32 s65, s64, 1")
    a("s_lshl_b32 s65, s65, 15")
    a("s_cmp_eq_u32 s64, 0")
    a(f"s_cselect_b32 s65, {BKV}, s65")
    a("s_lshr_b32 s64, s38, 5")
    a("s_lshl_b32 s64, s64, 14")
    a("s_add_u32 s65, s65, s64")
    a("s_and_b32 s64, s38, 7")
    a("s_lshl_b32 s64, s64, 11")
    a("s_add_u32 s65, s65, s64")
    a(f"v_add_u32 v{T0}, s65, v{LIN}")
    a(f"ds_read_b128 {vr(KF,4)}, v{T0}")
    a("s_waitcnt lgkmcnt(0)")
    mfma(a, SB[0][0], KF, QA[0], "0")
    mfma(a, SB[1][0], KF, QA[1], "0")
    a("s_nop 15")
    for q, m in ((0, MX), (1, MX1)):
        s = SB[q][0]
        for r in range(8):
            a(f"v_max3_f32 v{m}, v{s+2*r}, v{s+2*r+1}, v{m}")
    a("s_add_u32 s38, s38, 1")
    a("s_cmp_lg_u32 s38, 64")
    a("s_cbranch_scc1 La_fb")
    a(f"v_add_u32 v{VKN}, s71, v{LIN}")
    a(f"v_add_u32 v{VVN}, s71, v{VLO}")
    a(f"v_add_u32 v{VKA}, s72, v{LIN}")
    a(f"v_add_u32 v{VVA}, s72, v{VLO}")
    a("s_branch La_main")
    a.label("La_done")
    a("s_cmp_eq_u32 s73, 0")
    a("s_cbranch_scc1 La_bok")
    a("s_barrier")
    wo_dma(WOA, 0, 0)
    a("s_cmp_lt_u32 s3, 4")
    a("s_cbranch_scc1 La_brl")
    b_loads(a, LIN, QBL)
    a.label("La_brl")
    a("s_waitcnt vmcnt(0)")
    a("s_barrier")
    a.label("La_bok")
    a(f"v_add_u32 v{VKA}, s37, v{LIN}")
    a(f"v_add_u32 v{VVA}, s37, v{VLO}")
    a("s_lshl_b32 s64, s3, 10")
    a(f"s_add_u32 s64, s64, {QBL}")
    a(f"v_add_u32 v{T0}, s64, v{LIN}")
    a(f"ds_read_b128 {vr(QB,4)}, v{T0}")
    for i in range(8, -1, -1):
        a(f"ds_read_b128 {vr(KF+4*i,4)}, v{VKA} offset:{i*2048}")
    for r in range(9):
        a(f"v_add_f32 v{OACC[0]+r}, v{OACC[0]+r}, v{SB[0][0]+r}")
    a("s_and_b32 s64, s3, 3")
    a("s_lshl_b32 s64, s64, 1")
    a("s_add_u32 s64, s64, s70")
    a(f"s_lshl_b32 s65, s{S_QB}, 3")
    a("s_add_u32 s64, s64, s65")
    a("s_lshl_b32 s64, s64, 10")
    a(f"s_lshl_b32 s68, s{S_H}, 16")
    a("s_add_u32 s68, s68, s64")
    a(f"s_add_u32 s68, s68, {O_BASE}")
    def finish_o(o, lreg, soff):
        a(f"v_rcp_f32 v{TMP}, v{lreg}")
        a("s_nop 1")
        for r in range(8):
            a(f"v_mul_f32 v{o+r}, v{o+r}, v{TMP}")
        for r in range(4):
            a(f"v_cvt_pk_bf16_f32 v{PP[1]+r}, v{o+2*r}, v{o+2*r+1}")
        a(f"buffer_store_dwordx4 {vr(PP[1],4)}, v{LIN}, s[{WS}:{WS+3}], {soff} offen sc1")
    def o_flag(p):
        a("s_lshl_b32 s56, s2, 3")
        a("s_add_u32 s56, s56, s3")
        a("s_lshl_b32 s56, s56, 7")
        a(f"s_add_u32 s56, s56, {FO + p*262144}")
        a(f"v_mov_b32 v{T0}, s56")
        a(f"v_mov_b32 v{T1}, s{NONCE}")
        a("s_mov_b64 exec, 1")
        a(f"buffer_store_dword v{T1}, v{T0}, s[{WS}:{WS+3}], 0 offen sc1")
        a("s_mov_b64 exec, -1")
    a("s_waitcnt lgkmcnt(6)")
    SP = [80, 96, 112, 128]
    def qk1(i):
        c = MHI if i == 8 else (MLO if i == 0 else "0")
        mfma(a, SP[(8-i) % 4], KF+4*i, QB, c)
    qk1(8); qk1(7); qk1(6)
    finish_o(OACC[0], OACC[0]+8, "s68")
    st(7)
    st.l(8)
    a("s_waitcnt lgkmcnt(0)")
    a("s_barrier")
    read_v(VF[0], VVA, 8*2048)
    wo_dma(WOA, 1, 32768)
    a("s_mov_b32 s38, s35")
    for i in range(8, -1, -1):
        s = SP[(8-i) % 4]
        if i == 8:
            a(f"v_max_f32 v{MX}, v{s}, v{s+1}")
            for r in range(1, 8):
                a(f"v_max3_f32 v{MX}, v{s+2*r}, v{s+2*r+1}, v{MX}")
        else:
            for r in range(8):
                a(f"v_max3_f32 v{MX}, v{s+2*r}, v{s+2*r+1}, v{MX}")
        if i > 0:
            a("s_cmp_eq_u32 s38, 0")
            a("s_cbranch_scc1 Lb_p1_done")
            a("s_sub_u32 s38, s38, 1")
        if i - 3 >= 0:
            qk1(i - 3)
    a.label("Lb_p1_done")
    halves_max(MX, TMP)
    st(8)
    st.l(9)
    wo_dma(WOB, 0, 65536)
    for r in range(16):
        a(f"v_sub_f32 v{MHI+r}, v{MHI+r}, v{MX}")
    a("s_nop 1")
    mfma(a, SP[0], KF+4*8, QB, MHI)
    for r in range(16):
        a(f"v_sub_f32 v{CNEG[0]+r}, 0, v{MX}")
        a(f"v_sub_f32 v{MLO+r}, v{MLO+r}, v{MX}")
        a(f"v_mov_b32 v{OACC[0]+r}, 0")
    a("s_waitcnt vmcnt(8)")
    o_flag(0)
    wo_dma(WOB, 1, 98304)
    a("s_mov_b32 s38, s35")
    for n, i in enumerate(range(8, -1, -1)):
        cur, nxt = SP[n % 2], SP[(n+1) % 2]
        vb = VF[n % 2]
        if i > 0:
            cn = MLO if i - 1 == 0 else CNEG[0]
            step(cur, PP[0], OACC[0],
                 lambda: read_v(VF[(n+1) % 2], VVA, (i-1)*2048),
                 lambda: mfma(a, nxt, KF+4*(i-1), QB, cn),
                 lambda: a("s_waitcnt lgkmcnt(2)"),
                 lambda: a("s_nop 1"), nop, vb)
            a("s_cmp_eq_u32 s38, 0")
            a("s_cbranch_scc1 Lb_p2_done")
            a("s_sub_u32 s38, s38, 1")
        else:
            step(cur, PP[0], OACC[0], nop, nop,
                 lambda: a("s_waitcnt lgkmcnt(0)"),
                 lambda: a("s_nop 1"), nop, vb)
    a.label("Lb_p2_done")
    st(9)
    st.l(10)
    a("s_nop 15")
    a(f"s_lshl_b32 s68, s{S_H}, 16")
    a("s_lshl_b32 s69, s34, 10")
    a("s_add_u32 s68, s68, s69")
    a(f"s_add_u32 s68, s68, {O_BASE + O_PROB}")
    finish_o(OACC[0], OACC[0]+8, "s68")
    OF, ACC2, WF2 = 16, 80, 112
    a("s_lshr_b32 s52, s3, 2")
    a("s_and_b32 s53, s3, 1")
    a("s_bfe_u32 s54, s3, 0x10001")
    a("s_lshl_b32 s55, s75, 1")
    a("s_add_u32 s55, s55, s53")
    a("s_lshl_b32 s56, s53, 2")
    a("s_add_u32 s56, s56, s75")
    a("s_cmp_eq_u32 s52, 0")
    a("s_cselect_b32 s56, s56, s55")
    a(f"s_lshl_b32 s57, s{S_QB}, 5")
    a("s_lshl_b32 s58, s54, 4")
    a("s_add_u32 s57, s57, s58")
    a("s_lshl_b32 s57, s57, 3")
    a("s_add_u32 s57, s57, s56")
    a("s_lshl_b32 s57, s57, 7")
    a("s_lshl_b32 s58, s52, 18")
    a("s_add_u32 s57, s57, s58")
    a(f"s_add_u32 s57, s57, {FO}")
    a(f"v_and_b32 v{T2}, 15, v1")
    a(f"v_lshlrev_b32 v{T2}, 10, v{T2}")
    a(f"v_add_u32 v{T2}, s57, v{T2}")
    a(f"s_lshl_b32 s59, s{S_QB}, 3")
    a("s_add_u32 s59, s59, s55")
    a("s_lshl_b32 s60, s59, 10")
    a(f"s_mul_i32 s61, s52, {O_PROB}")
    a("s_add_u32 s60, s60, s61")
    a(f"s_add_u32 s60, s60, {O_BASE}")
    a("s_bfe_u32 s61, s2, 0x20003")
    a("s_lshl_b32 s61, s61, 2")
    a(f"v_lshrrev_b32 v{T0}, 5, v1")
    a(f"v_lshlrev_b32 v{T1}, 2, v{T0}")
    a(f"v_bfe_u32 v{T3}, v1, 2, 2")
    a(f"v_add_u32 v{T1}, v{T1}, v{T3}")
    a(f"v_lshlrev_b32 v{T1}, 7, v{T1}")
    a(f"v_bfe_u32 v{T3}, v1, 4, 1")
    a(f"v_lshlrev_b32 v{T3}, 5, v{T3}")
    a(f"v_add_u32 v{T1}, v{T1}, v{T3}")
    a(f"v_and_b32 v{T3}, 3, v1")
    a(f"v_lshlrev_b32 v{T3}, 3, v{T3}")
    a(f"v_add_u32 v{T1}, v{T1}, v{T3}")
    a(f"v_bfe_u32 v{T3}, v1, 3, 1")
    a(f"v_lshlrev_b32 v{T3}, 6, v{T3}")
    a("s_lshl_b32 s62, s52, 16")
    a("s_lshl_b32 s63, s54, 15")
    a("s_add_u32 s62, s62, s63")
    a(f"v_add_u32 v{T1}, s62, v{T1}")
    a(f"v_add_u32 v{VKA}, v{T1}, v{T3}")
    a(f"v_xor_b32 v{T3}, 64, v{T3}")
    a(f"v_add_u32 v{VVA}, v{T1}, v{T3}")
    a(f"v_and_b32 v{VKN}, 31, v1")
    a(f"v_lshlrev_b32 v{VKN}, 11, v{VKN}")
    a(f"v_lshlrev_b32 v{T0}, 4, v{T0}")
    a(f"v_add_u32 v{VKN}, v{VKN}, v{T0}")
    a("s_waitcnt vmcnt(0)")
    o_flag(1)
    st(10)
    a("s_barrier")
    a(f"s_mov_b32 s67, {SPIN}")
    a.label("Lo_spin")
    a(f"buffer_load_dword v{T3}, v{T2}, s[{WS}:{WS+3}], 0 offen sc1")
    a("s_waitcnt vmcnt(0)")
    a(f"v_cmp_eq_u32 vcc, s{NONCE}, v{T3}")
    a("s_nop 4")
    a("s_cmp_eq_u64 vcc, -1")
    a("s_cbranch_scc1 Lo_got")
    a("s_sleep 1")
    a("s_sub_u32 s67, s67, 1")
    a("s_cmp_lg_u32 s67, 0")
    a("s_cbranch_scc1 Lo_spin")
    a.label("Lo_got")
    for sidx in range(16):
        pass
    a("s_lshl_b32 s63, s54, 20")
    a("s_add_u32 s60, s60, s63")
    for hh in range(16):
        a(f"s_add_u32 s64, s60, {hh*65536}")
        a(f"buffer_load_dwordx4 {vr(OF+4*hh,4)}, v{LIN}, s[{WS}:{WS+3}], s64 offen sc1")
    def rd(hh, buf):
        for ct, reg in ((0, VKA), (1, VVA)):
            a(f"ds_read_b64_tr_b16 {vr(WF2+8*buf+4*ct,2)}, v{reg} offset:{hh*2048}")
            a(f"ds_read_b64_tr_b16 {vr(WF2+8*buf+4*ct+2,2)}, v{reg} offset:{hh*2048+1024}")
    rd(0, 0)
    for hh in range(16):
        buf = hh % 2
        if hh < 15:
            rd(hh+1, buf ^ 1)
            a(f"s_waitcnt vmcnt({15-hh}) lgkmcnt(4)")
        else:
            a("s_waitcnt vmcnt(0) lgkmcnt(0)")
        for ct in range(2):
            acc = ACC2 + 16*ct
            mfma(a, acc, WF2+8*buf+4*ct, OF+4*hh, "0" if hh == 0 else acc)
    a("s_lshl_b32 s64, s3, 12")
    a(f"s_add_u32 s64, s64, {BKV}")
    a(f"v_add_u32 v{T0}, s64, v{LIN}")
    a("s_xor_b32 s65, s3, 2")
    a("s_lshl_b32 s65, s65, 12")
    a(f"s_add_u32 s65, s65, {BKV}")
    a(f"v_add_u32 v{T1}, s65, v{LIN}")
    a("s_nop 15")
    a("s_cmp_eq_u32 s54, 0")
    a("s_cbranch_scc0 Lo_send0")
    for r in range(4):
        a(f"ds_write_b128 v{T0}, {vr(ACC2+16+4*r,4)} offset:{r*1024}")
    a("s_branch Lo_sent")
    a.label("Lo_send0")
    for r in range(4):
        a(f"ds_write_b128 v{T0}, {vr(ACC2+4*r,4)} offset:{r*1024}")
    for r in range(16):
        a(f"v_mov_b32 v{ACC2+r}, v{ACC2+16+r}")
    a.label("Lo_sent")
    a("s_waitcnt lgkmcnt(0)")
    a("s_barrier")
    for r in range(4):
        a(f"ds_read_b128 {vr(OF+4*r,4)}, v{T1} offset:{r*1024}")
    a("s_lshl_b32 s64, s59, 16")
    a("s_lshl_b32 s65, s52, 10")
    a("s_add_u32 s64, s64, s65")
    a("s_lshl_b32 s65, s39, 7")
    a("s_add_u32 s64, s64, s65")
    a("s_lshl_b32 s65, s54, 6")
    a("s_add_u32 s64, s64, s65")
    a("s_waitcnt lgkmcnt(0)")
    for r in range(16):
        a(f"v_add_f32 v{ACC2+r}, v{ACC2+r}, v{OF+r}")
    for pr in range(2):
        b = ACC2 + 8*pr
        pk = WF2 + 4*pr
        for r in range(4):
            a(f"v_cvt_pk_bf16_f32 v{pk+r}, v{b+2*r}, v{b+2*r+1}")
        a("s_nop 1")
        a(f"v_permlane32_swap_b32 v{pk}, v{pk+2}")
        a(f"v_permlane32_swap_b32 v{pk+1}, v{pk+3}")
        a("s_nop 1")
        a(f"buffer_store_dwordx4 {vr(pk,4)}, v{VKN}, s[{OUT}:{OUT+3}], s64 offen offset:{pr*32}")
    st(11)
    st.p(11)
    st.flush(8, 12)
    a.label("Lfa_end")
    a("s_endpgm")

def b_loads(a, LIN, QBL):
    a("s_sub_u32 s51, s3, 4")
    a("s_lshl_b32 s51, s51, 10")
    a(f"s_lshl_b32 s50, s{S_QB}, 14")
    a("s_add_u32 s50, s50, s51")
    a("s_sub_u32 s50, s50, 16384")
    for u in range(8):
        a(f"s_add_u32 s54, s50, {u*4096}")
        a("s_max_i32 s54, s54, 0")
        a("s_add_u32 s54, s54, s36")
        a("s_add_u32 s54, s54, 65536")
        a(f"s_add_u32 m0, s51, {BKV + u*4096}")
        a(f"buffer_load_dwordx4 v{LIN}, s[{WS}:{WS+3}], s54 offen sc1 lds")
    a(f"s_lshl_b32 s50, s{S_QB}, 13")
    a("s_add_u32 s50, s50, s36")
    a("s_add_u32 s50, s50, s51")
    for u in range(2):
        a(f"s_add_u32 m0, s51, {QBL + u*4096}")
        a(f"s_add_u32 s54, s50, {u*4096}")
        a(f"buffer_load_dwordx4 v{LIN}, s[{WS}:{WS+3}], s54 offen sc1 lds")

def gen_oproj(a):
    a.raw(".p2align 8")
    a.raw(".type oproj_kernel,@function")
    a.label("oproj_kernel")
    a("s_cmp_ge_u32 s2, 256")
    a("s_cbranch_scc1 Lop_end")
    st = Stamper(a, "oproj", 1, "s20")
    st()
    a("s_load_dwordx2 s[4:5], s[0:1], 16")
    a("s_load_dwordx2 s[26:27], s[0:1], 40")
    a("s_load_dwordx2 s[28:29], s[0:1], 48")
    a("s_load_dwordx2 s[30:31], s[0:1], 64")
    a("s_and_b32 s32, s2, 7")
    a("s_lshr_b32 s33, s2, 3")
    a("s_lshr_b32 s23, s32, 2")
    a("s_and_b32 s34, s32, 3")
    a("s_lshl_b32 s34, s34, 2")
    a("s_and_b32 s35, s33, 3")
    a("s_add_u32 s24, s34, s35")
    a("s_lshr_b32 s25, s33, 2")
    a("v_and_b32 v1, 63, v0")
    a("v_lshrrev_b32 v2, 6, v0")
    a("s_nop 0")
    a("v_readfirstlane_b32 s20, v2")
    a("v_lshrrev_b32 v2, 3, v1")
    a("v_lshlrev_b32 v2, 10, v2")
    a("v_bfe_u32 v3, v1, 4, 1")
    a("v_lshlrev_b32 v3, 2, v3")
    a("v_and_b32 v5, 7, v1")
    a("v_xor_b32 v3, v3, v5")
    a("v_lshlrev_b32 v3, 4, v3")
    a("v_add_u32 v4, v2, v3")
    a("v_lshlrev_b32 v5, 4, v1")
    a("s_waitcnt lgkmcnt(0)")
    a("s_cmp_eq_u32 s23, 0")
    a("s_cselect_b32 s4, s4, s26")
    a("s_cselect_b32 s5, s5, s27")
    srd(a, 8, 4, 5, 512*1024)
    a(f"s_mul_i32 s36, s23, {O_PROB}")
    a(f"s_add_u32 s36, s36, {O_BASE}")
    a("s_add_u32 s30, s30, s36")
    a("s_addc_u32 s31, s31, 0")
    srd(a, 12, 30, 31, O_PROB)
    a("s_lshl_b32 s40, s20, 13")
    a("s_lshl_b32 s36, s25, 7")
    a("s_add_u32 s40, s40, s36")
    a("s_lshl_b32 s41, s20, 10")
    OF = 64
    a("s_lshl_b32 s42, s24, 2")
    a("s_add_u32 s42, s42, s20")
    a("s_lshl_b32 s43, s42, 10")
    a("s_lshl_b32 s49, s25, 2")
    a("s_and_b32 s47, s24, 3")
    a("s_lshl_b32 s47, s47, 3")
    a("s_add_u32 s49, s49, s47")
    a("s_lshl_b32 s46, s49, 4")
    a("s_lshl_b32 s47, s20, 3")
    a("s_add_u32 s46, s46, s47")
    a("s_lshl_b32 s48, s25, 7")
    def wdma(u):
        a(f"s_add_u32 m0, s41, {u*4096}")
        a(f"s_add_u32 s44, s46, {u*32}")
        a("s_and_b32 s44, s44, 511")
        a("s_lshl_b32 s44, s44, 10")
        a("s_add_u32 s44, s44, s48")
        a("buffer_load_dwordx4 v4, s[8:11], s44 offen lds")
    def oload(H):
        a(f"s_add_u32 s44, s49, {H}")
        a("s_and_b32 s44, s44, 31")
        a("s_lshl_b32 s44, s44, 16")
        a("s_add_u32 s44, s44, s43")
        a(f"buffer_load_dwordx4 {vr(OF+4*H,4)}, v5, s[12:15], s44 offen")
    for q in range(4):
        for u in range(4): wdma(4*q+u)
        for H in range(8): oload(8*q+H)
    srd(a, 16, 28, 29, 2048*2048)
    a("v_lshrrev_b32 v2, 5, v1")
    a("v_lshlrev_b32 v3, 2, v2")
    a("v_bfe_u32 v8, v1, 2, 2")
    a("v_add_u32 v3, v3, v8")
    a("v_lshlrev_b32 v3, 7, v3")
    a("v_bfe_u32 v8, v1, 4, 1")
    a("v_lshlrev_b32 v8, 5, v8")
    a("v_add_u32 v3, v3, v8")
    a("v_and_b32 v8, 3, v1")
    a("v_lshlrev_b32 v8, 3, v8")
    a("v_add_u32 v3, v3, v8")
    a("v_bfe_u32 v8, v1, 3, 1")
    a("v_lshlrev_b32 v8, 6, v8")
    a("v_add_u32 v6, v3, v8")
    a("v_xor_b32 v8, 64, v8")
    a("v_add_u32 v7, v3, v8")
    a("v_and_b32 v8, 31, v1")
    a("v_lshlrev_b32 v8, 11, v8")
    a("v_lshlrev_b32 v9, 4, v2")
    a("v_add_u32 v8, v8, v9")
    ACC = 16
    st()
    WF = [48, 56]
    def rd(H, buf):
        for ct in range(2):
            a(f"ds_read_b64_tr_b16 {vr(WF[buf]+4*ct,2)}, v{6+ct} offset:{H*2048}")
            a(f"ds_read_b64_tr_b16 {vr(WF[buf]+4*ct+2,2)}, v{6+ct} offset:{H*2048+1024}")
    for q in range(4):
        a(f"s_waitcnt vmcnt({8 + 12*(3-q)})")
        a("s_barrier")
        rd(8*q, 0)
        for hh in range(8):
            H = 8*q + hh
            buf = hh % 2
            if hh < 7:
                rd(H+1, buf ^ 1)
                a(f"s_waitcnt vmcnt({7-hh + 12*(3-q)}) lgkmcnt(4)")
            else:
                a(f"s_waitcnt vmcnt({12*(3-q)}) lgkmcnt(0)")
            for ct in range(2):
                acc = ACC+16*ct
                mfma(a, acc, WF[buf]+4*ct, OF+4*H, "0" if H == 0 else acc)
    a("s_nop 15")
    st()
    a("s_lshl_b32 s44, s42, 16")
    a("s_lshl_b32 s45, s23, 10")
    a("s_add_u32 s44, s44, s45")
    a("s_lshl_b32 s45, s25, 7")
    a("s_add_u32 s44, s44, s45")
    for ct in range(2):
        for pr in range(2):
            b = ACC + 16*ct + 8*pr
            pk = 48 + (ct*2+pr)*4
            for r in range(4):
                a(f"v_cvt_pk_bf16_f32 v{pk+r}, v{b+2*r}, v{b+2*r+1}")
            a("s_nop 1")
            a(f"v_permlane32_swap_b32 v{pk}, v{pk+2}")
            a(f"v_permlane32_swap_b32 v{pk+1}, v{pk+3}")
            a("s_nop 1")
            a(f"buffer_store_dwordx4 {vr(pk,4)}, v8, s[16:19], s44 offen offset:{ct*64+pr*32}")
    st()
    st.flush(4)
    a.label("Lop_end")
    a("s_endpgm")

def kd(name, vgpr, sgpr=102):
    acc = (vgpr + 3)//4*4
    return f""".section .rodata,"a"
.p2align 6
.amdhsa_kernel {name}
  .amdhsa_next_free_vgpr {vgpr}
  .amdhsa_next_free_sgpr {sgpr}
  .amdhsa_accum_offset {acc}
  .amdhsa_group_segment_fixed_size 0
  .amdhsa_kernarg_size 72
  .amdhsa_user_sgpr_count 2
  .amdhsa_user_sgpr_kernarg_segment_ptr 1
  .amdhsa_system_sgpr_workgroup_id_x 1
.end_amdhsa_kernel
"""

HEADER = """; Kernarg layout for this problem (72 bytes, ptrs only, base s[0:1]):
;   offset   0: d_in[0] A_x  shape=(1, 2048, 512) dtype=bfloat16
;   offset   8: d_in[1] A_wqkv  shape=(512, 1536) dtype=bfloat16
;   offset  16: d_in[2] A_wo  shape=(512, 512) dtype=bfloat16
;   offset  24: d_in[3] B_x  shape=(1, 2048, 512) dtype=bfloat16
;   offset  32: d_in[4] B_wqkv  shape=(512, 1536) dtype=bfloat16
;   offset  40: d_in[5] B_wo  shape=(512, 512) dtype=bfloat16
;   offset  48: d_out     shape=(1, 2048, 1024) dtype=bfloat16
;   offset  56: d_debug   256 bytes
;   offset  64: d_ws      268435456 bytes workspace
; @launch grid=(256,1,1) block=(512,1,1) lds=163840
.amdgcn_target "amdgcn-amd-amdhsa--gfx950"
.text
.globl concat_heads__softmax_full_mha__sliding_block__prompt_kernel
"""

def main(path):
    a = Asm()
    gen_fused(a)
    txt = HEADER + a.text() + kd("concat_heads__softmax_full_mha__sliding_block__prompt_kernel", 256)
    open(path, "w").write(txt)

if __name__ == "__main__":
    main(sys.argv[1] if len(sys.argv) > 1 else f"cdna_kernels/{NAME}.s")
```

```python
import sys, os, struct

NAME = "concat_heads__softmax_full_mha__sliding_block__prompt"
STAMPS = os.environ.get("STAMPS", "")

class Asm:
    def __init__(self): self.lines = []
    def __call__(self, s): self.lines.append("  " + s)
    def label(self, s): self.lines.append(s + ":")
    def raw(self, s): self.lines.append(s)
    def text(self): return "\n".join(self.lines) + "\n"

def vr(b, n=1): return f"v{b}" if n == 1 else f"v[{b}:{b+n-1}]"
def f32bits(x): return struct.unpack("<I", struct.pack("<f", x))[0]

HEAD_STRIDE = 196608
PROB_STRIDE = 32 * HEAD_STRIDE
O_BASE = 2 * PROB_STRIDE
O_PROB = 32 * 65536
F_BASE = 16 << 20
WS_SIZE = 17 << 20
QSCALE = 0.25 * 1.4426950408889634
SPIN = 1 << 16

def srd(a, d, lo, hi, nrec):
    a(f"s_mov_b32 s{d}, s{lo}")
    a(f"s_and_b32 s{d+1}, s{hi}, 0xffff")
    a(f"s_mov_b32 s{d+2}, {nrec}")
    a(f"s_mov_b32 s{d+3}, 0x00020000")

class Stamper:
    def __init__(self, a, kname, kidx, wavereg, base=76):
        self.a=a; self.on=(STAMPS==kname or (STAMPS in ("fp","fs","fl") and kname=="fa")); self.fp=(STAMPS in ("fp","fs","fl")); self.fs=(STAMPS=="fs"); self.fl=(STAMPS=="fl"); self.rt=(STAMPS=="rt"); self.n=0; self.base=base; self.wavereg=wavereg; self.kidx=kidx
        if self.rt:
            a("s_memrealtime s[76:77]"); a("s_memtime s[78:79]")
    def p(self, idx):
        if self.fp and ((not self.fs and not self.fl) or idx==11): self._st(idx)
    def l(self, idx):
        if self.fl: self._st(idx)
    def ldyn(self, base, uid):
        if not self.fl: return
        a=self.a
        for j in range(4):
            a(f"s_cmp_eq_u32 s38, {j}")
            a(f"s_cbranch_scc0 Lst{uid}_{j}")
            self._st(base+j)
            a.label(f"Lst{uid}_{j}")
    def f(self, idx):
        if self.fs: self._st(idx)
    def __call__(self, idx=None):
        if STAMPS == "dbg" and self.kidx == 0:
            m = {0:0, 2:1, 5:2, 6:3, 9:4, 10:5, 11:6}
            if idx in m:
                self.a(f"s_memrealtime s[{76+2*m[idx]}:{77+2*m[idx]}]")
                self.a("s_waitcnt lgkmcnt(0)")
            return
        if not self.on: return
        if self.fp and idx not in (0,): return
        self._st(idx)
    def _st(self, idx=None):
        if idx is not None: self.n = idx
        assert self.base+2*self.n+1 < 102
        self.a(f"s_memtime s[{self.base+2*self.n}:{self.base+2*self.n+1}]")
        self.a("s_waitcnt lgkmcnt(0)")
        self.n+=1
    def flush(self, nw, n=None):
        if STAMPS == "dbg":
            a=self.a
            a("s_cmp_eq_u32 s3, 4"); a("s_cbranch_scc0 Ldbg_skip")
            a("s_cmp_eq_u32 s2, 0"); a("s_cselect_b32 s6, 4, 0")
            a("s_cmp_eq_u32 s2, 131"); a("s_cselect_b32 s6, 32, s6")
            a("s_cmp_eq_u32 s6, 0"); a("s_cbranch_scc1 Ldbg_skip")
            a("v_mov_b32 v1, s6")
            for i in range(1,7):
                a(f"s_sub_u32 s7, s{76+2*i}, s76")
                a("v_mov_b32 v2, s7")
                a(f"buffer_store_dword v2, v1, s[{DBG}:{DBG+3}], 0 offen offset:{4*(i-1)}")
            a("v_mov_b32 v2, s76")
            a(f"buffer_store_dword v2, v1, s[{DBG}:{DBG+3}], 0 offen offset:24")
            a("s_waitcnt vmcnt(0)")
            a.label("Ldbg_skip")
            return
        if not (self.on or self.rt): return
        a=self.a
        n = n or self.n
        if self.rt:
            a("s_waitcnt vmcnt(0)"); a("s_memrealtime s[80:81]"); a("s_memtime s[82:83]"); n=4
        a("s_load_dwordx2 s[4:5], s[0:1], 64")
        a("s_waitcnt vmcnt(0) lgkmcnt(0)")
        a(f"s_add_u32 s4, s4, {(64<<20) + (self.kidx<<20 if self.rt else 0)}")
        a("s_addc_u32 s5, s5, 0")
        srd(a, 8, 4, 5, 1<<20)
        a(f"s_mul_i32 s6, s2, {nw}")
        a(f"s_add_u32 s6, s6, {self.wavereg}")
        a("s_lshl_b32 s6, s6, 6")
        a("v_mov_b32 v1, s6")
        for i in range(n):
            a(f"v_mov_b32 v2, s{self.base+2*i}")
            a(f"buffer_store_dword v2, v1, s[8:11], 0 offen offset:{4*i}")
        a("s_waitcnt vmcnt(0)")

def mfma(a, d, x, y, c):
    cs = c if isinstance(c, str) else vr(c, 16)
    a(f"v_mfma_f32_32x32x16_bf16 {vr(d,16)}, {vr(x,4)}, {vr(y,4)}, {cs}")

WS, XB, WB, XA, WA, DBG = 4, 8, 12, 16, 20, 24
NONCE = 28
S_H, S_QB, S_G, S_TB = 30, 31, 32, 33
SLOT = 32768
BKV = 131072

def gen_fused(a):
    QA = [4, 8]; QB = 12
    OACC = [16, 32]
    CNEG = [48, 64]
    SB = [[80, 96], [112, 128]]
    PP = [144, 152]
    VF = [160, 168]
    KF = 176
    MHI, MLO = 212, 228
    VKA, VVA, TMP, LIN, MX, MX1 = 244, 245, 246, 247, 248, 249
    T0, T1, T2, T3 = 250, 251, 252, 253
    VKN, VVN = 254, 255
    VLO = 3
    XCH = 98304
    QBL = 122880
    FA, FB = F_BASE, F_BASE + 65536
    PUB = int(os.environ.get("PUB", "9"))
    FO = F_BASE + 131072
    WOA, WOB, OUT = 8, 12, 16

    a.raw(".p2align 8")
    a.raw(".type concat_heads__softmax_full_mha__sliding_block__prompt_kernel,@function")
    a.label("concat_heads__softmax_full_mha__sliding_block__prompt_kernel")
    a("s_cmp_ge_u32 s2, 256")
    a("s_cbranch_scc1 Lfa_end")
    st = Stamper(a, "fa", 0, "s3")
    st(0)
    a("s_load_dwordx4 s[36:39], s[0:1], 0")
    a("s_load_dwordx2 s[34:35], s[0:1], 24")
    a("s_load_dwordx2 s[42:43], s[0:1], 32")
    a("s_load_dwordx4 s[44:47], s[0:1], 56")
    a("v_and_b32 v1, 63, v0")
    a("v_lshrrev_b32 v2, 6, v0")
    a(f"s_and_b32 s{S_H}, s2, 31")
    a("v_readfirstlane_b32 s3, v2")
    a(f"s_lshr_b32 s{S_QB}, s2, 5")
    a("s_lshr_b32 s48, s2, 3")
    a("s_and_b32 s49, s2, 1")
    a("s_lshl_b32 s49, s49, 2")
    a("s_and_b32 s50, s48, 3")
    a(f"s_add_u32 s{S_G}, s49, s50")
    a("s_bfe_u32 s49, s2, 0x20001")
    a("s_lshl_b32 s49, s49, 3")
    a("s_lshr_b32 s50, s48, 2")
    a(f"s_add_u32 s{S_TB}, s49, s50")
    a(f"s_and_b32 s29, s{S_G}, 3")
    a("s_lshl_b32 s29, s29, 1")
    a(f"s_add_u32 s29, s29, s{S_TB}")
    a("s_and_b32 s29, s29, 7")
    a("s_cmp_lt_u32 s3, 4")
    a("s_cbranch_scc1 Lfa_compute")

    def early_setup():
        a(f"v_lshlrev_b32 v{LIN}, 4, v1")
        a(f"v_lshrrev_b32 v{T0}, 5, v1")
        a(f"v_lshlrev_b32 v{VLO}, 8, v{T0}")
        a(f"v_and_b32 v{T1}, 15, v1")
        a(f"v_lshlrev_b32 v{T1}, 4, v{T1}")
        a(f"v_add_u32 v{VLO}, v{VLO}, v{T1}")
        a(f"v_add_u32 v{VLO}, 1024, v{VLO}")
        a(f"v_and_b32 v{T1}, 27, v1")
        a(f"v_cmp_eq_u32 vcc, 16, v{T1}")
        a(f"v_mov_b32 v{T2}, 0x3f803f80")
        a(f"v_mov_b32 v{T3}, 0")
        a("s_nop 0")
        for r in range(16):
            a(f"v_cndmask_b32 v{VF[0]+r}, v{T3}, v{T2}, vcc")
        a(f"v_and_b32 v{T1}, 31, v1")
        a(f"v_lshlrev_b32 v{T0}, 2, v{T0}")
        a(f"v_sub_u32 v{T1}, v{T1}, v{T0}")
        a(f"v_mov_b32 v{T2}, 0xff800000")
        for r in range(16):
            cr = 8*(r//4) + r % 4
            a(f"v_cmp_le_i32 s[{62+2*(r%4)}:{63+2*(r%4)}], {cr}, v{T1}")
            if r % 4 == 3:
                a("s_nop 1")
                for q in range(r-3, r+1):
                    a(f"v_cndmask_b32 v{MHI+q}, v{T2}, v{T3}, s[{62+2*(q%4)}:{63+2*(q%4)}]")
                    a(f"v_cndmask_b32 v{MLO+q}, v{T3}, v{T2}, s[{62+2*(q%4)}:{63+2*(q%4)}]")
        a("s_lshr_b32 s70, s3, 2")
        a("s_lshl_b32 s71, s70, 14")
        a(f"s_add_u32 s72, s71, {BKV}")
        a(f"v_add_u32 v{VKN}, s71, v{LIN}")
        a(f"v_add_u32 v{VVN}, s71, v{VLO}")
        a(f"v_add_u32 v{VKA}, s72, v{LIN}")
        a(f"v_add_u32 v{VVA}, s72, v{VLO}")
        a("s_mov_b32 s73, 0")
        a("s_mov_b32 s40, 0x0000ffff")
        a("s_mov_b32 s41, 0x0000ffff")

    a("s_sub_u32 s48, s3, 4")
    a("v_lshrrev_b32 v2, 3, v1")
    a("v_lshlrev_b32 v2, 10, v2")
    a("v_and_b32 v3, 7, v1")
    a("v_lshrrev_b32 v6, 4, v1")
    a("v_xor_b32 v3, v3, v6")
    a("v_lshlrev_b32 v3, 4, v3")
    a("v_add_u32 v4, v2, v3")
    a("v_xor_b32 v5, 64, v4")
    a(f"s_lshl_b32 s50, s{S_TB}, 6")
    a("s_lshl_b32 s49, s48, 4")
    a("s_add_u32 s50, s50, s49")
    a("s_lshl_b32 s50, s50, 10")
    a("s_lshl_b32 s51, s48, 11")
    a("s_mul_i32 s52, s48, 49152")
    a(f"s_lshl_b32 s49, s{S_G}, 7")
    a("s_add_u32 s52, s52, s49")
    a("s_mul_i32 s53, s48, 6144")
    a("s_add_u32 s53, s53, 8192")
    a("s_movk_i32 s49, 171")
    a("s_movk_i32 s55, 3072")
    for v in range(3):
        a(f"v_add_u32 v2, {64*v}, v1")
        a("v_mul_lo_u32 v3, v2, s49")
        a("v_lshrrev_b32 v3, 12, v3")
        a("v_mul_u32_u24 v9, 24, v3")
        a("v_sub_u32 v9, v2, v9")
        a("v_bfe_u32 v10, v3, 1, 1")
        a("v_lshlrev_b32 v10, 2, v10")
        a("v_xor_b32 v9, v9, v10")
        a("v_mul_lo_u32 v3, v3, s55")
        a("v_lshrrev_b32 v10, 3, v9")
        a("v_lshlrev_b32 v10, 10, v10")
        a("v_add_u32 v3, v3, v10")
        a("v_and_b32 v9, 7, v9")
        a("v_lshlrev_b32 v9, 4, v9")
        a(f"v_add_u32 v{6+v}, v3, v9")
    a("s_waitcnt lgkmcnt(0)")
    srd(a, XA, 36, 37, 2048*1024)
    srd(a, WA, 38, 39, 512*3072)
    def dma_chunk(i, ldsbase=None):
        c = i % 8
        base = (i % 4)*SLOT if ldsbase is None else ldsbase
        xs, wsr = (XA, WA) if i < 8 else (XB, WB)
        a(f"s_add_u32 s58, s29, {c}")
        a("s_and_b32 s58, s58, 7")
        a("s_lshl_b32 s59, s58, 7")
        a("s_add_u32 s59, s59, s50")
        a(f"s_mul_i32 s58, s58, {64*3072}")
        a("s_add_u32 s58, s58, s52")
        for u in range(2):
            a(f"s_add_u32 m0, s51, {base + u*1024}")
            a(f"s_add_u32 s54, s59, {u*8192}")
            a(f"buffer_load_dwordx4 v{4 + u}, s[{xs}:{xs+3}], s54 offen lds")
        for u in range(6):
            up, v = divmod(u, 3)
            a(f"s_add_u32 m0, s53, {base + u*1024}")
            a(f"s_add_u32 s54, s58, {8*up*3072}")
            a(f"buffer_load_dwordx4 v{6 + v}, s[{wsr}:{wsr+3}], s54 offen lds")
    dma_chunk(0)
    dma_chunk(1)
    srd(a, XB, 34, 35, 2048*1024)
    srd(a, WB, 42, 43, 512*3072)
    srd(a, WS, 46, 47, WS_SIZE)
    srd(a, DBG, 44, 45, 256)
    a("s_cmp_eq_u32 s2, 0")
    a("s_cselect_b32 s49, s48, 1")
    a("s_cmp_eq_u32 s49, 0")
    a("s_cbranch_scc0 Lfa_nononce")
    a("s_memrealtime s[56:57]")
    a("s_waitcnt lgkmcnt(0)")
    a("s_or_b32 s56, s56, 1")
    a("v_mov_b32 v10, s56")
    a("v_mov_b32 v11, 0")
    a(f"buffer_store_dword v10, v11, s[{DBG}:{DBG+3}], 0 offen sc1")
    a.label("Lfa_nononce")
    dma_chunk(8, BKV)
    early_setup()
    a(f"s_lshr_b32 s56, s{S_H}, 2")
    a("s_lshl_b32 s56, s56, 12")
    a(f"s_add_u32 s56, s56, {FA}")
    a("v_and_b32 v12, 31, v1")
    a("v_lshlrev_b32 v12, 7, v12")
    a("v_add_u32 v12, s56, v12")
    a(f"s_lshl_b32 s56, s{S_G}, 5")
    a(f"s_add_u32 s56, s56, s{S_TB}")
    a("s_lshl_b32 s74, s56, 7")
    a("v_and_b32 v2, 7, v1")
    a(f"s_lshl_b32 s49, s{S_QB}, 2")
    a("s_sub_u32 s49, s49, 4")
    a("v_add_u32 v2, s49, v2")
    a("v_max_i32 v2, 0, v2")
    a(f"s_lshr_b32 s49, s{S_H}, 2")
    a("s_lshl_b32 s49, s49, 5")
    a("v_add_u32 v2, s49, v2")
    a("v_lshlrev_b32 v2, 7, v2")
    a(f"v_add_u32 v2, {FB}, v2")
    a("v_mov_b32 v11, 0")
    st(1)
    def write_flag(base):
        a(f"s_add_u32 s56, s74, {base}")
        a("v_mov_b32 v14, s56")
        a(f"v_mov_b32 v15, s{NONCE}")
        a("s_mov_b64 exec, 1")
        a(f"buffer_store_dword v15, v14, s[{WS}:{WS+3}], 0 offen sc1")
        a("s_mov_b64 exec, -1")
    def a_loads():
        a(f"s_mul_i32 s64, s{S_H}, {HEAD_STRIDE}")
        a("s_lshl_b32 s65, s48, 10")
        a("s_add_u32 s64, s64, s65")
        for u in range(8):
            a(f"s_add_u32 m0, s65, {BKV + (u&3)*4096 + (u>>2)*16384}")
            a(f"s_add_u32 s66, s64, {65536 + (u&3)*4096 + (u>>2)*65536}")
            a(f"buffer_load_dwordx4 v{LIN}, s[{WS}:{WS+3}], s66 offen sc1 lds")
        a(f"s_lshl_b32 s67, s{S_QB}, 13")
        a("s_add_u32 s67, s67, s64")
        for u in range(2):
            a(f"s_add_u32 m0, s65, {32768 + u*4096}")
            a(f"s_add_u32 s66, s67, {u*4096}")
            a(f"buffer_load_dwordx4 v{LIN}, s[{WS}:{WS+3}], s66 offen sc1 lds")
        for u in range(8):
            a(f"s_add_u32 m0, s65, {(u&3)*4096 + (u>>2)*16384}")
            a(f"s_add_u32 s66, s64, {65536 + 16384 + (u&3)*4096 + (u>>2)*65536}")
            a(f"buffer_load_dwordx4 v{LIN}, s[{WS}:{WS+3}], s66 offen sc1 lds")
    for i in range(16):
        if i == 0:   w = 16
        elif i == 1: w = 17
        elif i == 2: w = 8
        elif i <= 6: w = 8
        elif i == 7: w = 0
        elif i == 8: w = 8
        elif i <= 13: w = 8
        elif i == 14: w = 9
        else: w = 1
        a(f"s_waitcnt vmcnt({w})")
        if i == 2:
            a(f"s_mov_b32 s55, {SPIN}")
            a.label("Lfa_nspin")
            a(f"v_readfirstlane_b32 s{NONCE}, v10")
            a(f"s_cmp_lg_u32 s{NONCE}, 0")
            a("s_cbranch_scc1 Lfa_ngot")
            a("s_sleep 1")
            a(f"buffer_load_dword v10, v11, s[{DBG}:{DBG+3}], 0 offen sc1")
            a("s_waitcnt vmcnt(0)")
            a("s_sub_u32 s55, s55, 1")
            a("s_cmp_lg_u32 s55, 0")
            a("s_cbranch_scc1 Lfa_nspin")
            a.label("Lfa_ngot")
        a("s_barrier")
        if i in (0,1,2,4,6,8,10,12,14,15): st.p({0:1,1:2,2:3,4:4,6:5,8:6,10:7,12:8,14:9,15:10}[i])
        if i == 0:
            a(f"buffer_load_dword v10, v11, s[{DBG}:{DBG+3}], 0 offen sc1")
        if i + 2 <= 15 and i + 2 != 8:
            dma_chunk(i + 2)
        if i == PUB + 1:
            a("s_cmp_eq_u32 s48, 0")
            a("s_cbranch_scc0 Lfa_nf")
            write_flag(FA)
            a.label("Lfa_nf")
        if i == 13:
            a(f"buffer_load_dword v13, v12, s[{WS}:{WS+3}], 0 offen sc1")
    st(2)
    a(f"s_mov_b32 s55, {SPIN}")
    a.label("Lfa_aspin")
    a("s_waitcnt vmcnt(0)")
    a(f"v_cmp_eq_u32 vcc, s{NONCE}, v13")
    a("s_nop 4")
    a("s_cmp_eq_u64 vcc, -1")
    a("s_cbranch_scc1 Lfa_agot")
    a("s_sleep 1")
    a(f"buffer_load_dword v13, v12, s[{WS}:{WS+3}], 0 offen sc1")
    a("s_sub_u32 s55, s55, 1")
    a("s_cmp_lg_u32 s55, 0")
    a("s_cbranch_scc1 Lfa_aspin")
    a("s_waitcnt vmcnt(0)")
    a.label("Lfa_agot")
    a_loads()
    st(3)
    a("s_branch Lfa_attn")

    a.label("Lfa_compute")
    a("s_lshr_b32 s48, s3, 1")
    a("s_and_b32 s49, s3, 1")
    a("v_and_b32 v2, 31, v1")
    a("v_lshrrev_b32 v3, 5, v1")
    a("v_bfe_u32 v9, v2, 1, 3")
    a("v_xor_b32 v9, v9, v3")
    a("s_lshl_b32 s50, s48, 12")
    a("v_lshlrev_b32 v18, 7, v2")
    a("v_add_u32 v18, s50, v18")
    for s in range(4):
        a(f"v_xor_b32 v19, {2*s}, v9")
        a("v_lshlrev_b32 v19, 4, v19")
        a(f"v_add_u32 v{10+s}, v18, v19")
        a(f"v_add_u32 v{14+s}, 0x10000, v{10+s}")
    a("v_lshlrev_b32 v24, 3, v3")
    a("v_bfe_u32 v25, v1, 2, 2")
    a("v_add_u32 v24, v24, v25")
    a("s_movk_i32 s50, 384")
    a("v_mul_lo_u32 v24, v24, s50")
    a("v_bfe_u32 v25, v1, 4, 1")
    a("v_lshlrev_b32 v25, 5, v25")
    a("v_add_u32 v24, v24, v25")
    a("v_and_b32 v25, 3, v1")
    a("v_lshlrev_b32 v25, 3, v25")
    a("v_add_u32 v24, v24, v25")
    a("v_add_u32 v24, 8192, v24")
    a("v_bfe_u32 v25, v1, 3, 1")
    a("s_mul_i32 s50, s49, 3")
    for ct in range(3):
        a(f"s_add_u32 s51, s50, {ct}")
        a("v_xor_b32 v26, s51, v25")
        a("v_lshlrev_b32 v26, 6, v26")
        a(f"v_add_u32 v{18+ct}, v24, v26")
        a(f"v_add_u32 v{21+ct}, 0x10000, v{18+ct}")
    a("v_lshlrev_b32 v24, 4, v1")
    a("v_bfe_u32 v25, v1, 4, 1")
    a(f"s_mov_b32 s50, {HEAD_STRIDE}")
    a("v_mul_lo_u32 v25, v25, s50")
    a("v_lshlrev_b32 v26, 8, v3")
    a("v_add_u32 v25, v25, v26")
    a("v_and_b32 v26, 15, v1")
    a("v_lshlrev_b32 v26, 4, v26")
    a("v_add_u32 v25, v25, v26")
    a(f"s_mul_i32 s52, s{S_G}, {4*HEAD_STRIDE}")
    a(f"s_lshl_b32 s53, s{S_TB}, 1")
    a("s_add_u32 s53, s53, s48")
    a("s_lshl_b32 s54, s53, 11")
    a("s_add_u32 s54, s54, 65536")
    a("s_lshl_b32 s53, s53, 10")
    a(f"s_mov_b32 s55, {f32bits(QSCALE):#x}")
    ACC = 64
    for r in range(48): a(f"v_mov_b32 v{ACC+r}, 0")
    early_setup()
    a("s_waitcnt lgkmcnt(0)")
    srd(a, WS, 46, 47, WS_SIZE)
    if os.environ.get("XTOUCH", "0") == "1":
        a("s_cmp_eq_u32 s3, 3")
        a("s_cbranch_scc0 Lfa_nxt")
        srd(a, XB, 34, 35, 2048*1024)
        a("v_lshrrev_b32 v129, 3, v1")
        a("v_lshlrev_b32 v129, 10, v129")
        a("v_and_b32 v130, 7, v1")
        a("v_lshlrev_b32 v130, 7, v130")
        a("v_add_u32 v129, v129, v130")
        a(f"s_lshl_b32 s60, s{S_TB}, 16")
        a(f"s_and_b32 s61, s{S_G}, 3")
        a("s_lshl_b32 s61, s61, 14")
        a("s_add_u32 s60, s60, s61")
        a("s_add_u32 s61, s60, 8192")
        a(f"buffer_load_dword v131, v129, s[{XB}:{XB+3}], s60 offen")
        a(f"buffer_load_dword v132, v129, s[{XB}:{XB+3}], s61 offen")
        a.label("Lfa_nxt")
    XF = [28, 32]; WF = [36, 48]; PK = 112
    def read_frags(slot, s, buf):
        xr = (10 if slot < 2 else 14) + s
        a(f"ds_read_b128 {vr(XF[buf],4)}, v{xr} offset:{(slot%2)*SLOT}")
        for ct in range(3):
            reg = (18 if slot < 2 else 21) + ct
            off = (slot % 2) * SLOT + s * 6144
            a(f"ds_read_b64_tr_b16 {vr(WF[buf]+4*ct,2)}, v{reg} offset:{off}")
            a(f"ds_read_b64_tr_b16 {vr(WF[buf]+4*ct+2,2)}, v{reg} offset:{off+1536}")
    def body(types, tag):
        L = f"Lpj{tag}"
        st(1)
        a("s_mov_b32 s57, 0")
        a.label(L + "_loop")
        for slot in range(4):
            a("s_barrier")
            if slot == 0:
                a("s_cmp_eq_u32 s57, 2")
                a(f"s_cselect_b32 s58, {BKV}, 0")
                for r in (10, 11, 12, 13, 18, 19, 20):
                    a(f"v_add_u32 v{r}, s58, v{r}")
            if slot == PUB % 4:
                a(f"s_cmp_eq_u32 s57, {PUB // 4}")
                a(f"s_cbranch_scc0 {L}_np")
                a("s_waitcnt vmcnt(0)")
                a.label(L + "_np")
            read_frags(slot, 0, 0)
            for s in range(4):
                buf = s % 2
                if s < 3:
                    read_frags(slot, s+1, buf ^ 1)
                    a("s_waitcnt lgkmcnt(7)")
                else:
                    a("s_waitcnt lgkmcnt(0)")
                for ct in range(3):
                    acc = ACC + ct*16
                    if types[ct] == 'V':
                        mfma(a, acc, XF[buf], WF[buf]+4*ct, acc)
                    else:
                        mfma(a, acc, WF[buf]+4*ct, XF[buf], acc)
            if slot == 0:
                for r in (10, 11, 12, 13, 18, 19, 20):
                    a(f"v_subrev_u32 v{r}, s58, v{r}")
        a("s_add_u32 s57, s57, 1")
        a("s_bitcmp1_b32 s57, 0")
        a(f"s_cbranch_scc1 {L}_loop")
        a("s_nop 15")
        n = 0
        for ct in range(3):
            acc = ACC + ct*16
            c = tag*3 + ct
            ty = types[ct]
            for e in range(2):
                pk = PK + (n % 4)*4; n += 1
                if ty == 'Q':
                    for r in range(8):
                        a(f"v_mul_f32 v{acc+8*e+r}, s55, v{acc+8*e+r}")
                for r in range(4):
                    a(f"v_cvt_pk_bf16_f32 v{pk+r}, v{acc+2*r+8*e}, v{acc+8*e+2*r+1}")
                if ty == 'Q':
                    a(f"s_add_u32 s59, s52, {(2*(c%2)+e)*HEAD_STRIDE}")
                    a("s_add_u32 s59, s59, s53")
                    a(f"buffer_store_dwordx4 {vr(pk,4)}, v24, s[{WS}:{WS+3}], s59 offen sc1")
                elif ty == 'K':
                    a(f"s_add_u32 s59, s52, {(2*(c%2)+e)*HEAD_STRIDE}")
                    a("s_add_u32 s59, s59, s54")
                    a(f"buffer_store_dwordx4 {vr(pk,4)}, v24, s[{WS}:{WS+3}], s59 offen sc1")
                else:
                    a(f"s_add_u32 s59, s52, {(2*(c%2))*HEAD_STRIDE + 1024 + 512*e}")
                    a("s_add_u32 s59, s59, s54")
                    a(f"buffer_store_dwordx4 {vr(pk,4)}, v25, s[{WS}:{WS+3}], s59 offen sc1")
        for r in range(48): a(f"v_mov_b32 v{ACC+r}, 0")
        a(f"s_add_u32 s52, s52, {PROB_STRIDE}")
        a("s_cmp_lt_u32 s57, 4")
        a(f"s_cbranch_scc1 {L}_loop")
        st(2); st(3)
        a("s_branch Lfa_attn")
    a("s_cmp_eq_u32 s49, 0")
    a("s_cbranch_scc0 Lfa_wn1")
    body(['Q', 'Q', 'K'], 0)
    a.label("Lfa_wn1")
    body(['K', 'V', 'V'], 1)

    a.label("Lfa_attn")
    a("s_and_b32 s64, s3, 3")
    a("s_lshl_b32 s64, s64, 11")
    a(f"s_add_u32 s64, s64, 32768")
    a(f"v_add_u32 v{T0}, s64, v{LIN}")
    a(f"v_add_u32 v{T1}, {BKV}, v{LIN}")
    a(f"s_mul_i32 s62, s{S_H}, {HEAD_STRIDE}")
    a("s_lshl_b32 s63, s3, 10")
    a("s_add_u32 s62, s62, s63")
    WOV = 0
    a("v_lshrrev_b32 v0, 3, v1")
    a("v_lshlrev_b32 v0, 10, v0")
    a(f"v_bfe_u32 v{T2}, v1, 4, 1")
    a(f"v_lshlrev_b32 v{T2}, 2, v{T2}")
    a(f"v_and_b32 v{T3}, 7, v1")
    a(f"v_xor_b32 v{T2}, v{T2}, v{T3}")
    a(f"v_lshlrev_b32 v{T2}, 4, v{T2}")
    a(f"v_add_u32 v0, v0, v{T2}")
    a(f"s_lshl_b32 s34, s{S_QB}, 3")
    a("s_add_u32 s34, s34, s3")
    a("s_min_u32 s35, s34, 8")
    a(f"s_mul_i32 s36, s{S_H}, {HEAD_STRIDE}")
    a(f"s_add_u32 s36, s36, {PROB_STRIDE}")
    a("s_load_dwordx2 s[44:45], s[0:1], 16")
    a("s_load_dwordx4 s[48:51], s[0:1], 40")
    a("s_bfe_u32 s75, s2, 0x20001")
    a("s_and_b32 s52, s2, 1")
    a("s_lshl_b32 s52, s52, 2")
    a("s_bfe_u32 s53, s2, 0x20003")
    a("s_add_u32 s39, s52, s53")
    a("s_lshl_b32 s42, s3, 13")
    a("s_lshl_b32 s52, s39, 7")
    a("s_add_u32 s42, s42, s52")
    a("s_waitcnt lgkmcnt(0)")
    srd(a, WOA, 44, 45, 512*1024)
    srd(a, WOB, 48, 49, 512*1024)
    srd(a, OUT, 50, 51, 2048*2048)
    st(4)
    st.l(1)
    a("s_waitcnt vmcnt(8)")
    a("s_barrier")
    st(5)
    st.l(2)
    a(f"ds_read_b128 {vr(QA[0],4)}, v{T0}")
    a(f"ds_read_b128 {vr(QA[1],4)}, v{T0} offset:1024")
    a(f"ds_read_b128 {vr(KF,4)}, v{T1}")
    a("s_waitcnt lgkmcnt(0)")
    mfma(a, SB[0][0], KF, QA[0], "0")
    mfma(a, SB[1][0], KF, QA[1], "0")
    a("s_cmp_eq_u32 s3, 4")
    a("s_cbranch_scc0 La_nnw")
    a(f"v_mov_b32 v{T0}, {XCH + 512}")
    a(f"v_mov_b32 v{T1}, s{NONCE}")
    a(f"ds_write_b32 v{T0}, v{T1}")
    a("s_waitcnt lgkmcnt(0)")
    a.label("La_nnw")
    a("s_barrier")
    a(f"v_mov_b32 v{T0}, {XCH + 512}")
    a(f"ds_read_b32 v{T0}, v{T0}")
    a("s_waitcnt lgkmcnt(0)")
    a(f"v_readfirstlane_b32 s{NONCE}, v{T0}")
    for q in range(2):
        for r in range(16):
            a(f"v_mov_b32 v{OACC[q]+r}, 0") if r < 6 else None
    for q, m in ((0, MX), (1, MX1)):
        s = SB[q][0]
        a(f"v_max_f32 v{m}, v{s}, v{s+1}")
        for r in range(1, 8):
            a(f"v_max3_f32 v{m}, v{s+2*r}, v{s+2*r+1}, v{m}")
    def halves_max(m, t):
        a(f"v_mov_b32 v{t}, v{m}")
        a("s_nop 1")
        a(f"v_permlane32_swap_b32 v{m}, v{t}")
        a("s_nop 1")
        a(f"v_max_f32 v{m}, v{m}, v{t}")
    def read_v(buf, areg, off):
        a("s_mov_b64 exec, s[40:41]")
        a(f"ds_read_b128 {vr(buf,4)}, v{areg} offset:{off}")
        a(f"ds_read_b128 {vr(buf+4,4)}, v{areg} offset:{off+512}")
        a("s_mov_b64 exec, -1")
    def step(cur, p, o, early, qk, pre_pv0, mid, pre_pv1, vb):
        E = lambda i: a(f"v_exp_f32 v{cur+i}, v{cur+i}")
        C = lambda j: a(f"v_cvt_pk_bf16_f32 v{p+j}, v{cur+2*j}, v{cur+2*j+1}")
        E(0); E(1)
        early()
        E(2); E(3); C(0); E(4); C(1); E(5)
        qk()
        E(6); E(7); C(2); E(8); C(3); E(9); E(10)
        pre_pv0()
        mfma(a, o, vb, p, o)
        E(11); C(4); E(12); C(5); E(13); E(14); E(15); C(6); C(7)
        mid()
        pre_pv1()
        mfma(a, o, vb+4, p+4, o)
    nop = lambda: None
    a.label("La_main")
    a(f"ds_read_b128 {vr(KF,4)}, v{VKA}")
    read_v(VF[0], VVA, 0)
    a(f"ds_read_b128 {vr(KF+4,4)}, v{VKA} offset:2048")
    halves_max(MX, TMP)
    halves_max(MX1, TMP)
    for q, m in ((0, MX), (1, MX1)):
        for r in range(16):
            a(f"v_sub_f32 v{CNEG[q]+r}, 0, v{m}")
    a("s_waitcnt lgkmcnt(3)")
    mfma(a, SB[0][0], KF, QA[0], CNEG[0])
    mfma(a, SB[1][0], KF, QA[1], CNEG[1])
    for q in range(2):
        for r in range(16):
            a(f"v_mov_b32 v{OACC[q]+r}, 0")
    U = 8
    a("s_mov_b32 s38, 0")
    a.raw(".p2align 6")
    a.label("La_loop")
    st.ldyn(3, "a")
    def kv_dma(j):
        for u in range(4):
            a(f"s_add_u32 m0, s63, {(j-1)*32768 + (u&1)*8192 + (u>>1)*16384}")
            a(f"s_add_u32 s66, s62, {65536 + j*16384 + (u&1)*8192 + (u>>1)*65536}")
            a(f"buffer_load_dwordx4 v{LIN}, s[{WS}:{WS+3}], s66 offen sc1 lds")
    def wo_dma(srdr, half, ldsbase):
        for u in range(4):
            a(f"s_add_u32 m0, s63, {ldsbase + u*8192}")
            a(f"s_add_u32 s66, s42, {(256*half + 64*u)*1024}")
            a(f"buffer_load_dwordx4 v{WOV}, s[{srdr}:{srdr+3}], s66 offen lds")
    for n in range(U):
        vb = VF[n % 2]
        if n == 3:
            a("s_cmp_eq_u32 s38, 3")
            a("s_cselect_b32 s64, s73, 1")
            a("s_cmp_eq_u32 s64, 0")
            a("s_cbranch_scc0 La_ng0")
            wo_dma(WOA, 0, 0)
            a.label("La_ng0")
        if n == 1:
            a("s_cmp_lg_u32 s73, 0")
            a("s_cbranch_scc1 La_sd")
            a("s_cmp_eq_u32 s38, 0")
            a("s_cbranch_scc0 La_s1")
            kv_dma(2)
            a("s_branch La_sd")
            a.label("La_s1")
            a("s_cmp_eq_u32 s38, 1")
            a("s_cbranch_scc0 La_s2")
            kv_dma(3)
            a("s_branch La_sd")
            a.label("La_s2")
            a("s_cmp_lt_u32 s3, 4")
            a("s_cbranch_scc1 La_sd")
            a("s_cmp_eq_u32 s38, 2")
            a("s_cbranch_scc0 La_s3")
            a(f"buffer_load_dword v{T2}, v2, s[{WS}:{WS+3}], 0 offen sc1")
            a("s_branch La_sd")
            a.label("La_s3")
            a(f"s_mov_b32 s67, {SPIN}")
            a.label("La_bspin")
            a("s_waitcnt vmcnt(0)")
            a(f"v_cmp_eq_u32 vcc, s{NONCE}, v{T2}")
            a("s_nop 4")
            a("s_cmp_eq_u64 vcc, -1")
            a("s_cbranch_scc1 La_bgot")
            a("s_sleep 1")
            a(f"buffer_load_dword v{T2}, v2, s[{WS}:{WS+3}], 0 offen sc1")
            a("s_sub_u32 s67, s67, 1")
            a("s_cmp_lg_u32 s67, 0")
            a("s_cbranch_scc1 La_bspin")
            a("s_waitcnt vmcnt(0)")
            a.label("La_bgot")
            b_loads(a, LIN, QBL)
            a.label("La_sd")
        if n == 5:
            a("s_cmp_lg_u32 s73, 0")
            a("s_cbranch_scc1 La_nowait")
            a("s_cmp_eq_u32 s38, 3")
            a("s_cbranch_scc1 La_nowait")
            a("s_cmp_eq_u32 s38, 2")
            a("s_cbranch_scc1 La_w2")
            a("s_waitcnt vmcnt(4)")
            a("s_branch La_wd")
            a.label("La_w2")
            a("s_waitcnt vmcnt(1)")
            a.label("La_wd")
            a("s_barrier")
            a("s_cmp_eq_u32 s38, 0")
            a("s_cselect_b32 s64, s3, 0")
            a("s_cmp_eq_u32 s64, 4")
            a("s_cbranch_scc0 La_nowait")
            a(f"s_add_u32 s56, s74, {FB}")
            a(f"v_mov_b32 v{T0}, s56")
            a(f"v_mov_b32 v{T1}, s{NONCE}")
            a("s_mov_b64 exec, 1")
            a(f"buffer_store_dword v{T1}, v{T0}, s[{WS}:{WS+3}], 0 offen sc1")
            a("s_mov_b64 exec, -1")
            a.label("La_nowait")
        for q in range(2):
            cur, nxt = SB[q][n % 2], SB[q][(n+1) % 2]
            def early(n=n):
                if n + 1 < U: read_v(VF[(n+1) % 2], VVA, (n+1)*2048)
                else: read_v(VF[(n+1) % 2], VVN, 0)
            def qk(q=q, nxt=nxt, n=n):
                if q == 0: a("s_waitcnt lgkmcnt(2)")
                mfma(a, nxt, KF+4*((n+1) % 2), QA[q], CNEG[q])
                if q == 1:
                    if n + 2 < U: a(f"ds_read_b128 {vr(KF+4*(n % 2),4)}, v{VKA} offset:{(n+2)*2048}")
                    else: a(f"ds_read_b128 {vr(KF+4*(n % 2),4)}, v{VKN} offset:{(n+2-U)*2048}")
            step(cur, PP[q], OACC[q], early if q == 0 else nop, qk, nop,
                 lambda: a("s_nop 1"), nop, vb)
    a(f"v_mov_b32 v{VKA}, v{VKN}")
    a(f"v_mov_b32 v{VVA}, v{VVN}")
    a(f"v_add_u32 v{VKN}, 32768, v{VKN}")
    a(f"v_add_u32 v{VVN}, 32768, v{VVN}")
    a("s_add_u32 s38, s38, 1")
    a("s_cmp_lg_u32 s38, 4")
    a("s_cbranch_scc1 La_loop")
    st(6)
    st.l(7)
    a("s_waitcnt lgkmcnt(0)")
    a("s_nop 7")
    a(f"v_mov_b32 v{TMP}, 0x71800000")
    a(f"v_cmp_lt_f32 vcc, v{OACC[0]+8}, v{TMP}")
    a(f"v_cmp_lt_f32 s[58:59], v{OACC[1]+8}, v{TMP}")
    a("s_nop 4")
    a("s_and_b64 s[58:59], s[58:59], vcc")
    a("s_cmp_eq_u64 s[58:59], -1")
    a("s_cselect_b32 s64, 0, 1")
    a("s_cmp_lg_u32 s73, 0")
    a("s_cselect_b32 s64, 0, s64")
    a("s_lshl_b32 s65, s3, 2")
    a(f"s_add_u32 s65, s65, {XCH}")
    a(f"v_mov_b32 v{T0}, s65")
    a(f"v_mov_b32 v{T1}, s64")
    a(f"ds_write_b32 v{T0}, v{T1}")
    a("s_mul_i32 s65, s3, 2560")
    a(f"s_add_u32 s65, s65, {XCH + 1024}")
    a(f"v_add_u32 v{T0}, s65, v{LIN}")
    a(f"v_lshrrev_b32 v{T1}, 2, v{LIN}")
    a(f"v_add_u32 v{T1}, s65, v{T1}")
    a("s_cmp_eq_u32 s70, 0")
    a("s_cbranch_scc0 La_sendq0")
    for lab, qs in (("La_sendq1", 1), ("La_sendq0", 0)):
        if qs == 0: a.label(lab)
        a(f"ds_write_b128 v{T0}, {vr(OACC[qs],4)}")
        a(f"ds_write_b128 v{T0}, {vr(OACC[qs]+4,4)} offset:1024")
        a(f"ds_write_b32 v{T1}, v{OACC[qs]+8} offset:2048")
        if qs == 1:
            a("s_branch La_sent")
        else:
            for r in range(9):
                a(f"v_mov_b32 v{OACC[0]+r}, v{OACC[1]+r}")
    a.label("La_sent")
    a("s_waitcnt vmcnt(0) lgkmcnt(0)")
    a("s_barrier")
    a(f"v_and_b32 v{T2}, 7, v1")
    a(f"v_lshlrev_b32 v{T2}, 2, v{T2}")
    a(f"v_add_u32 v{T2}, {XCH}, v{T2}")
    a(f"ds_read_b32 v{T2}, v{T2}")
    a("s_xor_b32 s64, s3, 4")
    a("s_mul_i32 s65, s64, 2560")
    a(f"s_add_u32 s65, s65, {XCH + 1024}")
    a(f"v_add_u32 v{T0}, s65, v{LIN}")
    a(f"v_lshrrev_b32 v{T1}, 2, v{LIN}")
    a(f"v_add_u32 v{T1}, s65, v{T1}")
    a(f"ds_read_b128 {vr(SB[0][0],4)}, v{T0}")
    a(f"ds_read_b128 {vr(SB[0][0]+4,4)}, v{T0} offset:1024")
    a(f"ds_read_b32 v{SB[0][0]+8}, v{T1} offset:2048")
    a("s_lshl_b32 s37, s3, 11")
    a(f"s_add_u32 s37, s37, {BKV}")
    a("s_waitcnt lgkmcnt(0)")
    a(f"v_cmp_ne_u32 vcc, 0, v{T2}")
    a("s_nop 4")
    a("s_cmp_eq_u64 vcc, 0")
    a("s_cbranch_scc1 La_done")
    a("s_barrier")
    a("s_mov_b32 s73, 1")
    for u in range(4):
        a(f"s_add_u32 m0, s63, {BKV + (u&1)*8192 + (u>>1)*16384}")
        a(f"s_add_u32 s66, s62, {65536 + (u&1)*8192 + (u>>1)*65536}")
        a(f"buffer_load_dwordx4 v{LIN}, s[{WS}:{WS+3}], s66 offen sc1 lds")
    kv_dma(1)
    a("s_waitcnt vmcnt(0)")
    a("s_barrier")
    a(f"v_mov_b32 v{MX}, 0xff800000")
    a(f"v_mov_b32 v{MX1}, 0xff800000")
    a("s_mov_b32 s38, 0")
    a.label("La_fb")
    a("s_bfe_u32 s64, s38, 0x20003")
    a("s_sub_u32 s65, s64, 1")
    a("s_lshl_b32 s65, s65, 15")
    a("s_cmp_eq_u32 s64, 0")
    a(f"s_cselect_b32 s65, {BKV}, s65")
    a("s_lshr_b32 s64, s38, 5")
    a("s_lshl_b32 s64, s64, 14")
    a("s_add_u32 s65, s65, s64")
    a("s_and_b32 s64, s38, 7")
    a("s_lshl_b32 s64, s64, 11")
    a("s_add_u32 s65, s65, s64")
    a(f"v_add_u32 v{T0}, s65, v{LIN}")
    a(f"ds_read_b128 {vr(KF,4)}, v{T0}")
    a("s_waitcnt lgkmcnt(0)")
    mfma(a, SB[0][0], KF, QA[0], "0")
    mfma(a, SB[1][0], KF, QA[1], "0")
    a("s_nop 15")
    for q, m in ((0, MX), (1, MX1)):
        s = SB[q][0]
        for r in range(8):
            a(f"v_max3_f32 v{m}, v{s+2*r}, v{s+2*r+1}, v{m}")
    a("s_add_u32 s38, s38, 1")
    a("s_cmp_lg_u32 s38, 64")
    a("s_cbranch_scc1 La_fb")
    a(f"v_add_u32 v{VKN}, s71, v{LIN}")
    a(f"v_add_u32 v{VVN}, s71, v{VLO}")
    a(f"v_add_u32 v{VKA}, s72, v{LIN}")
    a(f"v_add_u32 v{VVA}, s72, v{VLO}")
    a("s_branch La_main")
    a.label("La_done")
    a("s_cmp_eq_u32 s73, 0")
    a("s_cbranch_scc1 La_bok")
    a("s_barrier")
    wo_dma(WOA, 0, 0)
    a("s_cmp_lt_u32 s3, 4")
    a("s_cbranch_scc1 La_brl")
    b_loads(a, LIN, QBL)
    a.label("La_brl")
    a("s_waitcnt vmcnt(0)")
    a("s_barrier")
    a.label("La_bok")
    a(f"v_add_u32 v{VKA}, s37, v{LIN}")
    a(f"v_add_u32 v{VVA}, s37, v{VLO}")
    a("s_lshl_b32 s64, s3, 10")
    a(f"s_add_u32 s64, s64, {QBL}")
    a(f"v_add_u32 v{T0}, s64, v{LIN}")
    a(f"ds_read_b128 {vr(QB,4)}, v{T0}")
    for i in range(8, -1, -1):
        a(f"ds_read_b128 {vr(KF+4*i,4)}, v{VKA} offset:{i*2048}")
    for r in range(9):
        a(f"v_add_f32 v{OACC[0]+r}, v{OACC[0]+r}, v{SB[0][0]+r}")
    a("s_and_b32 s64, s3, 3")
    a("s_lshl_b32 s64, s64, 1")
    a("s_add_u32 s64, s64, s70")
    a(f"s_lshl_b32 s65, s{S_QB}, 3")
    a("s_add_u32 s64, s64, s65")
    a("s_lshl_b32 s64, s64, 10")
    a(f"s_lshl_b32 s68, s{S_H}, 16")
    a("s_add_u32 s68, s68, s64")
    a(f"s_add_u32 s68, s68, {O_BASE}")
    def finish_o(o, lreg, soff):
        a(f"v_rcp_f32 v{TMP}, v{lreg}")
        a("s_nop 1")
        for r in range(8):
            a(f"v_mul_f32 v{o+r}, v{o+r}, v{TMP}")
        for r in range(4):
            a(f"v_cvt_pk_bf16_f32 v{PP[1]+r}, v{o+2*r}, v{o+2*r+1}")
        a(f"buffer_store_dwordx4 {vr(PP[1],4)}, v{LIN}, s[{WS}:{WS+3}], {soff} offen sc1")
    def o_flag(p):
        a("s_lshl_b32 s56, s2, 3")
        a("s_add_u32 s56, s56, s3")
        a("s_lshl_b32 s56, s56, 7")
        a(f"s_add_u32 s56, s56, {FO + p*262144}")
        a(f"v_mov_b32 v{T0}, s56")
        a(f"v_mov_b32 v{T1}, s{NONCE}")
        a("s_mov_b64 exec, 1")
        a(f"buffer_store_dword v{T1}, v{T0}, s[{WS}:{WS+3}], 0 offen sc1")
        a("s_mov_b64 exec, -1")
    a("s_waitcnt lgkmcnt(6)")
    SP = [80, 96, 112, 128]
    def qk1(i):
        c = MHI if i == 8 else (MLO if i == 0 else "0")
        mfma(a, SP[(8-i) % 4], KF+4*i, QB, c)
    qk1(8); qk1(7); qk1(6)
    finish_o(OACC[0], OACC[0]+8, "s68")
    st(7)
    st.l(8)
    a("s_waitcnt lgkmcnt(0)")
    a("s_barrier")
    read_v(VF[0], VVA, 8*2048)
    wo_dma(WOA, 1, 32768)
    a("s_mov_b32 s38, s35")
    for i in range(8, -1, -1):
        s = SP[(8-i) % 4]
        if i == 8:
            a(f"v_max_f32 v{MX}, v{s}, v{s+1}")
            for r in range(1, 8):
                a(f"v_max3_f32 v{MX}, v{s+2*r}, v{s+2*r+1}, v{MX}")
        else:
            for r in range(8):
                a(f"v_max3_f32 v{MX}, v{s+2*r}, v{s+2*r+1}, v{MX}")
        if i > 0:
            a("s_cmp_eq_u32 s38, 0")
            a("s_cbranch_scc1 Lb_p1_done")
            a("s_sub_u32 s38, s38, 1")
        if i - 3 >= 0:
            qk1(i - 3)
    a.label("Lb_p1_done")
    halves_max(MX, TMP)
    st(8)
    st.l(9)
    wo_dma(WOB, 0, 65536)
    for r in range(16):
        a(f"v_sub_f32 v{MHI+r}, v{MHI+r}, v{MX}")
    a("s_nop 1")
    mfma(a, SP[0], KF+4*8, QB, MHI)
    for r in range(16):
        a(f"v_sub_f32 v{CNEG[0]+r}, 0, v{MX}")
        a(f"v_sub_f32 v{MLO+r}, v{MLO+r}, v{MX}")
        a(f"v_mov_b32 v{OACC[0]+r}, 0")
    a("s_waitcnt vmcnt(8)")
    o_flag(0)
    wo_dma(WOB, 1, 98304)
    a("s_mov_b32 s38, s35")
    for n, i in enumerate(range(8, -1, -1)):
        cur, nxt = SP[n % 2], SP[(n+1) % 2]
        vb = VF[n % 2]
        if i > 0:
            cn = MLO if i - 1 == 0 else CNEG[0]
            step(cur, PP[0], OACC[0],
                 lambda: read_v(VF[(n+1) % 2], VVA, (i-1)*2048),
                 lambda: mfma(a, nxt, KF+4*(i-1), QB, cn),
                 lambda: a("s_waitcnt lgkmcnt(2)"),
                 lambda: a("s_nop 1"), nop, vb)
            a("s_cmp_eq_u32 s38, 0")
            a("s_cbranch_scc1 Lb_p2_done")
            a("s_sub_u32 s38, s38, 1")
        else:
            step(cur, PP[0], OACC[0], nop, nop,
                 lambda: a("s_waitcnt lgkmcnt(0)"),
                 lambda: a("s_nop 1"), nop, vb)
    a.label("Lb_p2_done")
    st(9)
    st.l(10)
    a("s_nop 15")
    a(f"s_lshl_b32 s68, s{S_H}, 16")
    a("s_lshl_b32 s69, s34, 10")
    a("s_add_u32 s68, s68, s69")
    a(f"s_add_u32 s68, s68, {O_BASE + O_PROB}")
    finish_o(OACC[0], OACC[0]+8, "s68")
    OF, ACC2, WF2 = 16, 80, 112
    a("s_lshr_b32 s52, s3, 2")
    a("s_and_b32 s53, s3, 1")
    a("s_bfe_u32 s54, s3, 0x10001")
    a("s_lshl_b32 s55, s75, 1")
    a("s_add_u32 s55, s55, s53")
    a("s_lshl_b32 s56, s53, 2")
    a("s_add_u32 s56, s56, s75")
    a("s_cmp_eq_u32 s52, 0")
    a("s_cselect_b32 s56, s56, s55")
    a(f"s_lshl_b32 s57, s{S_QB}, 5")
    a("s_lshl_b32 s58, s54, 4")
    a("s_add_u32 s57, s57, s58")
    a("s_lshl_b32 s57, s57, 3")
    a("s_add_u32 s57, s57, s56")
    a("s_lshl_b32 s57, s57, 7")
    a("s_lshl_b32 s58, s52, 18")
    a("s_add_u32 s57, s57, s58")
    a(f"s_add_u32 s57, s57, {FO}")
    a(f"v_and_b32 v{T2}, 15, v1")
    a(f"v_lshlrev_b32 v{T2}, 10, v{T2}")
    a(f"v_add_u32 v{T2}, s57, v{T2}")
    a(f"s_lshl_b32 s59, s{S_QB}, 3")
    a("s_add_u32 s59, s59, s55")
    a("s_lshl_b32 s60, s59, 10")
    a(f"s_mul_i32 s61, s52, {O_PROB}")
    a("s_add_u32 s60, s60, s61")
    a(f"s_add_u32 s60, s60, {O_BASE}")
    a("s_bfe_u32 s61, s2, 0x20003")
    a("s_lshl_b32 s61, s61, 2")
    a(f"v_lshrrev_b32 v{T0}, 5, v1")
    a(f"v_lshlrev_b32 v{T1}, 2, v{T0}")
    a(f"v_bfe_u32 v{T3}, v1, 2, 2")
    a(f"v_add_u32 v{T1}, v{T1}, v{T3}")
    a(f"v_lshlrev_b32 v{T1}, 7, v{T1}")
    a(f"v_bfe_u32 v{T3}, v1, 4, 1")
    a(f"v_lshlrev_b32 v{T3}, 5, v{T3}")
    a(f"v_add_u32 v{T1}, v{T1}, v{T3}")
    a(f"v_and_b32 v{T3}, 3, v1")
    a(f"v_lshlrev_b32 v{T3}, 3, v{T3}")
    a(f"v_add_u32 v{T1}, v{T1}, v{T3}")
    a(f"v_bfe_u32 v{T3}, v1, 3, 1")
    a(f"v_lshlrev_b32 v{T3}, 6, v{T3}")
    a("s_lshl_b32 s62, s52, 16")
    a("s_lshl_b32 s63, s54, 15")
    a("s_add_u32 s62, s62, s63")
    a(f"v_add_u32 v{T1}, s62, v{T1}")
    a(f"v_add_u32 v{VKA}, v{T1}, v{T3}")
    a(f"v_xor_b32 v{T3}, 64, v{T3}")
    a(f"v_add_u32 v{VVA}, v{T1}, v{T3}")
    a(f"v_and_b32 v{VKN}, 31, v1")
    a(f"v_lshlrev_b32 v{VKN}, 11, v{VKN}")
    a(f"v_lshlrev_b32 v{T0}, 4, v{T0}")
    a(f"v_add_u32 v{VKN}, v{VKN}, v{T0}")
    a("s_waitcnt vmcnt(0)")
    o_flag(1)
    st(10)
    a("s_barrier")
    a(f"s_mov_b32 s67, {SPIN}")
    a.label("Lo_spin")
    a(f"buffer_load_dword v{T3}, v{T2}, s[{WS}:{WS+3}], 0 offen sc1")
    a("s_waitcnt vmcnt(0)")
    a(f"v_cmp_eq_u32 vcc, s{NONCE}, v{T3}")
    a("s_nop 4")
    a("s_cmp_eq_u64 vcc, -1")
    a("s_cbranch_scc1 Lo_got")
    a("s_sleep 1")
    a("s_sub_u32 s67, s67, 1")
    a("s_cmp_lg_u32 s67, 0")
    a("s_cbranch_scc1 Lo_spin")
    a.label("Lo_got")
    for sidx in range(16):
        pass
    a("s_lshl_b32 s63, s54, 20")
    a("s_add_u32 s60, s60, s63")
    for hh in range(16):
        a(f"s_add_u32 s64, s60, {hh*65536}")
        a(f"buffer_load_dwordx4 {vr(OF+4*hh,4)}, v{LIN}, s[{WS}:{WS+3}], s64 offen sc1")
    def rd(hh, buf):
        for ct, reg in ((0, VKA), (1, VVA)):
            a(f"ds_read_b64_tr_b16 {vr(WF2+8*buf+4*ct,2)}, v{reg} offset:{hh*2048}")
            a(f"ds_read_b64_tr_b16 {vr(WF2+8*buf+4*ct+2,2)}, v{reg} offset:{hh*2048+1024}")
    rd(0, 0)
    for hh in range(16):
        buf = hh % 2
        if hh < 15:
            rd(hh+1, buf ^ 1)
            a(f"s_waitcnt vmcnt({15-hh}) lgkmcnt(4)")
        else:
            a("s_waitcnt vmcnt(0) lgkmcnt(0)")
        for ct in range(2):
            acc = ACC2 + 16*ct
            mfma(a, acc, WF2+8*buf+4*ct, OF+4*hh, "0" if hh == 0 else acc)
    a("s_lshl_b32 s64, s3, 12")
    a(f"s_add_u32 s64, s64, {BKV}")
    a(f"v_add_u32 v{T0}, s64, v{LIN}")
    a("s_xor_b32 s65, s3, 2")
    a("s_lshl_b32 s65, s65, 12")
    a(f"s_add_u32 s65, s65, {BKV}")
    a(f"v_add_u32 v{T1}, s65, v{LIN}")
    a("s_nop 15")
    a("s_cmp_eq_u32 s54, 0")
    a("s_cbranch_scc0 Lo_send0")
    for r in range(4):
        a(f"ds_write_b128 v{T0}, {vr(ACC2+16+4*r,4)} offset:{r*1024}")
    a("s_branch Lo_sent")
    a.label("Lo_send0")
    for r in range(4):
        a(f"ds_write_b128 v{T0}, {vr(ACC2+4*r,4)} offset:{r*1024}")
    for r in range(16):
        a(f"v_mov_b32 v{ACC2+r}, v{ACC2+16+r}")
    a.label("Lo_sent")
    a("s_waitcnt lgkmcnt(0)")
    a("s_barrier")
    for r in range(4):
        a(f"ds_read_b128 {vr(OF+4*r,4)}, v{T1} offset:{r*1024}")
    a("s_lshl_b32 s64, s59, 16")
    a("s_lshl_b32 s65, s52, 10")
    a("s_add_u32 s64, s64, s65")
    a("s_lshl_b32 s65, s39, 7")
    a("s_add_u32 s64, s64, s65")
    a("s_lshl_b32 s65, s54, 6")
    a("s_add_u32 s64, s64, s65")
    a("s_waitcnt lgkmcnt(0)")
    for r in range(16):
        a(f"v_add_f32 v{ACC2+r}, v{ACC2+r}, v{OF+r}")
    for pr in range(2):
        b = ACC2 + 8*pr
        pk = WF2 + 4*pr
        for r in range(4):
            a(f"v_cvt_pk_bf16_f32 v{pk+r}, v{b+2*r}, v{b+2*r+1}")
        a("s_nop 1")
        a(f"v_permlane32_swap_b32 v{pk}, v{pk+2}")
        a(f"v_permlane32_swap_b32 v{pk+1}, v{pk+3}")
        a("s_nop 1")
        a(f"buffer_store_dwordx4 {vr(pk,4)}, v{VKN}, s[{OUT}:{OUT+3}], s64 offen offset:{pr*32}")
    st(11)
    st.p(11)
    st.flush(8, 12)
    a.label("Lfa_end")
    a("s_endpgm")

def b_loads(a, LIN, QBL):
    a("s_sub_u32 s51, s3, 4")
    a("s_lshl_b32 s51, s51, 10")
    a(f"s_lshl_b32 s50, s{S_QB}, 14")
    a("s_add_u32 s50, s50, s51")
    a("s_sub_u32 s50, s50, 16384")
    for u in range(8):
        a(f"s_add_u32 s54, s50, {u*4096}")
        a("s_max_i32 s54, s54, 0")
        a("s_add_u32 s54, s54, s36")
        a("s_add_u32 s54, s54, 65536")
        a(f"s_add_u32 m0, s51, {BKV + u*4096}")
        a(f"buffer_load_dwordx4 v{LIN}, s[{WS}:{WS+3}], s54 offen sc1 lds")
    a(f"s_lshl_b32 s50, s{S_QB}, 13")
    a("s_add_u32 s50, s50, s36")
    a("s_add_u32 s50, s50, s51")
    for u in range(2):
        a(f"s_add_u32 m0, s51, {QBL + u*4096}")
        a(f"s_add_u32 s54, s50, {u*4096}")
        a(f"buffer_load_dwordx4 v{LIN}, s[{WS}:{WS+3}], s54 offen sc1 lds")

def gen_oproj(a):
    a.raw(".p2align 8")
    a.raw(".type oproj_kernel,@function")
    a.label("oproj_kernel")
    a("s_cmp_ge_u32 s2, 256")
    a("s_cbranch_scc1 Lop_end")
    st = Stamper(a, "oproj", 1, "s20")
    st()
    a("s_load_dwordx2 s[4:5], s[0:1], 16")
    a("s_load_dwordx2 s[26:27], s[0:1], 40")
    a("s_load_dwordx2 s[28:29], s[0:1], 48")
    a("s_load_dwordx2 s[30:31], s[0:1], 64")
    a("s_and_b32 s32, s2, 7")
    a("s_lshr_b32 s33, s2, 3")
    a("s_lshr_b32 s23, s32, 2")
    a("s_and_b32 s34, s32, 3")
    a("s_lshl_b32 s34, s34, 2")
    a("s_and_b32 s35, s33, 3")
    a("s_add_u32 s24, s34, s35")
    a("s_lshr_b32 s25, s33, 2")
    a("v_and_b32 v1, 63, v0")
    a("v_lshrrev_b32 v2, 6, v0")
    a("s_nop 0")
    a("v_readfirstlane_b32 s20, v2")
    a("v_lshrrev_b32 v2, 3, v1")
    a("v_lshlrev_b32 v2, 10, v2")
    a("v_bfe_u32 v3, v1, 4, 1")
    a("v_lshlrev_b32 v3, 2, v3")
    a("v_and_b32 v5, 7, v1")
    a("v_xor_b32 v3, v3, v5")
    a("v_lshlrev_b32 v3, 4, v3")
    a("v_add_u32 v4, v2, v3")
    a("v_lshlrev_b32 v5, 4, v1")
    a("s_waitcnt lgkmcnt(0)")
    a("s_cmp_eq_u32 s23, 0")
    a("s_cselect_b32 s4, s4, s26")
    a("s_cselect_b32 s5, s5, s27")
    srd(a, 8, 4, 5, 512*1024)
    a(f"s_mul_i32 s36, s23, {O_PROB}")
    a(f"s_add_u32 s36, s36, {O_BASE}")
    a("s_add_u32 s30, s30, s36")
    a("s_addc_u32 s31, s31, 0")
    srd(a, 12, 30, 31, O_PROB)
    a("s_lshl_b32 s40, s20, 13")
    a("s_lshl_b32 s36, s25, 7")
    a("s_add_u32 s40, s40, s36")
    a("s_lshl_b32 s41, s20, 10")
    OF = 64
    a("s_lshl_b32 s42, s24, 2")
    a("s_add_u32 s42, s42, s20")
    a("s_lshl_b32 s43, s42, 10")
    a("s_lshl_b32 s49, s25, 2")
    a("s_and_b32 s47, s24, 3")
    a("s_lshl_b32 s47, s47, 3")
    a("s_add_u32 s49, s49, s47")
    a("s_lshl_b32 s46, s49, 4")
    a("s_lshl_b32 s47, s20, 3")
    a("s_add_u32 s46, s46, s47")
    a("s_lshl_b32 s48, s25, 7")
    def wdma(u):
        a(f"s_add_u32 m0, s41, {u*4096}")
        a(f"s_add_u32 s44, s46, {u*32}")
        a("s_and_b32 s44, s44, 511")
        a("s_lshl_b32 s44, s44, 10")
        a("s_add_u32 s44, s44, s48")
        a("buffer_load_dwordx4 v4, s[8:11], s44 offen lds")
    def oload(H):
        a(f"s_add_u32 s44, s49, {H}")
        a("s_and_b32 s44, s44, 31")
        a("s_lshl_b32 s44, s44, 16")
        a("s_add_u32 s44, s44, s43")
        a(f"buffer_load_dwordx4 {vr(OF+4*H,4)}, v5, s[12:15], s44 offen")
    for q in range(4):
        for u in range(4): wdma(4*q+u)
        for H in range(8): oload(8*q+H)
    srd(a, 16, 28, 29, 2048*2048)
    a("v_lshrrev_b32 v2, 5, v1")
    a("v_lshlrev_b32 v3, 2, v2")
    a("v_bfe_u32 v8, v1, 2, 2")
    a("v_add_u32 v3, v3, v8")
    a("v_lshlrev_b32 v3, 7, v3")
    a("v_bfe_u32 v8, v1, 4, 1")
    a("v_lshlrev_b32 v8, 5, v8")
    a("v_add_u32 v3, v3, v8")
    a("v_and_b32 v8, 3, v1")
    a("v_lshlrev_b32 v8, 3, v8")
    a("v_add_u32 v3, v3, v8")
    a("v_bfe_u32 v8, v1, 3, 1")
    a("v_lshlrev_b32 v8, 6, v8")
    a("v_add_u32 v6, v3, v8")
    a("v_xor_b32 v8, 64, v8")
    a("v_add_u32 v7, v3, v8")
    a("v_and_b32 v8, 31, v1")
    a("v_lshlrev_b32 v8, 11, v8")
    a("v_lshlrev_b32 v9, 4, v2")
    a("v_add_u32 v8, v8, v9")
    ACC = 16
    st()
    WF = [48, 56]
    def rd(H, buf):
        for ct in range(2):
            a(f"ds_read_b64_tr_b16 {vr(WF[buf]+4*ct,2)}, v{6+ct} offset:{H*2048}")
            a(f"ds_read_b64_tr_b16 {vr(WF[buf]+4*ct+2,2)}, v{6+ct} offset:{H*2048+1024}")
    for q in range(4):
        a(f"s_waitcnt vmcnt({8 + 12*(3-q)})")
        a("s_barrier")
        rd(8*q, 0)
        for hh in range(8):
            H = 8*q + hh
            buf = hh % 2
            if hh < 7:
                rd(H+1, buf ^ 1)
                a(f"s_waitcnt vmcnt({7-hh + 12*(3-q)}) lgkmcnt(4)")
            else:
                a(f"s_waitcnt vmcnt({12*(3-q)}) lgkmcnt(0)")
            for ct in range(2):
                acc = ACC+16*ct
                mfma(a, acc, WF[buf]+4*ct, OF+4*H, "0" if H == 0 else acc)
    a("s_nop 15")
    st()
    a("s_lshl_b32 s44, s42, 16")
    a("s_lshl_b32 s45, s23, 10")
    a("s_add_u32 s44, s44, s45")
    a("s_lshl_b32 s45, s25, 7")
    a("s_add_u32 s44, s44, s45")
    for ct in range(2):
        for pr in range(2):
            b = ACC + 16*ct + 8*pr
            pk = 48 + (ct*2+pr)*4
            for r in range(4):
                a(f"v_cvt_pk_bf16_f32 v{pk+r}, v{b+2*r}, v{b+2*r+1}")
            a("s_nop 1")
            a(f"v_permlane32_swap_b32 v{pk}, v{pk+2}")
            a(f"v_permlane32_swap_b32 v{pk+1}, v{pk+3}")
            a("s_nop 1")
            a(f"buffer_store_dwordx4 {vr(pk,4)}, v8, s[16:19], s44 offen offset:{ct*64+pr*32}")
    st()
    st.flush(4)
    a.label("Lop_end")
    a("s_endpgm")

def kd(name, vgpr, sgpr=102):
    acc = (vgpr + 3)//4*4
    return f""".section .rodata,"a"
.p2align 6
.amdhsa_kernel {name}
  .amdhsa_next_free_vgpr {vgpr}
  .amdhsa_next_free_sgpr {sgpr}
  .amdhsa_accum_offset {acc}
  .amdhsa_group_segment_fixed_size 0
  .amdhsa_kernarg_size 72
  .amdhsa_user_sgpr_count 2
  .amdhsa_user_sgpr_kernarg_segment_ptr 1
  .amdhsa_system_sgpr_workgroup_id_x 1
.end_amdhsa_kernel
"""

HEADER = """; Kernarg layout for this problem (72 bytes, ptrs only, base s[0:1]):
;   offset   0: d_in[0] A_x  shape=(1, 2048, 512) dtype=bfloat16
;   offset   8: d_in[1] A_wqkv  shape=(512, 1536) dtype=bfloat16
;   offset  16: d_in[2] A_wo  shape=(512, 512) dtype=bfloat16
;   offset  24: d_in[3] B_x  shape=(1, 2048, 512) dtype=bfloat16
;   offset  32: d_in[4] B_wqkv  shape=(512, 1536) dtype=bfloat16
;   offset  40: d_in[5] B_wo  shape=(512, 512) dtype=bfloat16
;   offset  48: d_out     shape=(1, 2048, 1024) dtype=bfloat16
;   offset  56: d_debug   256 bytes
;   offset  64: d_ws      268435456 bytes workspace
; @launch grid=(256,1,1) block=(512,1,1) lds=163840
.amdgcn_target "amdgcn-amd-amdhsa--gfx950"
.text
.globl concat_heads__softmax_full_mha__sliding_block__prompt_kernel
"""

def main(path):
    a = Asm()
    gen_fused(a)
    txt = HEADER + a.text() + kd("concat_heads__softmax_full_mha__sliding_block__prompt_kernel", 256)
    open(path, "w").write(txt)

if __name__ == "__main__":
    main(sys.argv[1] if len(sys.argv) > 1 else f"cdna_kernels/{NAME}.s")
```

```python
import sys, os, struct

NAME = "concat_heads__softmax_full_mha__sliding_block__prompt"
STAMPS = os.environ.get("STAMPS", "")

class Asm:
    def __init__(self): self.lines = []
    def __call__(self, s): self.lines.append("  " + s)
    def label(self, s): self.lines.append(s + ":")
    def raw(self, s): self.lines.append(s)
    def text(self): return "\n".join(self.lines) + "\n"

def vr(b, n=1): return f"v{b}" if n == 1 else f"v[{b}:{b+n-1}]"
def f32bits(x): return struct.unpack("<I", struct.pack("<f", x))[0]

HEAD_STRIDE = 196608
PROB_STRIDE = 32 * HEAD_STRIDE
O_BASE = 2 * PROB_STRIDE
O_PROB = 32 * 65536
F_BASE = 16 << 20
WS_SIZE = 17 << 20
QSCALE = 0.25 * 1.4426950408889634
SPIN = 1 << 16

def srd(a, d, lo, hi, nrec):
    a(f"s_mov_b32 s{d}, s{lo}")
    a(f"s_and_b32 s{d+1}, s{hi}, 0xffff")
    a(f"s_mov_b32 s{d+2}, {nrec}")
    a(f"s_mov_b32 s{d+3}, 0x00020000")

class Stamper:
    def __init__(self, a, kname, kidx, wavereg, base=76):
        self.a=a; self.on=(STAMPS==kname or (STAMPS in ("fp","fs","fl","ft") and kname=="fa")); self.fp=(STAMPS in ("fp","fs","fl","ft")); self.ft=(STAMPS=="ft"); self.fs=(STAMPS=="fs"); self.fl=(STAMPS=="fl"); self.rt=(STAMPS=="rt"); self.n=0; self.base=base; self.wavereg=wavereg; self.kidx=kidx
        if self.rt:
            a("s_memrealtime s[76:77]"); a("s_memtime s[78:79]")
    def p(self, idx):
        if self.fp and ((not self.fs and not self.fl and not self.ft) or idx==11): self._st(idx)
    def t(self, idx):
        if self.ft: self._st(idx)
    def l(self, idx):
        if self.fl: self._st(idx)
    def ldyn(self, base, uid):
        if not self.fl: return
        a=self.a
        for j in range(4):
            a(f"s_cmp_eq_u32 s38, {j}")
            a(f"s_cbranch_scc0 Lst{uid}_{j}")
            self._st(base+j)
            a.label(f"Lst{uid}_{j}")
    def f(self, idx):
        if self.fs: self._st(idx)
    def __call__(self, idx=None):
        if STAMPS == "dbg" and self.kidx == 0:
            m = {0:0, 2:1, 5:2, 6:3, 9:4, 10:5, 11:6}
            if idx in m:
                self.a(f"s_memrealtime s[{76+2*m[idx]}:{77+2*m[idx]}]")
                self.a("s_waitcnt lgkmcnt(0)")
            return
        if not self.on: return
        if self.fp and idx not in (0,): return
        self._st(idx)
    def _st(self, idx=None):
        if idx is not None: self.n = idx
        assert self.base+2*self.n+1 < 102
        self.a(f"s_memtime s[{self.base+2*self.n}:{self.base+2*self.n+1}]")
        self.a("s_waitcnt lgkmcnt(0)")
        self.n+=1
    def flush(self, nw, n=None):
        if STAMPS == "dbg":
            a=self.a
            a("s_cmp_eq_u32 s3, 4"); a("s_cbranch_scc0 Ldbg_skip")
            a("s_cmp_eq_u32 s2, 0"); a("s_cselect_b32 s6, 4, 0")
            a("s_cmp_eq_u32 s2, 131"); a("s_cselect_b32 s6, 32, s6")
            a("s_cmp_eq_u32 s6, 0"); a("s_cbranch_scc1 Ldbg_skip")
            a("v_mov_b32 v1, s6")
            for i in range(1,7):
                a(f"s_sub_u32 s7, s{76+2*i}, s76")
                a("v_mov_b32 v2, s7")
                a(f"buffer_store_dword v2, v1, s[{DBG}:{DBG+3}], 0 offen offset:{4*(i-1)}")
            a("v_mov_b32 v2, s76")
            a(f"buffer_store_dword v2, v1, s[{DBG}:{DBG+3}], 0 offen offset:24")
            a("s_waitcnt vmcnt(0)")
            a.label("Ldbg_skip")
            return
        if not (self.on or self.rt): return
        a=self.a
        n = n or self.n
        if self.rt:
            a("s_waitcnt vmcnt(0)"); a("s_memrealtime s[80:81]"); a("s_memtime s[82:83]"); n=4
        a("s_load_dwordx2 s[4:5], s[0:1], 64")
        a("s_waitcnt vmcnt(0) lgkmcnt(0)")
        a(f"s_add_u32 s4, s4, {(64<<20) + (self.kidx<<20 if self.rt else 0)}")
        a("s_addc_u32 s5, s5, 0")
        srd(a, 8, 4, 5, 1<<20)
        a(f"s_mul_i32 s6, s2, {nw}")
        a(f"s_add_u32 s6, s6, {self.wavereg}")
        a("s_lshl_b32 s6, s6, 6")
        a("v_mov_b32 v1, s6")
        for i in range(n):
            a(f"v_mov_b32 v2, s{self.base+2*i}")
            a(f"buffer_store_dword v2, v1, s[8:11], 0 offen offset:{4*i}")
        a("s_waitcnt vmcnt(0)")

def mfma(a, d, x, y, c):
    cs = c if isinstance(c, str) else vr(c, 16)
    a(f"v_mfma_f32_32x32x16_bf16 {vr(d,16)}, {vr(x,4)}, {vr(y,4)}, {cs}")

WS, XB, WB, XA, WA, DBG = 4, 8, 12, 16, 20, 24
NONCE = 28
S_H, S_QB, S_G, S_TB = 30, 31, 32, 33
SLOT = 32768
BKV = 131072

def gen_fused(a):
    QA = [4, 8]; QB = 12
    OACC = [16, 32]
    CNEG = [48, 64]
    SB = [[80, 96], [112, 128]]
    PP = [144, 152]
    VF = [160, 168]
    KF = 176
    MHI, MLO = 212, 228
    VKA, VVA, TMP, LIN, MX, MX1 = 244, 245, 246, 247, 248, 249
    T0, T1, T2, T3 = 250, 251, 252, 253
    VKN, VVN = 254, 255
    VLO = 3
    XCH = 98304
    QBL = 122880
    FA, FB = F_BASE, F_BASE + 65536
    PUB = int(os.environ.get("PUB", "9"))
    FO = F_BASE + 131072
    WOA, WOB, OUT = 8, 12, 16

    a.raw(".p2align 8")
    a.raw(".type concat_heads__softmax_full_mha__sliding_block__prompt_kernel,@function")
    a.label("concat_heads__softmax_full_mha__sliding_block__prompt_kernel")
    a("s_cmp_ge_u32 s2, 256")
    a("s_cbranch_scc1 Lfa_end")
    st = Stamper(a, "fa", 0, "s3")
    st(0)
    a("s_load_dwordx4 s[36:39], s[0:1], 0")
    a("s_load_dwordx2 s[34:35], s[0:1], 24")
    a("s_load_dwordx2 s[42:43], s[0:1], 32")
    a("s_load_dwordx4 s[44:47], s[0:1], 56")
    a("v_and_b32 v1, 63, v0")
    a("v_lshrrev_b32 v2, 6, v0")
    a(f"s_and_b32 s{S_H}, s2, 31")
    a("v_readfirstlane_b32 s3, v2")
    a(f"s_lshr_b32 s{S_QB}, s2, 5")
    a("s_lshr_b32 s48, s2, 3")
    a("s_and_b32 s49, s2, 1")
    a("s_lshl_b32 s49, s49, 2")
    a("s_and_b32 s50, s48, 3")
    a(f"s_add_u32 s{S_G}, s49, s50")
    a("s_bfe_u32 s49, s2, 0x20001")
    a("s_lshl_b32 s49, s49, 3")
    a("s_lshr_b32 s50, s48, 2")
    a(f"s_add_u32 s{S_TB}, s49, s50")
    a(f"s_and_b32 s29, s{S_G}, 3")
    a("s_lshl_b32 s29, s29, 1")
    a(f"s_add_u32 s29, s29, s{S_TB}")
    a("s_and_b32 s29, s29, 7")
    a("s_cmp_lt_u32 s3, 4")
    a("s_cbranch_scc1 Lfa_compute")

    def early_setup():
        a(f"v_lshlrev_b32 v{LIN}, 4, v1")
        a(f"v_lshrrev_b32 v{T0}, 5, v1")
        a(f"v_lshlrev_b32 v{VLO}, 8, v{T0}")
        a(f"v_and_b32 v{T1}, 15, v1")
        a(f"v_lshlrev_b32 v{T1}, 4, v{T1}")
        a(f"v_add_u32 v{VLO}, v{VLO}, v{T1}")
        a(f"v_add_u32 v{VLO}, 1024, v{VLO}")
        a(f"v_and_b32 v{T1}, 27, v1")
        a(f"v_cmp_eq_u32 vcc, 16, v{T1}")
        a(f"v_mov_b32 v{T2}, 0x3f803f80")
        a(f"v_mov_b32 v{T3}, 0")
        a("s_nop 0")
        for r in range(16):
            a(f"v_cndmask_b32 v{VF[0]+r}, v{T3}, v{T2}, vcc")
        a(f"v_and_b32 v{T1}, 31, v1")
        a(f"v_lshlrev_b32 v{T0}, 2, v{T0}")
        a(f"v_sub_u32 v{T1}, v{T1}, v{T0}")
        a(f"v_mov_b32 v{T2}, 0xff800000")
        for r in range(16):
            cr = 8*(r//4) + r % 4
            a(f"v_cmp_le_i32 s[{62+2*(r%4)}:{63+2*(r%4)}], {cr}, v{T1}")
            if r % 4 == 3:
                a("s_nop 1")
                for q in range(r-3, r+1):
                    a(f"v_cndmask_b32 v{MHI+q}, v{T2}, v{T3}, s[{62+2*(q%4)}:{63+2*(q%4)}]")
                    a(f"v_cndmask_b32 v{MLO+q}, v{T3}, v{T2}, s[{62+2*(q%4)}:{63+2*(q%4)}]")
        a("s_lshr_b32 s70, s3, 2")
        a("s_lshl_b32 s71, s70, 14")
        a(f"s_add_u32 s72, s71, {BKV}")
        a(f"v_add_u32 v{VKN}, s71, v{LIN}")
        a(f"v_add_u32 v{VVN}, s71, v{VLO}")
        a(f"v_add_u32 v{VKA}, s72, v{LIN}")
        a(f"v_add_u32 v{VVA}, s72, v{VLO}")
        a("s_mov_b32 s73, 0")
        a("s_mov_b32 s40, 0x0000ffff")
        a("s_mov_b32 s41, 0x0000ffff")

    a("s_sub_u32 s48, s3, 4")
    a("v_lshrrev_b32 v2, 3, v1")
    a("v_lshlrev_b32 v2, 10, v2")
    a("v_and_b32 v3, 7, v1")
    a("v_lshrrev_b32 v6, 4, v1")
    a("v_xor_b32 v3, v3, v6")
    a("v_lshlrev_b32 v3, 4, v3")
    a("v_add_u32 v4, v2, v3")
    a("v_xor_b32 v5, 64, v4")
    a(f"s_lshl_b32 s50, s{S_TB}, 6")
    a("s_lshl_b32 s49, s48, 4")
    a("s_add_u32 s50, s50, s49")
    a("s_lshl_b32 s50, s50, 10")
    a("s_lshl_b32 s51, s48, 11")
    a("s_mul_i32 s52, s48, 49152")
    a(f"s_lshl_b32 s49, s{S_G}, 7")
    a("s_add_u32 s52, s52, s49")
    a("s_mul_i32 s53, s48, 6144")
    a("s_add_u32 s53, s53, 8192")
    a("s_movk_i32 s49, 171")
    a("s_movk_i32 s55, 3072")
    for v in range(3):
        a(f"v_add_u32 v2, {64*v}, v1")
        a("v_mul_lo_u32 v3, v2, s49")
        a("v_lshrrev_b32 v3, 12, v3")
        a("v_mul_u32_u24 v9, 24, v3")
        a("v_sub_u32 v9, v2, v9")
        a("v_bfe_u32 v10, v3, 1, 1")
        a("v_lshlrev_b32 v10, 2, v10")
        a("v_xor_b32 v9, v9, v10")
        a("v_mul_lo_u32 v3, v3, s55")
        a("v_lshrrev_b32 v10, 3, v9")
        a("v_lshlrev_b32 v10, 10, v10")
        a("v_add_u32 v3, v3, v10")
        a("v_and_b32 v9, 7, v9")
        a("v_lshlrev_b32 v9, 4, v9")
        a(f"v_add_u32 v{6+v}, v3, v9")
    a("s_waitcnt lgkmcnt(0)")
    srd(a, XA, 36, 37, 2048*1024)
    srd(a, WA, 38, 39, 512*3072)
    def dma_chunk(i, ldsbase=None):
        c = i % 8
        base = (i % 4)*SLOT if ldsbase is None else ldsbase
        xs, wsr = (XA, WA) if i < 8 else (XB, WB)
        a(f"s_add_u32 s58, s29, {c}")
        a("s_and_b32 s58, s58, 7")
        a("s_lshl_b32 s59, s58, 7")
        a("s_add_u32 s59, s59, s50")
        a(f"s_mul_i32 s58, s58, {64*3072}")
        a("s_add_u32 s58, s58, s52")
        for u in range(2):
            a(f"s_add_u32 m0, s51, {base + u*1024}")
            a(f"s_add_u32 s54, s59, {u*8192}")
            a(f"buffer_load_dwordx4 v{4 + u}, s[{xs}:{xs+3}], s54 offen lds")
        for u in range(6):
            up, v = divmod(u, 3)
            a(f"s_add_u32 m0, s53, {base + u*1024}")
            a(f"s_add_u32 s54, s58, {8*up*3072}")
            a(f"buffer_load_dwordx4 v{6 + v}, s[{wsr}:{wsr+3}], s54 offen lds")
    dma_chunk(0)
    dma_chunk(1)
    srd(a, XB, 34, 35, 2048*1024)
    srd(a, WB, 42, 43, 512*3072)
    srd(a, WS, 46, 47, WS_SIZE)
    srd(a, DBG, 44, 45, 256)
    a("s_cmp_eq_u32 s2, 0")
    a("s_cselect_b32 s49, s48, 1")
    a("s_cmp_eq_u32 s49, 0")
    a("s_cbranch_scc0 Lfa_nononce")
    a("s_memrealtime s[56:57]")
    a("s_waitcnt lgkmcnt(0)")
    a("s_or_b32 s56, s56, 1")
    a("v_mov_b32 v10, s56")
    a("v_mov_b32 v11, 0")
    a(f"buffer_store_dword v10, v11, s[{DBG}:{DBG+3}], 0 offen sc1")
    a.label("Lfa_nononce")
    dma_chunk(8, BKV)
    early_setup()
    a(f"s_lshr_b32 s56, s{S_H}, 2")
    a("s_lshl_b32 s56, s56, 12")
    a(f"s_add_u32 s56, s56, {FA}")
    a("v_and_b32 v12, 31, v1")
    a("v_lshlrev_b32 v12, 7, v12")
    a("v_add_u32 v12, s56, v12")
    a(f"s_lshl_b32 s56, s{S_G}, 5")
    a(f"s_add_u32 s56, s56, s{S_TB}")
    a("s_lshl_b32 s74, s56, 7")
    a("v_and_b32 v2, 7, v1")
    a(f"s_lshl_b32 s49, s{S_QB}, 2")
    a("s_sub_u32 s49, s49, 4")
    a("v_add_u32 v2, s49, v2")
    a("v_max_i32 v2, 0, v2")
    a(f"s_lshr_b32 s49, s{S_H}, 2")
    a("s_lshl_b32 s49, s49, 5")
    a("v_add_u32 v2, s49, v2")
    a("v_lshlrev_b32 v2, 7, v2")
    a(f"v_add_u32 v2, {FB}, v2")
    a("v_mov_b32 v11, 0")
    st(1)
    def write_flag(base):
        a(f"s_add_u32 s56, s74, {base}")
        a("v_mov_b32 v14, s56")
        a(f"v_mov_b32 v15, s{NONCE}")
        a("s_mov_b64 exec, 1")
        a(f"buffer_store_dword v15, v14, s[{WS}:{WS+3}], 0 offen sc1")
        a("s_mov_b64 exec, -1")
    def a_loads():
        a(f"s_mul_i32 s64, s{S_H}, {HEAD_STRIDE}")
        a("s_lshl_b32 s65, s48, 10")
        a("s_add_u32 s64, s64, s65")
        for u in range(8):
            a(f"s_add_u32 m0, s65, {BKV + (u&3)*4096 + (u>>2)*16384}")
            a(f"s_add_u32 s66, s64, {65536 + (u&3)*4096 + (u>>2)*65536}")
            a(f"buffer_load_dwordx4 v{LIN}, s[{WS}:{WS+3}], s66 offen sc1 lds")
        a(f"s_lshl_b32 s67, s{S_QB}, 13")
        a("s_add_u32 s67, s67, s64")
        for u in range(2):
            a(f"s_add_u32 m0, s65, {32768 + u*4096}")
            a(f"s_add_u32 s66, s67, {u*4096}")
            a(f"buffer_load_dwordx4 v{LIN}, s[{WS}:{WS+3}], s66 offen sc1 lds")
        for u in range(8):
            a(f"s_add_u32 m0, s65, {(u&3)*4096 + (u>>2)*16384}")
            a(f"s_add_u32 s66, s64, {65536 + 16384 + (u&3)*4096 + (u>>2)*65536}")
            a(f"buffer_load_dwordx4 v{LIN}, s[{WS}:{WS+3}], s66 offen sc1 lds")
    for i in range(16):
        if i == 0:   w = 16
        elif i == 1: w = 17
        elif i == 2: w = 8
        elif i <= 6: w = 8
        elif i == 7: w = 0
        elif i == 8: w = 8
        elif i <= 13: w = 8
        elif i == 14: w = 9
        else: w = 1
        a(f"s_waitcnt vmcnt({w})")
        if i == 2:
            a(f"s_mov_b32 s55, {SPIN}")
            a.label("Lfa_nspin")
            a(f"v_readfirstlane_b32 s{NONCE}, v10")
            a(f"s_cmp_lg_u32 s{NONCE}, 0")
            a("s_cbranch_scc1 Lfa_ngot")
            a("s_sleep 1")
            a(f"buffer_load_dword v10, v11, s[{DBG}:{DBG+3}], 0 offen sc1")
            a("s_waitcnt vmcnt(0)")
            a("s_sub_u32 s55, s55, 1")
            a("s_cmp_lg_u32 s55, 0")
            a("s_cbranch_scc1 Lfa_nspin")
            a.label("Lfa_ngot")
        a("s_barrier")
        if i in (0,1,2,4,6,8,10,12,14,15): st.p({0:1,1:2,2:3,4:4,6:5,8:6,10:7,12:8,14:9,15:10}[i])
        if i == 0:
            a(f"buffer_load_dword v10, v11, s[{DBG}:{DBG+3}], 0 offen sc1")
        if i + 2 <= 15 and i + 2 != 8:
            dma_chunk(i + 2)
        if i == PUB + 1:
            a("s_cmp_eq_u32 s48, 0")
            a("s_cbranch_scc0 Lfa_nf")
            write_flag(FA)
            a.label("Lfa_nf")
        if i == 13:
            a(f"buffer_load_dword v13, v12, s[{WS}:{WS+3}], 0 offen sc1")
    st(2)
    a(f"s_mov_b32 s55, {SPIN}")
    a.label("Lfa_aspin")
    a("s_waitcnt vmcnt(0)")
    a(f"v_cmp_eq_u32 vcc, s{NONCE}, v13")
    a("s_nop 4")
    a("s_cmp_eq_u64 vcc, -1")
    a("s_cbranch_scc1 Lfa_agot")
    a("s_sleep 1")
    a(f"buffer_load_dword v13, v12, s[{WS}:{WS+3}], 0 offen sc1")
    a("s_sub_u32 s55, s55, 1")
    a("s_cmp_lg_u32 s55, 0")
    a("s_cbranch_scc1 Lfa_aspin")
    a("s_waitcnt vmcnt(0)")
    a.label("Lfa_agot")
    a_loads()
    st(3)
    a("s_branch Lfa_attn")

    a.label("Lfa_compute")
    a("s_lshr_b32 s48, s3, 1")
    a("s_and_b32 s49, s3, 1")
    a("v_and_b32 v2, 31, v1")
    a("v_lshrrev_b32 v3, 5, v1")
    a("v_bfe_u32 v9, v2, 1, 3")
    a("v_xor_b32 v9, v9, v3")
    a("s_lshl_b32 s50, s48, 12")
    a("v_lshlrev_b32 v18, 7, v2")
    a("v_add_u32 v18, s50, v18")
    for s in range(4):
        a(f"v_xor_b32 v19, {2*s}, v9")
        a("v_lshlrev_b32 v19, 4, v19")
        a(f"v_add_u32 v{10+s}, v18, v19")
        a(f"v_add_u32 v{14+s}, 0x10000, v{10+s}")
    a("v_lshlrev_b32 v24, 3, v3")
    a("v_bfe_u32 v25, v1, 2, 2")
    a("v_add_u32 v24, v24, v25")
    a("s_movk_i32 s50, 384")
    a("v_mul_lo_u32 v24, v24, s50")
    a("v_bfe_u32 v25, v1, 4, 1")
    a("v_lshlrev_b32 v25, 5, v25")
    a("v_add_u32 v24, v24, v25")
    a("v_and_b32 v25, 3, v1")
    a("v_lshlrev_b32 v25, 3, v25")
    a("v_add_u32 v24, v24, v25")
    a("v_add_u32 v24, 8192, v24")
    a("v_bfe_u32 v25, v1, 3, 1")
    a("s_mul_i32 s50, s49, 3")
    for ct in range(3):
        a(f"s_add_u32 s51, s50, {ct}")
        a("v_xor_b32 v26, s51, v25")
        a("v_lshlrev_b32 v26, 6, v26")
        a(f"v_add_u32 v{18+ct}, v24, v26")
        a(f"v_add_u32 v{21+ct}, 0x10000, v{18+ct}")
    a("v_lshlrev_b32 v24, 4, v1")
    a("v_bfe_u32 v25, v1, 4, 1")
    a(f"s_mov_b32 s50, {HEAD_STRIDE}")
    a("v_mul_lo_u32 v25, v25, s50")
    a("v_lshlrev_b32 v26, 8, v3")
    a("v_add_u32 v25, v25, v26")
    a("v_and_b32 v26, 15, v1")
    a("v_lshlrev_b32 v26, 4, v26")
    a("v_add_u32 v25, v25, v26")
    a(f"s_mul_i32 s52, s{S_G}, {4*HEAD_STRIDE}")
    a(f"s_lshl_b32 s53, s{S_TB}, 1")
    a("s_add_u32 s53, s53, s48")
    a("s_lshl_b32 s54, s53, 11")
    a("s_add_u32 s54, s54, 65536")
    a("s_lshl_b32 s53, s53, 10")
    a(f"s_mov_b32 s55, {f32bits(QSCALE):#x}")
    ACC = 64
    for r in range(48): a(f"v_mov_b32 v{ACC+r}, 0")
    early_setup()
    a("s_waitcnt lgkmcnt(0)")
    srd(a, WS, 46, 47, WS_SIZE)
    if os.environ.get("XTOUCH", "0") == "1":
        a("s_cmp_eq_u32 s3, 3")
        a("s_cbranch_scc0 Lfa_nxt")
        srd(a, XB, 34, 35, 2048*1024)
        a("v_lshrrev_b32 v129, 3, v1")
        a("v_lshlrev_b32 v129, 10, v129")
        a("v_and_b32 v130, 7, v1")
        a("v_lshlrev_b32 v130, 7, v130")
        a("v_add_u32 v129, v129, v130")
        a(f"s_lshl_b32 s60, s{S_TB}, 16")
        a(f"s_and_b32 s61, s{S_G}, 3")
        a("s_lshl_b32 s61, s61, 14")
        a("s_add_u32 s60, s60, s61")
        a("s_add_u32 s61, s60, 8192")
        a(f"buffer_load_dword v131, v129, s[{XB}:{XB+3}], s60 offen")
        a(f"buffer_load_dword v132, v129, s[{XB}:{XB+3}], s61 offen")
        a.label("Lfa_nxt")
    XF = [28, 32]; WF = [36, 48]; PK = 112
    def read_frags(slot, s, buf):
        xr = (10 if slot < 2 else 14) + s
        a(f"ds_read_b128 {vr(XF[buf],4)}, v{xr} offset:{(slot%2)*SLOT}")
        for ct in range(3):
            reg = (18 if slot < 2 else 21) + ct
            off = (slot % 2) * SLOT + s * 6144
            a(f"ds_read_b64_tr_b16 {vr(WF[buf]+4*ct,2)}, v{reg} offset:{off}")
            a(f"ds_read_b64_tr_b16 {vr(WF[buf]+4*ct+2,2)}, v{reg} offset:{off+1536}")
    def body(types, tag):
        L = f"Lpj{tag}"
        st(1)
        a("s_mov_b32 s57, 0")
        a.label(L + "_loop")
        for slot in range(4):
            a("s_barrier")
            if slot == 0:
                a("s_cmp_eq_u32 s57, 2")
                a(f"s_cselect_b32 s58, {BKV}, 0")
                for r in (10, 11, 12, 13, 18, 19, 20):
                    a(f"v_add_u32 v{r}, s58, v{r}")
            if slot == PUB % 4:
                a(f"s_cmp_eq_u32 s57, {PUB // 4}")
                a(f"s_cbranch_scc0 {L}_np")
                a("s_waitcnt vmcnt(0)")
                a.label(L + "_np")
            read_frags(slot, 0, 0)
            for s in range(4):
                buf = s % 2
                if s < 3:
                    read_frags(slot, s+1, buf ^ 1)
                    a("s_waitcnt lgkmcnt(7)")
                else:
                    a("s_waitcnt lgkmcnt(0)")
                for ct in range(3):
                    acc = ACC + ct*16
                    if types[ct] == 'V':
                        mfma(a, acc, XF[buf], WF[buf]+4*ct, acc)
                    else:
                        mfma(a, acc, WF[buf]+4*ct, XF[buf], acc)
            if slot == 0:
                for r in (10, 11, 12, 13, 18, 19, 20):
                    a(f"v_subrev_u32 v{r}, s58, v{r}")
        a("s_add_u32 s57, s57, 1")
        a("s_bitcmp1_b32 s57, 0")
        a(f"s_cbranch_scc1 {L}_loop")
        a("s_nop 15")
        n = 0
        for ct in range(3):
            acc = ACC + ct*16
            c = tag*3 + ct
            ty = types[ct]
            for e in range(2):
                pk = PK + (n % 4)*4; n += 1
                if ty == 'Q':
                    for r in range(8):
                        a(f"v_mul_f32 v{acc+8*e+r}, s55, v{acc+8*e+r}")
                for r in range(4):
                    a(f"v_cvt_pk_bf16_f32 v{pk+r}, v{acc+2*r+8*e}, v{acc+8*e+2*r+1}")
                if ty == 'Q':
                    a(f"s_add_u32 s59, s52, {(2*(c%2)+e)*HEAD_STRIDE}")
                    a("s_add_u32 s59, s59, s53")
                    a(f"buffer_store_dwordx4 {vr(pk,4)}, v24, s[{WS}:{WS+3}], s59 offen sc1")
                elif ty == 'K':
                    a(f"s_add_u32 s59, s52, {(2*(c%2)+e)*HEAD_STRIDE}")
                    a("s_add_u32 s59, s59, s54")
                    a(f"buffer_store_dwordx4 {vr(pk,4)}, v24, s[{WS}:{WS+3}], s59 offen sc1")
                else:
                    a(f"s_add_u32 s59, s52, {(2*(c%2))*HEAD_STRIDE + 1024 + 512*e}")
                    a("s_add_u32 s59, s59, s54")
                    a(f"buffer_store_dwordx4 {vr(pk,4)}, v25, s[{WS}:{WS+3}], s59 offen sc1")
        for r in range(48): a(f"v_mov_b32 v{ACC+r}, 0")
        a(f"s_add_u32 s52, s52, {PROB_STRIDE}")
        a("s_cmp_lt_u32 s57, 4")
        a(f"s_cbranch_scc1 {L}_loop")
        st(2); st(3)
        a("s_branch Lfa_attn")
    a("s_cmp_eq_u32 s49, 0")
    a("s_cbranch_scc0 Lfa_wn1")
    body(['Q', 'Q', 'K'], 0)
    a.label("Lfa_wn1")
    body(['K', 'V', 'V'], 1)

    a.label("Lfa_attn")
    a("s_and_b32 s64, s3, 3")
    a("s_lshl_b32 s64, s64, 11")
    a(f"s_add_u32 s64, s64, 32768")
    a(f"v_add_u32 v{T0}, s64, v{LIN}")
    a(f"v_add_u32 v{T1}, {BKV}, v{LIN}")
    a(f"s_mul_i32 s62, s{S_H}, {HEAD_STRIDE}")
    a("s_lshl_b32 s63, s3, 10")
    a("s_add_u32 s62, s62, s63")
    WOV = 0
    a("v_lshrrev_b32 v0, 3, v1")
    a("v_lshlrev_b32 v0, 10, v0")
    a(f"v_bfe_u32 v{T2}, v1, 4, 1")
    a(f"v_lshlrev_b32 v{T2}, 2, v{T2}")
    a(f"v_and_b32 v{T3}, 7, v1")
    a(f"v_xor_b32 v{T2}, v{T2}, v{T3}")
    a(f"v_lshlrev_b32 v{T2}, 4, v{T2}")
    a(f"v_add_u32 v0, v0, v{T2}")
    a(f"s_lshl_b32 s34, s{S_QB}, 3")
    a("s_add_u32 s34, s34, s3")
    a("s_min_u32 s35, s34, 8")
    a(f"s_mul_i32 s36, s{S_H}, {HEAD_STRIDE}")
    a(f"s_add_u32 s36, s36, {PROB_STRIDE}")
    a("s_load_dwordx2 s[44:45], s[0:1], 16")
    a("s_load_dwordx4 s[48:51], s[0:1], 40")
    a("s_bfe_u32 s75, s2, 0x20001")
    a("s_and_b32 s52, s2, 1")
    a("s_lshl_b32 s52, s52, 2")
    a("s_bfe_u32 s53, s2, 0x20003")
    a("s_add_u32 s39, s52, s53")
    a("s_lshl_b32 s42, s3, 13")
    a("s_lshl_b32 s52, s39, 7")
    a("s_add_u32 s42, s42, s52")
    a("s_waitcnt lgkmcnt(0)")
    srd(a, WOA, 44, 45, 512*1024)
    srd(a, WOB, 48, 49, 512*1024)
    srd(a, OUT, 50, 51, 2048*2048)
    st(4)
    st.l(1)
    a("s_waitcnt vmcnt(8)")
    a("s_barrier")
    st(5)
    st.l(2)
    a(f"ds_read_b128 {vr(QA[0],4)}, v{T0}")
    a(f"ds_read_b128 {vr(QA[1],4)}, v{T0} offset:1024")
    a(f"ds_read_b128 {vr(KF,4)}, v{T1}")
    a("s_waitcnt lgkmcnt(0)")
    mfma(a, SB[0][0], KF, QA[0], "0")
    mfma(a, SB[1][0], KF, QA[1], "0")
    a("s_cmp_eq_u32 s3, 4")
    a("s_cbranch_scc0 La_nnw")
    a(f"v_mov_b32 v{T0}, {XCH + 512}")
    a(f"v_mov_b32 v{T1}, s{NONCE}")
    a(f"ds_write_b32 v{T0}, v{T1}")
    a("s_waitcnt lgkmcnt(0)")
    a.label("La_nnw")
    a("s_barrier")
    a(f"v_mov_b32 v{T0}, {XCH + 512}")
    a(f"ds_read_b32 v{T0}, v{T0}")
    a("s_waitcnt lgkmcnt(0)")
    a(f"v_readfirstlane_b32 s{NONCE}, v{T0}")
    for q in range(2):
        for r in range(16):
            a(f"v_mov_b32 v{OACC[q]+r}, 0") if r < 6 else None
    for q, m in ((0, MX), (1, MX1)):
        s = SB[q][0]
        a(f"v_max_f32 v{m}, v{s}, v{s+1}")
        for r in range(1, 8):
            a(f"v_max3_f32 v{m}, v{s+2*r}, v{s+2*r+1}, v{m}")
    def halves_max(m, t):
        a(f"v_mov_b32 v{t}, v{m}")
        a("s_nop 1")
        a(f"v_permlane32_swap_b32 v{m}, v{t}")
        a("s_nop 1")
        a(f"v_max_f32 v{m}, v{m}, v{t}")
    def read_v(buf, areg, off):
        a("s_mov_b64 exec, s[40:41]")
        a(f"ds_read_b128 {vr(buf,4)}, v{areg} offset:{off}")
        a(f"ds_read_b128 {vr(buf+4,4)}, v{areg} offset:{off+512}")
        a("s_mov_b64 exec, -1")
    def step(cur, p, o, early, qk, pre_pv0, mid, pre_pv1, vb):
        E = lambda i: a(f"v_exp_f32 v{cur+i}, v{cur+i}")
        C = lambda j: a(f"v_cvt_pk_bf16_f32 v{p+j}, v{cur+2*j}, v{cur+2*j+1}")
        E(0); E(1)
        early()
        E(2); E(3); C(0); E(4); C(1); E(5)
        qk()
        E(6); E(7); C(2); E(8); C(3); E(9); E(10)
        pre_pv0()
        mfma(a, o, vb, p, o)
        E(11); C(4); E(12); C(5); E(13); E(14); E(15); C(6); C(7)
        mid()
        pre_pv1()
        mfma(a, o, vb+4, p+4, o)
    nop = lambda: None
    a.label("La_main")
    a(f"ds_read_b128 {vr(KF,4)}, v{VKA}")
    read_v(VF[0], VVA, 0)
    a(f"ds_read_b128 {vr(KF+4,4)}, v{VKA} offset:2048")
    halves_max(MX, TMP)
    halves_max(MX1, TMP)
    for q, m in ((0, MX), (1, MX1)):
        for r in range(16):
            a(f"v_sub_f32 v{CNEG[q]+r}, 0, v{m}")
    a("s_waitcnt lgkmcnt(3)")
    mfma(a, SB[0][0], KF, QA[0], CNEG[0])
    mfma(a, SB[1][0], KF, QA[1], CNEG[1])
    for q in range(2):
        for r in range(16):
            a(f"v_mov_b32 v{OACC[q]+r}, 0")
    U = 8
    a("s_mov_b32 s38, 0")
    a.raw(".p2align 6")
    a.label("La_loop")
    st.ldyn(3, "a")
    def kv_dma(j):
        for u in range(4):
            a(f"s_add_u32 m0, s63, {(j-1)*32768 + (u&1)*8192 + (u>>1)*16384}")
            a(f"s_add_u32 s66, s62, {65536 + j*16384 + (u&1)*8192 + (u>>1)*65536}")
            a(f"buffer_load_dwordx4 v{LIN}, s[{WS}:{WS+3}], s66 offen sc1 lds")
    def wo_dma(srdr, half, ldsbase):
        for u in range(4):
            a(f"s_add_u32 m0, s63, {ldsbase + u*8192}")
            a(f"s_add_u32 s66, s42, {(256*half + 64*u)*1024}")
            a(f"buffer_load_dwordx4 v{WOV}, s[{srdr}:{srdr+3}], s66 offen lds")
    for n in range(U):
        vb = VF[n % 2]
        if n == 3:
            a("s_cmp_eq_u32 s38, 3")
            a("s_cselect_b32 s64, s73, 1")
            a("s_cmp_eq_u32 s64, 0")
            a("s_cbranch_scc0 La_ng0")
            wo_dma(WOA, 0, 0)
            a.label("La_ng0")
        if n == 1:
            a("s_cmp_lg_u32 s73, 0")
            a("s_cbranch_scc1 La_sd")
            a("s_cmp_eq_u32 s38, 0")
            a("s_cbranch_scc0 La_s1")
            kv_dma(2)
            a("s_branch La_sd")
            a.label("La_s1")
            a("s_cmp_eq_u32 s38, 1")
            a("s_cbranch_scc0 La_s2")
            kv_dma(3)
            a("s_branch La_sd")
            a.label("La_s2")
            a("s_cmp_lt_u32 s3, 4")
            a("s_cbranch_scc1 La_sd")
            a("s_cmp_eq_u32 s38, 2")
            a("s_cbranch_scc0 La_s3")
            a(f"buffer_load_dword v{T2}, v2, s[{WS}:{WS+3}], 0 offen sc1")
            a("s_branch La_sd")
            a.label("La_s3")
            a(f"s_mov_b32 s67, {SPIN}")
            a.label("La_bspin")
            a("s_waitcnt vmcnt(0)")
            a(f"v_cmp_eq_u32 vcc, s{NONCE}, v{T2}")
            a("s_nop 4")
            a("s_cmp_eq_u64 vcc, -1")
            a("s_cbranch_scc1 La_bgot")
            a("s_sleep 1")
            a(f"buffer_load_dword v{T2}, v2, s[{WS}:{WS+3}], 0 offen sc1")
            a("s_sub_u32 s67, s67, 1")
            a("s_cmp_lg_u32 s67, 0")
            a("s_cbranch_scc1 La_bspin")
            a("s_waitcnt vmcnt(0)")
            a.label("La_bgot")
            b_loads(a, LIN, QBL)
            a.label("La_sd")
        if n == 5:
            a("s_cmp_lg_u32 s73, 0")
            a("s_cbranch_scc1 La_nowait")
            a("s_cmp_eq_u32 s38, 3")
            a("s_cbranch_scc1 La_nowait")
            a("s_cmp_eq_u32 s38, 2")
            a("s_cbranch_scc1 La_w2")
            a("s_waitcnt vmcnt(4)")
            a("s_branch La_wd")
            a.label("La_w2")
            a("s_waitcnt vmcnt(1)")
            a.label("La_wd")
            a("s_barrier")
            a("s_cmp_eq_u32 s38, 0")
            a("s_cselect_b32 s64, s3, 0")
            a("s_cmp_eq_u32 s64, 4")
            a("s_cbranch_scc0 La_nowait")
            a(f"s_add_u32 s56, s74, {FB}")
            a(f"v_mov_b32 v{T0}, s56")
            a(f"v_mov_b32 v{T1}, s{NONCE}")
            a("s_mov_b64 exec, 1")
            a(f"buffer_store_dword v{T1}, v{T0}, s[{WS}:{WS+3}], 0 offen sc1")
            a("s_mov_b64 exec, -1")
            a.label("La_nowait")
        for q in range(2):
            cur, nxt = SB[q][n % 2], SB[q][(n+1) % 2]
            def early(n=n):
                if n + 1 < U: read_v(VF[(n+1) % 2], VVA, (n+1)*2048)
                else: read_v(VF[(n+1) % 2], VVN, 0)
            def qk(q=q, nxt=nxt, n=n):
                if q == 0: a("s_waitcnt lgkmcnt(2)")
                mfma(a, nxt, KF+4*((n+1) % 2), QA[q], CNEG[q])
                if q == 1:
                    if n + 2 < U: a(f"ds_read_b128 {vr(KF+4*(n % 2),4)}, v{VKA} offset:{(n+2)*2048}")
                    else: a(f"ds_read_b128 {vr(KF+4*(n % 2),4)}, v{VKN} offset:{(n+2-U)*2048}")
            step(cur, PP[q], OACC[q], early if q == 0 else nop, qk, nop,
                 lambda: a("s_nop 1"), nop, vb)
    a(f"v_mov_b32 v{VKA}, v{VKN}")
    a(f"v_mov_b32 v{VVA}, v{VVN}")
    a(f"v_add_u32 v{VKN}, 32768, v{VKN}")
    a(f"v_add_u32 v{VVN}, 32768, v{VVN}")
    a("s_add_u32 s38, s38, 1")
    a("s_cmp_lg_u32 s38, 4")
    a("s_cbranch_scc1 La_loop")
    st(6)
    st.l(7)
    a("s_waitcnt lgkmcnt(0)")
    a("s_nop 7")
    a(f"v_mov_b32 v{TMP}, 0x71800000")
    a(f"v_cmp_lt_f32 vcc, v{OACC[0]+8}, v{TMP}")
    a(f"v_cmp_lt_f32 s[58:59], v{OACC[1]+8}, v{TMP}")
    a("s_nop 4")
    a("s_and_b64 s[58:59], s[58:59], vcc")
    a("s_cmp_eq_u64 s[58:59], -1")
    a("s_cselect_b32 s64, 0, 1")
    a("s_cmp_lg_u32 s73, 0")
    a("s_cselect_b32 s64, 0, s64")
    a("s_lshl_b32 s65, s3, 2")
    a(f"s_add_u32 s65, s65, {XCH}")
    a(f"v_mov_b32 v{T0}, s65")
    a(f"v_mov_b32 v{T1}, s64")
    a(f"ds_write_b32 v{T0}, v{T1}")
    a("s_mul_i32 s65, s3, 2560")
    a(f"s_add_u32 s65, s65, {XCH + 1024}")
    a(f"v_add_u32 v{T0}, s65, v{LIN}")
    a(f"v_lshrrev_b32 v{T1}, 2, v{LIN}")
    a(f"v_add_u32 v{T1}, s65, v{T1}")
    a("s_cmp_eq_u32 s70, 0")
    a("s_cbranch_scc0 La_sendq0")
    for lab, qs in (("La_sendq1", 1), ("La_sendq0", 0)):
        if qs == 0: a.label(lab)
        a(f"ds_write_b128 v{T0}, {vr(OACC[qs],4)}")
        a(f"ds_write_b128 v{T0}, {vr(OACC[qs]+4,4)} offset:1024")
        a(f"ds_write_b32 v{T1}, v{OACC[qs]+8} offset:2048")
        if qs == 1:
            a("s_branch La_sent")
        else:
            for r in range(9):
                a(f"v_mov_b32 v{OACC[0]+r}, v{OACC[1]+r}")
    a.label("La_sent")
    a("s_waitcnt vmcnt(0) lgkmcnt(0)")
    a("s_barrier")
    a(f"v_and_b32 v{T2}, 7, v1")
    a(f"v_lshlrev_b32 v{T2}, 2, v{T2}")
    a(f"v_add_u32 v{T2}, {XCH}, v{T2}")
    a(f"ds_read_b32 v{T2}, v{T2}")
    a("s_xor_b32 s64, s3, 4")
    a("s_mul_i32 s65, s64, 2560")
    a(f"s_add_u32 s65, s65, {XCH + 1024}")
    a(f"v_add_u32 v{T0}, s65, v{LIN}")
    a(f"v_lshrrev_b32 v{T1}, 2, v{LIN}")
    a(f"v_add_u32 v{T1}, s65, v{T1}")
    a(f"ds_read_b128 {vr(SB[0][0],4)}, v{T0}")
    a(f"ds_read_b128 {vr(SB[0][0]+4,4)}, v{T0} offset:1024")
    a(f"ds_read_b32 v{SB[0][0]+8}, v{T1} offset:2048")
    a("s_lshl_b32 s37, s3, 11")
    a(f"s_add_u32 s37, s37, {BKV}")
    a("s_waitcnt lgkmcnt(0)")
    a(f"v_cmp_ne_u32 vcc, 0, v{T2}")
    a("s_nop 4")
    a("s_cmp_eq_u64 vcc, 0")
    a("s_cbranch_scc1 La_done")
    a("s_barrier")
    a("s_mov_b32 s73, 1")
    for u in range(4):
        a(f"s_add_u32 m0, s63, {BKV + (u&1)*8192 + (u>>1)*16384}")
        a(f"s_add_u32 s66, s62, {65536 + (u&1)*8192 + (u>>1)*65536}")
        a(f"buffer_load_dwordx4 v{LIN}, s[{WS}:{WS+3}], s66 offen sc1 lds")
    kv_dma(1)
    a("s_waitcnt vmcnt(0)")
    a("s_barrier")
    a(f"v_mov_b32 v{MX}, 0xff800000")
    a(f"v_mov_b32 v{MX1}, 0xff800000")
    a("s_mov_b32 s38, 0")
    a.label("La_fb")
    a("s_bfe_u32 s64, s38, 0x20003")
    a("s_sub_u32 s65, s64, 1")
    a("s_lshl_b32 s65, s65, 15")
    a("s_cmp_eq_u32 s64, 0")
    a(f"s_cselect_b32 s65, {BKV}, s65")
    a("s_lshr_b32 s64, s38, 5")
    a("s_lshl_b32 s64, s64, 14")
    a("s_add_u32 s65, s65, s64")
    a("s_and_b32 s64, s38, 7")
    a("s_lshl_b32 s64, s64, 11")
    a("s_add_u32 s65, s65, s64")
    a(f"v_add_u32 v{T0}, s65, v{LIN}")
    a(f"ds_read_b128 {vr(KF,4)}, v{T0}")
    a("s_waitcnt lgkmcnt(0)")
    mfma(a, SB[0][0], KF, QA[0], "0")
    mfma(a, SB[1][0], KF, QA[1], "0")
    a("s_nop 15")
    for q, m in ((0, MX), (1, MX1)):
        s = SB[q][0]
        for r in range(8):
            a(f"v_max3_f32 v{m}, v{s+2*r}, v{s+2*r+1}, v{m}")
    a("s_add_u32 s38, s38, 1")
    a("s_cmp_lg_u32 s38, 64")
    a("s_cbranch_scc1 La_fb")
    a(f"v_add_u32 v{VKN}, s71, v{LIN}")
    a(f"v_add_u32 v{VVN}, s71, v{VLO}")
    a(f"v_add_u32 v{VKA}, s72, v{LIN}")
    a(f"v_add_u32 v{VVA}, s72, v{VLO}")
    a("s_branch La_main")
    a.label("La_done")
    a("s_cmp_eq_u32 s73, 0")
    a("s_cbranch_scc1 La_bok")
    a("s_barrier")
    wo_dma(WOA, 0, 0)
    a("s_cmp_lt_u32 s3, 4")
    a("s_cbranch_scc1 La_brl")
    b_loads(a, LIN, QBL)
    a.label("La_brl")
    a("s_waitcnt vmcnt(0)")
    a("s_barrier")
    a.label("La_bok")
    a(f"v_add_u32 v{VKA}, s37, v{LIN}")
    a(f"v_add_u32 v{VVA}, s37, v{VLO}")
    a("s_lshl_b32 s64, s3, 10")
    a(f"s_add_u32 s64, s64, {QBL}")
    a(f"v_add_u32 v{T0}, s64, v{LIN}")
    a(f"ds_read_b128 {vr(QB,4)}, v{T0}")
    for i in range(8, -1, -1):
        a(f"ds_read_b128 {vr(KF+4*i,4)}, v{VKA} offset:{i*2048}")
    for r in range(9):
        a(f"v_add_f32 v{OACC[0]+r}, v{OACC[0]+r}, v{SB[0][0]+r}")
    a("s_and_b32 s64, s3, 3")
    a("s_lshl_b32 s64, s64, 1")
    a("s_add_u32 s64, s64, s70")
    a(f"s_lshl_b32 s65, s{S_QB}, 3")
    a("s_add_u32 s64, s64, s65")
    a("s_lshl_b32 s64, s64, 10")
    a(f"s_lshl_b32 s68, s{S_H}, 16")
    a("s_add_u32 s68, s68, s64")
    a(f"s_add_u32 s68, s68, {O_BASE}")
    def finish_o(o, lreg, soff):
        a(f"v_rcp_f32 v{TMP}, v{lreg}")
        a("s_nop 1")
        for r in range(8):
            a(f"v_mul_f32 v{o+r}, v{o+r}, v{TMP}")
        for r in range(4):
            a(f"v_cvt_pk_bf16_f32 v{PP[1]+r}, v{o+2*r}, v{o+2*r+1}")
        a(f"buffer_store_dwordx4 {vr(PP[1],4)}, v{LIN}, s[{WS}:{WS+3}], {soff} offen sc1")
    def o_flag(p):
        a("s_lshl_b32 s56, s2, 3")
        a("s_add_u32 s56, s56, s3")
        a("s_lshl_b32 s56, s56, 7")
        a(f"s_add_u32 s56, s56, {FO + p*262144}")
        a(f"v_mov_b32 v{T0}, s56")
        a(f"v_mov_b32 v{T1}, s{NONCE}")
        a("s_mov_b64 exec, 1")
        a(f"buffer_store_dword v{T1}, v{T0}, s[{WS}:{WS+3}], 0 offen sc1")
        a("s_mov_b64 exec, -1")
    a("s_waitcnt lgkmcnt(6)")
    SP = [80, 96, 112, 128]
    def qk1(i):
        c = MHI if i == 8 else (MLO if i == 0 else "0")
        mfma(a, SP[(8-i) % 4], KF+4*i, QB, c)
    qk1(8); qk1(7); qk1(6)
    finish_o(OACC[0], OACC[0]+8, "s68")
    st(7)
    st.l(8)
    a("s_waitcnt lgkmcnt(0)")
    a("s_barrier")
    read_v(VF[0], VVA, 8*2048)
    wo_dma(WOA, 1, 32768)
    a("s_mov_b32 s38, s35")
    for i in range(8, -1, -1):
        s = SP[(8-i) % 4]
        if i == 8:
            a(f"v_max_f32 v{MX}, v{s}, v{s+1}")
            for r in range(1, 8):
                a(f"v_max3_f32 v{MX}, v{s+2*r}, v{s+2*r+1}, v{MX}")
        else:
            for r in range(8):
                a(f"v_max3_f32 v{MX}, v{s+2*r}, v{s+2*r+1}, v{MX}")
        if i > 0:
            a("s_cmp_eq_u32 s38, 0")
            a("s_cbranch_scc1 Lb_p1_done")
            a("s_sub_u32 s38, s38, 1")
        if i - 3 >= 0:
            qk1(i - 3)
    a.label("Lb_p1_done")
    halves_max(MX, TMP)
    st(8)
    st.l(9)
    wo_dma(WOB, 0, 65536)
    for r in range(16):
        a(f"v_sub_f32 v{MHI+r}, v{MHI+r}, v{MX}")
    a("s_nop 1")
    mfma(a, SP[0], KF+4*8, QB, MHI)
    for r in range(16):
        a(f"v_sub_f32 v{CNEG[0]+r}, 0, v{MX}")
        a(f"v_sub_f32 v{MLO+r}, v{MLO+r}, v{MX}")
        a(f"v_mov_b32 v{OACC[0]+r}, 0")
    a("s_waitcnt vmcnt(8)")
    o_flag(0)
    wo_dma(WOB, 1, 98304)
    a("s_mov_b32 s38, s35")
    for n, i in enumerate(range(8, -1, -1)):
        cur, nxt = SP[n % 2], SP[(n+1) % 2]
        vb = VF[n % 2]
        if i > 0:
            cn = MLO if i - 1 == 0 else CNEG[0]
            step(cur, PP[0], OACC[0],
                 lambda: read_v(VF[(n+1) % 2], VVA, (i-1)*2048),
                 lambda: mfma(a, nxt, KF+4*(i-1), QB, cn),
                 lambda: a("s_waitcnt lgkmcnt(2)"),
                 lambda: a("s_nop 1"), nop, vb)
            a("s_cmp_eq_u32 s38, 0")
            a("s_cbranch_scc1 Lb_p2_done")
            a("s_sub_u32 s38, s38, 1")
        else:
            step(cur, PP[0], OACC[0], nop, nop,
                 lambda: a("s_waitcnt lgkmcnt(0)"),
                 lambda: a("s_nop 1"), nop, vb)
    a.label("Lb_p2_done")
    st(9)
    st.l(10)
    st.t(1)
    a("s_nop 15")
    a(f"s_lshl_b32 s68, s{S_H}, 16")
    a("s_lshl_b32 s69, s34, 10")
    a("s_add_u32 s68, s68, s69")
    a(f"s_add_u32 s68, s68, {O_BASE + O_PROB}")
    finish_o(OACC[0], OACC[0]+8, "s68")
    OF, ACC2, WF2 = 16, 80, 112
    a("s_lshr_b32 s52, s3, 2")
    a("s_and_b32 s53, s3, 1")
    a("s_bfe_u32 s54, s3, 0x10001")
    a("s_lshl_b32 s55, s75, 1")
    a("s_add_u32 s55, s55, s53")
    a("s_lshl_b32 s56, s53, 2")
    a("s_add_u32 s56, s56, s75")
    a("s_cmp_eq_u32 s52, 0")
    a("s_cselect_b32 s56, s56, s55")
    a(f"s_lshl_b32 s57, s{S_QB}, 5")
    a("s_lshl_b32 s58, s54, 4")
    a("s_add_u32 s57, s57, s58")
    a("s_lshl_b32 s57, s57, 3")
    a("s_add_u32 s57, s57, s56")
    a("s_lshl_b32 s57, s57, 7")
    a("s_lshl_b32 s58, s52, 18")
    a("s_add_u32 s57, s57, s58")
    a(f"s_add_u32 s57, s57, {FO}")
    a(f"v_and_b32 v{T2}, 15, v1")
    a(f"v_lshlrev_b32 v{T2}, 10, v{T2}")
    a(f"v_add_u32 v{T2}, s57, v{T2}")
    a(f"s_lshl_b32 s59, s{S_QB}, 3")
    a("s_add_u32 s59, s59, s55")
    a("s_lshl_b32 s60, s59, 10")
    a(f"s_mul_i32 s61, s52, {O_PROB}")
    a("s_add_u32 s60, s60, s61")
    a(f"s_add_u32 s60, s60, {O_BASE}")
    a("s_bfe_u32 s61, s2, 0x20003")
    a("s_lshl_b32 s61, s61, 2")
    a(f"v_lshrrev_b32 v{T0}, 5, v1")
    a(f"v_lshlrev_b32 v{T1}, 2, v{T0}")
    a(f"v_bfe_u32 v{T3}, v1, 2, 2")
    a(f"v_add_u32 v{T1}, v{T1}, v{T3}")
    a(f"v_lshlrev_b32 v{T1}, 7, v{T1}")
    a(f"v_bfe_u32 v{T3}, v1, 4, 1")
    a(f"v_lshlrev_b32 v{T3}, 5, v{T3}")
    a(f"v_add_u32 v{T1}, v{T1}, v{T3}")
    a(f"v_and_b32 v{T3}, 3, v1")
    a(f"v_lshlrev_b32 v{T3}, 3, v{T3}")
    a(f"v_add_u32 v{T1}, v{T1}, v{T3}")
    a(f"v_bfe_u32 v{T3}, v1, 3, 1")
    a(f"v_lshlrev_b32 v{T3}, 6, v{T3}")
    a("s_lshl_b32 s62, s52, 16")
    a("s_lshl_b32 s63, s54, 15")
    a("s_add_u32 s62, s62, s63")
    a(f"v_add_u32 v{T1}, s62, v{T1}")
    a(f"v_add_u32 v{VKA}, v{T1}, v{T3}")
    a(f"v_xor_b32 v{T3}, 64, v{T3}")
    a(f"v_add_u32 v{VVA}, v{T1}, v{T3}")
    a(f"v_and_b32 v{VKN}, 31, v1")
    a(f"v_lshlrev_b32 v{VKN}, 11, v{VKN}")
    a(f"v_lshlrev_b32 v{T0}, 4, v{T0}")
    a(f"v_add_u32 v{VKN}, v{VKN}, v{T0}")
    st.t(2)
    a("s_waitcnt vmcnt(0)")
    st.t(3)
    o_flag(1)
    st(10)
    a("s_barrier")
    st.t(4)
    a(f"s_mov_b32 s67, {SPIN}")
    a.label("Lo_spin")
    a(f"buffer_load_dword v{T3}, v{T2}, s[{WS}:{WS+3}], 0 offen sc1")
    a("s_waitcnt vmcnt(0)")
    a(f"v_cmp_eq_u32 vcc, s{NONCE}, v{T3}")
    a("s_nop 4")
    a("s_cmp_eq_u64 vcc, -1")
    a("s_cbranch_scc1 Lo_got")
    a("s_sleep 1")
    a("s_sub_u32 s67, s67, 1")
    a("s_cmp_lg_u32 s67, 0")
    a("s_cbranch_scc1 Lo_spin")
    a.label("Lo_got")
    st.t(5)
    for sidx in range(16):
        pass
    a("s_lshl_b32 s63, s54, 20")
    a("s_add_u32 s60, s60, s63")
    for hh in range(16):
        a(f"s_add_u32 s64, s60, {hh*65536}")
        a(f"buffer_load_dwordx4 {vr(OF+4*hh,4)}, v{LIN}, s[{WS}:{WS+3}], s64 offen sc1")
    def rd(hh, buf):
        for ct, reg in ((0, VKA), (1, VVA)):
            a(f"ds_read_b64_tr_b16 {vr(WF2+8*buf+4*ct,2)}, v{reg} offset:{hh*2048}")
            a(f"ds_read_b64_tr_b16 {vr(WF2+8*buf+4*ct+2,2)}, v{reg} offset:{hh*2048+1024}")
    rd(0, 0)
    for hh in range(16):
        buf = hh % 2
        if hh < 15:
            rd(hh+1, buf ^ 1)
            a(f"s_waitcnt vmcnt({15-hh}) lgkmcnt(4)")
        else:
            a("s_waitcnt vmcnt(0) lgkmcnt(0)")
        for ct in range(2):
            acc = ACC2 + 16*ct
            mfma(a, acc, WF2+8*buf+4*ct, OF+4*hh, "0" if hh == 0 else acc)
    st.t(6)
    a("s_lshl_b32 s64, s3, 12")
    a(f"s_add_u32 s64, s64, {BKV}")
    a(f"v_add_u32 v{T0}, s64, v{LIN}")
    a("s_xor_b32 s65, s3, 2")
    a("s_lshl_b32 s65, s65, 12")
    a(f"s_add_u32 s65, s65, {BKV}")
    a(f"v_add_u32 v{T1}, s65, v{LIN}")
    a("s_nop 15")
    a("s_cmp_eq_u32 s54, 0")
    a("s_cbranch_scc0 Lo_send0")
    for r in range(4):
        a(f"ds_write_b128 v{T0}, {vr(ACC2+16+4*r,4)} offset:{r*1024}")
    a("s_branch Lo_sent")
    a.label("Lo_send0")
    for r in range(4):
        a(f"ds_write_b128 v{T0}, {vr(ACC2+4*r,4)} offset:{r*1024}")
    for r in range(16):
        a(f"v_mov_b32 v{ACC2+r}, v{ACC2+16+r}")
    a.label("Lo_sent")
    a("s_waitcnt lgkmcnt(0)")
    a("s_barrier")
    st.t(7)
    for r in range(4):
        a(f"ds_read_b128 {vr(OF+4*r,4)}, v{T1} offset:{r*1024}")
    a("s_lshl_b32 s64, s59, 16")
    a("s_lshl_b32 s65, s52, 10")
    a("s_add_u32 s64, s64, s65")
    a("s_lshl_b32 s65, s39, 7")
    a("s_add_u32 s64, s64, s65")
    a("s_lshl_b32 s65, s54, 6")
    a("s_add_u32 s64, s64, s65")
    a("s_waitcnt lgkmcnt(0)")
    for r in range(16):
        a(f"v_add_f32 v{ACC2+r}, v{ACC2+r}, v{OF+r}")
    for pr in range(2):
        b = ACC2 + 8*pr
        pk = WF2 + 4*pr
        for r in range(4):
            a(f"v_cvt_pk_bf16_f32 v{pk+r}, v{b+2*r}, v{b+2*r+1}")
        a("s_nop 1")
        a(f"v_permlane32_swap_b32 v{pk}, v{pk+2}")
        a(f"v_permlane32_swap_b32 v{pk+1}, v{pk+3}")
        a("s_nop 1")
        a(f"buffer_store_dwordx4 {vr(pk,4)}, v{VKN}, s[{OUT}:{OUT+3}], s64 offen offset:{pr*32} {os.environ.get('OUTF','')}")
    st.t(8)
    if st.ft: a("s_waitcnt vmcnt(0)")
    st.t(9); st.t(10)
    st(11)
    st.p(11)
    st.flush(8, 12)
    a.label("Lfa_end")
    a("s_endpgm")

def b_loads(a, LIN, QBL):
    a("s_sub_u32 s51, s3, 4")
    a("s_lshl_b32 s51, s51, 10")
    a(f"s_lshl_b32 s50, s{S_QB}, 14")
    a("s_add_u32 s50, s50, s51")
    a("s_sub_u32 s50, s50, 16384")
    for u in range(8):
        a(f"s_add_u32 s54, s50, {u*4096}")
        a("s_max_i32 s54, s54, 0")
        a("s_add_u32 s54, s54, s36")
        a("s_add_u32 s54, s54, 65536")
        a(f"s_add_u32 m0, s51, {BKV + u*4096}")
        a(f"buffer_load_dwordx4 v{LIN}, s[{WS}:{WS+3}], s54 offen sc1 lds")
    a(f"s_lshl_b32 s50, s{S_QB}, 13")
    a("s_add_u32 s50, s50, s36")
    a("s_add_u32 s50, s50, s51")
    for u in range(2):
        a(f"s_add_u32 m0, s51, {QBL + u*4096}")
        a(f"s_add_u32 s54, s50, {u*4096}")
        a(f"buffer_load_dwordx4 v{LIN}, s[{WS}:{WS+3}], s54 offen sc1 lds")

def gen_oproj(a):
    a.raw(".p2align 8")
    a.raw(".type oproj_kernel,@function")
    a.label("oproj_kernel")
    a("s_cmp_ge_u32 s2, 256")
    a("s_cbranch_scc1 Lop_end")
    st = Stamper(a, "oproj", 1, "s20")
    st()
    a("s_load_dwordx2 s[4:5], s[0:1], 16")
    a("s_load_dwordx2 s[26:27], s[0:1], 40")
    a("s_load_dwordx2 s[28:29], s[0:1], 48")
    a("s_load_dwordx2 s[30:31], s[0:1], 64")
    a("s_and_b32 s32, s2, 7")
    a("s_lshr_b32 s33, s2, 3")
    a("s_lshr_b32 s23, s32, 2")
    a("s_and_b32 s34, s32, 3")
    a("s_lshl_b32 s34, s34, 2")
    a("s_and_b32 s35, s33, 3")
    a("s_add_u32 s24, s34, s35")
    a("s_lshr_b32 s25, s33, 2")
    a("v_and_b32 v1, 63, v0")
    a("v_lshrrev_b32 v2, 6, v0")
    a("s_nop 0")
    a("v_readfirstlane_b32 s20, v2")
    a("v_lshrrev_b32 v2, 3, v1")
    a("v_lshlrev_b32 v2, 10, v2")
    a("v_bfe_u32 v3, v1, 4, 1")
    a("v_lshlrev_b32 v3, 2, v3")
    a("v_and_b32 v5, 7, v1")
    a("v_xor_b32 v3, v3, v5")
    a("v_lshlrev_b32 v3, 4, v3")
    a("v_add_u32 v4, v2, v3")
    a("v_lshlrev_b32 v5, 4, v1")
    a("s_waitcnt lgkmcnt(0)")
    a("s_cmp_eq_u32 s23, 0")
    a("s_cselect_b32 s4, s4, s26")
    a("s_cselect_b32 s5, s5, s27")
    srd(a, 8, 4, 5, 512*1024)
    a(f"s_mul_i32 s36, s23, {O_PROB}")
    a(f"s_add_u32 s36, s36, {O_BASE}")
    a("s_add_u32 s30, s30, s36")
    a("s_addc_u32 s31, s31, 0")
    srd(a, 12, 30, 31, O_PROB)
    a("s_lshl_b32 s40, s20, 13")
    a("s_lshl_b32 s36, s25, 7")
    a("s_add_u32 s40, s40, s36")
    a("s_lshl_b32 s41, s20, 10")
    OF = 64
    a("s_lshl_b32 s42, s24, 2")
    a("s_add_u32 s42, s42, s20")
    a("s_lshl_b32 s43, s42, 10")
    a("s_lshl_b32 s49, s25, 2")
    a("s_and_b32 s47, s24, 3")
    a("s_lshl_b32 s47, s47, 3")
    a("s_add_u32 s49, s49, s47")
    a("s_lshl_b32 s46, s49, 4")
    a("s_lshl_b32 s47, s20, 3")
    a("s_add_u32 s46, s46, s47")
    a("s_lshl_b32 s48, s25, 7")
    def wdma(u):
        a(f"s_add_u32 m0, s41, {u*4096}")
        a(f"s_add_u32 s44, s46, {u*32}")
        a("s_and_b32 s44, s44, 511")
        a("s_lshl_b32 s44, s44, 10")
        a("s_add_u32 s44, s44, s48")
        a("buffer_load_dwordx4 v4, s[8:11], s44 offen lds")
    def oload(H):
        a(f"s_add_u32 s44, s49, {H}")
        a("s_and_b32 s44, s44, 31")
        a("s_lshl_b32 s44, s44, 16")
        a("s_add_u32 s44, s44, s43")
        a(f"buffer_load_dwordx4 {vr(OF+4*H,4)}, v5, s[12:15], s44 offen")
    for q in range(4):
        for u in range(4): wdma(4*q+u)
        for H in range(8): oload(8*q+H)
    srd(a, 16, 28, 29, 2048*2048)
    a("v_lshrrev_b32 v2, 5, v1")
    a("v_lshlrev_b32 v3, 2, v2")
    a("v_bfe_u32 v8, v1, 2, 2")
    a("v_add_u32 v3, v3, v8")
    a("v_lshlrev_b32 v3, 7, v3")
    a("v_bfe_u32 v8, v1, 4, 1")
    a("v_lshlrev_b32 v8, 5, v8")
    a("v_add_u32 v3, v3, v8")
    a("v_and_b32 v8, 3, v1")
    a("v_lshlrev_b32 v8, 3, v8")
    a("v_add_u32 v3, v3, v8")
    a("v_bfe_u32 v8, v1, 3, 1")
    a("v_lshlrev_b32 v8, 6, v8")
    a("v_add_u32 v6, v3, v8")
    a("v_xor_b32 v8, 64, v8")
    a("v_add_u32 v7, v3, v8")
    a("v_and_b32 v8, 31, v1")
    a("v_lshlrev_b32 v8, 11, v8")
    a("v_lshlrev_b32 v9, 4, v2")
    a("v_add_u32 v8, v8, v9")
    ACC = 16
    st()
    WF = [48, 56]
    def rd(H, buf):
        for ct in range(2):
            a(f"ds_read_b64_tr_b16 {vr(WF[buf]+4*ct,2)}, v{6+ct} offset:{H*2048}")
            a(f"ds_read_b64_tr_b16 {vr(WF[buf]+4*ct+2,2)}, v{6+ct} offset:{H*2048+1024}")
    for q in range(4):
        a(f"s_waitcnt vmcnt({8 + 12*(3-q)})")
        a("s_barrier")
        rd(8*q, 0)
        for hh in range(8):
            H = 8*q + hh
            buf = hh % 2
            if hh < 7:
                rd(H+1, buf ^ 1)
                a(f"s_waitcnt vmcnt({7-hh + 12*(3-q)}) lgkmcnt(4)")
            else:
                a(f"s_waitcnt vmcnt({12*(3-q)}) lgkmcnt(0)")
            for ct in range(2):
                acc = ACC+16*ct
                mfma(a, acc, WF[buf]+4*ct, OF+4*H, "0" if H == 0 else acc)
    a("s_nop 15")
    st()
    a("s_lshl_b32 s44, s42, 16")
    a("s_lshl_b32 s45, s23, 10")
    a("s_add_u32 s44, s44, s45")
    a("s_lshl_b32 s45, s25, 7")
    a("s_add_u32 s44, s44, s45")
    for ct in range(2):
        for pr in range(2):
            b = ACC + 16*ct + 8*pr
            pk = 48 + (ct*2+pr)*4
            for r in range(4):
                a(f"v_cvt_pk_bf16_f32 v{pk+r}, v{b+2*r}, v{b+2*r+1}")
            a("s_nop 1")
            a(f"v_permlane32_swap_b32 v{pk}, v{pk+2}")
            a(f"v_permlane32_swap_b32 v{pk+1}, v{pk+3}")
            a("s_nop 1")
            a(f"buffer_store_dwordx4 {vr(pk,4)}, v8, s[16:19], s44 offen offset:{ct*64+pr*32}")
    st()
    st.flush(4)
    a.label("Lop_end")
    a("s_endpgm")

def kd(name, vgpr, sgpr=102):
    acc = (vgpr + 3)//4*4
    return f""".section .rodata,"a"
.p2align 6
.amdhsa_kernel {name}
  .amdhsa_next_free_vgpr {vgpr}
  .amdhsa_next_free_sgpr {sgpr}
  .amdhsa_accum_offset {acc}
  .amdhsa_group_segment_fixed_size 0
  .amdhsa_kernarg_size 72
  .amdhsa_user_sgpr_count 2
  .amdhsa_user_sgpr_kernarg_segment_ptr 1
  .amdhsa_system_sgpr_workgroup_id_x 1
.end_amdhsa_kernel
"""

HEADER = """; Kernarg layout for this problem (72 bytes, ptrs only, base s[0:1]):
;   offset   0: d_in[0] A_x  shape=(1, 2048, 512) dtype=bfloat16
;   offset   8: d_in[1] A_wqkv  shape=(512, 1536) dtype=bfloat16
;   offset  16: d_in[2] A_wo  shape=(512, 512) dtype=bfloat16
;   offset  24: d_in[3] B_x  shape=(1, 2048, 512) dtype=bfloat16
;   offset  32: d_in[4] B_wqkv  shape=(512, 1536) dtype=bfloat16
;   offset  40: d_in[5] B_wo  shape=(512, 512) dtype=bfloat16
;   offset  48: d_out     shape=(1, 2048, 1024) dtype=bfloat16
;   offset  56: d_debug   256 bytes
;   offset  64: d_ws      268435456 bytes workspace
; @launch grid=(256,1,1) block=(512,1,1) lds=163840
.amdgcn_target "amdgcn-amd-amdhsa--gfx950"
.text
.globl concat_heads__softmax_full_mha__sliding_block__prompt_kernel
"""

def main(path):
    a = Asm()
    gen_fused(a)
    txt = HEADER + a.text() + kd("concat_heads__softmax_full_mha__sliding_block__prompt_kernel", 256)
    open(path, "w").write(txt)

if __name__ == "__main__":
    main(sys.argv[1] if len(sys.argv) > 1 else f"cdna_kernels/{NAME}.s")
```

```python
import sys, os, struct

NAME = "concat_heads__softmax_full_mha__sliding_block__prompt"
STAMPS = os.environ.get("STAMPS", "")

class Asm:
    def __init__(self): self.lines = []
    def __call__(self, s): self.lines.append("  " + s)
    def label(self, s): self.lines.append(s + ":")
    def raw(self, s): self.lines.append(s)
    def text(self): return "\n".join(self.lines) + "\n"

def vr(b, n=1): return f"v{b}" if n == 1 else f"v[{b}:{b+n-1}]"
def f32bits(x): return struct.unpack("<I", struct.pack("<f", x))[0]

HEAD_STRIDE = 196608
PROB_STRIDE = 32 * HEAD_STRIDE
O_BASE = 2 * PROB_STRIDE
O_PROB = 32 * 65536
F_BASE = 16 << 20
WS_SIZE = 17 << 20
QSCALE = 0.25 * 1.4426950408889634
SPIN = 1 << 16

def srd(a, d, lo, hi, nrec):
    a(f"s_mov_b32 s{d}, s{lo}")
    a(f"s_and_b32 s{d+1}, s{hi}, 0xffff")
    a(f"s_mov_b32 s{d+2}, {nrec}")
    a(f"s_mov_b32 s{d+3}, 0x00020000")

class Stamper:
    def __init__(self, a, kname, kidx, wavereg, base=76):
        self.a=a; self.on=(STAMPS==kname or (STAMPS in ("fp","fs","fl","ft") and kname=="fa")); self.fp=(STAMPS in ("fp","fs","fl","ft")); self.ft=(STAMPS=="ft"); self.fs=(STAMPS=="fs"); self.fl=(STAMPS=="fl"); self.rt=(STAMPS=="rt"); self.n=0; self.base=base; self.wavereg=wavereg; self.kidx=kidx
        if self.rt:
            a("s_memrealtime s[76:77]"); a("s_memtime s[78:79]")
    def p(self, idx):
        if self.fp and ((not self.fs and not self.fl and not self.ft) or idx==11): self._st(idx)
    def t(self, idx):
        if self.ft: self._st(idx)
    def l(self, idx):
        if self.fl: self._st(idx)
    def ldyn(self, base, uid):
        if not self.fl: return
        a=self.a
        for j in range(4):
            a(f"s_cmp_eq_u32 s38, {j}")
            a(f"s_cbranch_scc0 Lst{uid}_{j}")
            self._st(base+j)
            a.label(f"Lst{uid}_{j}")
    def f(self, idx):
        if self.fs: self._st(idx)
    def __call__(self, idx=None):
        if STAMPS == "dbg" and self.kidx == 0:
            m = {0:0, 2:1, 5:2, 6:3, 9:4, 10:5, 11:6}
            if idx in m:
                self.a(f"s_memrealtime s[{76+2*m[idx]}:{77+2*m[idx]}]")
                self.a("s_waitcnt lgkmcnt(0)")
            return
        if not self.on: return
        if self.fp and idx not in (0,): return
        self._st(idx)
    def _st(self, idx=None):
        if idx is not None: self.n = idx
        assert self.base+2*self.n+1 < 102
        self.a(f"s_memtime s[{self.base+2*self.n}:{self.base+2*self.n+1}]")
        self.a("s_waitcnt lgkmcnt(0)")
        self.n+=1
    def flush(self, nw, n=None):
        if STAMPS == "dbg":
            a=self.a
            a("s_cmp_eq_u32 s3, 4"); a("s_cbranch_scc0 Ldbg_skip")
            a("s_cmp_eq_u32 s2, 0"); a("s_cselect_b32 s6, 4, 0")
            a("s_cmp_eq_u32 s2, 131"); a("s_cselect_b32 s6, 32, s6")
            a("s_cmp_eq_u32 s6, 0"); a("s_cbranch_scc1 Ldbg_skip")
            a("v_mov_b32 v1, s6")
            for i in range(1,7):
                a(f"s_sub_u32 s7, s{76+2*i}, s76")
                a("v_mov_b32 v2, s7")
                a(f"buffer_store_dword v2, v1, s[{DBG}:{DBG+3}], 0 offen offset:{4*(i-1)}")
            a("v_mov_b32 v2, s76")
            a(f"buffer_store_dword v2, v1, s[{DBG}:{DBG+3}], 0 offen offset:24")
            a("s_waitcnt vmcnt(0)")
            a.label("Ldbg_skip")
            return
        if not (self.on or self.rt): return
        a=self.a
        n = n or self.n
        if self.rt:
            a("s_waitcnt vmcnt(0)"); a("s_memrealtime s[80:81]"); a("s_memtime s[82:83]"); n=4
        a("s_load_dwordx2 s[4:5], s[0:1], 64")
        a("s_waitcnt vmcnt(0) lgkmcnt(0)")
        a(f"s_add_u32 s4, s4, {(64<<20) + (self.kidx<<20 if self.rt else 0)}")
        a("s_addc_u32 s5, s5, 0")
        srd(a, 8, 4, 5, 1<<20)
        a(f"s_mul_i32 s6, s2, {nw}")
        a(f"s_add_u32 s6, s6, {self.wavereg}")
        a("s_lshl_b32 s6, s6, 6")
        a("v_mov_b32 v1, s6")
        for i in range(n):
            a(f"v_mov_b32 v2, s{self.base+2*i}")
            a(f"buffer_store_dword v2, v1, s[8:11], 0 offen offset:{4*i}")
        a("s_waitcnt vmcnt(0)")

def mfma(a, d, x, y, c):
    cs = c if isinstance(c, str) else vr(c, 16)
    a(f"v_mfma_f32_32x32x16_bf16 {vr(d,16)}, {vr(x,4)}, {vr(y,4)}, {cs}")

WS, XB, WB, XA, WA, DBG = 4, 8, 12, 16, 20, 24
NONCE = 28
S_H, S_QB, S_G, S_TB = 30, 31, 32, 33
SLOT = 32768
BKV = 131072

def gen_fused(a):
    QA = [4, 8]; QB = 12
    OACC = [16, 32]
    CNEG = [48, 64]
    SB = [[80, 96], [112, 128]]
    PP = [144, 152]
    VF = [160, 168]
    KF = 176
    MHI, MLO = 212, 228
    VKA, VVA, TMP, LIN, MX, MX1 = 244, 245, 246, 247, 248, 249
    T0, T1, T2, T3 = 250, 251, 252, 253
    VKN, VVN = 254, 255
    VLO = 3
    XCH = 98304
    QBL = 122880
    FA, FB = F_BASE, F_BASE + 65536
    PUB = int(os.environ.get("PUB", "9"))
    FO = F_BASE + 131072
    WOA, WOB, OUT = 8, 12, 16

    a.raw(".p2align 8")
    a.raw(".type concat_heads__softmax_full_mha__sliding_block__prompt_kernel,@function")
    a.label("concat_heads__softmax_full_mha__sliding_block__prompt_kernel")
    a("s_cmp_ge_u32 s2, 256")
    a("s_cbranch_scc1 Lfa_end")
    st = Stamper(a, "fa", 0, "s3")
    st(0)
    a("s_load_dwordx4 s[36:39], s[0:1], 0")
    a("s_load_dwordx2 s[34:35], s[0:1], 24")
    a("s_load_dwordx2 s[42:43], s[0:1], 32")
    a("s_load_dwordx4 s[44:47], s[0:1], 56")
    a("v_and_b32 v1, 63, v0")
    a("v_lshrrev_b32 v2, 6, v0")
    a(f"s_and_b32 s{S_H}, s2, 31")
    a("v_readfirstlane_b32 s3, v2")
    a(f"s_lshr_b32 s{S_QB}, s2, 5")
    a("s_lshr_b32 s48, s2, 3")
    a("s_and_b32 s49, s2, 1")
    a("s_lshl_b32 s49, s49, 2")
    a("s_and_b32 s50, s48, 3")
    a(f"s_add_u32 s{S_G}, s49, s50")
    a("s_bfe_u32 s49, s2, 0x20001")
    a("s_lshl_b32 s49, s49, 3")
    a("s_lshr_b32 s50, s48, 2")
    a(f"s_add_u32 s{S_TB}, s49, s50")
    a(f"s_and_b32 s29, s{S_G}, 3")
    a("s_lshl_b32 s29, s29, 1")
    a(f"s_add_u32 s29, s29, s{S_TB}")
    a("s_and_b32 s29, s29, 7")
    a("s_cmp_lt_u32 s3, 4")
    a("s_cbranch_scc1 Lfa_compute")

    def early_setup():
        a(f"v_lshlrev_b32 v{LIN}, 4, v1")
        a(f"v_lshrrev_b32 v{T0}, 5, v1")
        a(f"v_lshlrev_b32 v{VLO}, 8, v{T0}")
        a(f"v_and_b32 v{T1}, 15, v1")
        a(f"v_lshlrev_b32 v{T1}, 4, v{T1}")
        a(f"v_add_u32 v{VLO}, v{VLO}, v{T1}")
        a(f"v_add_u32 v{VLO}, 1024, v{VLO}")
        a(f"v_and_b32 v{T1}, 27, v1")
        a(f"v_cmp_eq_u32 vcc, 16, v{T1}")
        a(f"v_mov_b32 v{T2}, 0x3f803f80")
        a(f"v_mov_b32 v{T3}, 0")
        a("s_nop 0")
        for r in range(16):
            a(f"v_cndmask_b32 v{VF[0]+r}, v{T3}, v{T2}, vcc")
        a(f"v_and_b32 v{T1}, 31, v1")
        a(f"v_lshlrev_b32 v{T0}, 2, v{T0}")
        a(f"v_sub_u32 v{T1}, v{T1}, v{T0}")
        a(f"v_mov_b32 v{T2}, 0xff800000")
        for r in range(16):
            cr = 8*(r//4) + r % 4
            a(f"v_cmp_le_i32 s[{62+2*(r%4)}:{63+2*(r%4)}], {cr}, v{T1}")
            if r % 4 == 3:
                a("s_nop 1")
                for q in range(r-3, r+1):
                    a(f"v_cndmask_b32 v{MHI+q}, v{T2}, v{T3}, s[{62+2*(q%4)}:{63+2*(q%4)}]")
                    a(f"v_cndmask_b32 v{MLO+q}, v{T3}, v{T2}, s[{62+2*(q%4)}:{63+2*(q%4)}]")
        a("s_lshr_b32 s70, s3, 2")
        a("s_lshl_b32 s71, s70, 14")
        a(f"s_add_u32 s72, s71, {BKV}")
        a(f"v_add_u32 v{VKN}, s71, v{LIN}")
        a(f"v_add_u32 v{VVN}, s71, v{VLO}")
        a(f"v_add_u32 v{VKA}, s72, v{LIN}")
        a(f"v_add_u32 v{VVA}, s72, v{VLO}")
        a("s_mov_b32 s73, 0")
        a("s_mov_b32 s40, 0x0000ffff")
        a("s_mov_b32 s41, 0x0000ffff")

    a("s_sub_u32 s48, s3, 4")
    a("v_lshrrev_b32 v2, 3, v1")
    a("v_lshlrev_b32 v2, 10, v2")
    a("v_and_b32 v3, 7, v1")
    a("v_lshrrev_b32 v6, 4, v1")
    a("v_xor_b32 v3, v3, v6")
    a("v_lshlrev_b32 v3, 4, v3")
    a("v_add_u32 v4, v2, v3")
    a("v_xor_b32 v5, 64, v4")
    a(f"s_lshl_b32 s50, s{S_TB}, 6")
    a("s_lshl_b32 s49, s48, 4")
    a("s_add_u32 s50, s50, s49")
    a("s_lshl_b32 s50, s50, 10")
    a("s_lshl_b32 s51, s48, 11")
    a("s_mul_i32 s52, s48, 49152")
    a(f"s_lshl_b32 s49, s{S_G}, 7")
    a("s_add_u32 s52, s52, s49")
    a("s_mul_i32 s53, s48, 6144")
    a("s_add_u32 s53, s53, 8192")
    a("s_movk_i32 s49, 171")
    a("s_movk_i32 s55, 3072")
    for v in range(3):
        a(f"v_add_u32 v2, {64*v}, v1")
        a("v_mul_lo_u32 v3, v2, s49")
        a("v_lshrrev_b32 v3, 12, v3")
        a("v_mul_u32_u24 v9, 24, v3")
        a("v_sub_u32 v9, v2, v9")
        a("v_bfe_u32 v10, v3, 1, 1")
        a("v_lshlrev_b32 v10, 2, v10")
        a("v_xor_b32 v9, v9, v10")
        a("v_mul_lo_u32 v3, v3, s55")
        a("v_lshrrev_b32 v10, 3, v9")
        a("v_lshlrev_b32 v10, 10, v10")
        a("v_add_u32 v3, v3, v10")
        a("v_and_b32 v9, 7, v9")
        a("v_lshlrev_b32 v9, 4, v9")
        a(f"v_add_u32 v{6+v}, v3, v9")
    a("s_waitcnt lgkmcnt(0)")
    srd(a, XA, 36, 37, 2048*1024)
    srd(a, WA, 38, 39, 512*3072)
    def dma_chunk(i, ldsbase=None):
        c = i % 8
        base = (i % 4)*SLOT if ldsbase is None else ldsbase
        xs, wsr = (XA, WA) if i < 8 else (XB, WB)
        a(f"s_add_u32 s58, s29, {c}")
        a("s_and_b32 s58, s58, 7")
        a("s_lshl_b32 s59, s58, 7")
        a("s_add_u32 s59, s59, s50")
        a(f"s_mul_i32 s58, s58, {64*3072}")
        a("s_add_u32 s58, s58, s52")
        for u in range(2):
            a(f"s_add_u32 m0, s51, {base + u*1024}")
            a(f"s_add_u32 s54, s59, {u*8192}")
            a(f"buffer_load_dwordx4 v{4 + u}, s[{xs}:{xs+3}], s54 offen lds")
        for u in range(6):
            up, v = divmod(u, 3)
            a(f"s_add_u32 m0, s53, {base + u*1024}")
            a(f"s_add_u32 s54, s58, {8*up*3072}")
            a(f"buffer_load_dwordx4 v{6 + v}, s[{wsr}:{wsr+3}], s54 offen lds")
    dma_chunk(0)
    dma_chunk(1)
    srd(a, XB, 34, 35, 2048*1024)
    srd(a, WB, 42, 43, 512*3072)
    srd(a, WS, 46, 47, WS_SIZE)
    srd(a, DBG, 44, 45, 256)
    a("s_cmp_eq_u32 s2, 0")
    a("s_cselect_b32 s49, s48, 1")
    a("s_cmp_eq_u32 s49, 0")
    a("s_cbranch_scc0 Lfa_nononce")
    a("s_memrealtime s[56:57]")
    a("s_waitcnt lgkmcnt(0)")
    a("s_or_b32 s56, s56, 1")
    a("v_mov_b32 v10, s56")
    a("v_mov_b32 v11, 0")
    a(f"buffer_store_dword v10, v11, s[{DBG}:{DBG+3}], 0 offen sc1")
    a.label("Lfa_nononce")
    NCHK = 3
    C8AT = int(os.environ.get("C8AT", "-1"))
    if C8AT < 0:
        dma_chunk(8, BKV)
    early_setup()
    a(f"s_lshr_b32 s56, s{S_H}, 2")
    a("s_lshl_b32 s56, s56, 12")
    a(f"s_add_u32 s56, s56, {FA}")
    a("v_and_b32 v12, 31, v1")
    a("v_lshlrev_b32 v12, 7, v12")
    a("v_add_u32 v12, s56, v12")
    a(f"s_lshl_b32 s56, s{S_G}, 5")
    a(f"s_add_u32 s56, s56, s{S_TB}")
    a("s_lshl_b32 s74, s56, 7")
    a("v_and_b32 v2, 7, v1")
    a(f"s_lshl_b32 s49, s{S_QB}, 2")
    a("s_sub_u32 s49, s49, 4")
    a("v_add_u32 v2, s49, v2")
    a("v_max_i32 v2, 0, v2")
    a(f"s_lshr_b32 s49, s{S_H}, 2")
    a("s_lshl_b32 s49, s49, 5")
    a("v_add_u32 v2, s49, v2")
    a("v_lshlrev_b32 v2, 7, v2")
    a(f"v_add_u32 v2, {FB}, v2")
    a("v_mov_b32 v11, 0")
    st(1)
    def write_flag(base):
        a(f"s_add_u32 s56, s74, {base}")
        a("v_mov_b32 v14, s56")
        a(f"v_mov_b32 v15, s{NONCE}")
        a("s_mov_b64 exec, 1")
        a(f"buffer_store_dword v15, v14, s[{WS}:{WS+3}], 0 offen sc1")
        a("s_mov_b64 exec, -1")
    def a_loads():
        a(f"s_mul_i32 s64, s{S_H}, {HEAD_STRIDE}")
        a("s_lshl_b32 s65, s48, 10")
        a("s_add_u32 s64, s64, s65")
        for u in range(8):
            a(f"s_add_u32 m0, s65, {BKV + (u&3)*4096 + (u>>2)*16384}")
            a(f"s_add_u32 s66, s64, {65536 + (u&3)*4096 + (u>>2)*65536}")
            a(f"buffer_load_dwordx4 v{LIN}, s[{WS}:{WS+3}], s66 offen sc1 lds")
        a(f"s_lshl_b32 s67, s{S_QB}, 13")
        a("s_add_u32 s67, s67, s64")
        for u in range(2):
            a(f"s_add_u32 m0, s65, {32768 + u*4096}")
            a(f"s_add_u32 s66, s67, {u*4096}")
            a(f"buffer_load_dwordx4 v{LIN}, s[{WS}:{WS+3}], s66 offen sc1 lds")
        for u in range(8):
            a(f"s_add_u32 m0, s65, {(u&3)*4096 + (u>>2)*16384}")
            a(f"s_add_u32 s66, s64, {65536 + 16384 + (u&3)*4096 + (u>>2)*65536}")
            a(f"buffer_load_dwordx4 v{LIN}, s[{WS}:{WS+3}], s66 offen sc1 lds")
    order = ["c0"]*8 + ["c1"]*8
    if C8AT < 0: order += ["c8"]*8
    waits = {}
    for i in range(16):
        last = max(k for k, t in enumerate(order) if t == f"c{i}")
        if i == NCHK: last = max(last, max(k for k, t in enumerate(order) if t == "nonce"))
        waits[i] = len(order) - 1 - last
        if i == 0: order += ["nonce"]
        if C8AT == i: order += ["c8"]*8
        if i + 2 <= 15 and i + 2 != 8: order += [f"c{i+2}"]*8
        if i == 13: order += ["poll"]
    for i in range(16):
        w = waits[i]
        a(f"s_waitcnt vmcnt({w})")
        if i == NCHK:
            a(f"s_mov_b32 s55, {SPIN}")
            a.label("Lfa_nspin")
            a(f"v_readfirstlane_b32 s{NONCE}, v10")
            a(f"s_cmp_lg_u32 s{NONCE}, 0")
            a("s_cbranch_scc1 Lfa_ngot")
            a("s_sleep 1")
            a(f"buffer_load_dword v10, v11, s[{DBG}:{DBG+3}], 0 offen sc1")
            a("s_waitcnt vmcnt(0)")
            a("s_sub_u32 s55, s55, 1")
            a("s_cmp_lg_u32 s55, 0")
            a("s_cbranch_scc1 Lfa_nspin")
            a.label("Lfa_ngot")
        a("s_barrier")
        if i in (0,1,2,4,6,8,10,12,14,15): st.p({0:1,1:2,2:3,4:4,6:5,8:6,10:7,12:8,14:9,15:10}[i])
        if i == 0:
            a(f"buffer_load_dword v10, v11, s[{DBG}:{DBG+3}], 0 offen sc1")
        if C8AT == i:
            dma_chunk(8, BKV)
        if i + 2 <= 15 and i + 2 != 8:
            dma_chunk(i + 2)
        if i == PUB + 1:
            a("s_cmp_eq_u32 s48, 0")
            a("s_cbranch_scc0 Lfa_nf")
            write_flag(FA)
            a.label("Lfa_nf")
        if i == 13:
            a(f"buffer_load_dword v13, v12, s[{WS}:{WS+3}], 0 offen sc1")
    st(2)
    a(f"s_mov_b32 s55, {SPIN}")
    a.label("Lfa_aspin")
    a("s_waitcnt vmcnt(0)")
    a(f"v_cmp_eq_u32 vcc, s{NONCE}, v13")
    a("s_nop 4")
    a("s_cmp_eq_u64 vcc, -1")
    a("s_cbranch_scc1 Lfa_agot")
    a("s_sleep 1")
    a(f"buffer_load_dword v13, v12, s[{WS}:{WS+3}], 0 offen sc1")
    a("s_sub_u32 s55, s55, 1")
    a("s_cmp_lg_u32 s55, 0")
    a("s_cbranch_scc1 Lfa_aspin")
    a("s_waitcnt vmcnt(0)")
    a.label("Lfa_agot")
    a_loads()
    st(3)
    a("s_branch Lfa_attn")

    a.label("Lfa_compute")
    a("s_lshr_b32 s48, s3, 1")
    a("s_and_b32 s49, s3, 1")
    a("v_and_b32 v2, 31, v1")
    a("v_lshrrev_b32 v3, 5, v1")
    a("v_bfe_u32 v9, v2, 1, 3")
    a("v_xor_b32 v9, v9, v3")
    a("s_lshl_b32 s50, s48, 12")
    a("v_lshlrev_b32 v18, 7, v2")
    a("v_add_u32 v18, s50, v18")
    for s in range(4):
        a(f"v_xor_b32 v19, {2*s}, v9")
        a("v_lshlrev_b32 v19, 4, v19")
        a(f"v_add_u32 v{10+s}, v18, v19")
        a(f"v_add_u32 v{14+s}, 0x10000, v{10+s}")
    a("v_lshlrev_b32 v24, 3, v3")
    a("v_bfe_u32 v25, v1, 2, 2")
    a("v_add_u32 v24, v24, v25")
    a("s_movk_i32 s50, 384")
    a("v_mul_lo_u32 v24, v24, s50")
    a("v_bfe_u32 v25, v1, 4, 1")
    a("v_lshlrev_b32 v25, 5, v25")
    a("v_add_u32 v24, v24, v25")
    a("v_and_b32 v25, 3, v1")
    a("v_lshlrev_b32 v25, 3, v25")
    a("v_add_u32 v24, v24, v25")
    a("v_add_u32 v24, 8192, v24")
    a("v_bfe_u32 v25, v1, 3, 1")
    a("s_mul_i32 s50, s49, 3")
    for ct in range(3):
        a(f"s_add_u32 s51, s50, {ct}")
        a("v_xor_b32 v26, s51, v25")
        a("v_lshlrev_b32 v26, 6, v26")
        a(f"v_add_u32 v{18+ct}, v24, v26")
        a(f"v_add_u32 v{21+ct}, 0x10000, v{18+ct}")
    a("v_lshlrev_b32 v24, 4, v1")
    a("v_bfe_u32 v25, v1, 4, 1")
    a(f"s_mov_b32 s50, {HEAD_STRIDE}")
    a("v_mul_lo_u32 v25, v25, s50")
    a("v_lshlrev_b32 v26, 8, v3")
    a("v_add_u32 v25, v25, v26")
    a("v_and_b32 v26, 15, v1")
    a("v_lshlrev_b32 v26, 4, v26")
    a("v_add_u32 v25, v25, v26")
    a(f"s_mul_i32 s52, s{S_G}, {4*HEAD_STRIDE}")
    a(f"s_lshl_b32 s53, s{S_TB}, 1")
    a("s_add_u32 s53, s53, s48")
    a("s_lshl_b32 s54, s53, 11")
    a("s_add_u32 s54, s54, 65536")
    a("s_lshl_b32 s53, s53, 10")
    a(f"s_mov_b32 s55, {f32bits(QSCALE):#x}")
    ACC = 64
    for r in range(48): a(f"v_mov_b32 v{ACC+r}, 0")
    early_setup()
    a("s_waitcnt lgkmcnt(0)")
    srd(a, WS, 46, 47, WS_SIZE)
    if os.environ.get("XTOUCH", "0") == "1":
        a("s_cmp_eq_u32 s3, 3")
        a("s_cbranch_scc0 Lfa_nxt")
        srd(a, XB, 34, 35, 2048*1024)
        a("v_lshrrev_b32 v129, 3, v1")
        a("v_lshlrev_b32 v129, 10, v129")
        a("v_and_b32 v130, 7, v1")
        a("v_lshlrev_b32 v130, 7, v130")
        a("v_add_u32 v129, v129, v130")
        a(f"s_lshl_b32 s60, s{S_TB}, 16")
        a(f"s_and_b32 s61, s{S_G}, 3")
        a("s_lshl_b32 s61, s61, 14")
        a("s_add_u32 s60, s60, s61")
        a("s_add_u32 s61, s60, 8192")
        a(f"buffer_load_dword v131, v129, s[{XB}:{XB+3}], s60 offen")
        a(f"buffer_load_dword v132, v129, s[{XB}:{XB+3}], s61 offen")
        a.label("Lfa_nxt")
    XF = [28, 32]; WF = [36, 48]; PK = 112
    def read_frags(slot, s, buf):
        xr = (10 if slot < 2 else 14) + s
        a(f"ds_read_b128 {vr(XF[buf],4)}, v{xr} offset:{(slot%2)*SLOT}")
        for ct in range(3):
            reg = (18 if slot < 2 else 21) + ct
            off = (slot % 2) * SLOT + s * 6144
            a(f"ds_read_b64_tr_b16 {vr(WF[buf]+4*ct,2)}, v{reg} offset:{off}")
            a(f"ds_read_b64_tr_b16 {vr(WF[buf]+4*ct+2,2)}, v{reg} offset:{off+1536}")
    def body(types, tag):
        L = f"Lpj{tag}"
        st(1)
        a("s_mov_b32 s57, 0")
        a.label(L + "_loop")
        for slot in range(4):
            a("s_barrier")
            if slot == 0:
                a("s_cmp_eq_u32 s57, 2")
                a(f"s_cselect_b32 s58, {BKV}, 0")
                for r in (10, 11, 12, 13, 18, 19, 20):
                    a(f"v_add_u32 v{r}, s58, v{r}")
            if slot == PUB % 4:
                a(f"s_cmp_eq_u32 s57, {PUB // 4}")
                a(f"s_cbranch_scc0 {L}_np")
                a("s_waitcnt vmcnt(0)")
                a.label(L + "_np")
            read_frags(slot, 0, 0)
            for s in range(4):
                buf = s % 2
                if s < 3:
                    read_frags(slot, s+1, buf ^ 1)
                    a("s_waitcnt lgkmcnt(7)")
                else:
                    a("s_waitcnt lgkmcnt(0)")
                for ct in range(3):
                    acc = ACC + ct*16
                    if types[ct] == 'V':
                        mfma(a, acc, XF[buf], WF[buf]+4*ct, acc)
                    else:
                        mfma(a, acc, WF[buf]+4*ct, XF[buf], acc)
            if slot == 0:
                for r in (10, 11, 12, 13, 18, 19, 20):
                    a(f"v_subrev_u32 v{r}, s58, v{r}")
        a("s_add_u32 s57, s57, 1")
        a("s_bitcmp1_b32 s57, 0")
        a(f"s_cbranch_scc1 {L}_loop")
        a("s_nop 15")
        n = 0
        for ct in range(3):
            acc = ACC + ct*16
            c = tag*3 + ct
            ty = types[ct]
            for e in range(2):
                pk = PK + (n % 4)*4; n += 1
                if ty == 'Q':
                    for r in range(8):
                        a(f"v_mul_f32 v{acc+8*e+r}, s55, v{acc+8*e+r}")
                for r in range(4):
                    a(f"v_cvt_pk_bf16_f32 v{pk+r}, v{acc+2*r+8*e}, v{acc+8*e+2*r+1}")
                if ty == 'Q':
                    a(f"s_add_u32 s59, s52, {(2*(c%2)+e)*HEAD_STRIDE}")
                    a("s_add_u32 s59, s59, s53")
                    a(f"buffer_store_dwordx4 {vr(pk,4)}, v24, s[{WS}:{WS+3}], s59 offen sc1")
                elif ty == 'K':
                    a(f"s_add_u32 s59, s52, {(2*(c%2)+e)*HEAD_STRIDE}")
                    a("s_add_u32 s59, s59, s54")
                    a(f"buffer_store_dwordx4 {vr(pk,4)}, v24, s[{WS}:{WS+3}], s59 offen sc1")
                else:
                    a(f"s_add_u32 s59, s52, {(2*(c%2))*HEAD_STRIDE + 1024 + 512*e}")
                    a("s_add_u32 s59, s59, s54")
                    a(f"buffer_store_dwordx4 {vr(pk,4)}, v25, s[{WS}:{WS+3}], s59 offen sc1")
        for r in range(48): a(f"v_mov_b32 v{ACC+r}, 0")
        a(f"s_add_u32 s52, s52, {PROB_STRIDE}")
        a("s_cmp_lt_u32 s57, 4")
        a(f"s_cbranch_scc1 {L}_loop")
        st(2); st(3)
        a("s_branch Lfa_attn")
    a("s_cmp_eq_u32 s49, 0")
    a("s_cbranch_scc0 Lfa_wn1")
    body(['Q', 'Q', 'K'], 0)
    a.label("Lfa_wn1")
    body(['K', 'V', 'V'], 1)

    a.label("Lfa_attn")
    a("s_and_b32 s64, s3, 3")
    a("s_lshl_b32 s64, s64, 11")
    a(f"s_add_u32 s64, s64, 32768")
    a(f"v_add_u32 v{T0}, s64, v{LIN}")
    a(f"v_add_u32 v{T1}, {BKV}, v{LIN}")
    a(f"s_mul_i32 s62, s{S_H}, {HEAD_STRIDE}")
    a("s_lshl_b32 s63, s3, 10")
    a("s_add_u32 s62, s62, s63")
    WOV = 0
    a("v_lshrrev_b32 v0, 3, v1")
    a("v_lshlrev_b32 v0, 10, v0")
    a(f"v_bfe_u32 v{T2}, v1, 4, 1")
    a(f"v_lshlrev_b32 v{T2}, 2, v{T2}")
    a(f"v_and_b32 v{T3}, 7, v1")
    a(f"v_xor_b32 v{T2}, v{T2}, v{T3}")
    a(f"v_lshlrev_b32 v{T2}, 4, v{T2}")
    a(f"v_add_u32 v0, v0, v{T2}")
    a(f"s_lshl_b32 s34, s{S_QB}, 3")
    a("s_add_u32 s34, s34, s3")
    a("s_min_u32 s35, s34, 8")
    a(f"s_mul_i32 s36, s{S_H}, {HEAD_STRIDE}")
    a(f"s_add_u32 s36, s36, {PROB_STRIDE}")
    a("s_load_dwordx2 s[44:45], s[0:1], 16")
    a("s_load_dwordx4 s[48:51], s[0:1], 40")
    a("s_bfe_u32 s75, s2, 0x20001")
    a("s_and_b32 s52, s2, 1")
    a("s_lshl_b32 s52, s52, 2")
    a("s_bfe_u32 s53, s2, 0x20003")
    a("s_add_u32 s39, s52, s53")
    a("s_lshl_b32 s42, s3, 13")
    a("s_lshl_b32 s52, s39, 7")
    a("s_add_u32 s42, s42, s52")
    a("s_waitcnt lgkmcnt(0)")
    srd(a, WOA, 44, 45, 512*1024)
    srd(a, WOB, 48, 49, 512*1024)
    srd(a, OUT, 50, 51, 2048*2048)
    st(4)
    st.l(1)
    a("s_waitcnt vmcnt(8)")
    a("s_barrier")
    st(5)
    st.l(2)
    a(f"ds_read_b128 {vr(QA[0],4)}, v{T0}")
    a(f"ds_read_b128 {vr(QA[1],4)}, v{T0} offset:1024")
    a(f"ds_read_b128 {vr(KF,4)}, v{T1}")
    a("s_waitcnt lgkmcnt(0)")
    mfma(a, SB[0][0], KF, QA[0], "0")
    mfma(a, SB[1][0], KF, QA[1], "0")
    a("s_cmp_eq_u32 s3, 4")
    a("s_cbranch_scc0 La_nnw")
    a(f"v_mov_b32 v{T0}, {XCH + 512}")
    a(f"v_mov_b32 v{T1}, s{NONCE}")
    a(f"ds_write_b32 v{T0}, v{T1}")
    a("s_waitcnt lgkmcnt(0)")
    a.label("La_nnw")
    a("s_barrier")
    a(f"v_mov_b32 v{T0}, {XCH + 512}")
    a(f"ds_read_b32 v{T0}, v{T0}")
    a("s_waitcnt lgkmcnt(0)")
    a(f"v_readfirstlane_b32 s{NONCE}, v{T0}")
    for q in range(2):
        for r in range(16):
            a(f"v_mov_b32 v{OACC[q]+r}, 0") if r < 6 else None
    for q, m in ((0, MX), (1, MX1)):
        s = SB[q][0]
        a(f"v_max_f32 v{m}, v{s}, v{s+1}")
        for r in range(1, 8):
            a(f"v_max3_f32 v{m}, v{s+2*r}, v{s+2*r+1}, v{m}")
    def halves_max(m, t):
        a(f"v_mov_b32 v{t}, v{m}")
        a("s_nop 1")
        a(f"v_permlane32_swap_b32 v{m}, v{t}")
        a("s_nop 1")
        a(f"v_max_f32 v{m}, v{m}, v{t}")
    def read_v(buf, areg, off):
        a("s_mov_b64 exec, s[40:41]")
        a(f"ds_read_b128 {vr(buf,4)}, v{areg} offset:{off}")
        a(f"ds_read_b128 {vr(buf+4,4)}, v{areg} offset:{off+512}")
        a("s_mov_b64 exec, -1")
    def step(cur, p, o, early, qk, pre_pv0, mid, pre_pv1, vb):
        E = lambda i: a(f"v_exp_f32 v{cur+i}, v{cur+i}")
        C = lambda j: a(f"v_cvt_pk_bf16_f32 v{p+j}, v{cur+2*j}, v{cur+2*j+1}")
        E(0); E(1)
        early()
        E(2); E(3); C(0); E(4); C(1); E(5)
        qk()
        E(6); E(7); C(2); E(8); C(3); E(9); E(10)
        pre_pv0()
        mfma(a, o, vb, p, o)
        E(11); C(4); E(12); C(5); E(13); E(14); E(15); C(6); C(7)
        mid()
        pre_pv1()
        mfma(a, o, vb+4, p+4, o)
    nop = lambda: None
    a.label("La_main")
    a(f"ds_read_b128 {vr(KF,4)}, v{VKA}")
    read_v(VF[0], VVA, 0)
    a(f"ds_read_b128 {vr(KF+4,4)}, v{VKA} offset:2048")
    halves_max(MX, TMP)
    halves_max(MX1, TMP)
    for q, m in ((0, MX), (1, MX1)):
        for r in range(16):
            a(f"v_sub_f32 v{CNEG[q]+r}, 0, v{m}")
    a("s_waitcnt lgkmcnt(3)")
    mfma(a, SB[0][0], KF, QA[0], CNEG[0])
    mfma(a, SB[1][0], KF, QA[1], CNEG[1])
    for q in range(2):
        for r in range(16):
            a(f"v_mov_b32 v{OACC[q]+r}, 0")
    U = 8
    SCHED = int(os.environ.get("SCHED", "1"))
    if SCHED == 1:
        for r in range(4): a(f"v_mov_b32 v{PP[1]+4+r}, 0")
    a("s_mov_b32 s38, 0")
    a.raw(".p2align 6")
    a.label("La_loop")
    st.ldyn(3, "a")
    def kv_dma(j):
        for u in range(4):
            a(f"s_add_u32 m0, s63, {(j-1)*32768 + (u&1)*8192 + (u>>1)*16384}")
            a(f"s_add_u32 s66, s62, {65536 + j*16384 + (u&1)*8192 + (u>>1)*65536}")
            a(f"buffer_load_dwordx4 v{LIN}, s[{WS}:{WS+3}], s66 offen sc1 lds")
    def wo_dma(srdr, half, ldsbase):
        for u in range(4):
            a(f"s_add_u32 m0, s63, {ldsbase + u*8192}")
            a(f"s_add_u32 s66, s42, {(256*half + 64*u)*1024}")
            a(f"buffer_load_dwordx4 v{WOV}, s[{srdr}:{srdr+3}], s66 offen lds")
    for n in range(U):
        vb = VF[n % 2]
        if n == 3:
            a("s_cmp_eq_u32 s38, 3")
            a("s_cselect_b32 s64, s73, 1")
            a("s_cmp_eq_u32 s64, 0")
            a("s_cbranch_scc0 La_ng0")
            wo_dma(WOA, 0, 0)
            a.label("La_ng0")
        if n == 1:
            a("s_cmp_lg_u32 s73, 0")
            a("s_cbranch_scc1 La_sd")
            a("s_cmp_eq_u32 s38, 0")
            a("s_cbranch_scc0 La_s1")
            kv_dma(2)
            a("s_branch La_sd")
            a.label("La_s1")
            a("s_cmp_eq_u32 s38, 1")
            a("s_cbranch_scc0 La_s2")
            kv_dma(3)
            a("s_branch La_sd")
            a.label("La_s2")
            a("s_cmp_lt_u32 s3, 4")
            a("s_cbranch_scc1 La_sd")
            a("s_cmp_eq_u32 s38, 2")
            a("s_cbranch_scc0 La_s3")
            a(f"buffer_load_dword v{T2}, v2, s[{WS}:{WS+3}], 0 offen sc1")
            a("s_branch La_sd")
            a.label("La_s3")
            a(f"s_mov_b32 s67, {SPIN}")
            a.label("La_bspin")
            a("s_waitcnt vmcnt(0)")
            a(f"v_cmp_eq_u32 vcc, s{NONCE}, v{T2}")
            a("s_nop 4")
            a("s_cmp_eq_u64 vcc, -1")
            a("s_cbranch_scc1 La_bgot")
            a("s_sleep 1")
            a(f"buffer_load_dword v{T2}, v2, s[{WS}:{WS+3}], 0 offen sc1")
            a("s_sub_u32 s67, s67, 1")
            a("s_cmp_lg_u32 s67, 0")
            a("s_cbranch_scc1 La_bspin")
            a("s_waitcnt vmcnt(0)")
            a.label("La_bgot")
            b_loads(a, LIN, QBL)
            a.label("La_sd")
        if n == 5:
            a("s_cmp_lg_u32 s73, 0")
            a("s_cbranch_scc1 La_nowait")
            a("s_cmp_eq_u32 s38, 3")
            a("s_cbranch_scc1 La_nowait")
            a("s_cmp_eq_u32 s38, 2")
            a("s_cbranch_scc1 La_w2")
            a("s_cmp_eq_u32 s38, 1")
            a("s_cbranch_scc1 La_w1")
            a("s_waitcnt vmcnt(0)")
            a("s_branch La_wd")
            a.label("La_w1")
            a("s_waitcnt vmcnt(4)")
            a("s_branch La_wd")
            a.label("La_w2")
            a("s_waitcnt vmcnt(1)")
            a.label("La_wd")
            a("s_barrier")
            a("s_cmp_eq_u32 s38, 0")
            a("s_cselect_b32 s64, s3, 0")
            a("s_cmp_eq_u32 s64, 4")
            a("s_cbranch_scc0 La_nowait")
            a(f"s_add_u32 s56, s74, {FB}")
            a(f"v_mov_b32 v{T0}, s56")
            a(f"v_mov_b32 v{T1}, s{NONCE}")
            a("s_mov_b64 exec, 1")
            a(f"buffer_store_dword v{T1}, v{T0}, s[{WS}:{WS+3}], 0 offen sc1")
            a("s_mov_b64 exec, -1")
            a.label("La_nowait")
        for q in range(2):
            cur, nxt = SB[q][n % 2], SB[q][(n+1) % 2]
            def early(n=n):
                if n + 1 < U: read_v(VF[(n+1) % 2], VVA, (n+1)*2048)
                else: read_v(VF[(n+1) % 2], VVN, 0)
            def qk(q=q, nxt=nxt, n=n):
                if q == 0: a("s_waitcnt lgkmcnt(2)" if SCHED == 0 else "s_waitcnt lgkmcnt(0)")
                mfma(a, nxt, KF+4*((n+1) % 2), QA[q], CNEG[q])
                if q == 1:
                    if n + 2 < U: a(f"ds_read_b128 {vr(KF+4*(n % 2),4)}, v{VKA} offset:{(n+2)*2048}")
                    else: a(f"ds_read_b128 {vr(KF+4*(n % 2),4)}, v{VKN} offset:{(n+2-U)*2048}")
            if SCHED == 0:
                step(cur, PP[q], OACC[q], early if q == 0 else nop, qk, nop,
                     lambda: a("s_nop 1"), nop, vb)
            else:
                p = PP[q]
                E = lambda i: a(f"v_exp_f32 v{cur+i}, v{cur+i}")
                C = lambda j: a(f"v_cvt_pk_bf16_f32 v{p+j}, v{cur+2*j}, v{cur+2*j+1}")
                pq = 1 - q
                pvb = VF[n % 2] if q == 1 else VF[(n+1) % 2]
                E(0); E(1)
                mfma(a, OACC[pq], pvb+4, PP[pq]+4, OACC[pq])
                E(2); E(3); E(4); C(0); E(5); C(1)
                qk()
                E(6); E(7); E(8); C(2); E(9); C(3); E(10); E(11)
                mfma(a, OACC[q], vb, p, OACC[q])
                E(12); C(4); E(13); C(5); E(14); E(15)
                if q == 0: early()
                C(6); C(7)
    a(f"v_mov_b32 v{VKA}, v{VKN}")
    a(f"v_mov_b32 v{VVA}, v{VVN}")
    a(f"v_add_u32 v{VKN}, 32768, v{VKN}")
    a(f"v_add_u32 v{VVN}, 32768, v{VVN}")
    a("s_add_u32 s38, s38, 1")
    a("s_cmp_lg_u32 s38, 4")
    a("s_cbranch_scc1 La_loop")
    if SCHED == 1:
        mfma(a, OACC[1], VF[1]+4, PP[1]+4, OACC[1])
    st(6)
    st.l(7)
    a("s_waitcnt lgkmcnt(0)")
    a("s_nop 15")
    a(f"v_mov_b32 v{TMP}, 0x71800000")
    a(f"v_cmp_lt_f32 vcc, v{OACC[0]+8}, v{TMP}")
    a(f"v_cmp_lt_f32 s[58:59], v{OACC[1]+8}, v{TMP}")
    a("s_nop 4")
    a("s_and_b64 s[58:59], s[58:59], vcc")
    a("s_cmp_eq_u64 s[58:59], -1")
    a("s_cselect_b32 s64, 0, 1")
    a("s_cmp_lg_u32 s73, 0")
    a("s_cselect_b32 s64, 0, s64")
    a("s_lshl_b32 s65, s3, 2")
    a(f"s_add_u32 s65, s65, {XCH}")
    a(f"v_mov_b32 v{T0}, s65")
    a(f"v_mov_b32 v{T1}, s64")
    a(f"ds_write_b32 v{T0}, v{T1}")
    a("s_mul_i32 s65, s3, 2560")
    a(f"s_add_u32 s65, s65, {XCH + 1024}")
    a(f"v_add_u32 v{T0}, s65, v{LIN}")
    a(f"v_lshrrev_b32 v{T1}, 2, v{LIN}")
    a(f"v_add_u32 v{T1}, s65, v{T1}")
    a("s_cmp_eq_u32 s70, 0")
    a("s_cbranch_scc0 La_sendq0")
    for lab, qs in (("La_sendq1", 1), ("La_sendq0", 0)):
        if qs == 0: a.label(lab)
        a(f"ds_write_b128 v{T0}, {vr(OACC[qs],4)}")
        a(f"ds_write_b128 v{T0}, {vr(OACC[qs]+4,4)} offset:1024")
        a(f"ds_write_b32 v{T1}, v{OACC[qs]+8} offset:2048")
        if qs == 1:
            a("s_branch La_sent")
        else:
            for r in range(9):
                a(f"v_mov_b32 v{OACC[0]+r}, v{OACC[1]+r}")
    a.label("La_sent")
    a("s_waitcnt vmcnt(0) lgkmcnt(0)")
    a("s_barrier")
    a(f"v_and_b32 v{T2}, 7, v1")
    a(f"v_lshlrev_b32 v{T2}, 2, v{T2}")
    a(f"v_add_u32 v{T2}, {XCH}, v{T2}")
    a(f"ds_read_b32 v{T2}, v{T2}")
    a("s_xor_b32 s64, s3, 4")
    a("s_mul_i32 s65, s64, 2560")
    a(f"s_add_u32 s65, s65, {XCH + 1024}")
    a(f"v_add_u32 v{T0}, s65, v{LIN}")
    a(f"v_lshrrev_b32 v{T1}, 2, v{LIN}")
    a(f"v_add_u32 v{T1}, s65, v{T1}")
    a(f"ds_read_b128 {vr(SB[0][0],4)}, v{T0}")
    a(f"ds_read_b128 {vr(SB[0][0]+4,4)}, v{T0} offset:1024")
    a(f"ds_read_b32 v{SB[0][0]+8}, v{T1} offset:2048")
    a("s_lshl_b32 s37, s3, 11")
    a(f"s_add_u32 s37, s37, {BKV}")
    a("s_waitcnt lgkmcnt(0)")
    a(f"v_cmp_ne_u32 vcc, 0, v{T2}")
    a("s_nop 4")
    a("s_cmp_eq_u64 vcc, 0")
    a("s_cbranch_scc1 La_done")
    a("s_barrier")
    a("s_mov_b32 s73, 1")
    for u in range(4):
        a(f"s_add_u32 m0, s63, {BKV + (u&1)*8192 + (u>>1)*16384}")
        a(f"s_add_u32 s66, s62, {65536 + (u&1)*8192 + (u>>1)*65536}")
        a(f"buffer_load_dwordx4 v{LIN}, s[{WS}:{WS+3}], s66 offen sc1 lds")
    kv_dma(1)
    a("s_waitcnt vmcnt(0)")
    a("s_barrier")
    a(f"v_mov_b32 v{MX}, 0xff800000")
    a(f"v_mov_b32 v{MX1}, 0xff800000")
    a("s_mov_b32 s38, 0")
    a.label("La_fb")
    a("s_bfe_u32 s64, s38, 0x20003")
    a("s_sub_u32 s65, s64, 1")
    a("s_lshl_b32 s65, s65, 15")
    a("s_cmp_eq_u32 s64, 0")
    a(f"s_cselect_b32 s65, {BKV}, s65")
    a("s_lshr_b32 s64, s38, 5")
    a("s_lshl_b32 s64, s64, 14")
    a("s_add_u32 s65, s65, s64")
    a("s_and_b32 s64, s38, 7")
    a("s_lshl_b32 s64, s64, 11")
    a("s_add_u32 s65, s65, s64")
    a(f"v_add_u32 v{T0}, s65, v{LIN}")
    a(f"ds_read_b128 {vr(KF,4)}, v{T0}")
    a("s_waitcnt lgkmcnt(0)")
    mfma(a, SB[0][0], KF, QA[0], "0")
    mfma(a, SB[1][0], KF, QA[1], "0")
    a("s_nop 15")
    for q, m in ((0, MX), (1, MX1)):
        s = SB[q][0]
        for r in range(8):
            a(f"v_max3_f32 v{m}, v{s+2*r}, v{s+2*r+1}, v{m}")
    a("s_add_u32 s38, s38, 1")
    a("s_cmp_lg_u32 s38, 64")
    a("s_cbranch_scc1 La_fb")
    a(f"v_add_u32 v{VKN}, s71, v{LIN}")
    a(f"v_add_u32 v{VVN}, s71, v{VLO}")
    a(f"v_add_u32 v{VKA}, s72, v{LIN}")
    a(f"v_add_u32 v{VVA}, s72, v{VLO}")
    a("s_branch La_main")
    a.label("La_done")
    a("s_cmp_eq_u32 s73, 0")
    a("s_cbranch_scc1 La_bok")
    a("s_barrier")
    wo_dma(WOA, 0, 0)
    a("s_cmp_lt_u32 s3, 4")
    a("s_cbranch_scc1 La_brl")
    b_loads(a, LIN, QBL)
    a.label("La_brl")
    a("s_waitcnt vmcnt(0)")
    a("s_barrier")
    a.label("La_bok")
    a(f"v_add_u32 v{VKA}, s37, v{LIN}")
    a(f"v_add_u32 v{VVA}, s37, v{VLO}")
    a("s_lshl_b32 s64, s3, 10")
    a(f"s_add_u32 s64, s64, {QBL}")
    a(f"v_add_u32 v{T0}, s64, v{LIN}")
    a(f"ds_read_b128 {vr(QB,4)}, v{T0}")
    for i in range(8, -1, -1):
        a(f"ds_read_b128 {vr(KF+4*i,4)}, v{VKA} offset:{i*2048}")
    for r in range(9):
        a(f"v_add_f32 v{OACC[0]+r}, v{OACC[0]+r}, v{SB[0][0]+r}")
    a("s_and_b32 s64, s3, 3")
    a("s_lshl_b32 s64, s64, 1")
    a("s_add_u32 s64, s64, s70")
    a(f"s_lshl_b32 s65, s{S_QB}, 3")
    a("s_add_u32 s64, s64, s65")
    a("s_lshl_b32 s64, s64, 10")
    a(f"s_lshl_b32 s68, s{S_H}, 16")
    a("s_add_u32 s68, s68, s64")
    a(f"s_add_u32 s68, s68, {O_BASE}")
    def finish_o(o, lreg, soff):
        a(f"v_rcp_f32 v{TMP}, v{lreg}")
        a("s_nop 1")
        for r in range(8):
            a(f"v_mul_f32 v{o+r}, v{o+r}, v{TMP}")
        for r in range(4):
            a(f"v_cvt_pk_bf16_f32 v{PP[1]+r}, v{o+2*r}, v{o+2*r+1}")
        a(f"buffer_store_dwordx4 {vr(PP[1],4)}, v{LIN}, s[{WS}:{WS+3}], {soff} offen sc1")
    def o_flag(p):
        a("s_lshl_b32 s56, s2, 3")
        a("s_add_u32 s56, s56, s3")
        a("s_lshl_b32 s56, s56, 7")
        a(f"s_add_u32 s56, s56, {FO + p*262144}")
        a(f"v_mov_b32 v{T0}, s56")
        a(f"v_mov_b32 v{T1}, s{NONCE}")
        a("s_mov_b64 exec, 1")
        a(f"buffer_store_dword v{T1}, v{T0}, s[{WS}:{WS+3}], 0 offen sc1")
        a("s_mov_b64 exec, -1")
    a("s_waitcnt lgkmcnt(6)")
    SP = [80, 96, 112, 128]
    def qk1(i):
        c = MHI if i == 8 else (MLO if i == 0 else "0")
        mfma(a, SP[(8-i) % 4], KF+4*i, QB, c)
    qk1(8); qk1(7); qk1(6)
    finish_o(OACC[0], OACC[0]+8, "s68")
    st(7)
    st.l(8)
    a("s_waitcnt lgkmcnt(0)")
    a("s_barrier")
    read_v(VF[0], VVA, 8*2048)
    a("s_nop 0")
    a("s_mov_b32 s38, s35")
    for i in range(8, -1, -1):
        s = SP[(8-i) % 4]
        if i == 8:
            a(f"v_max_f32 v{MX}, v{s}, v{s+1}")
            for r in range(1, 8):
                a(f"v_max3_f32 v{MX}, v{s+2*r}, v{s+2*r+1}, v{MX}")
        else:
            for r in range(8):
                a(f"v_max3_f32 v{MX}, v{s+2*r}, v{s+2*r+1}, v{MX}")
        if i > 0:
            a("s_cmp_eq_u32 s38, 0")
            a("s_cbranch_scc1 Lb_p1_done")
            a("s_sub_u32 s38, s38, 1")
        if i - 3 >= 0:
            qk1(i - 3)
    a.label("Lb_p1_done")
    halves_max(MX, TMP)
    st(8)
    st.l(9)
    a("s_waitcnt vmcnt(0)")
    o_flag(0)
    a("s_mov_b32 s43, 0")
    for r in range(16):
        a(f"v_sub_f32 v{MHI+r}, v{MHI+r}, v{MX}")
    a("s_nop 1")
    mfma(a, SP[0], KF+4*8, QB, MHI)
    for r in range(16):
        a(f"v_sub_f32 v{CNEG[0]+r}, 0, v{MX}")
        a(f"v_sub_f32 v{MLO+r}, v{MLO+r}, v{MX}")
        a(f"v_mov_b32 v{OACC[0]+r}, 0")
    WG = [(WOA, 1, 32768), (WOB, 0, 65536), (WOB, 1, 98304)]
    wo_dma(*WG[0])
    a("s_mov_b32 s43, 1")
    a("s_mov_b32 s38, s35")
    for n, i in enumerate(range(8, -1, -1)):
        cur, nxt = SP[n % 2], SP[(n+1) % 2]
        vb = VF[n % 2]
        if i > 0:
            cn = MLO if i - 1 == 0 else CNEG[0]
            step(cur, PP[0], OACC[0],
                 lambda: read_v(VF[(n+1) % 2], VVA, (i-1)*2048),
                 lambda: mfma(a, nxt, KF+4*(i-1), QB, cn),
                 lambda: a("s_waitcnt lgkmcnt(2)"),
                 lambda: a("s_nop 1"), nop, vb)
            if n in (1, 3):
                wo_dma(*WG[1 if n == 1 else 2])
                a(f"s_mov_b32 s43, {2 if n == 1 else 3}")
            a("s_cmp_eq_u32 s38, 0")
            a("s_cbranch_scc1 Lb_p2_done")
            a("s_sub_u32 s38, s38, 1")
        else:
            step(cur, PP[0], OACC[0], nop, nop,
                 lambda: a("s_waitcnt lgkmcnt(0)"),
                 lambda: a("s_nop 1"), nop, vb)
    a.label("Lb_p2_done")
    st(9)
    st.l(10)
    st.t(1)
    a("s_cmp_ge_u32 s43, 2")
    a("s_cbranch_scc1 Lb_g1")
    wo_dma(*WG[1])
    a.label("Lb_g1")
    a("s_cmp_ge_u32 s43, 3")
    a("s_cbranch_scc1 Lb_g2")
    wo_dma(*WG[2])
    a.label("Lb_g2")
    a("s_nop 15")
    a(f"s_lshl_b32 s68, s{S_H}, 16")
    a("s_lshl_b32 s69, s34, 10")
    a("s_add_u32 s68, s68, s69")
    a(f"s_add_u32 s68, s68, {O_BASE + O_PROB}")
    finish_o(OACC[0], OACC[0]+8, "s68")
    OF, ACC2, WF2 = 16, 80, 112
    a("s_lshr_b32 s52, s3, 2")
    a("s_and_b32 s53, s3, 1")
    a("s_bfe_u32 s54, s3, 0x10001")
    a("s_lshl_b32 s55, s75, 1")
    a("s_add_u32 s55, s55, s53")
    a("s_lshl_b32 s56, s53, 2")
    a("s_add_u32 s56, s56, s75")
    a("s_cmp_eq_u32 s52, 0")
    a("s_cselect_b32 s56, s56, s55")
    a(f"s_lshl_b32 s57, s{S_QB}, 5")
    a("s_lshl_b32 s58, s54, 4")
    a("s_add_u32 s57, s57, s58")
    a("s_lshl_b32 s57, s57, 3")
    a("s_add_u32 s57, s57, s56")
    a("s_lshl_b32 s57, s57, 7")
    a("s_lshl_b32 s58, s52, 18")
    a("s_add_u32 s57, s57, s58")
    a(f"s_add_u32 s57, s57, {FO}")
    a(f"v_and_b32 v{T2}, 15, v1")
    a(f"v_lshlrev_b32 v{T2}, 10, v{T2}")
    a(f"v_add_u32 v{T2}, s57, v{T2}")
    a(f"s_lshl_b32 s59, s{S_QB}, 3")
    a("s_add_u32 s59, s59, s55")
    a("s_lshl_b32 s60, s59, 10")
    a(f"s_mul_i32 s61, s52, {O_PROB}")
    a("s_add_u32 s60, s60, s61")
    a(f"s_add_u32 s60, s60, {O_BASE}")
    a("s_bfe_u32 s61, s2, 0x20003")
    a("s_lshl_b32 s61, s61, 2")
    a(f"v_lshrrev_b32 v{T0}, 5, v1")
    a(f"v_lshlrev_b32 v{T1}, 2, v{T0}")
    a(f"v_bfe_u32 v{T3}, v1, 2, 2")
    a(f"v_add_u32 v{T1}, v{T1}, v{T3}")
    a(f"v_lshlrev_b32 v{T1}, 7, v{T1}")
    a(f"v_bfe_u32 v{T3}, v1, 4, 1")
    a(f"v_lshlrev_b32 v{T3}, 5, v{T3}")
    a(f"v_add_u32 v{T1}, v{T1}, v{T3}")
    a(f"v_and_b32 v{T3}, 3, v1")
    a(f"v_lshlrev_b32 v{T3}, 3, v{T3}")
    a(f"v_add_u32 v{T1}, v{T1}, v{T3}")
    a(f"v_bfe_u32 v{T3}, v1, 3, 1")
    a(f"v_lshlrev_b32 v{T3}, 6, v{T3}")
    a("s_lshl_b32 s62, s52, 16")
    a("s_lshl_b32 s63, s54, 15")
    a("s_add_u32 s62, s62, s63")
    a(f"v_add_u32 v{T1}, s62, v{T1}")
    a(f"v_add_u32 v{VKA}, v{T1}, v{T3}")
    a(f"v_xor_b32 v{T3}, 64, v{T3}")
    a(f"v_add_u32 v{VVA}, v{T1}, v{T3}")
    a(f"v_and_b32 v{VKN}, 31, v1")
    a(f"v_lshlrev_b32 v{VKN}, 11, v{VKN}")
    a(f"v_lshlrev_b32 v{T0}, 4, v{T0}")
    a(f"v_add_u32 v{VKN}, v{VKN}, v{T0}")
    st.t(2)
    a("s_waitcnt vmcnt(0)")
    st.t(3)
    o_flag(1)
    st(10)
    a("s_lshl_b32 s63, s54, 20")
    a("s_add_u32 s60, s60, s63")
    def poll_and_load(tag):
        a(f"s_mov_b32 s67, {SPIN}")
        a.label(f"Lo_spin{tag}")
        a(f"buffer_load_dword v{T3}, v{T2}, s[{WS}:{WS+3}], 0 offen sc1")
        a("s_waitcnt vmcnt(0)")
        a(f"v_cmp_eq_u32 vcc, s{NONCE}, v{T3}")
        a("s_nop 4")
        a("s_cmp_eq_u64 vcc, -1")
        a(f"s_cbranch_scc1 Lo_got{tag}")
        a("s_sleep 1")
        a("s_sub_u32 s67, s67, 1")
        a("s_cmp_lg_u32 s67, 0")
        a(f"s_cbranch_scc1 Lo_spin{tag}")
        a.label(f"Lo_got{tag}")
        for hh in range(16):
            a(f"s_add_u32 s64, s60, {hh*65536}")
            a(f"buffer_load_dwordx4 {vr(OF+4*hh,4)}, v{LIN}, s[{WS}:{WS+3}], s64 offen sc1")
    poll_and_load("A")
    st.t(4)
    a("s_barrier")
    st.t(5)
    def rd(hh, buf):
        for ct, reg in ((0, VKA), (1, VVA)):
            a(f"ds_read_b64_tr_b16 {vr(WF2+8*buf+4*ct,2)}, v{reg} offset:{hh*2048}")
            a(f"ds_read_b64_tr_b16 {vr(WF2+8*buf+4*ct+2,2)}, v{reg} offset:{hh*2048+1024}")
    rd(0, 0)
    for hh in range(16):
        buf = hh % 2
        if hh < 15:
            rd(hh+1, buf ^ 1)
            a(f"s_waitcnt vmcnt({15-hh}) lgkmcnt(4)")
        else:
            a("s_waitcnt vmcnt(0) lgkmcnt(0)")
        for ct in range(2):
            acc = ACC2 + 16*ct
            mfma(a, acc, WF2+8*buf+4*ct, OF+4*hh, "0" if hh == 0 else acc)
    st.t(6)
    a("s_lshl_b32 s64, s3, 12")
    a(f"s_add_u32 s64, s64, {BKV}")
    a(f"v_add_u32 v{T0}, s64, v{LIN}")
    a("s_xor_b32 s65, s3, 2")
    a("s_lshl_b32 s65, s65, 12")
    a(f"s_add_u32 s65, s65, {BKV}")
    a(f"v_add_u32 v{T1}, s65, v{LIN}")
    a("s_nop 15")
    a("s_cmp_eq_u32 s54, 0")
    a("s_cbranch_scc0 Lo_send0")
    for r in range(4):
        a(f"ds_write_b128 v{T0}, {vr(ACC2+16+4*r,4)} offset:{r*1024}")
    a("s_branch Lo_sent")
    a.label("Lo_send0")
    for r in range(4):
        a(f"ds_write_b128 v{T0}, {vr(ACC2+4*r,4)} offset:{r*1024}")
    for r in range(16):
        a(f"v_mov_b32 v{ACC2+r}, v{ACC2+16+r}")
    a.label("Lo_sent")
    a("s_waitcnt lgkmcnt(0)")
    a("s_barrier")
    st.t(7)
    for r in range(4):
        a(f"ds_read_b128 {vr(OF+4*r,4)}, v{T1} offset:{r*1024}")
    a("s_lshl_b32 s64, s59, 16")
    a("s_lshl_b32 s65, s52, 10")
    a("s_add_u32 s64, s64, s65")
    a("s_lshl_b32 s65, s39, 7")
    a("s_add_u32 s64, s64, s65")
    a("s_lshl_b32 s65, s54, 6")
    a("s_add_u32 s64, s64, s65")
    a("s_waitcnt lgkmcnt(0)")
    for r in range(16):
        a(f"v_add_f32 v{ACC2+r}, v{ACC2+r}, v{OF+r}")
    for pr in range(2):
        b = ACC2 + 8*pr
        pk = WF2 + 4*pr
        for r in range(4):
            a(f"v_cvt_pk_bf16_f32 v{pk+r}, v{b+2*r}, v{b+2*r+1}")
        a("s_nop 1")
        a(f"v_permlane32_swap_b32 v{pk}, v{pk+2}")
        a(f"v_permlane32_swap_b32 v{pk+1}, v{pk+3}")
        a("s_nop 1")
        a(f"buffer_store_dwordx4 {vr(pk,4)}, v{VKN}, s[{OUT}:{OUT+3}], s64 offen offset:{pr*32} {os.environ.get('OUTF','')}")
    st.t(8)
    if st.ft: a("s_waitcnt vmcnt(0)")
    st.t(9); st.t(10)
    st(11)
    st.p(11)
    st.flush(8, 12)
    a.label("Lfa_end")
    a("s_endpgm")

def b_loads(a, LIN, QBL):
    a("s_sub_u32 s51, s3, 4")
    a("s_lshl_b32 s51, s51, 10")
    a(f"s_lshl_b32 s50, s{S_QB}, 14")
    a("s_add_u32 s50, s50, s51")
    a("s_sub_u32 s50, s50, 16384")
    for u in range(8):
        a(f"s_add_u32 s54, s50, {u*4096}")
        a("s_max_i32 s54, s54, 0")
        a("s_add_u32 s54, s54, s36")
        a("s_add_u32 s54, s54, 65536")
        a(f"s_add_u32 m0, s51, {BKV + u*4096}")
        a(f"buffer_load_dwordx4 v{LIN}, s[{WS}:{WS+3}], s54 offen sc1 lds")
    a(f"s_lshl_b32 s50, s{S_QB}, 13")
    a("s_add_u32 s50, s50, s36")
    a("s_add_u32 s50, s50, s51")
    for u in range(2):
        a(f"s_add_u32 m0, s51, {QBL + u*4096}")
        a(f"s_add_u32 s54, s50, {u*4096}")
        a(f"buffer_load_dwordx4 v{LIN}, s[{WS}:{WS+3}], s54 offen sc1 lds")

def gen_oproj(a):
    a.raw(".p2align 8")
    a.raw(".type oproj_kernel,@function")
    a.label("oproj_kernel")
    a("s_cmp_ge_u32 s2, 256")
    a("s_cbranch_scc1 Lop_end")
    st = Stamper(a, "oproj", 1, "s20")
    st()
    a("s_load_dwordx2 s[4:5], s[0:1], 16")
    a("s_load_dwordx2 s[26:27], s[0:1], 40")
    a("s_load_dwordx2 s[28:29], s[0:1], 48")
    a("s_load_dwordx2 s[30:31], s[0:1], 64")
    a("s_and_b32 s32, s2, 7")
    a("s_lshr_b32 s33, s2, 3")
    a("s_lshr_b32 s23, s32, 2")
    a("s_and_b32 s34, s32, 3")
    a("s_lshl_b32 s34, s34, 2")
    a("s_and_b32 s35, s33, 3")
    a("s_add_u32 s24, s34, s35")
    a("s_lshr_b32 s25, s33, 2")
    a("v_and_b32 v1, 63, v0")
    a("v_lshrrev_b32 v2, 6, v0")
    a("s_nop 0")
    a("v_readfirstlane_b32 s20, v2")
    a("v_lshrrev_b32 v2, 3, v1")
    a("v_lshlrev_b32 v2, 10, v2")
    a("v_bfe_u32 v3, v1, 4, 1")
    a("v_lshlrev_b32 v3, 2, v3")
    a("v_and_b32 v5, 7, v1")
    a("v_xor_b32 v3, v3, v5")
    a("v_lshlrev_b32 v3, 4, v3")
    a("v_add_u32 v4, v2, v3")
    a("v_lshlrev_b32 v5, 4, v1")
    a("s_waitcnt lgkmcnt(0)")
    a("s_cmp_eq_u32 s23, 0")
    a("s_cselect_b32 s4, s4, s26")
    a("s_cselect_b32 s5, s5, s27")
    srd(a, 8, 4, 5, 512*1024)
    a(f"s_mul_i32 s36, s23, {O_PROB}")
    a(f"s_add_u32 s36, s36, {O_BASE}")
    a("s_add_u32 s30, s30, s36")
    a("s_addc_u32 s31, s31, 0")
    srd(a, 12, 30, 31, O_PROB)
    a("s_lshl_b32 s40, s20, 13")
    a("s_lshl_b32 s36, s25, 7")
    a("s_add_u32 s40, s40, s36")
    a("s_lshl_b32 s41, s20, 10")
    OF = 64
    a("s_lshl_b32 s42, s24, 2")
    a("s_add_u32 s42, s42, s20")
    a("s_lshl_b32 s43, s42, 10")
    a("s_lshl_b32 s49, s25, 2")
    a("s_and_b32 s47, s24, 3")
    a("s_lshl_b32 s47, s47, 3")
    a("s_add_u32 s49, s49, s47")
    a("s_lshl_b32 s46, s49, 4")
    a("s_lshl_b32 s47, s20, 3")
    a("s_add_u32 s46, s46, s47")
    a("s_lshl_b32 s48, s25, 7")
    def wdma(u):
        a(f"s_add_u32 m0, s41, {u*4096}")
        a(f"s_add_u32 s44, s46, {u*32}")
        a("s_and_b32 s44, s44, 511")
        a("s_lshl_b32 s44, s44, 10")
        a("s_add_u32 s44, s44, s48")
        a("buffer_load_dwordx4 v4, s[8:11], s44 offen lds")
    def oload(H):
        a(f"s_add_u32 s44, s49, {H}")
        a("s_and_b32 s44, s44, 31")
        a("s_lshl_b32 s44, s44, 16")
        a("s_add_u32 s44, s44, s43")
        a(f"buffer_load_dwordx4 {vr(OF+4*H,4)}, v5, s[12:15], s44 offen")
    for q in range(4):
        for u in range(4): wdma(4*q+u)
        for H in range(8): oload(8*q+H)
    srd(a, 16, 28, 29, 2048*2048)
    a("v_lshrrev_b32 v2, 5, v1")
    a("v_lshlrev_b32 v3, 2, v2")
    a("v_bfe_u32 v8, v1, 2, 2")
    a("v_add_u32 v3, v3, v8")
    a("v_lshlrev_b32 v3, 7, v3")
    a("v_bfe_u32 v8, v1, 4, 1")
    a("v_lshlrev_b32 v8, 5, v8")
    a("v_add_u32 v3, v3, v8")
    a("v_and_b32 v8, 3, v1")
    a("v_lshlrev_b32 v8, 3, v8")
    a("v_add_u32 v3, v3, v8")
    a("v_bfe_u32 v8, v1, 3, 1")
    a("v_lshlrev_b32 v8, 6, v8")
    a("v_add_u32 v6, v3, v8")
    a("v_xor_b32 v8, 64, v8")
    a("v_add_u32 v7, v3, v8")
    a("v_and_b32 v8, 31, v1")
    a("v_lshlrev_b32 v8, 11, v8")
    a("v_lshlrev_b32 v9, 4, v2")
    a("v_add_u32 v8, v8, v9")
    ACC = 16
    st()
    WF = [48, 56]
    def rd(H, buf):
        for ct in range(2):
            a(f"ds_read_b64_tr_b16 {vr(WF[buf]+4*ct,2)}, v{6+ct} offset:{H*2048}")
            a(f"ds_read_b64_tr_b16 {vr(WF[buf]+4*ct+2,2)}, v{6+ct} offset:{H*2048+1024}")
    for q in range(4):
        a(f"s_waitcnt vmcnt({8 + 12*(3-q)})")
        a("s_barrier")
        rd(8*q, 0)
        for hh in range(8):
            H = 8*q + hh
            buf = hh % 2
            if hh < 7:
                rd(H+1, buf ^ 1)
                a(f"s_waitcnt vmcnt({7-hh + 12*(3-q)}) lgkmcnt(4)")
            else:
                a(f"s_waitcnt vmcnt({12*(3-q)}) lgkmcnt(0)")
            for ct in range(2):
                acc = ACC+16*ct
                mfma(a, acc, WF[buf]+4*ct, OF+4*H, "0" if H == 0 else acc)
    a("s_nop 15")
    st()
    a("s_lshl_b32 s44, s42, 16")
    a("s_lshl_b32 s45, s23, 10")
    a("s_add_u32 s44, s44, s45")
    a("s_lshl_b32 s45, s25, 7")
    a("s_add_u32 s44, s44, s45")
    for ct in range(2):
        for pr in range(2):
            b = ACC + 16*ct + 8*pr
            pk = 48 + (ct*2+pr)*4
            for r in range(4):
                a(f"v_cvt_pk_bf16_f32 v{pk+r}, v{b+2*r}, v{b+2*r+1}")
            a("s_nop 1")
            a(f"v_permlane32_swap_b32 v{pk}, v{pk+2}")
            a(f"v_permlane32_swap_b32 v{pk+1}, v{pk+3}")
            a("s_nop 1")
            a(f"buffer_store_dwordx4 {vr(pk,4)}, v8, s[16:19], s44 offen offset:{ct*64+pr*32}")
    st()
    st.flush(4)
    a.label("Lop_end")
    a("s_endpgm")

def kd(name, vgpr, sgpr=102):
    acc = (vgpr + 3)//4*4
    return f""".section .rodata,"a"
.p2align 6
.amdhsa_kernel {name}
  .amdhsa_next_free_vgpr {vgpr}
  .amdhsa_next_free_sgpr {sgpr}
  .amdhsa_accum_offset {acc}
  .amdhsa_group_segment_fixed_size 0
  .amdhsa_kernarg_size 72
  .amdhsa_user_sgpr_count 2
  .amdhsa_user_sgpr_kernarg_segment_ptr 1
  .amdhsa_system_sgpr_workgroup_id_x 1
.end_amdhsa_kernel
"""

HEADER = """; Kernarg layout for this problem (72 bytes, ptrs only, base s[0:1]):
;   offset   0: d_in[0] A_x  shape=(1, 2048, 512) dtype=bfloat16
;   offset   8: d_in[1] A_wqkv  shape=(512, 1536) dtype=bfloat16
;   offset  16: d_in[2] A_wo  shape=(512, 512) dtype=bfloat16
;   offset  24: d_in[3] B_x  shape=(1, 2048, 512) dtype=bfloat16
;   offset  32: d_in[4] B_wqkv  shape=(512, 1536) dtype=bfloat16
;   offset  40: d_in[5] B_wo  shape=(512, 512) dtype=bfloat16
;   offset  48: d_out     shape=(1, 2048, 1024) dtype=bfloat16
;   offset  56: d_debug   256 bytes
;   offset  64: d_ws      268435456 bytes workspace
; @launch grid=(256,1,1) block=(512,1,1) lds=163840
.amdgcn_target "amdgcn-amd-amdhsa--gfx950"
.text
.globl concat_heads__softmax_full_mha__sliding_block__prompt_kernel
"""

def main(path):
    a = Asm()
    gen_fused(a)
    txt = HEADER + a.text() + kd("concat_heads__softmax_full_mha__sliding_block__prompt_kernel", 256)
    open(path, "w").write(txt)

if __name__ == "__main__":
    main(sys.argv[1] if len(sys.argv) > 1 else f"cdna_kernels/{NAME}.s")
```

```python
import sys, os, struct

NAME = "concat_heads__softmax_full_mha__sliding_block__prompt"
STAMPS = os.environ.get("STAMPS", "")

class Asm:
    def __init__(self): self.lines = []
    def __call__(self, s): self.lines.append("  " + s)
    def label(self, s): self.lines.append(s + ":")
    def raw(self, s): self.lines.append(s)
    def text(self): return "\n".join(self.lines) + "\n"

def vr(b, n=1): return f"v{b}" if n == 1 else f"v[{b}:{b+n-1}]"
def f32bits(x): return struct.unpack("<I", struct.pack("<f", x))[0]

HEAD_STRIDE = 196608
PROB_STRIDE = 32 * HEAD_STRIDE
O_BASE = 2 * PROB_STRIDE
O_PROB = 32 * 65536
F_BASE = 16 << 20
WS_SIZE = 17 << 20
QSCALE = 0.25 * 1.4426950408889634
SPIN = 1 << 16

def srd(a, d, lo, hi, nrec):
    a(f"s_mov_b32 s{d}, s{lo}")
    a(f"s_and_b32 s{d+1}, s{hi}, 0xffff")
    a(f"s_mov_b32 s{d+2}, {nrec}")
    a(f"s_mov_b32 s{d+3}, 0x00020000")

class Stamper:
    def __init__(self, a, kname, kidx, wavereg, base=76):
        self.a=a; self.on=(STAMPS==kname or (STAMPS in ("fp","fs","fl","ft") and kname=="fa")); self.fp=(STAMPS in ("fp","fs","fl","ft")); self.ft=(STAMPS=="ft"); self.fs=(STAMPS=="fs"); self.fl=(STAMPS=="fl"); self.rt=(STAMPS=="rt"); self.n=0; self.base=base; self.wavereg=wavereg; self.kidx=kidx
        if self.rt:
            a("s_memrealtime s[76:77]"); a("s_memtime s[78:79]")
    def p(self, idx):
        if self.fp and ((not self.fs and not self.fl and not self.ft) or idx==11): self._st(idx)
    def t(self, idx):
        if self.ft: self._st(idx)
    def l(self, idx):
        if self.fl: self._st(idx)
    def ldyn(self, base, uid):
        if not self.fl: return
        a=self.a
        for j in range(4):
            a(f"s_cmp_eq_u32 s38, {j}")
            a(f"s_cbranch_scc0 Lst{uid}_{j}")
            self._st(base+j)
            a.label(f"Lst{uid}_{j}")
    def f(self, idx):
        if self.fs: self._st(idx)
    def __call__(self, idx=None):
        if STAMPS == "dbg" and self.kidx == 0:
            m = {0:0, 2:1, 5:2, 6:3, 9:4, 10:5, 11:6}
            if idx in m:
                self.a(f"s_memrealtime s[{76+2*m[idx]}:{77+2*m[idx]}]")
                self.a("s_waitcnt lgkmcnt(0)")
            return
        if not self.on: return
        if self.fp and idx not in (0,): return
        self._st(idx)
    def _st(self, idx=None):
        if idx is not None: self.n = idx
        assert self.base+2*self.n+1 < 102
        self.a(f"s_memtime s[{self.base+2*self.n}:{self.base+2*self.n+1}]")
        self.a("s_waitcnt lgkmcnt(0)")
        self.n+=1
    def flush(self, nw, n=None):
        if STAMPS == "dbg":
            a=self.a
            a("s_cmp_eq_u32 s3, 4"); a("s_cbranch_scc0 Ldbg_skip")
            a("s_cmp_eq_u32 s2, 0"); a("s_cselect_b32 s6, 4, 0")
            a("s_cmp_eq_u32 s2, 131"); a("s_cselect_b32 s6, 32, s6")
            a("s_cmp_eq_u32 s6, 0"); a("s_cbranch_scc1 Ldbg_skip")
            a("v_mov_b32 v1, s6")
            for i in range(1,7):
                a(f"s_sub_u32 s7, s{76+2*i}, s76")
                a("v_mov_b32 v2, s7")
                a(f"buffer_store_dword v2, v1, s[{DBG}:{DBG+3}], 0 offen offset:{4*(i-1)}")
            a("v_mov_b32 v2, s76")
            a(f"buffer_store_dword v2, v1, s[{DBG}:{DBG+3}], 0 offen offset:24")
            a("s_waitcnt vmcnt(0)")
            a.label("Ldbg_skip")
            return
        if not (self.on or self.rt): return
        a=self.a
        n = n or self.n
        if self.rt:
            a("s_waitcnt vmcnt(0)"); a("s_memrealtime s[80:81]"); a("s_memtime s[82:83]"); n=4
        a("s_load_dwordx2 s[4:5], s[0:1], 64")
        a("s_waitcnt vmcnt(0) lgkmcnt(0)")
        a(f"s_add_u32 s4, s4, {(64<<20) + (self.kidx<<20 if self.rt else 0)}")
        a("s_addc_u32 s5, s5, 0")
        srd(a, 8, 4, 5, 1<<20)
        a(f"s_mul_i32 s6, s2, {nw}")
        a(f"s_add_u32 s6, s6, {self.wavereg}")
        a("s_lshl_b32 s6, s6, 6")
        a("v_mov_b32 v1, s6")
        for i in range(n):
            a(f"v_mov_b32 v2, s{self.base+2*i}")
            a(f"buffer_store_dword v2, v1, s[8:11], 0 offen offset:{4*i}")
        a("s_waitcnt vmcnt(0)")

def mfma(a, d, x, y, c):
    cs = c if isinstance(c, str) else vr(c, 16)
    a(f"v_mfma_f32_32x32x16_bf16 {vr(d,16)}, {vr(x,4)}, {vr(y,4)}, {cs}")

WS, XB, WB, XA, WA, DBG = 4, 8, 12, 16, 20, 24
NONCE = 28
S_H, S_QB, S_G, S_TB = 30, 31, 32, 33
SLOT = 32768
BKV = 131072

def gen_fused(a):
    QA = [4, 8]; QB = 12
    OACC = [16, 32]
    CNEG = [48, 64]
    SB = [[80, 96], [112, 128]]
    PP = [144, 152]
    VF = [160, 168]
    KF = 176
    MHI, MLO = 212, 228
    VKA, VVA, TMP, LIN, MX, MX1 = 244, 245, 246, 247, 248, 249
    T0, T1, T2, T3 = 250, 251, 252, 253
    VKN, VVN = 254, 255
    VLO = 3
    XCH = 98304
    QBL = 122880
    FA, FB = F_BASE, F_BASE + 65536
    PUB = int(os.environ.get("PUB", "9"))
    FO = F_BASE + 131072
    WOA, WOB, OUT = 8, 12, 16

    a.raw(".p2align 8")
    a.raw(".type concat_heads__softmax_full_mha__sliding_block__prompt_kernel,@function")
    a.label("concat_heads__softmax_full_mha__sliding_block__prompt_kernel")
    a("s_cmp_ge_u32 s2, 256")
    a("s_cbranch_scc1 Lfa_end")
    st = Stamper(a, "fa", 0, "s3")
    st(0)
    a("s_load_dwordx4 s[36:39], s[0:1], 0")
    a("s_load_dwordx2 s[34:35], s[0:1], 24")
    a("s_load_dwordx2 s[42:43], s[0:1], 32")
    a("s_load_dwordx4 s[44:47], s[0:1], 56")
    a("v_and_b32 v1, 63, v0")
    a("v_lshrrev_b32 v2, 6, v0")
    a(f"s_and_b32 s{S_H}, s2, 31")
    a("v_readfirstlane_b32 s3, v2")
    a(f"s_lshr_b32 s{S_QB}, s2, 5")
    a("s_lshr_b32 s48, s2, 3")
    a("s_and_b32 s49, s2, 1")
    a("s_lshl_b32 s49, s49, 2")
    a("s_and_b32 s50, s48, 3")
    a(f"s_add_u32 s{S_G}, s49, s50")
    a("s_bfe_u32 s49, s2, 0x20001")
    a("s_lshl_b32 s49, s49, 3")
    a("s_lshr_b32 s50, s48, 2")
    a(f"s_add_u32 s{S_TB}, s49, s50")
    a(f"s_and_b32 s29, s{S_G}, 3")
    a("s_lshl_b32 s29, s29, 1")
    a(f"s_add_u32 s29, s29, s{S_TB}")
    a("s_and_b32 s29, s29, 7")
    a("s_cmp_lt_u32 s3, 4")
    a("s_cbranch_scc1 Lfa_compute")

    def early_setup():
        a(f"v_lshlrev_b32 v{LIN}, 4, v1")
        a(f"v_lshrrev_b32 v{T0}, 5, v1")
        a(f"v_lshlrev_b32 v{VLO}, 8, v{T0}")
        a(f"v_and_b32 v{T1}, 15, v1")
        a(f"v_lshlrev_b32 v{T1}, 4, v{T1}")
        a(f"v_add_u32 v{VLO}, v{VLO}, v{T1}")
        a(f"v_add_u32 v{VLO}, 1024, v{VLO}")
        a(f"v_and_b32 v{T1}, 27, v1")
        a(f"v_cmp_eq_u32 vcc, 16, v{T1}")
        a(f"v_mov_b32 v{T2}, 0x3f803f80")
        a(f"v_mov_b32 v{T3}, 0")
        a("s_nop 0")
        for r in range(16):
            a(f"v_cndmask_b32 v{VF[0]+r}, v{T3}, v{T2}, vcc")
        a(f"v_and_b32 v{T1}, 31, v1")
        a(f"v_lshlrev_b32 v{T0}, 2, v{T0}")
        a(f"v_sub_u32 v{T1}, v{T1}, v{T0}")
        a(f"v_mov_b32 v{T2}, 0xff800000")
        for r in range(16):
            cr = 8*(r//4) + r % 4
            a(f"v_cmp_le_i32 s[{62+2*(r%4)}:{63+2*(r%4)}], {cr}, v{T1}")
            if r % 4 == 3:
                a("s_nop 1")
                for q in range(r-3, r+1):
                    a(f"v_cndmask_b32 v{MHI+q}, v{T2}, v{T3}, s[{62+2*(q%4)}:{63+2*(q%4)}]")
                    a(f"v_cndmask_b32 v{MLO+q}, v{T3}, v{T2}, s[{62+2*(q%4)}:{63+2*(q%4)}]")
        a("s_lshr_b32 s70, s3, 2")
        a("s_lshl_b32 s71, s70, 14")
        a(f"s_add_u32 s72, s71, {BKV}")
        a(f"v_add_u32 v{VKN}, s71, v{LIN}")
        a(f"v_add_u32 v{VVN}, s71, v{VLO}")
        a(f"v_add_u32 v{VKA}, s72, v{LIN}")
        a(f"v_add_u32 v{VVA}, s72, v{VLO}")
        a("s_mov_b32 s73, 0")
        a("s_mov_b32 s40, 0x0000ffff")
        a("s_mov_b32 s41, 0x0000ffff")

    a("s_sub_u32 s48, s3, 4")
    a("v_lshrrev_b32 v2, 3, v1")
    a("v_lshlrev_b32 v2, 10, v2")
    a("v_and_b32 v3, 7, v1")
    a("v_lshrrev_b32 v6, 4, v1")
    a("v_xor_b32 v3, v3, v6")
    a("v_lshlrev_b32 v3, 4, v3")
    a("v_add_u32 v4, v2, v3")
    a("v_xor_b32 v5, 64, v4")
    a(f"s_lshl_b32 s50, s{S_TB}, 6")
    a("s_lshl_b32 s49, s48, 4")
    a("s_add_u32 s50, s50, s49")
    a("s_lshl_b32 s50, s50, 10")
    a("s_lshl_b32 s51, s48, 11")
    a("s_mul_i32 s52, s48, 49152")
    a(f"s_lshl_b32 s49, s{S_G}, 7")
    a("s_add_u32 s52, s52, s49")
    a("s_mul_i32 s53, s48, 6144")
    a("s_add_u32 s53, s53, 8192")
    a("s_movk_i32 s49, 171")
    a("s_movk_i32 s55, 3072")
    for v in range(3):
        a(f"v_add_u32 v2, {64*v}, v1")
        a("v_mul_lo_u32 v3, v2, s49")
        a("v_lshrrev_b32 v3, 12, v3")
        a("v_mul_u32_u24 v9, 24, v3")
        a("v_sub_u32 v9, v2, v9")
        a("v_bfe_u32 v10, v3, 1, 1")
        a("v_lshlrev_b32 v10, 2, v10")
        a("v_xor_b32 v9, v9, v10")
        a("v_mul_lo_u32 v3, v3, s55")
        a("v_lshrrev_b32 v10, 3, v9")
        a("v_lshlrev_b32 v10, 10, v10")
        a("v_add_u32 v3, v3, v10")
        a("v_and_b32 v9, 7, v9")
        a("v_lshlrev_b32 v9, 4, v9")
        a(f"v_add_u32 v{6+v}, v3, v9")
    a("s_waitcnt lgkmcnt(0)")
    srd(a, XA, 36, 37, 2048*1024)
    srd(a, WA, 38, 39, 512*3072)
    def dma_chunk(i, ldsbase=None):
        c = i % 8
        base = (i % 4)*SLOT if ldsbase is None else ldsbase
        xs, wsr = (XA, WA) if i < 8 else (XB, WB)
        a(f"s_add_u32 s58, s29, {c}")
        a("s_and_b32 s58, s58, 7")
        a("s_lshl_b32 s59, s58, 7")
        a("s_add_u32 s59, s59, s50")
        a(f"s_mul_i32 s58, s58, {64*3072}")
        a("s_add_u32 s58, s58, s52")
        for u in range(2):
            a(f"s_add_u32 m0, s51, {base + u*1024}")
            a(f"s_add_u32 s54, s59, {u*8192}")
            a(f"buffer_load_dwordx4 v{4 + u}, s[{xs}:{xs+3}], s54 offen lds")
        for u in range(6):
            up, v = divmod(u, 3)
            a(f"s_add_u32 m0, s53, {base + u*1024}")
            a(f"s_add_u32 s54, s58, {8*up*3072}")
            a(f"buffer_load_dwordx4 v{6 + v}, s[{wsr}:{wsr+3}], s54 offen lds")
    dma_chunk(0)
    dma_chunk(1)
    srd(a, XB, 34, 35, 2048*1024)
    srd(a, WB, 42, 43, 512*3072)
    srd(a, WS, 46, 47, WS_SIZE)
    srd(a, DBG, 44, 45, 256)
    a("s_cmp_eq_u32 s2, 0")
    a("s_cselect_b32 s49, s48, 1")
    a("s_cmp_eq_u32 s49, 0")
    a("s_cbranch_scc0 Lfa_nononce")
    a("s_memrealtime s[56:57]")
    a("s_waitcnt lgkmcnt(0)")
    a("s_or_b32 s56, s56, 1")
    a("v_mov_b32 v10, s56")
    a("v_mov_b32 v11, 0")
    a(f"buffer_store_dword v10, v11, s[{DBG}:{DBG+3}], 0 offen sc1")
    a.label("Lfa_nononce")
    NCHK = 3
    C8AT = int(os.environ.get("C8AT", "-1"))
    if C8AT < 0:
        dma_chunk(8, BKV)
    early_setup()
    a(f"s_lshr_b32 s56, s{S_H}, 2")
    a("s_lshl_b32 s56, s56, 12")
    a(f"s_add_u32 s56, s56, {FA}")
    a("v_and_b32 v12, 31, v1")
    a("v_lshlrev_b32 v12, 7, v12")
    a("v_add_u32 v12, s56, v12")
    a(f"s_lshl_b32 s56, s{S_G}, 5")
    a(f"s_add_u32 s56, s56, s{S_TB}")
    a("s_lshl_b32 s74, s56, 7")
    a("v_and_b32 v2, 7, v1")
    a(f"s_lshl_b32 s49, s{S_QB}, 2")
    a("s_sub_u32 s49, s49, 4")
    a("v_add_u32 v2, s49, v2")
    a("v_max_i32 v2, 0, v2")
    a(f"s_lshr_b32 s49, s{S_H}, 2")
    a("s_lshl_b32 s49, s49, 5")
    a("v_add_u32 v2, s49, v2")
    a("v_lshlrev_b32 v2, 7, v2")
    a(f"v_add_u32 v2, {FB}, v2")
    a("v_mov_b32 v11, 0")
    st(1)
    def write_flag(base):
        a(f"s_add_u32 s56, s74, {base}")
        a("v_mov_b32 v14, s56")
        a(f"v_mov_b32 v15, s{NONCE}")
        a("s_mov_b64 exec, 1")
        a(f"buffer_store_dword v15, v14, s[{WS}:{WS+3}], 0 offen sc1")
        a("s_mov_b64 exec, -1")
    def a_loads():
        a(f"s_mul_i32 s64, s{S_H}, {HEAD_STRIDE}")
        a("s_lshl_b32 s65, s48, 10")
        a("s_add_u32 s64, s64, s65")
        for u in range(8):
            a(f"s_add_u32 m0, s65, {BKV + (u&3)*4096 + (u>>2)*16384}")
            a(f"s_add_u32 s66, s64, {65536 + (u&3)*4096 + (u>>2)*65536}")
            a(f"buffer_load_dwordx4 v{LIN}, s[{WS}:{WS+3}], s66 offen sc1 lds")
        a(f"s_lshl_b32 s67, s{S_QB}, 13")
        a("s_add_u32 s67, s67, s64")
        for u in range(2):
            a(f"s_add_u32 m0, s65, {32768 + u*4096}")
            a(f"s_add_u32 s66, s67, {u*4096}")
            a(f"buffer_load_dwordx4 v{LIN}, s[{WS}:{WS+3}], s66 offen sc1 lds")
        for u in range(8):
            a(f"s_add_u32 m0, s65, {(u&3)*4096 + (u>>2)*16384}")
            a(f"s_add_u32 s66, s64, {65536 + 16384 + (u&3)*4096 + (u>>2)*65536}")
            a(f"buffer_load_dwordx4 v{LIN}, s[{WS}:{WS+3}], s66 offen sc1 lds")
    order = ["c0"]*8 + ["c1"]*8
    if C8AT < 0: order += ["c8"]*8
    waits = {}
    for i in range(16):
        last = max(k for k, t in enumerate(order) if t == f"c{i}")
        if i == NCHK: last = max(last, max(k for k, t in enumerate(order) if t == "nonce"))
        waits[i] = len(order) - 1 - last
        if i == 0: order += ["nonce"]
        if C8AT == i: order += ["c8"]*8
        if i + 2 <= 15 and i + 2 != 8: order += [f"c{i+2}"]*8
        if i == 13: order += ["poll"]
    for i in range(16):
        w = waits[i]
        a(f"s_waitcnt vmcnt({w})")
        if i == NCHK:
            a(f"s_mov_b32 s55, {SPIN}")
            a.label("Lfa_nspin")
            a(f"v_readfirstlane_b32 s{NONCE}, v10")
            a(f"s_cmp_lg_u32 s{NONCE}, 0")
            a("s_cbranch_scc1 Lfa_ngot")
            a("s_sleep 1")
            a(f"buffer_load_dword v10, v11, s[{DBG}:{DBG+3}], 0 offen sc1")
            a("s_waitcnt vmcnt(0)")
            a("s_sub_u32 s55, s55, 1")
            a("s_cmp_lg_u32 s55, 0")
            a("s_cbranch_scc1 Lfa_nspin")
            a.label("Lfa_ngot")
        a("s_barrier")
        if i in (0,1,2,4,6,8,10,12,14,15): st.p({0:1,1:2,2:3,4:4,6:5,8:6,10:7,12:8,14:9,15:10}[i])
        if i == 0:
            a(f"buffer_load_dword v10, v11, s[{DBG}:{DBG+3}], 0 offen sc1")
        if C8AT == i:
            dma_chunk(8, BKV)
        if i + 2 <= 15 and i + 2 != 8:
            dma_chunk(i + 2)
        if i == PUB + 1:
            a("s_cmp_eq_u32 s48, 0")
            a("s_cbranch_scc0 Lfa_nf")
            write_flag(FA)
            a.label("Lfa_nf")
        if i == 13:
            a(f"buffer_load_dword v13, v12, s[{WS}:{WS+3}], 0 offen sc1")
    st(2)
    a(f"s_mov_b32 s55, {SPIN}")
    a.label("Lfa_aspin")
    a("s_waitcnt vmcnt(0)")
    a(f"v_cmp_eq_u32 vcc, s{NONCE}, v13")
    a("s_nop 4")
    a("s_cmp_eq_u64 vcc, -1")
    a("s_cbranch_scc1 Lfa_agot")
    a("s_sleep 1")
    a(f"buffer_load_dword v13, v12, s[{WS}:{WS+3}], 0 offen sc1")
    a("s_sub_u32 s55, s55, 1")
    a("s_cmp_lg_u32 s55, 0")
    a("s_cbranch_scc1 Lfa_aspin")
    a("s_waitcnt vmcnt(0)")
    a.label("Lfa_agot")
    a_loads()
    st(3)
    a("s_branch Lfa_attn")

    a.label("Lfa_compute")
    a("s_lshr_b32 s48, s3, 1")
    a("s_and_b32 s49, s3, 1")
    a("v_and_b32 v2, 31, v1")
    a("v_lshrrev_b32 v3, 5, v1")
    a("v_bfe_u32 v9, v2, 1, 3")
    a("v_xor_b32 v9, v9, v3")
    a("s_lshl_b32 s50, s48, 12")
    a("v_lshlrev_b32 v18, 7, v2")
    a("v_add_u32 v18, s50, v18")
    for s in range(4):
        a(f"v_xor_b32 v19, {2*s}, v9")
        a("v_lshlrev_b32 v19, 4, v19")
        a(f"v_add_u32 v{10+s}, v18, v19")
        a(f"v_add_u32 v{14+s}, 0x10000, v{10+s}")
    a("v_lshlrev_b32 v24, 3, v3")
    a("v_bfe_u32 v25, v1, 2, 2")
    a("v_add_u32 v24, v24, v25")
    a("s_movk_i32 s50, 384")
    a("v_mul_lo_u32 v24, v24, s50")
    a("v_bfe_u32 v25, v1, 4, 1")
    a("v_lshlrev_b32 v25, 5, v25")
    a("v_add_u32 v24, v24, v25")
    a("v_and_b32 v25, 3, v1")
    a("v_lshlrev_b32 v25, 3, v25")
    a("v_add_u32 v24, v24, v25")
    a("v_add_u32 v24, 8192, v24")
    a("v_bfe_u32 v25, v1, 3, 1")
    a("s_mul_i32 s50, s49, 3")
    for ct in range(3):
        a(f"s_add_u32 s51, s50, {ct}")
        a("v_xor_b32 v26, s51, v25")
        a("v_lshlrev_b32 v26, 6, v26")
        a(f"v_add_u32 v{18+ct}, v24, v26")
        a(f"v_add_u32 v{21+ct}, 0x10000, v{18+ct}")
    a("v_lshlrev_b32 v24, 4, v1")
    a("v_bfe_u32 v25, v1, 4, 1")
    a(f"s_mov_b32 s50, {HEAD_STRIDE}")
    a("v_mul_lo_u32 v25, v25, s50")
    a("v_lshlrev_b32 v26, 8, v3")
    a("v_add_u32 v25, v25, v26")
    a("v_and_b32 v26, 15, v1")
    a("v_lshlrev_b32 v26, 4, v26")
    a("v_add_u32 v25, v25, v26")
    a(f"s_mul_i32 s52, s{S_G}, {4*HEAD_STRIDE}")
    a(f"s_lshl_b32 s53, s{S_TB}, 1")
    a("s_add_u32 s53, s53, s48")
    a("s_lshl_b32 s54, s53, 11")
    a("s_add_u32 s54, s54, 65536")
    a("s_lshl_b32 s53, s53, 10")
    a(f"s_mov_b32 s55, {f32bits(QSCALE):#x}")
    ACC = 64
    for r in range(48): a(f"v_mov_b32 v{ACC+r}, 0")
    early_setup()
    a("s_waitcnt lgkmcnt(0)")
    srd(a, WS, 46, 47, WS_SIZE)
    if os.environ.get("TLBW", "0") == "1":
        a("s_lshr_b32 s80, s2, 3")
        a("s_cmp_eq_u32 s80, 0")
        a("s_cbranch_scc0 Lfa_ntlb")
        a("v_lshlrev_b32 v129, 20, v1")
        a("s_cmp_eq_u32 s3, 0")
        a("s_cbranch_scc0 Lfa_tlb1")
        a(f"buffer_load_dword v131, v129, s[{WS}:{WS+3}], 0 offen")
        a("s_branch Lfa_ntlb")
        a.label("Lfa_tlb1")
        a("s_load_dwordx2 s[80:81], s[0:1], 48")
        a("s_load_dwordx2 s[82:83], s[0:1], 16")
        a("s_load_dwordx2 s[84:85], s[0:1], 40")
        a("s_waitcnt lgkmcnt(0)")
        a("s_cmp_eq_u32 s3, 1")
        a("s_cselect_b32 s86, s80, s82")
        a("s_cselect_b32 s87, s81, s83")
        a("s_cmp_eq_u32 s3, 3")
        a("s_cselect_b32 s86, s84, s86")
        a("s_cselect_b32 s87, s85, s87")
        a("s_mov_b32 s88, s86")
        a("s_and_b32 s89, s87, 0xffff")
        a("s_cmp_eq_u32 s3, 1")
        a(f"s_mov_b32 s90, {512*1024}")
        a(f"s_cselect_b32 s90, {2048*2048}, s90")
        a("s_mov_b32 s91, 0x00020000")
        a("buffer_load_dword v131, v129, s[88:91], 0 offen")
        a.label("Lfa_ntlb")
    if os.environ.get("XTOUCH", "0") == "1":
        a("s_cmp_eq_u32 s3, 3")
        a("s_cbranch_scc0 Lfa_nxt")
        srd(a, XB, 34, 35, 2048*1024)
        a("v_lshrrev_b32 v129, 3, v1")
        a("v_lshlrev_b32 v129, 10, v129")
        a("v_and_b32 v130, 7, v1")
        a("v_lshlrev_b32 v130, 7, v130")
        a("v_add_u32 v129, v129, v130")
        a(f"s_lshl_b32 s60, s{S_TB}, 16")
        a(f"s_and_b32 s61, s{S_G}, 3")
        a("s_lshl_b32 s61, s61, 14")
        a("s_add_u32 s60, s60, s61")
        a("s_add_u32 s61, s60, 8192")
        a(f"buffer_load_dword v131, v129, s[{XB}:{XB+3}], s60 offen")
        a(f"buffer_load_dword v132, v129, s[{XB}:{XB+3}], s61 offen")
        a.label("Lfa_nxt")
    XF = [28, 32]; WF = [36, 48]; PK = 112
    def read_frags(slot, s, buf):
        xr = (10 if slot < 2 else 14) + s
        a(f"ds_read_b128 {vr(XF[buf],4)}, v{xr} offset:{(slot%2)*SLOT}")
        for ct in range(3):
            reg = (18 if slot < 2 else 21) + ct
            off = (slot % 2) * SLOT + s * 6144
            a(f"ds_read_b64_tr_b16 {vr(WF[buf]+4*ct,2)}, v{reg} offset:{off}")
            a(f"ds_read_b64_tr_b16 {vr(WF[buf]+4*ct+2,2)}, v{reg} offset:{off+1536}")
    def body(types, tag):
        L = f"Lpj{tag}"
        st(1)
        a("s_mov_b32 s57, 0")
        a.label(L + "_loop")
        for slot in range(4):
            a("s_barrier")
            if slot == 0:
                a("s_cmp_eq_u32 s57, 2")
                a(f"s_cselect_b32 s58, {BKV}, 0")
                for r in (10, 11, 12, 13, 18, 19, 20):
                    a(f"v_add_u32 v{r}, s58, v{r}")
            if slot == PUB % 4:
                a(f"s_cmp_eq_u32 s57, {PUB // 4}")
                a(f"s_cbranch_scc0 {L}_np")
                a("s_waitcnt vmcnt(0)")
                a.label(L + "_np")
            read_frags(slot, 0, 0)
            for s in range(4):
                buf = s % 2
                if s < 3:
                    read_frags(slot, s+1, buf ^ 1)
                    a("s_waitcnt lgkmcnt(7)")
                else:
                    a("s_waitcnt lgkmcnt(0)")
                for ct in range(3):
                    acc = ACC + ct*16
                    if types[ct] == 'V':
                        mfma(a, acc, XF[buf], WF[buf]+4*ct, acc)
                    else:
                        mfma(a, acc, WF[buf]+4*ct, XF[buf], acc)
            if slot == 0:
                for r in (10, 11, 12, 13, 18, 19, 20):
                    a(f"v_subrev_u32 v{r}, s58, v{r}")
        a("s_add_u32 s57, s57, 1")
        a("s_bitcmp1_b32 s57, 0")
        a(f"s_cbranch_scc1 {L}_loop")
        a("s_nop 15")
        n = 0
        for ct in range(3):
            acc = ACC + ct*16
            c = tag*3 + ct
            ty = types[ct]
            for e in range(2):
                pk = PK + (n % 4)*4; n += 1
                if ty == 'Q':
                    for r in range(8):
                        a(f"v_mul_f32 v{acc+8*e+r}, s55, v{acc+8*e+r}")
                for r in range(4):
                    a(f"v_cvt_pk_bf16_f32 v{pk+r}, v{acc+2*r+8*e}, v{acc+8*e+2*r+1}")
                if ty == 'Q':
                    a(f"s_add_u32 s59, s52, {(2*(c%2)+e)*HEAD_STRIDE}")
                    a("s_add_u32 s59, s59, s53")
                    a(f"buffer_store_dwordx4 {vr(pk,4)}, v24, s[{WS}:{WS+3}], s59 offen sc1")
                elif ty == 'K':
                    a(f"s_add_u32 s59, s52, {(2*(c%2)+e)*HEAD_STRIDE}")
                    a("s_add_u32 s59, s59, s54")
                    a(f"buffer_store_dwordx4 {vr(pk,4)}, v24, s[{WS}:{WS+3}], s59 offen sc1")
                else:
                    a(f"s_add_u32 s59, s52, {(2*(c%2))*HEAD_STRIDE + 1024 + 512*e}")
                    a("s_add_u32 s59, s59, s54")
                    a(f"buffer_store_dwordx4 {vr(pk,4)}, v25, s[{WS}:{WS+3}], s59 offen sc1")
        for r in range(48): a(f"v_mov_b32 v{ACC+r}, 0")
        a(f"s_add_u32 s52, s52, {PROB_STRIDE}")
        a("s_cmp_lt_u32 s57, 4")
        a(f"s_cbranch_scc1 {L}_loop")
        st(2); st(3)
        a("s_branch Lfa_attn")
    a("s_cmp_eq_u32 s49, 0")
    a("s_cbranch_scc0 Lfa_wn1")
    body(['Q', 'Q', 'K'], 0)
    a.label("Lfa_wn1")
    body(['K', 'V', 'V'], 1)

    a.label("Lfa_attn")
    a("s_and_b32 s64, s3, 3")
    a("s_lshl_b32 s64, s64, 11")
    a(f"s_add_u32 s64, s64, 32768")
    a(f"v_add_u32 v{T0}, s64, v{LIN}")
    a(f"v_add_u32 v{T1}, {BKV}, v{LIN}")
    a(f"s_mul_i32 s62, s{S_H}, {HEAD_STRIDE}")
    a("s_lshl_b32 s63, s3, 10")
    a("s_add_u32 s62, s62, s63")
    WOV = 0
    a("v_lshrrev_b32 v0, 3, v1")
    a("v_lshlrev_b32 v0, 10, v0")
    a(f"v_bfe_u32 v{T2}, v1, 4, 1")
    a(f"v_lshlrev_b32 v{T2}, 2, v{T2}")
    a(f"v_and_b32 v{T3}, 7, v1")
    a(f"v_xor_b32 v{T2}, v{T2}, v{T3}")
    a(f"v_lshlrev_b32 v{T2}, 4, v{T2}")
    a(f"v_add_u32 v0, v0, v{T2}")
    a(f"s_lshl_b32 s34, s{S_QB}, 3")
    a("s_add_u32 s34, s34, s3")
    a("s_min_u32 s35, s34, 8")
    a(f"s_mul_i32 s36, s{S_H}, {HEAD_STRIDE}")
    a(f"s_add_u32 s36, s36, {PROB_STRIDE}")
    a("s_load_dwordx2 s[44:45], s[0:1], 16")
    a("s_load_dwordx4 s[48:51], s[0:1], 40")
    a("s_bfe_u32 s75, s2, 0x20001")
    a("s_and_b32 s52, s2, 1")
    a("s_lshl_b32 s52, s52, 2")
    a("s_bfe_u32 s53, s2, 0x20003")
    a("s_add_u32 s39, s52, s53")
    a("s_lshl_b32 s42, s3, 13")
    a("s_lshl_b32 s52, s39, 7")
    a("s_add_u32 s42, s42, s52")
    a("s_waitcnt lgkmcnt(0)")
    srd(a, WOA, 44, 45, 512*1024)
    srd(a, WOB, 48, 49, 512*1024)
    srd(a, OUT, 50, 51, 2048*2048)
    st(4)
    st.l(1)
    a("s_waitcnt vmcnt(8)")
    a("s_barrier")
    st(5)
    st.l(2)
    a(f"ds_read_b128 {vr(QA[0],4)}, v{T0}")
    a(f"ds_read_b128 {vr(QA[1],4)}, v{T0} offset:1024")
    a(f"ds_read_b128 {vr(KF,4)}, v{T1}")
    a("s_waitcnt lgkmcnt(0)")
    mfma(a, SB[0][0], KF, QA[0], "0")
    mfma(a, SB[1][0], KF, QA[1], "0")
    a("s_cmp_eq_u32 s3, 4")
    a("s_cbranch_scc0 La_nnw")
    a(f"v_mov_b32 v{T0}, {XCH + 512}")
    a(f"v_mov_b32 v{T1}, s{NONCE}")
    a(f"ds_write_b32 v{T0}, v{T1}")
    a("s_waitcnt lgkmcnt(0)")
    a.label("La_nnw")
    a("s_barrier")
    a(f"v_mov_b32 v{T0}, {XCH + 512}")
    a(f"ds_read_b32 v{T0}, v{T0}")
    a("s_waitcnt lgkmcnt(0)")
    a(f"v_readfirstlane_b32 s{NONCE}, v{T0}")
    for q in range(2):
        for r in range(16):
            a(f"v_mov_b32 v{OACC[q]+r}, 0") if r < 6 else None
    for q, m in ((0, MX), (1, MX1)):
        s = SB[q][0]
        a(f"v_max_f32 v{m}, v{s}, v{s+1}")
        for r in range(1, 8):
            a(f"v_max3_f32 v{m}, v{s+2*r}, v{s+2*r+1}, v{m}")
    def halves_max(m, t):
        a(f"v_mov_b32 v{t}, v{m}")
        a("s_nop 1")
        a(f"v_permlane32_swap_b32 v{m}, v{t}")
        a("s_nop 1")
        a(f"v_max_f32 v{m}, v{m}, v{t}")
    def read_v(buf, areg, off):
        a("s_mov_b64 exec, s[40:41]")
        a(f"ds_read_b128 {vr(buf,4)}, v{areg} offset:{off}")
        a(f"ds_read_b128 {vr(buf+4,4)}, v{areg} offset:{off+512}")
        a("s_mov_b64 exec, -1")
    def step(cur, p, o, early, qk, pre_pv0, mid, pre_pv1, vb):
        E = lambda i: a(f"v_exp_f32 v{cur+i}, v{cur+i}")
        C = lambda j: a(f"v_cvt_pk_bf16_f32 v{p+j}, v{cur+2*j}, v{cur+2*j+1}")
        E(0); E(1)
        early()
        E(2); E(3); C(0); E(4); C(1); E(5)
        qk()
        E(6); E(7); C(2); E(8); C(3); E(9); E(10)
        pre_pv0()
        mfma(a, o, vb, p, o)
        E(11); C(4); E(12); C(5); E(13); E(14); E(15); C(6); C(7)
        mid()
        pre_pv1()
        mfma(a, o, vb+4, p+4, o)
    nop = lambda: None
    a.label("La_main")
    a(f"ds_read_b128 {vr(KF,4)}, v{VKA}")
    read_v(VF[0], VVA, 0)
    a(f"ds_read_b128 {vr(KF+4,4)}, v{VKA} offset:2048")
    halves_max(MX, TMP)
    halves_max(MX1, TMP)
    for q, m in ((0, MX), (1, MX1)):
        for r in range(16):
            a(f"v_sub_f32 v{CNEG[q]+r}, 0, v{m}")
    a("s_waitcnt lgkmcnt(3)")
    mfma(a, SB[0][0], KF, QA[0], CNEG[0])
    mfma(a, SB[1][0], KF, QA[1], CNEG[1])
    for q in range(2):
        for r in range(16):
            a(f"v_mov_b32 v{OACC[q]+r}, 0")
    U = 8
    SCHED = int(os.environ.get("SCHED", "1"))
    if SCHED == 1:
        for r in range(4): a(f"v_mov_b32 v{PP[1]+4+r}, 0")
    a("s_mov_b32 s38, 0")
    a.raw(".p2align 6")
    a.label("La_loop")
    st.ldyn(3, "a")
    def kv_dma(j):
        for u in range(4):
            a(f"s_add_u32 m0, s63, {(j-1)*32768 + (u&1)*8192 + (u>>1)*16384}")
            a(f"s_add_u32 s66, s62, {65536 + j*16384 + (u&1)*8192 + (u>>1)*65536}")
            a(f"buffer_load_dwordx4 v{LIN}, s[{WS}:{WS+3}], s66 offen sc1 lds")
    def wo_dma(srdr, half, ldsbase):
        for u in range(4):
            a(f"s_add_u32 m0, s63, {ldsbase + u*8192}")
            a(f"s_add_u32 s66, s42, {(256*half + 64*u)*1024}")
            a(f"buffer_load_dwordx4 v{WOV}, s[{srdr}:{srdr+3}], s66 offen lds")
    for n in range(U):
        vb = VF[n % 2]
        if n == 3:
            a("s_cmp_eq_u32 s38, 3")
            a("s_cselect_b32 s64, s73, 1")
            a("s_cmp_eq_u32 s64, 0")
            a("s_cbranch_scc0 La_ng0")
            wo_dma(WOA, 0, 0)
            a.label("La_ng0")
        if n == 1:
            a("s_cmp_lg_u32 s73, 0")
            a("s_cbranch_scc1 La_sd")
            a("s_cmp_eq_u32 s38, 0")
            a("s_cbranch_scc0 La_s1")
            kv_dma(2)
            a("s_branch La_sd")
            a.label("La_s1")
            a("s_cmp_eq_u32 s38, 1")
            a("s_cbranch_scc0 La_s2")
            kv_dma(3)
            a("s_branch La_sd")
            a.label("La_s2")
            a("s_cmp_lt_u32 s3, 4")
            a("s_cbranch_scc1 La_sd")
            a("s_cmp_eq_u32 s38, 2")
            a("s_cbranch_scc0 La_s3")
            a(f"buffer_load_dword v{T2}, v2, s[{WS}:{WS+3}], 0 offen sc1")
            a("s_branch La_sd")
            a.label("La_s3")
            a(f"s_mov_b32 s67, {SPIN}")
            a.label("La_bspin")
            a("s_waitcnt vmcnt(0)")
            a(f"v_cmp_eq_u32 vcc, s{NONCE}, v{T2}")
            a("s_nop 4")
            a("s_cmp_eq_u64 vcc, -1")
            a("s_cbranch_scc1 La_bgot")
            a("s_sleep 1")
            a(f"buffer_load_dword v{T2}, v2, s[{WS}:{WS+3}], 0 offen sc1")
            a("s_sub_u32 s67, s67, 1")
            a("s_cmp_lg_u32 s67, 0")
            a("s_cbranch_scc1 La_bspin")
            a("s_waitcnt vmcnt(0)")
            a.label("La_bgot")
            b_loads(a, LIN, QBL)
            a.label("La_sd")
        if n == 5:
            a("s_cmp_lg_u32 s73, 0")
            a("s_cbranch_scc1 La_nowait")
            a("s_cmp_eq_u32 s38, 3")
            a("s_cbranch_scc1 La_nowait")
            a("s_cmp_eq_u32 s38, 2")
            a("s_cbranch_scc1 La_w2")
            a("s_cmp_eq_u32 s38, 1")
            a("s_cbranch_scc1 La_w1")
            a("s_waitcnt vmcnt(0)")
            a("s_branch La_wd")
            a.label("La_w1")
            a("s_waitcnt vmcnt(4)")
            a("s_branch La_wd")
            a.label("La_w2")
            a("s_waitcnt vmcnt(1)")
            a.label("La_wd")
            a("s_barrier")
            a("s_cmp_eq_u32 s38, 0")
            a("s_cselect_b32 s64, s3, 0")
            a("s_cmp_eq_u32 s64, 4")
            a("s_cbranch_scc0 La_nowait")
            a(f"s_add_u32 s56, s74, {FB}")
            a(f"v_mov_b32 v{T0}, s56")
            a(f"v_mov_b32 v{T1}, s{NONCE}")
            a("s_mov_b64 exec, 1")
            a(f"buffer_store_dword v{T1}, v{T0}, s[{WS}:{WS+3}], 0 offen sc1")
            a("s_mov_b64 exec, -1")
            a.label("La_nowait")
        for q in range(2):
            cur, nxt = SB[q][n % 2], SB[q][(n+1) % 2]
            def early(n=n):
                if n + 1 < U: read_v(VF[(n+1) % 2], VVA, (n+1)*2048)
                else: read_v(VF[(n+1) % 2], VVN, 0)
            def qk(q=q, nxt=nxt, n=n):
                if q == 0: a("s_waitcnt lgkmcnt(2)" if SCHED == 0 else "s_waitcnt lgkmcnt(0)")
                mfma(a, nxt, KF+4*((n+1) % 2), QA[q], CNEG[q])
                if q == 1:
                    if n + 2 < U: a(f"ds_read_b128 {vr(KF+4*(n % 2),4)}, v{VKA} offset:{(n+2)*2048}")
                    else: a(f"ds_read_b128 {vr(KF+4*(n % 2),4)}, v{VKN} offset:{(n+2-U)*2048}")
            if SCHED == 0:
                step(cur, PP[q], OACC[q], early if q == 0 else nop, qk, nop,
                     lambda: a("s_nop 1"), nop, vb)
            else:
                p = PP[q]
                E = lambda i: a(f"v_exp_f32 v{cur+i}, v{cur+i}")
                C = lambda j: a(f"v_cvt_pk_bf16_f32 v{p+j}, v{cur+2*j}, v{cur+2*j+1}")
                pq = 1 - q
                pvb = VF[n % 2] if q == 1 else VF[(n+1) % 2]
                E(0); E(1)
                mfma(a, OACC[pq], pvb+4, PP[pq]+4, OACC[pq])
                E(2); E(3); E(4); C(0); E(5); C(1)
                qk()
                E(6); E(7); E(8); C(2); E(9); C(3); E(10); E(11)
                mfma(a, OACC[q], vb, p, OACC[q])
                E(12); C(4); E(13); C(5); E(14); E(15)
                if q == 0: early()
                C(6); C(7)
    a(f"v_mov_b32 v{VKA}, v{VKN}")
    a(f"v_mov_b32 v{VVA}, v{VVN}")
    a(f"v_add_u32 v{VKN}, 32768, v{VKN}")
    a(f"v_add_u32 v{VVN}, 32768, v{VVN}")
    a("s_add_u32 s38, s38, 1")
    a("s_cmp_lg_u32 s38, 4")
    a("s_cbranch_scc1 La_loop")
    if SCHED == 1:
        mfma(a, OACC[1], VF[1]+4, PP[1]+4, OACC[1])
    st(6)
    st.l(7)
    a("s_waitcnt lgkmcnt(0)")
    a("s_nop 15")
    a(f"v_mov_b32 v{TMP}, 0x71800000")
    a(f"v_cmp_lt_f32 vcc, v{OACC[0]+8}, v{TMP}")
    a(f"v_cmp_lt_f32 s[58:59], v{OACC[1]+8}, v{TMP}")
    a("s_nop 4")
    a("s_and_b64 s[58:59], s[58:59], vcc")
    a("s_cmp_eq_u64 s[58:59], -1")
    a("s_cselect_b32 s64, 0, 1")
    a("s_cmp_lg_u32 s73, 0")
    a("s_cselect_b32 s64, 0, s64")
    a("s_lshl_b32 s65, s3, 2")
    a(f"s_add_u32 s65, s65, {XCH}")
    a(f"v_mov_b32 v{T0}, s65")
    a(f"v_mov_b32 v{T1}, s64")
    a(f"ds_write_b32 v{T0}, v{T1}")
    a("s_mul_i32 s65, s3, 2560")
    a(f"s_add_u32 s65, s65, {XCH + 1024}")
    a(f"v_add_u32 v{T0}, s65, v{LIN}")
    a(f"v_lshrrev_b32 v{T1}, 2, v{LIN}")
    a(f"v_add_u32 v{T1}, s65, v{T1}")
    a("s_cmp_eq_u32 s70, 0")
    a("s_cbranch_scc0 La_sendq0")
    for lab, qs in (("La_sendq1", 1), ("La_sendq0", 0)):
        if qs == 0: a.label(lab)
        a(f"ds_write_b128 v{T0}, {vr(OACC[qs],4)}")
        a(f"ds_write_b128 v{T0}, {vr(OACC[qs]+4,4)} offset:1024")
        a(f"ds_write_b32 v{T1}, v{OACC[qs]+8} offset:2048")
        if qs == 1:
            a("s_branch La_sent")
        else:
            for r in range(9):
                a(f"v_mov_b32 v{OACC[0]+r}, v{OACC[1]+r}")
    a.label("La_sent")
    a("s_waitcnt vmcnt(0) lgkmcnt(0)")
    a("s_barrier")
    a(f"v_and_b32 v{T2}, 7, v1")
    a(f"v_lshlrev_b32 v{T2}, 2, v{T2}")
    a(f"v_add_u32 v{T2}, {XCH}, v{T2}")
    a(f"ds_read_b32 v{T2}, v{T2}")
    a("s_xor_b32 s64, s3, 4")
    a("s_mul_i32 s65, s64, 2560")
    a(f"s_add_u32 s65, s65, {XCH + 1024}")
    a(f"v_add_u32 v{T0}, s65, v{LIN}")
    a(f"v_lshrrev_b32 v{T1}, 2, v{LIN}")
    a(f"v_add_u32 v{T1}, s65, v{T1}")
    a(f"ds_read_b128 {vr(SB[0][0],4)}, v{T0}")
    a(f"ds_read_b128 {vr(SB[0][0]+4,4)}, v{T0} offset:1024")
    a(f"ds_read_b32 v{SB[0][0]+8}, v{T1} offset:2048")
    a("s_lshl_b32 s37, s3, 11")
    a(f"s_add_u32 s37, s37, {BKV}")
    a("s_waitcnt lgkmcnt(0)")
    a(f"v_cmp_ne_u32 vcc, 0, v{T2}")
    a("s_nop 4")
    a("s_cmp_eq_u64 vcc, 0")
    a("s_cbranch_scc1 La_done")
    a("s_barrier")
    a("s_mov_b32 s73, 1")
    for u in range(4):
        a(f"s_add_u32 m0, s63, {BKV + (u&1)*8192 + (u>>1)*16384}")
        a(f"s_add_u32 s66, s62, {65536 + (u&1)*8192 + (u>>1)*65536}")
        a(f"buffer_load_dwordx4 v{LIN}, s[{WS}:{WS+3}], s66 offen sc1 lds")
    kv_dma(1)
    a("s_waitcnt vmcnt(0)")
    a("s_barrier")
    a(f"v_mov_b32 v{MX}, 0xff800000")
    a(f"v_mov_b32 v{MX1}, 0xff800000")
    a("s_mov_b32 s38, 0")
    a.label("La_fb")
    a("s_bfe_u32 s64, s38, 0x20003")
    a("s_sub_u32 s65, s64, 1")
    a("s_lshl_b32 s65, s65, 15")
    a("s_cmp_eq_u32 s64, 0")
    a(f"s_cselect_b32 s65, {BKV}, s65")
    a("s_lshr_b32 s64, s38, 5")
    a("s_lshl_b32 s64, s64, 14")
    a("s_add_u32 s65, s65, s64")
    a("s_and_b32 s64, s38, 7")
    a("s_lshl_b32 s64, s64, 11")
    a("s_add_u32 s65, s65, s64")
    a(f"v_add_u32 v{T0}, s65, v{LIN}")
    a(f"ds_read_b128 {vr(KF,4)}, v{T0}")
    a("s_waitcnt lgkmcnt(0)")
    mfma(a, SB[0][0], KF, QA[0], "0")
    mfma(a, SB[1][0], KF, QA[1], "0")
    a("s_nop 15")
    for q, m in ((0, MX), (1, MX1)):
        s = SB[q][0]
        for r in range(8):
            a(f"v_max3_f32 v{m}, v{s+2*r}, v{s+2*r+1}, v{m}")
    a("s_add_u32 s38, s38, 1")
    a("s_cmp_lg_u32 s38, 64")
    a("s_cbranch_scc1 La_fb")
    a(f"v_add_u32 v{VKN}, s71, v{LIN}")
    a(f"v_add_u32 v{VVN}, s71, v{VLO}")
    a(f"v_add_u32 v{VKA}, s72, v{LIN}")
    a(f"v_add_u32 v{VVA}, s72, v{VLO}")
    a("s_branch La_main")
    a.label("La_done")
    a("s_cmp_eq_u32 s73, 0")
    a("s_cbranch_scc1 La_bok")
    a("s_barrier")
    wo_dma(WOA, 0, 0)
    a("s_cmp_lt_u32 s3, 4")
    a("s_cbranch_scc1 La_brl")
    b_loads(a, LIN, QBL)
    a.label("La_brl")
    a("s_waitcnt vmcnt(0)")
    a("s_barrier")
    a.label("La_bok")
    a(f"v_add_u32 v{VKA}, s37, v{LIN}")
    a(f"v_add_u32 v{VVA}, s37, v{VLO}")
    a("s_lshl_b32 s64, s3, 10")
    a(f"s_add_u32 s64, s64, {QBL}")
    a(f"v_add_u32 v{T0}, s64, v{LIN}")
    a(f"ds_read_b128 {vr(QB,4)}, v{T0}")
    for i in range(8, -1, -1):
        a(f"ds_read_b128 {vr(KF+4*i,4)}, v{VKA} offset:{i*2048}")
    for r in range(9):
        a(f"v_add_f32 v{OACC[0]+r}, v{OACC[0]+r}, v{SB[0][0]+r}")
    a("s_and_b32 s64, s3, 3")
    a("s_lshl_b32 s64, s64, 1")
    a("s_add_u32 s64, s64, s70")
    a(f"s_lshl_b32 s65, s{S_QB}, 3")
    a("s_add_u32 s64, s64, s65")
    a("s_lshl_b32 s64, s64, 10")
    a(f"s_lshl_b32 s68, s{S_H}, 16")
    a("s_add_u32 s68, s68, s64")
    a(f"s_add_u32 s68, s68, {O_BASE}")
    def finish_o(o, lreg, soff):
        a(f"v_rcp_f32 v{TMP}, v{lreg}")
        a("s_nop 1")
        for r in range(8):
            a(f"v_mul_f32 v{o+r}, v{o+r}, v{TMP}")
        for r in range(4):
            a(f"v_cvt_pk_bf16_f32 v{PP[1]+r}, v{o+2*r}, v{o+2*r+1}")
        a(f"buffer_store_dwordx4 {vr(PP[1],4)}, v{LIN}, s[{WS}:{WS+3}], {soff} offen sc1")
    def o_flag(p):
        a("s_lshl_b32 s56, s2, 3")
        a("s_add_u32 s56, s56, s3")
        a("s_lshl_b32 s56, s56, 7")
        a(f"s_add_u32 s56, s56, {FO + p*262144}")
        a(f"v_mov_b32 v{T0}, s56")
        a(f"v_mov_b32 v{T1}, s{NONCE}")
        a("s_mov_b64 exec, 1")
        a(f"buffer_store_dword v{T1}, v{T0}, s[{WS}:{WS+3}], 0 offen sc1")
        a("s_mov_b64 exec, -1")
    a("s_waitcnt lgkmcnt(6)")
    SP = [80, 96, 112, 128]
    def qk1(i):
        c = MHI if i == 8 else (MLO if i == 0 else "0")
        mfma(a, SP[(8-i) % 4], KF+4*i, QB, c)
    qk1(8); qk1(7); qk1(6)
    finish_o(OACC[0], OACC[0]+8, "s68")
    st(7)
    st.l(8)
    a("s_waitcnt lgkmcnt(0)")
    a("s_barrier")
    read_v(VF[0], VVA, 8*2048)
    a("s_nop 0")
    a("s_mov_b32 s38, s35")
    for i in range(8, -1, -1):
        s = SP[(8-i) % 4]
        if i == 8:
            a(f"v_max_f32 v{MX}, v{s}, v{s+1}")
            for r in range(1, 8):
                a(f"v_max3_f32 v{MX}, v{s+2*r}, v{s+2*r+1}, v{MX}")
        else:
            for r in range(8):
                a(f"v_max3_f32 v{MX}, v{s+2*r}, v{s+2*r+1}, v{MX}")
        if i > 0:
            a("s_cmp_eq_u32 s38, 0")
            a("s_cbranch_scc1 Lb_p1_done")
            a("s_sub_u32 s38, s38, 1")
        if i - 3 >= 0:
            qk1(i - 3)
    a.label("Lb_p1_done")
    halves_max(MX, TMP)
    st(8)
    st.l(9)
    a("s_waitcnt vmcnt(0)")
    o_flag(0)
    a("s_mov_b32 s43, 0")
    for r in range(16):
        a(f"v_sub_f32 v{MHI+r}, v{MHI+r}, v{MX}")
    a("s_nop 1")
    mfma(a, SP[0], KF+4*8, QB, MHI)
    for r in range(16):
        a(f"v_sub_f32 v{CNEG[0]+r}, 0, v{MX}")
        a(f"v_sub_f32 v{MLO+r}, v{MLO+r}, v{MX}")
        a(f"v_mov_b32 v{OACC[0]+r}, 0")
    WG = [(WOA, 1, 32768), (WOB, 0, 65536), (WOB, 1, 98304)]
    wo_dma(*WG[0])
    a("s_mov_b32 s43, 1")
    a("s_mov_b32 s38, s35")
    for n, i in enumerate(range(8, -1, -1)):
        cur, nxt = SP[n % 2], SP[(n+1) % 2]
        vb = VF[n % 2]
        if i > 0:
            cn = MLO if i - 1 == 0 else CNEG[0]
            step(cur, PP[0], OACC[0],
                 lambda: read_v(VF[(n+1) % 2], VVA, (i-1)*2048),
                 lambda: mfma(a, nxt, KF+4*(i-1), QB, cn),
                 lambda: a("s_waitcnt lgkmcnt(2)"),
                 lambda: a("s_nop 1"), nop, vb)
            if n in (1, 3):
                wo_dma(*WG[1 if n == 1 else 2])
                a(f"s_mov_b32 s43, {2 if n == 1 else 3}")
            a("s_cmp_eq_u32 s38, 0")
            a("s_cbranch_scc1 Lb_p2_done")
            a("s_sub_u32 s38, s38, 1")
        else:
            step(cur, PP[0], OACC[0], nop, nop,
                 lambda: a("s_waitcnt lgkmcnt(0)"),
                 lambda: a("s_nop 1"), nop, vb)
    a.label("Lb_p2_done")
    st(9)
    st.l(10)
    st.t(1)
    a("s_cmp_ge_u32 s43, 2")
    a("s_cbranch_scc1 Lb_g1")
    wo_dma(*WG[1])
    a.label("Lb_g1")
    a("s_cmp_ge_u32 s43, 3")
    a("s_cbranch_scc1 Lb_g2")
    wo_dma(*WG[2])
    a.label("Lb_g2")
    a("s_nop 15")
    a(f"s_lshl_b32 s68, s{S_H}, 16")
    a("s_lshl_b32 s69, s34, 10")
    a("s_add_u32 s68, s68, s69")
    a(f"s_add_u32 s68, s68, {O_BASE + O_PROB}")
    finish_o(OACC[0], OACC[0]+8, "s68")
    OF, ACC2, WF2 = 16, 80, 112
    a("s_lshr_b32 s52, s3, 2")
    a("s_and_b32 s53, s3, 1")
    a("s_bfe_u32 s54, s3, 0x10001")
    a("s_lshl_b32 s55, s75, 1")
    a("s_add_u32 s55, s55, s53")
    a("s_lshl_b32 s56, s53, 2")
    a("s_add_u32 s56, s56, s75")
    a("s_cmp_eq_u32 s52, 0")
    a("s_cselect_b32 s56, s56, s55")
    a(f"s_lshl_b32 s57, s{S_QB}, 5")
    a("s_lshl_b32 s58, s54, 4")
    a("s_add_u32 s57, s57, s58")
    a("s_lshl_b32 s57, s57, 3")
    a("s_add_u32 s57, s57, s56")
    a("s_lshl_b32 s57, s57, 7")
    a("s_lshl_b32 s58, s52, 18")
    a("s_add_u32 s57, s57, s58")
    a(f"s_add_u32 s57, s57, {FO}")
    a(f"v_and_b32 v{T2}, 15, v1")
    a(f"v_lshlrev_b32 v{T2}, 10, v{T2}")
    a(f"v_add_u32 v{T2}, s57, v{T2}")
    a(f"s_lshl_b32 s59, s{S_QB}, 3")
    a("s_add_u32 s59, s59, s55")
    a("s_lshl_b32 s60, s59, 10")
    a(f"s_mul_i32 s61, s52, {O_PROB}")
    a("s_add_u32 s60, s60, s61")
    a(f"s_add_u32 s60, s60, {O_BASE}")
    a("s_bfe_u32 s61, s2, 0x20003")
    a("s_lshl_b32 s61, s61, 2")
    a(f"v_lshrrev_b32 v{T0}, 5, v1")
    a(f"v_lshlrev_b32 v{T1}, 2, v{T0}")
    a(f"v_bfe_u32 v{T3}, v1, 2, 2")
    a(f"v_add_u32 v{T1}, v{T1}, v{T3}")
    a(f"v_lshlrev_b32 v{T1}, 7, v{T1}")
    a(f"v_bfe_u32 v{T3}, v1, 4, 1")
    a(f"v_lshlrev_b32 v{T3}, 5, v{T3}")
    a(f"v_add_u32 v{T1}, v{T1}, v{T3}")
    a(f"v_and_b32 v{T3}, 3, v1")
    a(f"v_lshlrev_b32 v{T3}, 3, v{T3}")
    a(f"v_add_u32 v{T1}, v{T1}, v{T3}")
    a(f"v_bfe_u32 v{T3}, v1, 3, 1")
    a(f"v_lshlrev_b32 v{T3}, 6, v{T3}")
    a("s_lshl_b32 s62, s52, 16")
    a("s_lshl_b32 s63, s54, 15")
    a("s_add_u32 s62, s62, s63")
    a(f"v_add_u32 v{T1}, s62, v{T1}")
    a(f"v_add_u32 v{VKA}, v{T1}, v{T3}")
    a(f"v_xor_b32 v{T3}, 64, v{T3}")
    a(f"v_add_u32 v{VVA}, v{T1}, v{T3}")
    a(f"v_and_b32 v{VKN}, 31, v1")
    a(f"v_lshlrev_b32 v{VKN}, 11, v{VKN}")
    a(f"v_lshlrev_b32 v{T0}, 4, v{T0}")
    a(f"v_add_u32 v{VKN}, v{VKN}, v{T0}")
    st.t(2)
    a("s_waitcnt vmcnt(0)")
    st.t(3)
    o_flag(1)
    st(10)
    a("s_lshl_b32 s63, s54, 20")
    a("s_add_u32 s60, s60, s63")
    def poll_and_load(tag):
        a(f"s_mov_b32 s67, {SPIN}")
        a.label(f"Lo_spin{tag}")
        a(f"buffer_load_dword v{T3}, v{T2}, s[{WS}:{WS+3}], 0 offen sc1")
        a("s_waitcnt vmcnt(0)")
        a(f"v_cmp_eq_u32 vcc, s{NONCE}, v{T3}")
        a("s_nop 4")
        a("s_cmp_eq_u64 vcc, -1")
        a(f"s_cbranch_scc1 Lo_got{tag}")
        a("s_sleep 1")
        a("s_sub_u32 s67, s67, 1")
        a("s_cmp_lg_u32 s67, 0")
        a(f"s_cbranch_scc1 Lo_spin{tag}")
        a.label(f"Lo_got{tag}")
        for hh in range(16):
            a(f"s_add_u32 s64, s60, {hh*65536}")
            a(f"buffer_load_dwordx4 {vr(OF+4*hh,4)}, v{LIN}, s[{WS}:{WS+3}], s64 offen sc1")
    poll_and_load("A")
    st.t(4)
    a("s_barrier")
    st.t(5)
    def rd(hh, buf):
        for ct, reg in ((0, VKA), (1, VVA)):
            a(f"ds_read_b64_tr_b16 {vr(WF2+8*buf+4*ct,2)}, v{reg} offset:{hh*2048}")
            a(f"ds_read_b64_tr_b16 {vr(WF2+8*buf+4*ct+2,2)}, v{reg} offset:{hh*2048+1024}")
    rd(0, 0)
    for hh in range(16):
        buf = hh % 2
        if hh < 15:
            rd(hh+1, buf ^ 1)
            a(f"s_waitcnt vmcnt({15-hh}) lgkmcnt(4)")
        else:
            a("s_waitcnt vmcnt(0) lgkmcnt(0)")
        for ct in range(2):
            acc = ACC2 + 16*ct
            mfma(a, acc, WF2+8*buf+4*ct, OF+4*hh, "0" if hh == 0 else acc)
    st.t(6)
    a("s_lshl_b32 s64, s3, 12")
    a(f"s_add_u32 s64, s64, {BKV}")
    a(f"v_add_u32 v{T0}, s64, v{LIN}")
    a("s_xor_b32 s65, s3, 2")
    a("s_lshl_b32 s65, s65, 12")
    a(f"s_add_u32 s65, s65, {BKV}")
    a(f"v_add_u32 v{T1}, s65, v{LIN}")
    a("s_nop 15")
    a("s_cmp_eq_u32 s54, 0")
    a("s_cbranch_scc0 Lo_send0")
    for r in range(4):
        a(f"ds_write_b128 v{T0}, {vr(ACC2+16+4*r,4)} offset:{r*1024}")
    a("s_branch Lo_sent")
    a.label("Lo_send0")
    for r in range(4):
        a(f"ds_write_b128 v{T0}, {vr(ACC2+4*r,4)} offset:{r*1024}")
    for r in range(16):
        a(f"v_mov_b32 v{ACC2+r}, v{ACC2+16+r}")
    a.label("Lo_sent")
    a("s_waitcnt lgkmcnt(0)")
    a("s_barrier")
    st.t(7)
    for r in range(4):
        a(f"ds_read_b128 {vr(OF+4*r,4)}, v{T1} offset:{r*1024}")
    a("s_lshl_b32 s64, s59, 16")
    a("s_lshl_b32 s65, s52, 10")
    a("s_add_u32 s64, s64, s65")
    a("s_lshl_b32 s65, s39, 7")
    a("s_add_u32 s64, s64, s65")
    a("s_lshl_b32 s65, s54, 6")
    a("s_add_u32 s64, s64, s65")
    a("s_waitcnt lgkmcnt(0)")
    for r in range(16):
        a(f"v_add_f32 v{ACC2+r}, v{ACC2+r}, v{OF+r}")
    for pr in range(2):
        b = ACC2 + 8*pr
        pk = WF2 + 4*pr
        for r in range(4):
            a(f"v_cvt_pk_bf16_f32 v{pk+r}, v{b+2*r}, v{b+2*r+1}")
        a("s_nop 1")
        a(f"v_permlane32_swap_b32 v{pk}, v{pk+2}")
        a(f"v_permlane32_swap_b32 v{pk+1}, v{pk+3}")
        a("s_nop 1")
        a(f"buffer_store_dwordx4 {vr(pk,4)}, v{VKN}, s[{OUT}:{OUT+3}], s64 offen offset:{pr*32} {os.environ.get('OUTF','')}")
    st.t(8)
    if st.ft: a("s_waitcnt vmcnt(0)")
    st.t(9); st.t(10)
    st(11)
    st.p(11)
    st.flush(8, 12)
    a.label("Lfa_end")
    a("s_endpgm")

def b_loads(a, LIN, QBL):
    a("s_sub_u32 s51, s3, 4")
    a("s_lshl_b32 s51, s51, 10")
    a(f"s_lshl_b32 s50, s{S_QB}, 14")
    a("s_add_u32 s50, s50, s51")
    a("s_sub_u32 s50, s50, 16384")
    for u in range(8):
        a(f"s_add_u32 s54, s50, {u*4096}")
        a("s_max_i32 s54, s54, 0")
        a("s_add_u32 s54, s54, s36")
        a("s_add_u32 s54, s54, 65536")
        a(f"s_add_u32 m0, s51, {BKV + u*4096}")
        a(f"buffer_load_dwordx4 v{LIN}, s[{WS}:{WS+3}], s54 offen sc1 lds")
    a(f"s_lshl_b32 s50, s{S_QB}, 13")
    a("s_add_u32 s50, s50, s36")
    a("s_add_u32 s50, s50, s51")
    for u in range(2):
        a(f"s_add_u32 m0, s51, {QBL + u*4096}")
        a(f"s_add_u32 s54, s50, {u*4096}")
        a(f"buffer_load_dwordx4 v{LIN}, s[{WS}:{WS+3}], s54 offen sc1 lds")

def gen_oproj(a):
    a.raw(".p2align 8")
    a.raw(".type oproj_kernel,@function")
    a.label("oproj_kernel")
    a("s_cmp_ge_u32 s2, 256")
    a("s_cbranch_scc1 Lop_end")
    st = Stamper(a, "oproj", 1, "s20")
    st()
    a("s_load_dwordx2 s[4:5], s[0:1], 16")
    a("s_load_dwordx2 s[26:27], s[0:1], 40")
    a("s_load_dwordx2 s[28:29], s[0:1], 48")
    a("s_load_dwordx2 s[30:31], s[0:1], 64")
    a("s_and_b32 s32, s2, 7")
    a("s_lshr_b32 s33, s2, 3")
    a("s_lshr_b32 s23, s32, 2")
    a("s_and_b32 s34, s32, 3")
    a("s_lshl_b32 s34, s34, 2")
    a("s_and_b32 s35, s33, 3")
    a("s_add_u32 s24, s34, s35")
    a("s_lshr_b32 s25, s33, 2")
    a("v_and_b32 v1, 63, v0")
    a("v_lshrrev_b32 v2, 6, v0")
    a("s_nop 0")
    a("v_readfirstlane_b32 s20, v2")
    a("v_lshrrev_b32 v2, 3, v1")
    a("v_lshlrev_b32 v2, 10, v2")
    a("v_bfe_u32 v3, v1, 4, 1")
    a("v_lshlrev_b32 v3, 2, v3")
    a("v_and_b32 v5, 7, v1")
    a("v_xor_b32 v3, v3, v5")
    a("v_lshlrev_b32 v3, 4, v3")
    a("v_add_u32 v4, v2, v3")
    a("v_lshlrev_b32 v5, 4, v1")
    a("s_waitcnt lgkmcnt(0)")
    a("s_cmp_eq_u32 s23, 0")
    a("s_cselect_b32 s4, s4, s26")
    a("s_cselect_b32 s5, s5, s27")
    srd(a, 8, 4, 5, 512*1024)
    a(f"s_mul_i32 s36, s23, {O_PROB}")
    a(f"s_add_u32 s36, s36, {O_BASE}")
    a("s_add_u32 s30, s30, s36")
    a("s_addc_u32 s31, s31, 0")
    srd(a, 12, 30, 31, O_PROB)
    a("s_lshl_b32 s40, s20, 13")
    a("s_lshl_b32 s36, s25, 7")
    a("s_add_u32 s40, s40, s36")
    a("s_lshl_b32 s41, s20, 10")
    OF = 64
    a("s_lshl_b32 s42, s24, 2")
    a("s_add_u32 s42, s42, s20")
    a("s_lshl_b32 s43, s42, 10")
    a("s_lshl_b32 s49, s25, 2")
    a("s_and_b32 s47, s24, 3")
    a("s_lshl_b32 s47, s47, 3")
    a("s_add_u32 s49, s49, s47")
    a("s_lshl_b32 s46, s49, 4")
    a("s_lshl_b32 s47, s20, 3")
    a("s_add_u32 s46, s46, s47")
    a("s_lshl_b32 s48, s25, 7")
    def wdma(u):
        a(f"s_add_u32 m0, s41, {u*4096}")
        a(f"s_add_u32 s44, s46, {u*32}")
        a("s_and_b32 s44, s44, 511")
        a("s_lshl_b32 s44, s44, 10")
        a("s_add_u32 s44, s44, s48")
        a("buffer_load_dwordx4 v4, s[8:11], s44 offen lds")
    def oload(H):
        a(f"s_add_u32 s44, s49, {H}")
        a("s_and_b32 s44, s44, 31")
        a("s_lshl_b32 s44, s44, 16")
        a("s_add_u32 s44, s44, s43")
        a(f"buffer_load_dwordx4 {vr(OF+4*H,4)}, v5, s[12:15], s44 offen")
    for q in range(4):
        for u in range(4): wdma(4*q+u)
        for H in range(8): oload(8*q+H)
    srd(a, 16, 28, 29, 2048*2048)
    a("v_lshrrev_b32 v2, 5, v1")
    a("v_lshlrev_b32 v3, 2, v2")
    a("v_bfe_u32 v8, v1, 2, 2")
    a("v_add_u32 v3, v3, v8")
    a("v_lshlrev_b32 v3, 7, v3")
    a("v_bfe_u32 v8, v1, 4, 1")
    a("v_lshlrev_b32 v8, 5, v8")
    a("v_add_u32 v3, v3, v8")
    a("v_and_b32 v8, 3, v1")
    a("v_lshlrev_b32 v8, 3, v8")
    a("v_add_u32 v3, v3, v8")
    a("v_bfe_u32 v8, v1, 3, 1")
    a("v_lshlrev_b32 v8, 6, v8")
    a("v_add_u32 v6, v3, v8")
    a("v_xor_b32 v8, 64, v8")
    a("v_add_u32 v7, v3, v8")
    a("v_and_b32 v8, 31, v1")
    a("v_lshlrev_b32 v8, 11, v8")
    a("v_lshlrev_b32 v9, 4, v2")
    a("v_add_u32 v8, v8, v9")
    ACC = 16
    st()
    WF = [48, 56]
    def rd(H, buf):
        for ct in range(2):
            a(f"ds_read_b64_tr_b16 {vr(WF[buf]+4*ct,2)}, v{6+ct} offset:{H*2048}")
            a(f"ds_read_b64_tr_b16 {vr(WF[buf]+4*ct+2,2)}, v{6+ct} offset:{H*2048+1024}")
    for q in range(4):
        a(f"s_waitcnt vmcnt({8 + 12*(3-q)})")
        a("s_barrier")
        rd(8*q, 0)
        for hh in range(8):
            H = 8*q + hh
            buf = hh % 2
            if hh < 7:
                rd(H+1, buf ^ 1)
                a(f"s_waitcnt vmcnt({7-hh + 12*(3-q)}) lgkmcnt(4)")
            else:
                a(f"s_waitcnt vmcnt({12*(3-q)}) lgkmcnt(0)")
            for ct in range(2):
                acc = ACC+16*ct
                mfma(a, acc, WF[buf]+4*ct, OF+4*H, "0" if H == 0 else acc)
    a("s_nop 15")
    st()
    a("s_lshl_b32 s44, s42, 16")
    a("s_lshl_b32 s45, s23, 10")
    a("s_add_u32 s44, s44, s45")
    a("s_lshl_b32 s45, s25, 7")
    a("s_add_u32 s44, s44, s45")
    for ct in range(2):
        for pr in range(2):
            b = ACC + 16*ct + 8*pr
            pk = 48 + (ct*2+pr)*4
            for r in range(4):
                a(f"v_cvt_pk_bf16_f32 v{pk+r}, v{b+2*r}, v{b+2*r+1}")
            a("s_nop 1")
            a(f"v_permlane32_swap_b32 v{pk}, v{pk+2}")
            a(f"v_permlane32_swap_b32 v{pk+1}, v{pk+3}")
            a("s_nop 1")
            a(f"buffer_store_dwordx4 {vr(pk,4)}, v8, s[16:19], s44 offen offset:{ct*64+pr*32}")
    st()
    st.flush(4)
    a.label("Lop_end")
    a("s_endpgm")

def kd(name, vgpr, sgpr=102):
    acc = (vgpr + 3)//4*4
    return f""".section .rodata,"a"
.p2align 6
.amdhsa_kernel {name}
  .amdhsa_next_free_vgpr {vgpr}
  .amdhsa_next_free_sgpr {sgpr}
  .amdhsa_accum_offset {acc}
  .amdhsa_group_segment_fixed_size 0
  .amdhsa_kernarg_size 72
  .amdhsa_user_sgpr_count 2
  .amdhsa_user_sgpr_kernarg_segment_ptr 1
  .amdhsa_system_sgpr_workgroup_id_x 1
.end_amdhsa_kernel
"""

HEADER = """; Kernarg layout for this problem (72 bytes, ptrs only, base s[0:1]):
;   offset   0: d_in[0] A_x  shape=(1, 2048, 512) dtype=bfloat16
;   offset   8: d_in[1] A_wqkv  shape=(512, 1536) dtype=bfloat16
;   offset  16: d_in[2] A_wo  shape=(512, 512) dtype=bfloat16
;   offset  24: d_in[3] B_x  shape=(1, 2048, 512) dtype=bfloat16
;   offset  32: d_in[4] B_wqkv  shape=(512, 1536) dtype=bfloat16
;   offset  40: d_in[5] B_wo  shape=(512, 512) dtype=bfloat16
;   offset  48: d_out     shape=(1, 2048, 1024) dtype=bfloat16
;   offset  56: d_debug   256 bytes
;   offset  64: d_ws      268435456 bytes workspace
; @launch grid=(256,1,1) block=(512,1,1) lds=163840
.amdgcn_target "amdgcn-amd-amdhsa--gfx950"
.text
.globl concat_heads__softmax_full_mha__sliding_block__prompt_kernel
"""

def main(path):
    a = Asm()
    gen_fused(a)
    txt = HEADER + a.text() + kd("concat_heads__softmax_full_mha__sliding_block__prompt_kernel", 256)
    open(path, "w").write(txt)

if __name__ == "__main__":
    main(sys.argv[1] if len(sys.argv) > 1 else f"cdna_kernels/{NAME}.s")
```

```python
import sys, os, struct

NAME = "concat_heads__softmax_full_mha__sliding_block__prompt"
STAMPS = os.environ.get("STAMPS", "")

class Asm:
    def __init__(self): self.lines = []
    def __call__(self, s): self.lines.append("  " + s)
    def label(self, s): self.lines.append(s + ":")
    def raw(self, s): self.lines.append(s)
    def text(self): return "\n".join(self.lines) + "\n"

def vr(b, n=1): return f"v{b}" if n == 1 else f"v[{b}:{b+n-1}]"
def f32bits(x): return struct.unpack("<I", struct.pack("<f", x))[0]

HEAD_STRIDE = 196608
PROB_STRIDE = 32 * HEAD_STRIDE
O_BASE = 2 * PROB_STRIDE
O_PROB = 32 * 65536
F_BASE = 16 << 20
WS_SIZE = 17 << 20
QSCALE = 0.25 * 1.4426950408889634
SPIN = 1 << 16

def srd(a, d, lo, hi, nrec):
    a(f"s_mov_b32 s{d}, s{lo}")
    a(f"s_and_b32 s{d+1}, s{hi}, 0xffff")
    a(f"s_mov_b32 s{d+2}, {nrec}")
    a(f"s_mov_b32 s{d+3}, 0x00020000")

class Stamper:
    def __init__(self, a, kname, kidx, wavereg, base=76):
        self.a=a; self.on=(STAMPS==kname or (STAMPS in ("fp","fs","fl","ft") and kname=="fa")); self.fp=(STAMPS in ("fp","fs","fl","ft")); self.ft=(STAMPS=="ft"); self.fs=(STAMPS=="fs"); self.fl=(STAMPS=="fl"); self.rt=(STAMPS=="rt"); self.n=0; self.base=base; self.wavereg=wavereg; self.kidx=kidx
        if self.rt:
            a("s_memrealtime s[76:77]"); a("s_memtime s[78:79]")
    def p(self, idx):
        if self.fp and ((not self.fs and not self.fl and not self.ft) or idx==11): self._st(idx)
    def t(self, idx):
        if self.ft: self._st(idx)
    def l(self, idx):
        if self.fl: self._st(idx)
    def ldyn(self, base, uid):
        if not self.fl: return
        a=self.a
        for j in range(4):
            a(f"s_cmp_eq_u32 s38, {j}")
            a(f"s_cbranch_scc0 Lst{uid}_{j}")
            self._st(base+j)
            a.label(f"Lst{uid}_{j}")
    def f(self, idx):
        if self.fs: self._st(idx)
    def __call__(self, idx=None):
        if STAMPS == "dbg" and self.kidx == 0:
            m = {0:0, 2:1, 5:2, 6:3, 9:4, 10:5, 11:6}
            if idx in m:
                self.a(f"s_memrealtime s[{76+2*m[idx]}:{77+2*m[idx]}]")
                self.a("s_waitcnt lgkmcnt(0)")
            return
        if not self.on: return
        if self.fp and idx not in (0,): return
        self._st(idx)
    def _st(self, idx=None):
        if idx is not None: self.n = idx
        assert self.base+2*self.n+1 < 102
        self.a(f"s_memtime s[{self.base+2*self.n}:{self.base+2*self.n+1}]")
        self.a("s_waitcnt lgkmcnt(0)")
        self.n+=1
    def flush(self, nw, n=None):
        if STAMPS == "dbg":
            a=self.a
            a("s_cmp_eq_u32 s3, 4"); a("s_cbranch_scc0 Ldbg_skip")
            a("s_cmp_eq_u32 s2, 0"); a("s_cselect_b32 s6, 4, 0")
            a("s_cmp_eq_u32 s2, 131"); a("s_cselect_b32 s6, 32, s6")
            a("s_cmp_eq_u32 s6, 0"); a("s_cbranch_scc1 Ldbg_skip")
            a("v_mov_b32 v1, s6")
            for i in range(1,7):
                a(f"s_sub_u32 s7, s{76+2*i}, s76")
                a("v_mov_b32 v2, s7")
                a(f"buffer_store_dword v2, v1, s[{DBG}:{DBG+3}], 0 offen offset:{4*(i-1)}")
            a("v_mov_b32 v2, s76")
            a(f"buffer_store_dword v2, v1, s[{DBG}:{DBG+3}], 0 offen offset:24")
            a("s_waitcnt vmcnt(0)")
            a.label("Ldbg_skip")
            return
        if not (self.on or self.rt): return
        a=self.a
        n = n or self.n
        if self.rt:
            a("s_waitcnt vmcnt(0)"); a("s_memrealtime s[80:81]"); a("s_memtime s[82:83]"); n=4
        a("s_load_dwordx2 s[4:5], s[0:1], 64")
        a("s_waitcnt vmcnt(0) lgkmcnt(0)")
        a(f"s_add_u32 s4, s4, {(64<<20) + (self.kidx<<20 if self.rt else 0)}")
        a("s_addc_u32 s5, s5, 0")
        srd(a, 8, 4, 5, 1<<20)
        a(f"s_mul_i32 s6, s2, {nw}")
        a(f"s_add_u32 s6, s6, {self.wavereg}")
        a("s_lshl_b32 s6, s6, 6")
        a("v_mov_b32 v1, s6")
        for i in range(n):
            a(f"v_mov_b32 v2, s{self.base+2*i}")
            a(f"buffer_store_dword v2, v1, s[8:11], 0 offen offset:{4*i}")
        a("s_waitcnt vmcnt(0)")

def mfma(a, d, x, y, c):
    cs = c if isinstance(c, str) else vr(c, 16)
    a(f"v_mfma_f32_32x32x16_bf16 {vr(d,16)}, {vr(x,4)}, {vr(y,4)}, {cs}")

WS, XB, WB, XA, WA, DBG = 4, 8, 12, 16, 20, 24
NONCE = 28
S_H, S_QB, S_G, S_TB = 30, 31, 32, 33
SLOT = 32768
BKV = 131072

def gen_fused(a):
    QA = [4, 8]; QB = 12
    OACC = [16, 32]
    CNEG = [48, 64]
    SB = [[80, 96], [112, 128]]
    PP = [144, 152]
    VF = [160, 168]
    KF = 176
    MHI, MLO = 212, 228
    VKA, VVA, TMP, LIN, MX, MX1 = 244, 245, 246, 247, 248, 249
    T0, T1, T2, T3 = 250, 251, 252, 253
    VKN, VVN = 254, 255
    VLO = 3
    XCH = 98304
    QBL = 122880
    FA, FB = F_BASE, F_BASE + 65536
    PUB = int(os.environ.get("PUB", "9"))
    FO = F_BASE + 131072
    WOA, WOB, OUT = 8, 12, 16

    a.raw(".p2align 8")
    a.raw(".type concat_heads__softmax_full_mha__sliding_block__prompt_kernel,@function")
    a.label("concat_heads__softmax_full_mha__sliding_block__prompt_kernel")
    a("s_cmp_ge_u32 s2, 256")
    a("s_cbranch_scc1 Lfa_end")
    st = Stamper(a, "fa", 0, "s3")
    st(0)
    a("s_load_dwordx4 s[36:39], s[0:1], 0")
    a("s_load_dwordx2 s[34:35], s[0:1], 24")
    a("s_load_dwordx2 s[42:43], s[0:1], 32")
    a("s_load_dwordx4 s[44:47], s[0:1], 56")
    a("v_and_b32 v1, 63, v0")
    a("v_lshrrev_b32 v2, 6, v0")
    a(f"s_and_b32 s{S_H}, s2, 31")
    a("v_readfirstlane_b32 s3, v2")
    a(f"s_lshr_b32 s{S_QB}, s2, 5")
    a("s_lshr_b32 s48, s2, 3")
    a("s_and_b32 s49, s2, 1")
    a("s_lshl_b32 s49, s49, 2")
    a("s_and_b32 s50, s48, 3")
    a(f"s_add_u32 s{S_G}, s49, s50")
    a("s_bfe_u32 s49, s2, 0x20001")
    a("s_lshl_b32 s49, s49, 3")
    a("s_lshr_b32 s50, s48, 2")
    a(f"s_add_u32 s{S_TB}, s49, s50")
    a(f"s_and_b32 s29, s{S_G}, 3")
    a("s_lshl_b32 s29, s29, 1")
    a(f"s_add_u32 s29, s29, s{S_TB}")
    a("s_and_b32 s29, s29, 7")
    a("s_cmp_lt_u32 s3, 4")
    a("s_cbranch_scc1 Lfa_compute")

    def early_setup():
        a(f"v_lshlrev_b32 v{LIN}, 4, v1")
        a(f"v_lshrrev_b32 v{T0}, 5, v1")
        a(f"v_lshlrev_b32 v{VLO}, 8, v{T0}")
        a(f"v_and_b32 v{T1}, 15, v1")
        a(f"v_lshlrev_b32 v{T1}, 4, v{T1}")
        a(f"v_add_u32 v{VLO}, v{VLO}, v{T1}")
        a(f"v_add_u32 v{VLO}, 1024, v{VLO}")
        a(f"v_and_b32 v{T1}, 27, v1")
        a(f"v_cmp_eq_u32 vcc, 16, v{T1}")
        a(f"v_mov_b32 v{T2}, 0x3f803f80")
        a(f"v_mov_b32 v{T3}, 0")
        a("s_nop 0")
        for r in range(16):
            a(f"v_cndmask_b32 v{VF[0]+r}, v{T3}, v{T2}, vcc")
        a(f"v_and_b32 v{T1}, 31, v1")
        a(f"v_lshlrev_b32 v{T0}, 2, v{T0}")
        a(f"v_sub_u32 v{T1}, v{T1}, v{T0}")
        a(f"v_mov_b32 v{T2}, 0xff800000")
        for r in range(16):
            cr = 8*(r//4) + r % 4
            a(f"v_cmp_le_i32 s[{62+2*(r%4)}:{63+2*(r%4)}], {cr}, v{T1}")
            if r % 4 == 3:
                a("s_nop 1")
                for q in range(r-3, r+1):
                    a(f"v_cndmask_b32 v{MHI+q}, v{T2}, v{T3}, s[{62+2*(q%4)}:{63+2*(q%4)}]")
                    a(f"v_cndmask_b32 v{MLO+q}, v{T3}, v{T2}, s[{62+2*(q%4)}:{63+2*(q%4)}]")
        a("s_lshr_b32 s70, s3, 2")
        a("s_lshl_b32 s71, s70, 14")
        a(f"s_add_u32 s72, s71, {BKV}")
        a(f"v_add_u32 v{VKN}, s71, v{LIN}")
        a(f"v_add_u32 v{VVN}, s71, v{VLO}")
        a(f"v_add_u32 v{VKA}, s72, v{LIN}")
        a(f"v_add_u32 v{VVA}, s72, v{VLO}")
        a("s_mov_b32 s73, 0")
        a("s_mov_b32 s40, 0x0000ffff")
        a("s_mov_b32 s41, 0x0000ffff")

    a("s_sub_u32 s48, s3, 4")
    a("v_lshrrev_b32 v2, 3, v1")
    a("v_lshlrev_b32 v2, 10, v2")
    a("v_and_b32 v3, 7, v1")
    a("v_lshrrev_b32 v6, 4, v1")
    a("v_xor_b32 v3, v3, v6")
    a("v_lshlrev_b32 v3, 4, v3")
    a("v_add_u32 v4, v2, v3")
    a("v_xor_b32 v5, 64, v4")
    a(f"s_lshl_b32 s50, s{S_TB}, 6")
    a("s_lshl_b32 s49, s48, 4")
    a("s_add_u32 s50, s50, s49")
    a("s_lshl_b32 s50, s50, 10")
    a("s_lshl_b32 s51, s48, 11")
    a("s_mul_i32 s52, s48, 49152")
    a(f"s_lshl_b32 s49, s{S_G}, 7")
    a("s_add_u32 s52, s52, s49")
    a("s_mul_i32 s53, s48, 6144")
    a("s_add_u32 s53, s53, 8192")
    a("s_movk_i32 s49, 171")
    a("s_movk_i32 s55, 3072")
    for v in range(3):
        a(f"v_add_u32 v2, {64*v}, v1")
        a("v_mul_lo_u32 v3, v2, s49")
        a("v_lshrrev_b32 v3, 12, v3")
        a("v_mul_u32_u24 v9, 24, v3")
        a("v_sub_u32 v9, v2, v9")
        a("v_bfe_u32 v10, v3, 1, 1")
        a("v_lshlrev_b32 v10, 2, v10")
        a("v_xor_b32 v9, v9, v10")
        a("v_mul_lo_u32 v3, v3, s55")
        a("v_lshrrev_b32 v10, 3, v9")
        a("v_lshlrev_b32 v10, 10, v10")
        a("v_add_u32 v3, v3, v10")
        a("v_and_b32 v9, 7, v9")
        a("v_lshlrev_b32 v9, 4, v9")
        a(f"v_add_u32 v{6+v}, v3, v9")
    a("s_waitcnt lgkmcnt(0)")
    srd(a, XA, 36, 37, 2048*1024)
    srd(a, WA, 38, 39, 512*3072)
    def dma_chunk(i, ldsbase=None):
        c = i % 8
        base = (i % 4)*SLOT if ldsbase is None else ldsbase
        xs, wsr = (XA, WA) if i < 8 else (XB, WB)
        a(f"s_add_u32 s58, s29, {c}")
        a("s_and_b32 s58, s58, 7")
        a("s_lshl_b32 s59, s58, 7")
        a("s_add_u32 s59, s59, s50")
        a(f"s_mul_i32 s58, s58, {64*3072}")
        a("s_add_u32 s58, s58, s52")
        for u in range(2):
            a(f"s_add_u32 m0, s51, {base + u*1024}")
            a(f"s_add_u32 s54, s59, {u*8192}")
            a(f"buffer_load_dwordx4 v{4 + u}, s[{xs}:{xs+3}], s54 offen lds")
        for u in range(6):
            up, v = divmod(u, 3)
            a(f"s_add_u32 m0, s53, {base + u*1024}")
            a(f"s_add_u32 s54, s58, {8*up*3072}")
            a(f"buffer_load_dwordx4 v{6 + v}, s[{wsr}:{wsr+3}], s54 offen lds")
    dma_chunk(0)
    dma_chunk(1)
    srd(a, XB, 34, 35, 2048*1024)
    srd(a, WB, 42, 43, 512*3072)
    srd(a, WS, 46, 47, WS_SIZE)
    srd(a, DBG, 44, 45, 256)
    a("s_cmp_eq_u32 s2, 0")
    a("s_cselect_b32 s49, s48, 1")
    a("s_cmp_eq_u32 s49, 0")
    a("s_cbranch_scc0 Lfa_nononce")
    a("s_memrealtime s[56:57]")
    a("s_waitcnt lgkmcnt(0)")
    a("s_or_b32 s56, s56, 1")
    a("v_mov_b32 v10, s56")
    a("v_mov_b32 v11, 0")
    a(f"buffer_store_dword v10, v11, s[{DBG}:{DBG+3}], 0 offen sc1")
    a.label("Lfa_nononce")
    NCHK = 3
    C8AT = int(os.environ.get("C8AT", "-1"))
    if C8AT < 0:
        dma_chunk(8, BKV)
    early_setup()
    a(f"s_lshr_b32 s56, s{S_H}, 2")
    a("s_lshl_b32 s56, s56, 12")
    a(f"s_add_u32 s56, s56, {FA}")
    a("v_and_b32 v12, 31, v1")
    a("v_lshlrev_b32 v12, 7, v12")
    a("v_add_u32 v12, s56, v12")
    a(f"s_lshl_b32 s56, s{S_G}, 5")
    a(f"s_add_u32 s56, s56, s{S_TB}")
    a("s_lshl_b32 s74, s56, 7")
    a("v_and_b32 v2, 7, v1")
    a(f"s_lshl_b32 s49, s{S_QB}, 2")
    a("s_sub_u32 s49, s49, 4")
    a("v_add_u32 v2, s49, v2")
    a("v_max_i32 v2, 0, v2")
    a(f"s_lshr_b32 s49, s{S_H}, 2")
    a("s_lshl_b32 s49, s49, 5")
    a("v_add_u32 v2, s49, v2")
    a("v_lshlrev_b32 v2, 7, v2")
    a(f"v_add_u32 v2, {FB}, v2")
    a("v_mov_b32 v11, 0")
    st(1)
    def write_flag(base):
        a(f"s_add_u32 s56, s74, {base}")
        a("v_mov_b32 v14, s56")
        a(f"v_mov_b32 v15, s{NONCE}")
        a("s_mov_b64 exec, 1")
        a(f"buffer_store_dword v15, v14, s[{WS}:{WS+3}], 0 offen sc1")
        a("s_mov_b64 exec, -1")
    def a_loads():
        a(f"s_mul_i32 s64, s{S_H}, {HEAD_STRIDE}")
        a("s_lshl_b32 s65, s48, 10")
        a("s_add_u32 s64, s64, s65")
        for u in range(8):
            a(f"s_add_u32 m0, s65, {BKV + (u&3)*4096 + (u>>2)*16384}")
            a(f"s_add_u32 s66, s64, {65536 + (u&3)*4096 + (u>>2)*65536}")
            a(f"buffer_load_dwordx4 v{LIN}, s[{WS}:{WS+3}], s66 offen sc1 lds")
        a(f"s_lshl_b32 s67, s{S_QB}, 13")
        a("s_add_u32 s67, s67, s64")
        for u in range(2):
            a(f"s_add_u32 m0, s65, {32768 + u*4096}")
            a(f"s_add_u32 s66, s67, {u*4096}")
            a(f"buffer_load_dwordx4 v{LIN}, s[{WS}:{WS+3}], s66 offen sc1 lds")
        for u in range(8):
            a(f"s_add_u32 m0, s65, {(u&3)*4096 + (u>>2)*16384}")
            a(f"s_add_u32 s66, s64, {65536 + 16384 + (u&3)*4096 + (u>>2)*65536}")
            a(f"buffer_load_dwordx4 v{LIN}, s[{WS}:{WS+3}], s66 offen sc1 lds")
    order = ["c0"]*8 + ["c1"]*8
    if C8AT < 0: order += ["c8"]*8
    waits = {}
    for i in range(16):
        last = max(k for k, t in enumerate(order) if t == f"c{i}")
        if i == NCHK: last = max(last, max(k for k, t in enumerate(order) if t == "nonce"))
        waits[i] = len(order) - 1 - last
        if i == 0: order += ["nonce"]
        if C8AT == i: order += ["c8"]*8
        if i + 2 <= 15 and i + 2 != 8: order += [f"c{i+2}"]*8
        if i == 13: order += ["poll"]
    for i in range(16):
        w = waits[i]
        a(f"s_waitcnt vmcnt({w})")
        if i == NCHK:
            a(f"s_mov_b32 s55, {SPIN}")
            a.label("Lfa_nspin")
            a(f"v_readfirstlane_b32 s{NONCE}, v10")
            a(f"s_cmp_lg_u32 s{NONCE}, 0")
            a("s_cbranch_scc1 Lfa_ngot")
            a("s_sleep 1")
            a(f"buffer_load_dword v10, v11, s[{DBG}:{DBG+3}], 0 offen sc1")
            a("s_waitcnt vmcnt(0)")
            a("s_sub_u32 s55, s55, 1")
            a("s_cmp_lg_u32 s55, 0")
            a("s_cbranch_scc1 Lfa_nspin")
            a.label("Lfa_ngot")
        a("s_barrier")
        if i in (0,1,2,4,6,8,10,12,14,15): st.p({0:1,1:2,2:3,4:4,6:5,8:6,10:7,12:8,14:9,15:10}[i])
        if i == 0:
            a(f"buffer_load_dword v10, v11, s[{DBG}:{DBG+3}], 0 offen sc1")
        if C8AT == i:
            dma_chunk(8, BKV)
        if i + 2 <= 15 and i + 2 != 8:
            dma_chunk(i + 2)
        if i == PUB + 1:
            a("s_cmp_eq_u32 s48, 0")
            a("s_cbranch_scc0 Lfa_nf")
            write_flag(FA)
            a.label("Lfa_nf")
        if i == 13:
            a(f"buffer_load_dword v13, v12, s[{WS}:{WS+3}], 0 offen sc1")
    st(2)
    a(f"s_mov_b32 s55, {SPIN}")
    a.label("Lfa_aspin")
    a("s_waitcnt vmcnt(0)")
    a(f"v_cmp_eq_u32 vcc, s{NONCE}, v13")
    a("s_nop 4")
    a("s_cmp_eq_u64 vcc, -1")
    a("s_cbranch_scc1 Lfa_agot")
    a("s_sleep 1")
    a(f"buffer_load_dword v13, v12, s[{WS}:{WS+3}], 0 offen sc1")
    a("s_sub_u32 s55, s55, 1")
    a("s_cmp_lg_u32 s55, 0")
    a("s_cbranch_scc1 Lfa_aspin")
    a("s_waitcnt vmcnt(0)")
    a.label("Lfa_agot")
    a_loads()
    st(3)
    a("s_branch Lfa_attn")

    a.label("Lfa_compute")
    a("s_lshr_b32 s48, s3, 1")
    a("s_and_b32 s49, s3, 1")
    a("v_and_b32 v2, 31, v1")
    a("v_lshrrev_b32 v3, 5, v1")
    a("v_bfe_u32 v9, v2, 1, 3")
    a("v_xor_b32 v9, v9, v3")
    a("s_lshl_b32 s50, s48, 12")
    a("v_lshlrev_b32 v18, 7, v2")
    a("v_add_u32 v18, s50, v18")
    for s in range(4):
        a(f"v_xor_b32 v19, {2*s}, v9")
        a("v_lshlrev_b32 v19, 4, v19")
        a(f"v_add_u32 v{10+s}, v18, v19")
        a(f"v_add_u32 v{14+s}, 0x10000, v{10+s}")
    a("v_lshlrev_b32 v24, 3, v3")
    a("v_bfe_u32 v25, v1, 2, 2")
    a("v_add_u32 v24, v24, v25")
    a("s_movk_i32 s50, 384")
    a("v_mul_lo_u32 v24, v24, s50")
    a("v_bfe_u32 v25, v1, 4, 1")
    a("v_lshlrev_b32 v25, 5, v25")
    a("v_add_u32 v24, v24, v25")
    a("v_and_b32 v25, 3, v1")
    a("v_lshlrev_b32 v25, 3, v25")
    a("v_add_u32 v24, v24, v25")
    a("v_add_u32 v24, 8192, v24")
    a("v_bfe_u32 v25, v1, 3, 1")
    a("s_mul_i32 s50, s49, 3")
    for ct in range(3):
        a(f"s_add_u32 s51, s50, {ct}")
        a("v_xor_b32 v26, s51, v25")
        a("v_lshlrev_b32 v26, 6, v26")
        a(f"v_add_u32 v{18+ct}, v24, v26")
        a(f"v_add_u32 v{21+ct}, 0x10000, v{18+ct}")
    a("v_lshlrev_b32 v24, 4, v1")
    a("v_bfe_u32 v25, v1, 4, 1")
    a(f"s_mov_b32 s50, {HEAD_STRIDE}")
    a("v_mul_lo_u32 v25, v25, s50")
    a("v_lshlrev_b32 v26, 8, v3")
    a("v_add_u32 v25, v25, v26")
    a("v_and_b32 v26, 15, v1")
    a("v_lshlrev_b32 v26, 4, v26")
    a("v_add_u32 v25, v25, v26")
    a(f"s_mul_i32 s52, s{S_G}, {4*HEAD_STRIDE}")
    a(f"s_lshl_b32 s53, s{S_TB}, 1")
    a("s_add_u32 s53, s53, s48")
    a("s_lshl_b32 s54, s53, 11")
    a("s_add_u32 s54, s54, 65536")
    a("s_lshl_b32 s53, s53, 10")
    a(f"s_mov_b32 s55, {f32bits(QSCALE):#x}")
    ACC = 64
    for r in range(48): a(f"v_mov_b32 v{ACC+r}, 0")
    early_setup()
    a("s_waitcnt lgkmcnt(0)")
    srd(a, WS, 46, 47, WS_SIZE)
    TLBW = int(os.environ.get("TLBW", "1"))
    if TLBW:
        if TLBW < 3:
            a("s_lshr_b32 s80, s2, 3" if TLBW == 1 else "s_bfe_u32 s80, s2, 0x30003")
            a("s_cmp_eq_u32 s80, 0")
            a("s_cbranch_scc0 Lfa_ntlb")
        a("v_lshlrev_b32 v129, 20, v1")
        a("s_cmp_eq_u32 s3, 0")
        a("s_cbranch_scc0 Lfa_tlb1")
        a(f"buffer_load_dword v131, v129, s[{WS}:{WS+3}], 0 offen")
        a("s_branch Lfa_ntlb")
        a.label("Lfa_tlb1")
        a("s_load_dwordx2 s[80:81], s[0:1], 48")
        a("s_load_dwordx2 s[82:83], s[0:1], 16")
        a("s_load_dwordx2 s[84:85], s[0:1], 40")
        a("s_waitcnt lgkmcnt(0)")
        a("s_cmp_eq_u32 s3, 1")
        a("s_cselect_b32 s86, s80, s82")
        a("s_cselect_b32 s87, s81, s83")
        a("s_cmp_eq_u32 s3, 3")
        a("s_cselect_b32 s86, s84, s86")
        a("s_cselect_b32 s87, s85, s87")
        a("s_mov_b32 s88, s86")
        a("s_and_b32 s89, s87, 0xffff")
        a("s_cmp_eq_u32 s3, 1")
        a(f"s_mov_b32 s90, {512*1024}")
        a(f"s_cselect_b32 s90, {2048*2048}, s90")
        a("s_mov_b32 s91, 0x00020000")
        a("buffer_load_dword v131, v129, s[88:91], 0 offen")
        a.label("Lfa_ntlb")
    if os.environ.get("XTOUCH", "0") == "1":
        a("s_cmp_eq_u32 s3, 3")
        a("s_cbranch_scc0 Lfa_nxt")
        srd(a, XB, 34, 35, 2048*1024)
        a("v_lshrrev_b32 v129, 3, v1")
        a("v_lshlrev_b32 v129, 10, v129")
        a("v_and_b32 v130, 7, v1")
        a("v_lshlrev_b32 v130, 7, v130")
        a("v_add_u32 v129, v129, v130")
        a(f"s_lshl_b32 s60, s{S_TB}, 16")
        a(f"s_and_b32 s61, s{S_G}, 3")
        a("s_lshl_b32 s61, s61, 14")
        a("s_add_u32 s60, s60, s61")
        a("s_add_u32 s61, s60, 8192")
        a(f"buffer_load_dword v131, v129, s[{XB}:{XB+3}], s60 offen")
        a(f"buffer_load_dword v132, v129, s[{XB}:{XB+3}], s61 offen")
        a.label("Lfa_nxt")
    XF = [28, 32]; WF = [36, 48]; PK = 112
    def read_frags(slot, s, buf):
        xr = (10 if slot < 2 else 14) + s
        a(f"ds_read_b128 {vr(XF[buf],4)}, v{xr} offset:{(slot%2)*SLOT}")
        for ct in range(3):
            reg = (18 if slot < 2 else 21) + ct
            off = (slot % 2) * SLOT + s * 6144
            a(f"ds_read_b64_tr_b16 {vr(WF[buf]+4*ct,2)}, v{reg} offset:{off}")
            a(f"ds_read_b64_tr_b16 {vr(WF[buf]+4*ct+2,2)}, v{reg} offset:{off+1536}")
    def body(types, tag):
        L = f"Lpj{tag}"
        st(1)
        a("s_mov_b32 s57, 0")
        a.label(L + "_loop")
        for slot in range(4):
            a("s_barrier")
            if slot == 0:
                a("s_cmp_eq_u32 s57, 2")
                a(f"s_cselect_b32 s58, {BKV}, 0")
                for r in (10, 11, 12, 13, 18, 19, 20):
                    a(f"v_add_u32 v{r}, s58, v{r}")
            if slot == PUB % 4:
                a(f"s_cmp_eq_u32 s57, {PUB // 4}")
                a(f"s_cbranch_scc0 {L}_np")
                a("s_waitcnt vmcnt(0)")
                a.label(L + "_np")
            read_frags(slot, 0, 0)
            for s in range(4):
                buf = s % 2
                if s < 3:
                    read_frags(slot, s+1, buf ^ 1)
                    a("s_waitcnt lgkmcnt(7)")
                else:
                    a("s_waitcnt lgkmcnt(0)")
                for ct in range(3):
                    acc = ACC + ct*16
                    if types[ct] == 'V':
                        mfma(a, acc, XF[buf], WF[buf]+4*ct, acc)
                    else:
                        mfma(a, acc, WF[buf]+4*ct, XF[buf], acc)
            if slot == 0:
                for r in (10, 11, 12, 13, 18, 19, 20):
                    a(f"v_subrev_u32 v{r}, s58, v{r}")
        a("s_add_u32 s57, s57, 1")
        a("s_bitcmp1_b32 s57, 0")
        a(f"s_cbranch_scc1 {L}_loop")
        a("s_nop 15")
        n = 0
        for ct in range(3):
            acc = ACC + ct*16
            c = tag*3 + ct
            ty = types[ct]
            for e in range(2):
                pk = PK + (n % 4)*4; n += 1
                if ty == 'Q':
                    for r in range(8):
                        a(f"v_mul_f32 v{acc+8*e+r}, s55, v{acc+8*e+r}")
                for r in range(4):
                    a(f"v_cvt_pk_bf16_f32 v{pk+r}, v{acc+2*r+8*e}, v{acc+8*e+2*r+1}")
                if ty == 'Q':
                    a(f"s_add_u32 s59, s52, {(2*(c%2)+e)*HEAD_STRIDE}")
                    a("s_add_u32 s59, s59, s53")
                    a(f"buffer_store_dwordx4 {vr(pk,4)}, v24, s[{WS}:{WS+3}], s59 offen sc1")
                elif ty == 'K':
                    a(f"s_add_u32 s59, s52, {(2*(c%2)+e)*HEAD_STRIDE}")
                    a("s_add_u32 s59, s59, s54")
                    a(f"buffer_store_dwordx4 {vr(pk,4)}, v24, s[{WS}:{WS+3}], s59 offen sc1")
                else:
                    a(f"s_add_u32 s59, s52, {(2*(c%2))*HEAD_STRIDE + 1024 + 512*e}")
                    a("s_add_u32 s59, s59, s54")
                    a(f"buffer_store_dwordx4 {vr(pk,4)}, v25, s[{WS}:{WS+3}], s59 offen sc1")
        for r in range(48): a(f"v_mov_b32 v{ACC+r}, 0")
        a(f"s_add_u32 s52, s52, {PROB_STRIDE}")
        a("s_cmp_lt_u32 s57, 4")
        a(f"s_cbranch_scc1 {L}_loop")
        st(2); st(3)
        a("s_branch Lfa_attn")
    a("s_cmp_eq_u32 s49, 0")
    a("s_cbranch_scc0 Lfa_wn1")
    body(['Q', 'Q', 'K'], 0)
    a.label("Lfa_wn1")
    body(['K', 'V', 'V'], 1)

    a.label("Lfa_attn")
    a("s_and_b32 s64, s3, 3")
    a("s_lshl_b32 s64, s64, 11")
    a(f"s_add_u32 s64, s64, 32768")
    a(f"v_add_u32 v{T0}, s64, v{LIN}")
    a(f"v_add_u32 v{T1}, {BKV}, v{LIN}")
    a(f"s_mul_i32 s62, s{S_H}, {HEAD_STRIDE}")
    a("s_lshl_b32 s63, s3, 10")
    a("s_add_u32 s62, s62, s63")
    WOV = 0
    a("v_lshrrev_b32 v0, 3, v1")
    a("v_lshlrev_b32 v0, 10, v0")
    a(f"v_bfe_u32 v{T2}, v1, 4, 1")
    a(f"v_lshlrev_b32 v{T2}, 2, v{T2}")
    a(f"v_and_b32 v{T3}, 7, v1")
    a(f"v_xor_b32 v{T2}, v{T2}, v{T3}")
    a(f"v_lshlrev_b32 v{T2}, 4, v{T2}")
    a(f"v_add_u32 v0, v0, v{T2}")
    a(f"s_lshl_b32 s34, s{S_QB}, 3")
    a("s_add_u32 s34, s34, s3")
    a("s_min_u32 s35, s34, 8")
    a(f"s_mul_i32 s36, s{S_H}, {HEAD_STRIDE}")
    a(f"s_add_u32 s36, s36, {PROB_STRIDE}")
    a("s_load_dwordx2 s[44:45], s[0:1], 16")
    a("s_load_dwordx4 s[48:51], s[0:1], 40")
    a("s_bfe_u32 s75, s2, 0x20001")
    a("s_and_b32 s52, s2, 1")
    a("s_lshl_b32 s52, s52, 2")
    a("s_bfe_u32 s53, s2, 0x20003")
    a("s_add_u32 s39, s52, s53")
    a("s_lshl_b32 s42, s3, 13")
    a("s_lshl_b32 s52, s39, 7")
    a("s_add_u32 s42, s42, s52")
    a("s_waitcnt lgkmcnt(0)")
    srd(a, WOA, 44, 45, 512*1024)
    srd(a, WOB, 48, 49, 512*1024)
    srd(a, OUT, 50, 51, 2048*2048)
    st(4)
    st.l(1)
    a("s_waitcnt vmcnt(8)")
    a("s_barrier")
    st(5)
    st.l(2)
    a(f"ds_read_b128 {vr(QA[0],4)}, v{T0}")
    a(f"ds_read_b128 {vr(QA[1],4)}, v{T0} offset:1024")
    a(f"ds_read_b128 {vr(KF,4)}, v{T1}")
    a("s_waitcnt lgkmcnt(0)")
    mfma(a, SB[0][0], KF, QA[0], "0")
    mfma(a, SB[1][0], KF, QA[1], "0")
    a("s_cmp_eq_u32 s3, 4")
    a("s_cbranch_scc0 La_nnw")
    a(f"v_mov_b32 v{T0}, {XCH + 512}")
    a(f"v_mov_b32 v{T1}, s{NONCE}")
    a(f"ds_write_b32 v{T0}, v{T1}")
    a("s_waitcnt lgkmcnt(0)")
    a.label("La_nnw")
    a("s_barrier")
    a(f"v_mov_b32 v{T0}, {XCH + 512}")
    a(f"ds_read_b32 v{T0}, v{T0}")
    a("s_waitcnt lgkmcnt(0)")
    a(f"v_readfirstlane_b32 s{NONCE}, v{T0}")
    for q in range(2):
        for r in range(16):
            a(f"v_mov_b32 v{OACC[q]+r}, 0") if r < 6 else None
    for q, m in ((0, MX), (1, MX1)):
        s = SB[q][0]
        a(f"v_max_f32 v{m}, v{s}, v{s+1}")
        for r in range(1, 8):
            a(f"v_max3_f32 v{m}, v{s+2*r}, v{s+2*r+1}, v{m}")
    def halves_max(m, t):
        a(f"v_mov_b32 v{t}, v{m}")
        a("s_nop 1")
        a(f"v_permlane32_swap_b32 v{m}, v{t}")
        a("s_nop 1")
        a(f"v_max_f32 v{m}, v{m}, v{t}")
    def read_v(buf, areg, off):
        a("s_mov_b64 exec, s[40:41]")
        a(f"ds_read_b128 {vr(buf,4)}, v{areg} offset:{off}")
        a(f"ds_read_b128 {vr(buf+4,4)}, v{areg} offset:{off+512}")
        a("s_mov_b64 exec, -1")
    def step(cur, p, o, early, qk, pre_pv0, mid, pre_pv1, vb):
        E = lambda i: a(f"v_exp_f32 v{cur+i}, v{cur+i}")
        C = lambda j: a(f"v_cvt_pk_bf16_f32 v{p+j}, v{cur+2*j}, v{cur+2*j+1}")
        E(0); E(1)
        early()
        E(2); E(3); C(0); E(4); C(1); E(5)
        qk()
        E(6); E(7); C(2); E(8); C(3); E(9); E(10)
        pre_pv0()
        mfma(a, o, vb, p, o)
        E(11); C(4); E(12); C(5); E(13); E(14); E(15); C(6); C(7)
        mid()
        pre_pv1()
        mfma(a, o, vb+4, p+4, o)
    nop = lambda: None
    a.label("La_main")
    a(f"ds_read_b128 {vr(KF,4)}, v{VKA}")
    read_v(VF[0], VVA, 0)
    a(f"ds_read_b128 {vr(KF+4,4)}, v{VKA} offset:2048")
    halves_max(MX, TMP)
    halves_max(MX1, TMP)
    for q, m in ((0, MX), (1, MX1)):
        for r in range(16):
            a(f"v_sub_f32 v{CNEG[q]+r}, 0, v{m}")
    a("s_waitcnt lgkmcnt(3)")
    mfma(a, SB[0][0], KF, QA[0], CNEG[0])
    mfma(a, SB[1][0], KF, QA[1], CNEG[1])
    for q in range(2):
        for r in range(16):
            a(f"v_mov_b32 v{OACC[q]+r}, 0")
    U = 8
    SCHED = int(os.environ.get("SCHED", "1"))
    if SCHED == 1:
        for r in range(4): a(f"v_mov_b32 v{PP[1]+4+r}, 0")
    a("s_mov_b32 s38, 0")
    a.raw(".p2align 6")
    a.label("La_loop")
    st.ldyn(3, "a")
    def kv_dma(j):
        for u in range(4):
            a(f"s_add_u32 m0, s63, {(j-1)*32768 + (u&1)*8192 + (u>>1)*16384}")
            a(f"s_add_u32 s66, s62, {65536 + j*16384 + (u&1)*8192 + (u>>1)*65536}")
            a(f"buffer_load_dwordx4 v{LIN}, s[{WS}:{WS+3}], s66 offen sc1 lds")
    def wo_dma(srdr, half, ldsbase):
        for u in range(4):
            a(f"s_add_u32 m0, s63, {ldsbase + u*8192}")
            a(f"s_add_u32 s66, s42, {(256*half + 64*u)*1024}")
            a(f"buffer_load_dwordx4 v{WOV}, s[{srdr}:{srdr+3}], s66 offen lds")
    for n in range(U):
        vb = VF[n % 2]
        if n == 3:
            a("s_cmp_eq_u32 s38, 3")
            a("s_cselect_b32 s64, s73, 1")
            a("s_cmp_eq_u32 s64, 0")
            a("s_cbranch_scc0 La_ng0")
            wo_dma(WOA, 0, 0)
            a.label("La_ng0")
        if n == 1:
            a("s_cmp_lg_u32 s73, 0")
            a("s_cbranch_scc1 La_sd")
            a("s_cmp_eq_u32 s38, 0")
            a("s_cbranch_scc0 La_s1")
            kv_dma(2)
            a("s_branch La_sd")
            a.label("La_s1")
            a("s_cmp_eq_u32 s38, 1")
            a("s_cbranch_scc0 La_s2")
            kv_dma(3)
            a("s_branch La_sd")
            a.label("La_s2")
            a("s_cmp_lt_u32 s3, 4")
            a("s_cbranch_scc1 La_sd")
            a("s_cmp_eq_u32 s38, 2")
            a("s_cbranch_scc0 La_s3")
            a(f"buffer_load_dword v{T2}, v2, s[{WS}:{WS+3}], 0 offen sc1")
            a("s_branch La_sd")
            a.label("La_s3")
            a(f"s_mov_b32 s67, {SPIN}")
            a.label("La_bspin")
            a("s_waitcnt vmcnt(0)")
            a(f"v_cmp_eq_u32 vcc, s{NONCE}, v{T2}")
            a("s_nop 4")
            a("s_cmp_eq_u64 vcc, -1")
            a("s_cbranch_scc1 La_bgot")
            a("s_sleep 1")
            a(f"buffer_load_dword v{T2}, v2, s[{WS}:{WS+3}], 0 offen sc1")
            a("s_sub_u32 s67, s67, 1")
            a("s_cmp_lg_u32 s67, 0")
            a("s_cbranch_scc1 La_bspin")
            a("s_waitcnt vmcnt(0)")
            a.label("La_bgot")
            b_loads(a, LIN, QBL)
            a.label("La_sd")
        if n == 5:
            a("s_cmp_lg_u32 s73, 0")
            a("s_cbranch_scc1 La_nowait")
            a("s_cmp_eq_u32 s38, 3")
            a("s_cbranch_scc1 La_nowait")
            a("s_cmp_eq_u32 s38, 2")
            a("s_cbranch_scc1 La_w2")
            a("s_cmp_eq_u32 s38, 1")
            a("s_cbranch_scc1 La_w1")
            a("s_waitcnt vmcnt(0)")
            a("s_branch La_wd")
            a.label("La_w1")
            a("s_waitcnt vmcnt(4)")
            a("s_branch La_wd")
            a.label("La_w2")
            a("s_waitcnt vmcnt(1)")
            a.label("La_wd")
            a("s_barrier")
            a("s_cmp_eq_u32 s38, 0")
            a("s_cselect_b32 s64, s3, 0")
            a("s_cmp_eq_u32 s64, 4")
            a("s_cbranch_scc0 La_nowait")
            a(f"s_add_u32 s56, s74, {FB}")
            a(f"v_mov_b32 v{T0}, s56")
            a(f"v_mov_b32 v{T1}, s{NONCE}")
            a("s_mov_b64 exec, 1")
            a(f"buffer_store_dword v{T1}, v{T0}, s[{WS}:{WS+3}], 0 offen sc1")
            a("s_mov_b64 exec, -1")
            a.label("La_nowait")
        for q in range(2):
            cur, nxt = SB[q][n % 2], SB[q][(n+1) % 2]
            def early(n=n):
                if n + 1 < U: read_v(VF[(n+1) % 2], VVA, (n+1)*2048)
                else: read_v(VF[(n+1) % 2], VVN, 0)
            def qk(q=q, nxt=nxt, n=n):
                if q == 0: a("s_waitcnt lgkmcnt(2)" if SCHED == 0 else "s_waitcnt lgkmcnt(0)")
                mfma(a, nxt, KF+4*((n+1) % 2), QA[q], CNEG[q])
                if q == 1:
                    if n + 2 < U: a(f"ds_read_b128 {vr(KF+4*(n % 2),4)}, v{VKA} offset:{(n+2)*2048}")
                    else: a(f"ds_read_b128 {vr(KF+4*(n % 2),4)}, v{VKN} offset:{(n+2-U)*2048}")
            if SCHED == 0:
                step(cur, PP[q], OACC[q], early if q == 0 else nop, qk, nop,
                     lambda: a("s_nop 1"), nop, vb)
            else:
                p = PP[q]
                E = lambda i: a(f"v_exp_f32 v{cur+i}, v{cur+i}")
                C = lambda j: a(f"v_cvt_pk_bf16_f32 v{p+j}, v{cur+2*j}, v{cur+2*j+1}")
                pq = 1 - q
                pvb = VF[n % 2] if q == 1 else VF[(n+1) % 2]
                E(0); E(1)
                mfma(a, OACC[pq], pvb+4, PP[pq]+4, OACC[pq])
                E(2); E(3); E(4); C(0); E(5); C(1)
                qk()
                E(6); E(7); E(8); C(2); E(9); C(3); E(10); E(11)
                mfma(a, OACC[q], vb, p, OACC[q])
                E(12); C(4); E(13); C(5); E(14); E(15)
                if q == 0: early()
                C(6); C(7)
    a(f"v_mov_b32 v{VKA}, v{VKN}")
    a(f"v_mov_b32 v{VVA}, v{VVN}")
    a(f"v_add_u32 v{VKN}, 32768, v{VKN}")
    a(f"v_add_u32 v{VVN}, 32768, v{VVN}")
    a("s_add_u32 s38, s38, 1")
    a("s_cmp_lg_u32 s38, 4")
    a("s_cbranch_scc1 La_loop")
    if SCHED == 1:
        mfma(a, OACC[1], VF[1]+4, PP[1]+4, OACC[1])
    st(6)
    st.l(7)
    a("s_waitcnt lgkmcnt(0)")
    a("s_nop 15")
    a(f"v_mov_b32 v{TMP}, 0x71800000")
    a(f"v_cmp_lt_f32 vcc, v{OACC[0]+8}, v{TMP}")
    a(f"v_cmp_lt_f32 s[58:59], v{OACC[1]+8}, v{TMP}")
    a("s_nop 4")
    a("s_and_b64 s[58:59], s[58:59], vcc")
    a("s_cmp_eq_u64 s[58:59], -1")
    a("s_cselect_b32 s64, 0, 1")
    a("s_cmp_lg_u32 s73, 0")
    a("s_cselect_b32 s64, 0, s64")
    a("s_lshl_b32 s65, s3, 2")
    a(f"s_add_u32 s65, s65, {XCH}")
    a(f"v_mov_b32 v{T0}, s65")
    a(f"v_mov_b32 v{T1}, s64")
    a(f"ds_write_b32 v{T0}, v{T1}")
    a("s_mul_i32 s65, s3, 2560")
    a(f"s_add_u32 s65, s65, {XCH + 1024}")
    a(f"v_add_u32 v{T0}, s65, v{LIN}")
    a(f"v_lshrrev_b32 v{T1}, 2, v{LIN}")
    a(f"v_add_u32 v{T1}, s65, v{T1}")
    a("s_cmp_eq_u32 s70, 0")
    a("s_cbranch_scc0 La_sendq0")
    for lab, qs in (("La_sendq1", 1), ("La_sendq0", 0)):
        if qs == 0: a.label(lab)
        a(f"ds_write_b128 v{T0}, {vr(OACC[qs],4)}")
        a(f"ds_write_b128 v{T0}, {vr(OACC[qs]+4,4)} offset:1024")
        a(f"ds_write_b32 v{T1}, v{OACC[qs]+8} offset:2048")
        if qs == 1:
            a("s_branch La_sent")
        else:
            for r in range(9):
                a(f"v_mov_b32 v{OACC[0]+r}, v{OACC[1]+r}")
    a.label("La_sent")
    a("s_waitcnt vmcnt(0) lgkmcnt(0)")
    a("s_barrier")
    a(f"v_and_b32 v{T2}, 7, v1")
    a(f"v_lshlrev_b32 v{T2}, 2, v{T2}")
    a(f"v_add_u32 v{T2}, {XCH}, v{T2}")
    a(f"ds_read_b32 v{T2}, v{T2}")
    a("s_xor_b32 s64, s3, 4")
    a("s_mul_i32 s65, s64, 2560")
    a(f"s_add_u32 s65, s65, {XCH + 1024}")
    a(f"v_add_u32 v{T0}, s65, v{LIN}")
    a(f"v_lshrrev_b32 v{T1}, 2, v{LIN}")
    a(f"v_add_u32 v{T1}, s65, v{T1}")
    a(f"ds_read_b128 {vr(SB[0][0],4)}, v{T0}")
    a(f"ds_read_b128 {vr(SB[0][0]+4,4)}, v{T0} offset:1024")
    a(f"ds_read_b32 v{SB[0][0]+8}, v{T1} offset:2048")
    a("s_lshl_b32 s37, s3, 11")
    a(f"s_add_u32 s37, s37, {BKV}")
    a("s_waitcnt lgkmcnt(0)")
    a(f"v_cmp_ne_u32 vcc, 0, v{T2}")
    a("s_nop 4")
    a("s_cmp_eq_u64 vcc, 0")
    a("s_cbranch_scc1 La_done")
    a("s_barrier")
    a("s_mov_b32 s73, 1")
    for u in range(4):
        a(f"s_add_u32 m0, s63, {BKV + (u&1)*8192 + (u>>1)*16384}")
        a(f"s_add_u32 s66, s62, {65536 + (u&1)*8192 + (u>>1)*65536}")
        a(f"buffer_load_dwordx4 v{LIN}, s[{WS}:{WS+3}], s66 offen sc1 lds")
    kv_dma(1)
    a("s_waitcnt vmcnt(0)")
    a("s_barrier")
    a(f"v_mov_b32 v{MX}, 0xff800000")
    a(f"v_mov_b32 v{MX1}, 0xff800000")
    a("s_mov_b32 s38, 0")
    a.label("La_fb")
    a("s_bfe_u32 s64, s38, 0x20003")
    a("s_sub_u32 s65, s64, 1")
    a("s_lshl_b32 s65, s65, 15")
    a("s_cmp_eq_u32 s64, 0")
    a(f"s_cselect_b32 s65, {BKV}, s65")
    a("s_lshr_b32 s64, s38, 5")
    a("s_lshl_b32 s64, s64, 14")
    a("s_add_u32 s65, s65, s64")
    a("s_and_b32 s64, s38, 7")
    a("s_lshl_b32 s64, s64, 11")
    a("s_add_u32 s65, s65, s64")
    a(f"v_add_u32 v{T0}, s65, v{LIN}")
    a(f"ds_read_b128 {vr(KF,4)}, v{T0}")
    a("s_waitcnt lgkmcnt(0)")
    mfma(a, SB[0][0], KF, QA[0], "0")
    mfma(a, SB[1][0], KF, QA[1], "0")
    a("s_nop 15")
    for q, m in ((0, MX), (1, MX1)):
        s = SB[q][0]
        for r in range(8):
            a(f"v_max3_f32 v{m}, v{s+2*r}, v{s+2*r+1}, v{m}")
    a("s_add_u32 s38, s38, 1")
    a("s_cmp_lg_u32 s38, 64")
    a("s_cbranch_scc1 La_fb")
    a(f"v_add_u32 v{VKN}, s71, v{LIN}")
    a(f"v_add_u32 v{VVN}, s71, v{VLO}")
    a(f"v_add_u32 v{VKA}, s72, v{LIN}")
    a(f"v_add_u32 v{VVA}, s72, v{VLO}")
    a("s_branch La_main")
    a.label("La_done")
    a("s_cmp_eq_u32 s73, 0")
    a("s_cbranch_scc1 La_bok")
    a("s_barrier")
    wo_dma(WOA, 0, 0)
    a("s_cmp_lt_u32 s3, 4")
    a("s_cbranch_scc1 La_brl")
    b_loads(a, LIN, QBL)
    a.label("La_brl")
    a("s_waitcnt vmcnt(0)")
    a("s_barrier")
    a.label("La_bok")
    a(f"v_add_u32 v{VKA}, s37, v{LIN}")
    a(f"v_add_u32 v{VVA}, s37, v{VLO}")
    a("s_lshl_b32 s64, s3, 10")
    a(f"s_add_u32 s64, s64, {QBL}")
    a(f"v_add_u32 v{T0}, s64, v{LIN}")
    a(f"ds_read_b128 {vr(QB,4)}, v{T0}")
    for i in range(8, -1, -1):
        a(f"ds_read_b128 {vr(KF+4*i,4)}, v{VKA} offset:{i*2048}")
    for r in range(9):
        a(f"v_add_f32 v{OACC[0]+r}, v{OACC[0]+r}, v{SB[0][0]+r}")
    a("s_and_b32 s64, s3, 3")
    a("s_lshl_b32 s64, s64, 1")
    a("s_add_u32 s64, s64, s70")
    a(f"s_lshl_b32 s65, s{S_QB}, 3")
    a("s_add_u32 s64, s64, s65")
    a("s_lshl_b32 s64, s64, 10")
    a(f"s_lshl_b32 s68, s{S_H}, 16")
    a("s_add_u32 s68, s68, s64")
    a(f"s_add_u32 s68, s68, {O_BASE}")
    def finish_o(o, lreg, soff):
        a(f"v_rcp_f32 v{TMP}, v{lreg}")
        a("s_nop 1")
        for r in range(8):
            a(f"v_mul_f32 v{o+r}, v{o+r}, v{TMP}")
        for r in range(4):
            a(f"v_cvt_pk_bf16_f32 v{PP[1]+r}, v{o+2*r}, v{o+2*r+1}")
        a(f"buffer_store_dwordx4 {vr(PP[1],4)}, v{LIN}, s[{WS}:{WS+3}], {soff} offen sc1")
    def o_flag(p):
        a("s_lshl_b32 s56, s2, 3")
        a("s_add_u32 s56, s56, s3")
        a("s_lshl_b32 s56, s56, 7")
        a(f"s_add_u32 s56, s56, {FO + p*262144}")
        a(f"v_mov_b32 v{T0}, s56")
        a(f"v_mov_b32 v{T1}, s{NONCE}")
        a("s_mov_b64 exec, 1")
        a(f"buffer_store_dword v{T1}, v{T0}, s[{WS}:{WS+3}], 0 offen sc1")
        a("s_mov_b64 exec, -1")
    a("s_waitcnt lgkmcnt(6)")
    SP = [80, 96, 112, 128]
    def qk1(i):
        c = MHI if i == 8 else (MLO if i == 0 else "0")
        mfma(a, SP[(8-i) % 4], KF+4*i, QB, c)
    qk1(8); qk1(7); qk1(6)
    finish_o(OACC[0], OACC[0]+8, "s68")
    st(7)
    st.l(8)
    a("s_waitcnt lgkmcnt(0)")
    a("s_barrier")
    read_v(VF[0], VVA, 8*2048)
    a("s_nop 0")
    a("s_mov_b32 s38, s35")
    for i in range(8, -1, -1):
        s = SP[(8-i) % 4]
        if i == 8:
            a(f"v_max_f32 v{MX}, v{s}, v{s+1}")
            for r in range(1, 8):
                a(f"v_max3_f32 v{MX}, v{s+2*r}, v{s+2*r+1}, v{MX}")
        else:
            for r in range(8):
                a(f"v_max3_f32 v{MX}, v{s+2*r}, v{s+2*r+1}, v{MX}")
        if i > 0:
            a("s_cmp_eq_u32 s38, 0")
            a("s_cbranch_scc1 Lb_p1_done")
            a("s_sub_u32 s38, s38, 1")
        if i - 3 >= 0:
            qk1(i - 3)
    a.label("Lb_p1_done")
    halves_max(MX, TMP)
    st(8)
    st.l(9)
    a("s_waitcnt vmcnt(0)")
    o_flag(0)
    a("s_mov_b32 s43, 0")
    for r in range(16):
        a(f"v_sub_f32 v{MHI+r}, v{MHI+r}, v{MX}")
    a("s_nop 1")
    mfma(a, SP[0], KF+4*8, QB, MHI)
    for r in range(16):
        a(f"v_sub_f32 v{CNEG[0]+r}, 0, v{MX}")
        a(f"v_sub_f32 v{MLO+r}, v{MLO+r}, v{MX}")
        a(f"v_mov_b32 v{OACC[0]+r}, 0")
    WG = [(WOA, 1, 32768), (WOB, 0, 65536), (WOB, 1, 98304)]
    wo_dma(*WG[0])
    a("s_mov_b32 s43, 1")
    a("s_mov_b32 s38, s35")
    for n, i in enumerate(range(8, -1, -1)):
        cur, nxt = SP[n % 2], SP[(n+1) % 2]
        vb = VF[n % 2]
        if i > 0:
            cn = MLO if i - 1 == 0 else CNEG[0]
            step(cur, PP[0], OACC[0],
                 lambda: read_v(VF[(n+1) % 2], VVA, (i-1)*2048),
                 lambda: mfma(a, nxt, KF+4*(i-1), QB, cn),
                 lambda: a("s_waitcnt lgkmcnt(2)"),
                 lambda: a("s_nop 1"), nop, vb)
            if n in (1, 3):
                wo_dma(*WG[1 if n == 1 else 2])
                a(f"s_mov_b32 s43, {2 if n == 1 else 3}")
            a("s_cmp_eq_u32 s38, 0")
            a("s_cbranch_scc1 Lb_p2_done")
            a("s_sub_u32 s38, s38, 1")
        else:
            step(cur, PP[0], OACC[0], nop, nop,
                 lambda: a("s_waitcnt lgkmcnt(0)"),
                 lambda: a("s_nop 1"), nop, vb)
    a.label("Lb_p2_done")
    st(9)
    st.l(10)
    st.t(1)
    a("s_cmp_ge_u32 s43, 2")
    a("s_cbranch_scc1 Lb_g1")
    wo_dma(*WG[1])
    a.label("Lb_g1")
    a("s_cmp_ge_u32 s43, 3")
    a("s_cbranch_scc1 Lb_g2")
    wo_dma(*WG[2])
    a.label("Lb_g2")
    a("s_nop 15")
    a(f"s_lshl_b32 s68, s{S_H}, 16")
    a("s_lshl_b32 s69, s34, 10")
    a("s_add_u32 s68, s68, s69")
    a(f"s_add_u32 s68, s68, {O_BASE + O_PROB}")
    finish_o(OACC[0], OACC[0]+8, "s68")
    OF, ACC2, WF2 = 16, 80, 112
    a("s_lshr_b32 s52, s3, 2")
    a("s_and_b32 s53, s3, 1")
    a("s_bfe_u32 s54, s3, 0x10001")
    a("s_lshl_b32 s55, s75, 1")
    a("s_add_u32 s55, s55, s53")
    a("s_lshl_b32 s56, s53, 2")
    a("s_add_u32 s56, s56, s75")
    a("s_cmp_eq_u32 s52, 0")
    a("s_cselect_b32 s56, s56, s55")
    a(f"s_lshl_b32 s57, s{S_QB}, 5")
    a("s_lshl_b32 s58, s54, 4")
    a("s_add_u32 s57, s57, s58")
    a("s_lshl_b32 s57, s57, 3")
    a("s_add_u32 s57, s57, s56")
    a("s_lshl_b32 s57, s57, 7")
    a("s_lshl_b32 s58, s52, 18")
    a("s_add_u32 s57, s57, s58")
    a(f"s_add_u32 s57, s57, {FO}")
    a(f"v_and_b32 v{T2}, 15, v1")
    a(f"v_lshlrev_b32 v{T2}, 10, v{T2}")
    a(f"v_add_u32 v{T2}, s57, v{T2}")
    a(f"s_lshl_b32 s59, s{S_QB}, 3")
    a("s_add_u32 s59, s59, s55")
    a("s_lshl_b32 s60, s59, 10")
    a(f"s_mul_i32 s61, s52, {O_PROB}")
    a("s_add_u32 s60, s60, s61")
    a(f"s_add_u32 s60, s60, {O_BASE}")
    a("s_bfe_u32 s61, s2, 0x20003")
    a("s_lshl_b32 s61, s61, 2")
    a(f"v_lshrrev_b32 v{T0}, 5, v1")
    a(f"v_lshlrev_b32 v{T1}, 2, v{T0}")
    a(f"v_bfe_u32 v{T3}, v1, 2, 2")
    a(f"v_add_u32 v{T1}, v{T1}, v{T3}")
    a(f"v_lshlrev_b32 v{T1}, 7, v{T1}")
    a(f"v_bfe_u32 v{T3}, v1, 4, 1")
    a(f"v_lshlrev_b32 v{T3}, 5, v{T3}")
    a(f"v_add_u32 v{T1}, v{T1}, v{T3}")
    a(f"v_and_b32 v{T3}, 3, v1")
    a(f"v_lshlrev_b32 v{T3}, 3, v{T3}")
    a(f"v_add_u32 v{T1}, v{T1}, v{T3}")
    a(f"v_bfe_u32 v{T3}, v1, 3, 1")
    a(f"v_lshlrev_b32 v{T3}, 6, v{T3}")
    a("s_lshl_b32 s62, s52, 16")
    a("s_lshl_b32 s63, s54, 15")
    a("s_add_u32 s62, s62, s63")
    a(f"v_add_u32 v{T1}, s62, v{T1}")
    a(f"v_add_u32 v{VKA}, v{T1}, v{T3}")
    a(f"v_xor_b32 v{T3}, 64, v{T3}")
    a(f"v_add_u32 v{VVA}, v{T1}, v{T3}")
    a(f"v_and_b32 v{VKN}, 31, v1")
    a(f"v_lshlrev_b32 v{VKN}, 11, v{VKN}")
    a(f"v_lshlrev_b32 v{T0}, 4, v{T0}")
    a(f"v_add_u32 v{VKN}, v{VKN}, v{T0}")
    st.t(2)
    a("s_waitcnt vmcnt(0)")
    st.t(3)
    o_flag(1)
    st(10)
    a("s_lshl_b32 s63, s54, 20")
    a("s_add_u32 s60, s60, s63")
    def poll_and_load(tag):
        a(f"s_mov_b32 s67, {SPIN}")
        a.label(f"Lo_spin{tag}")
        a(f"buffer_load_dword v{T3}, v{T2}, s[{WS}:{WS+3}], 0 offen sc1")
        a("s_waitcnt vmcnt(0)")
        a(f"v_cmp_eq_u32 vcc, s{NONCE}, v{T3}")
        a("s_nop 4")
        a("s_cmp_eq_u64 vcc, -1")
        a(f"s_cbranch_scc1 Lo_got{tag}")
        a("s_sleep 1")
        a("s_sub_u32 s67, s67, 1")
        a("s_cmp_lg_u32 s67, 0")
        a(f"s_cbranch_scc1 Lo_spin{tag}")
        a.label(f"Lo_got{tag}")
        for hh in range(16):
            a(f"s_add_u32 s64, s60, {hh*65536}")
            a(f"buffer_load_dwordx4 {vr(OF+4*hh,4)}, v{LIN}, s[{WS}:{WS+3}], s64 offen sc1")
    poll_and_load("A")
    st.t(4)
    a("s_barrier")
    st.t(5)
    def rd(hh, buf):
        for ct, reg in ((0, VKA), (1, VVA)):
            a(f"ds_read_b64_tr_b16 {vr(WF2+8*buf+4*ct,2)}, v{reg} offset:{hh*2048}")
            a(f"ds_read_b64_tr_b16 {vr(WF2+8*buf+4*ct+2,2)}, v{reg} offset:{hh*2048+1024}")
    rd(0, 0)
    for hh in range(16):
        buf = hh % 2
        if hh < 15:
            rd(hh+1, buf ^ 1)
            a(f"s_waitcnt vmcnt({15-hh}) lgkmcnt(4)")
        else:
            a("s_waitcnt vmcnt(0) lgkmcnt(0)")
        for ct in range(2):
            acc = ACC2 + 16*ct
            mfma(a, acc, WF2+8*buf+4*ct, OF+4*hh, "0" if hh == 0 else acc)
    st.t(6)
    a("s_lshl_b32 s64, s3, 12")
    a(f"s_add_u32 s64, s64, {BKV}")
    a(f"v_add_u32 v{T0}, s64, v{LIN}")
    a("s_xor_b32 s65, s3, 2")
    a("s_lshl_b32 s65, s65, 12")
    a(f"s_add_u32 s65, s65, {BKV}")
    a(f"v_add_u32 v{T1}, s65, v{LIN}")
    a("s_nop 15")
    a("s_cmp_eq_u32 s54, 0")
    a("s_cbranch_scc0 Lo_send0")
    for r in range(4):
        a(f"ds_write_b128 v{T0}, {vr(ACC2+16+4*r,4)} offset:{r*1024}")
    a("s_branch Lo_sent")
    a.label("Lo_send0")
    for r in range(4):
        a(f"ds_write_b128 v{T0}, {vr(ACC2+4*r,4)} offset:{r*1024}")
    for r in range(16):
        a(f"v_mov_b32 v{ACC2+r}, v{ACC2+16+r}")
    a.label("Lo_sent")
    a("s_waitcnt lgkmcnt(0)")
    a("s_barrier")
    st.t(7)
    for r in range(4):
        a(f"ds_read_b128 {vr(OF+4*r,4)}, v{T1} offset:{r*1024}")
    a("s_lshl_b32 s64, s59, 16")
    a("s_lshl_b32 s65, s52, 10")
    a("s_add_u32 s64, s64, s65")
    a("s_lshl_b32 s65, s39, 7")
    a("s_add_u32 s64, s64, s65")
    a("s_lshl_b32 s65, s54, 6")
    a("s_add_u32 s64, s64, s65")
    a("s_waitcnt lgkmcnt(0)")
    for r in range(16):
        a(f"v_add_f32 v{ACC2+r}, v{ACC2+r}, v{OF+r}")
    for pr in range(2):
        b = ACC2 + 8*pr
        pk = WF2 + 4*pr
        for r in range(4):
            a(f"v_cvt_pk_bf16_f32 v{pk+r}, v{b+2*r}, v{b+2*r+1}")
        a("s_nop 1")
        a(f"v_permlane32_swap_b32 v{pk}, v{pk+2}")
        a(f"v_permlane32_swap_b32 v{pk+1}, v{pk+3}")
        a("s_nop 1")
        a(f"buffer_store_dwordx4 {vr(pk,4)}, v{VKN}, s[{OUT}:{OUT+3}], s64 offen offset:{pr*32} {os.environ.get('OUTF','')}")
    st.t(8)
    if st.ft: a("s_waitcnt vmcnt(0)")
    st.t(9); st.t(10)
    st(11)
    st.p(11)
    st.flush(8, 12)
    a.label("Lfa_end")
    a("s_endpgm")

def b_loads(a, LIN, QBL):
    a("s_sub_u32 s51, s3, 4")
    a("s_lshl_b32 s51, s51, 10")
    a(f"s_lshl_b32 s50, s{S_QB}, 14")
    a("s_add_u32 s50, s50, s51")
    a("s_sub_u32 s50, s50, 16384")
    for u in range(8):
        a(f"s_add_u32 s54, s50, {u*4096}")
        a("s_max_i32 s54, s54, 0")
        a("s_add_u32 s54, s54, s36")
        a("s_add_u32 s54, s54, 65536")
        a(f"s_add_u32 m0, s51, {BKV + u*4096}")
        a(f"buffer_load_dwordx4 v{LIN}, s[{WS}:{WS+3}], s54 offen sc1 lds")
    a(f"s_lshl_b32 s50, s{S_QB}, 13")
    a("s_add_u32 s50, s50, s36")
    a("s_add_u32 s50, s50, s51")
    for u in range(2):
        a(f"s_add_u32 m0, s51, {QBL + u*4096}")
        a(f"s_add_u32 s54, s50, {u*4096}")
        a(f"buffer_load_dwordx4 v{LIN}, s[{WS}:{WS+3}], s54 offen sc1 lds")

def gen_oproj(a):
    a.raw(".p2align 8")
    a.raw(".type oproj_kernel,@function")
    a.label("oproj_kernel")
    a("s_cmp_ge_u32 s2, 256")
    a("s_cbranch_scc1 Lop_end")
    st = Stamper(a, "oproj", 1, "s20")
    st()
    a("s_load_dwordx2 s[4:5], s[0:1], 16")
    a("s_load_dwordx2 s[26:27], s[0:1], 40")
    a("s_load_dwordx2 s[28:29], s[0:1], 48")
    a("s_load_dwordx2 s[30:31], s[0:1], 64")
    a("s_and_b32 s32, s2, 7")
    a("s_lshr_b32 s33, s2, 3")
    a("s_lshr_b32 s23, s32, 2")
    a("s_and_b32 s34, s32, 3")
    a("s_lshl_b32 s34, s34, 2")
    a("s_and_b32 s35, s33, 3")
    a("s_add_u32 s24, s34, s35")
    a("s_lshr_b32 s25, s33, 2")
    a("v_and_b32 v1, 63, v0")
    a("v_lshrrev_b32 v2, 6, v0")
    a("s_nop 0")
    a("v_readfirstlane_b32 s20, v2")
    a("v_lshrrev_b32 v2, 3, v1")
    a("v_lshlrev_b32 v2, 10, v2")
    a("v_bfe_u32 v3, v1, 4, 1")
    a("v_lshlrev_b32 v3, 2, v3")
    a("v_and_b32 v5, 7, v1")
    a("v_xor_b32 v3, v3, v5")
    a("v_lshlrev_b32 v3, 4, v3")
    a("v_add_u32 v4, v2, v3")
    a("v_lshlrev_b32 v5, 4, v1")
    a("s_waitcnt lgkmcnt(0)")
    a("s_cmp_eq_u32 s23, 0")
    a("s_cselect_b32 s4, s4, s26")
    a("s_cselect_b32 s5, s5, s27")
    srd(a, 8, 4, 5, 512*1024)
    a(f"s_mul_i32 s36, s23, {O_PROB}")
    a(f"s_add_u32 s36, s36, {O_BASE}")
    a("s_add_u32 s30, s30, s36")
    a("s_addc_u32 s31, s31, 0")
    srd(a, 12, 30, 31, O_PROB)
    a("s_lshl_b32 s40, s20, 13")
    a("s_lshl_b32 s36, s25, 7")
    a("s_add_u32 s40, s40, s36")
    a("s_lshl_b32 s41, s20, 10")
    OF = 64
    a("s_lshl_b32 s42, s24, 2")
    a("s_add_u32 s42, s42, s20")
    a("s_lshl_b32 s43, s42, 10")
    a("s_lshl_b32 s49, s25, 2")
    a("s_and_b32 s47, s24, 3")
    a("s_lshl_b32 s47, s47, 3")
    a("s_add_u32 s49, s49, s47")
    a("s_lshl_b32 s46, s49, 4")
    a("s_lshl_b32 s47, s20, 3")
    a("s_add_u32 s46, s46, s47")
    a("s_lshl_b32 s48, s25, 7")
    def wdma(u):
        a(f"s_add_u32 m0, s41, {u*4096}")
        a(f"s_add_u32 s44, s46, {u*32}")
        a("s_and_b32 s44, s44, 511")
        a("s_lshl_b32 s44, s44, 10")
        a("s_add_u32 s44, s44, s48")
        a("buffer_load_dwordx4 v4, s[8:11], s44 offen lds")
    def oload(H):
        a(f"s_add_u32 s44, s49, {H}")
        a("s_and_b32 s44, s44, 31")
        a("s_lshl_b32 s44, s44, 16")
        a("s_add_u32 s44, s44, s43")
        a(f"buffer_load_dwordx4 {vr(OF+4*H,4)}, v5, s[12:15], s44 offen")
    for q in range(4):
        for u in range(4): wdma(4*q+u)
        for H in range(8): oload(8*q+H)
    srd(a, 16, 28, 29, 2048*2048)
    a("v_lshrrev_b32 v2, 5, v1")
    a("v_lshlrev_b32 v3, 2, v2")
    a("v_bfe_u32 v8, v1, 2, 2")
    a("v_add_u32 v3, v3, v8")
    a("v_lshlrev_b32 v3, 7, v3")
    a("v_bfe_u32 v8, v1, 4, 1")
    a("v_lshlrev_b32 v8, 5, v8")
    a("v_add_u32 v3, v3, v8")
    a("v_and_b32 v8, 3, v1")
    a("v_lshlrev_b32 v8, 3, v8")
    a("v_add_u32 v3, v3, v8")
    a("v_bfe_u32 v8, v1, 3, 1")
    a("v_lshlrev_b32 v8, 6, v8")
    a("v_add_u32 v6, v3, v8")
    a("v_xor_b32 v8, 64, v8")
    a("v_add_u32 v7, v3, v8")
    a("v_and_b32 v8, 31, v1")
    a("v_lshlrev_b32 v8, 11, v8")
    a("v_lshlrev_b32 v9, 4, v2")
    a("v_add_u32 v8, v8, v9")
    ACC = 16
    st()
    WF = [48, 56]
    def rd(H, buf):
        for ct in range(2):
            a(f"ds_read_b64_tr_b16 {vr(WF[buf]+4*ct,2)}, v{6+ct} offset:{H*2048}")
            a(f"ds_read_b64_tr_b16 {vr(WF[buf]+4*ct+2,2)}, v{6+ct} offset:{H*2048+1024}")
    for q in range(4):
        a(f"s_waitcnt vmcnt({8 + 12*(3-q)})")
        a("s_barrier")
        rd(8*q, 0)
        for hh in range(8):
            H = 8*q + hh
            buf = hh % 2
            if hh < 7:
                rd(H+1, buf ^ 1)
                a(f"s_waitcnt vmcnt({7-hh + 12*(3-q)}) lgkmcnt(4)")
            else:
                a(f"s_waitcnt vmcnt({12*(3-q)}) lgkmcnt(0)")
            for ct in range(2):
                acc = ACC+16*ct
                mfma(a, acc, WF[buf]+4*ct, OF+4*H, "0" if H == 0 else acc)
    a("s_nop 15")
    st()
    a("s_lshl_b32 s44, s42, 16")
    a("s_lshl_b32 s45, s23, 10")
    a("s_add_u32 s44, s44, s45")
    a("s_lshl_b32 s45, s25, 7")
    a("s_add_u32 s44, s44, s45")
    for ct in range(2):
        for pr in range(2):
            b = ACC + 16*ct + 8*pr
            pk = 48 + (ct*2+pr)*4
            for r in range(4):
                a(f"v_cvt_pk_bf16_f32 v{pk+r}, v{b+2*r}, v{b+2*r+1}")
            a("s_nop 1")
            a(f"v_permlane32_swap_b32 v{pk}, v{pk+2}")
            a(f"v_permlane32_swap_b32 v{pk+1}, v{pk+3}")
            a("s_nop 1")
            a(f"buffer_store_dwordx4 {vr(pk,4)}, v8, s[16:19], s44 offen offset:{ct*64+pr*32}")
    st()
    st.flush(4)
    a.label("Lop_end")
    a("s_endpgm")

def kd(name, vgpr, sgpr=102):
    acc = (vgpr + 3)//4*4
    return f""".section .rodata,"a"
.p2align 6
.amdhsa_kernel {name}
  .amdhsa_next_free_vgpr {vgpr}
  .amdhsa_next_free_sgpr {sgpr}
  .amdhsa_accum_offset {acc}
  .amdhsa_group_segment_fixed_size 0
  .amdhsa_kernarg_size 72
  .amdhsa_user_sgpr_count 2
  .amdhsa_user_sgpr_kernarg_segment_ptr 1
  .amdhsa_system_sgpr_workgroup_id_x 1
.end_amdhsa_kernel
"""

HEADER = """; Kernarg layout for this problem (72 bytes, ptrs only, base s[0:1]):
;   offset   0: d_in[0] A_x  shape=(1, 2048, 512) dtype=bfloat16
;   offset   8: d_in[1] A_wqkv  shape=(512, 1536) dtype=bfloat16
;   offset  16: d_in[2] A_wo  shape=(512, 512) dtype=bfloat16
;   offset  24: d_in[3] B_x  shape=(1, 2048, 512) dtype=bfloat16
;   offset  32: d_in[4] B_wqkv  shape=(512, 1536) dtype=bfloat16
;   offset  40: d_in[5] B_wo  shape=(512, 512) dtype=bfloat16
;   offset  48: d_out     shape=(1, 2048, 1024) dtype=bfloat16
;   offset  56: d_debug   256 bytes
;   offset  64: d_ws      268435456 bytes workspace
; @launch grid=(256,1,1) block=(512,1,1) lds=163840
.amdgcn_target "amdgcn-amd-amdhsa--gfx950"
.text
.globl concat_heads__softmax_full_mha__sliding_block__prompt_kernel
"""

def main(path):
    a = Asm()
    gen_fused(a)
    txt = HEADER + a.text() + kd("concat_heads__softmax_full_mha__sliding_block__prompt_kernel", 256)
    open(path, "w").write(txt)

if __name__ == "__main__":
    main(sys.argv[1] if len(sys.argv) > 1 else f"cdna_kernels/{NAME}.s")
```

```python
import sys, os, struct

NAME = "concat_heads__softmax_full_mha__sliding_block__prompt"
STAMPS = os.environ.get("STAMPS", "")

class Asm:
    def __init__(self): self.lines = []
    def __call__(self, s): self.lines.append("  " + s)
    def label(self, s): self.lines.append(s + ":")
    def raw(self, s): self.lines.append(s)
    def text(self): return "\n".join(self.lines) + "\n"

def vr(b, n=1): return f"v{b}" if n == 1 else f"v[{b}:{b+n-1}]"
def f32bits(x): return struct.unpack("<I", struct.pack("<f", x))[0]

HEAD_STRIDE = 196608
PROB_STRIDE = 32 * HEAD_STRIDE
O_BASE = 2 * PROB_STRIDE
O_PROB = 32 * 65536
F_BASE = 16 << 20
WS_SIZE = 17 << 20
QSCALE = 0.25 * 1.4426950408889634
SPIN = 1 << 16

def srd(a, d, lo, hi, nrec):
    a(f"s_mov_b32 s{d}, s{lo}")
    a(f"s_and_b32 s{d+1}, s{hi}, 0xffff")
    a(f"s_mov_b32 s{d+2}, {nrec}")
    a(f"s_mov_b32 s{d+3}, 0x00020000")

class Stamper:
    def __init__(self, a, kname, kidx, wavereg, base=76):
        self.a=a; self.on=(STAMPS==kname or (STAMPS in ("fp","fs","fl","ft") and kname=="fa")); self.fp=(STAMPS in ("fp","fs","fl","ft")); self.ft=(STAMPS=="ft"); self.fs=(STAMPS=="fs"); self.fl=(STAMPS=="fl"); self.rt=(STAMPS=="rt"); self.n=0; self.base=base; self.wavereg=wavereg; self.kidx=kidx
        if self.rt:
            a("s_memrealtime s[76:77]"); a("s_memtime s[78:79]")
    def p(self, idx):
        if self.fp and ((not self.fs and not self.fl and not self.ft) or idx==11): self._st(idx)
    def t(self, idx):
        if self.ft: self._st(idx)
    def l(self, idx):
        if self.fl: self._st(idx)
    def ldyn(self, base, uid):
        if not self.fl: return
        a=self.a
        for j in range(4):
            a(f"s_cmp_eq_u32 s38, {j}")
            a(f"s_cbranch_scc0 Lst{uid}_{j}")
            self._st(base+j)
            a.label(f"Lst{uid}_{j}")
    def f(self, idx):
        if self.fs: self._st(idx)
    def __call__(self, idx=None):
        if STAMPS == "dbg" and self.kidx == 0:
            m = {0:0, 2:1, 5:2, 6:3, 9:4, 10:5, 11:6}
            if idx in m:
                self.a(f"s_memrealtime s[{76+2*m[idx]}:{77+2*m[idx]}]")
                self.a("s_waitcnt lgkmcnt(0)")
            return
        if not self.on: return
        if self.fp and idx not in (0,): return
        self._st(idx)
    def _st(self, idx=None):
        if idx is not None: self.n = idx
        assert self.base+2*self.n+1 < 102
        self.a(f"s_memtime s[{self.base+2*self.n}:{self.base+2*self.n+1}]")
        self.a("s_waitcnt lgkmcnt(0)")
        self.n+=1
    def flush(self, nw, n=None):
        if STAMPS == "dbg":
            a=self.a
            a("s_cmp_eq_u32 s3, 4"); a("s_cbranch_scc0 Ldbg_skip")
            a("s_cmp_eq_u32 s2, 0"); a("s_cselect_b32 s6, 4, 0")
            a("s_cmp_eq_u32 s2, 131"); a("s_cselect_b32 s6, 32, s6")
            a("s_cmp_eq_u32 s6, 0"); a("s_cbranch_scc1 Ldbg_skip")
            a("v_mov_b32 v1, s6")
            for i in range(1,7):
                a(f"s_sub_u32 s7, s{76+2*i}, s76")
                a("v_mov_b32 v2, s7")
                a(f"buffer_store_dword v2, v1, s[{DBG}:{DBG+3}], 0 offen offset:{4*(i-1)}")
            a("v_mov_b32 v2, s76")
            a(f"buffer_store_dword v2, v1, s[{DBG}:{DBG+3}], 0 offen offset:24")
            a("s_waitcnt vmcnt(0)")
            a.label("Ldbg_skip")
            return
        if not (self.on or self.rt): return
        a=self.a
        n = n or self.n
        if self.rt:
            a("s_waitcnt vmcnt(0)"); a("s_memrealtime s[80:81]"); a("s_memtime s[82:83]"); n=4
        a("s_load_dwordx2 s[4:5], s[0:1], 64")
        a("s_waitcnt vmcnt(0) lgkmcnt(0)")
        a(f"s_add_u32 s4, s4, {(64<<20) + (self.kidx<<20 if self.rt else 0)}")
        a("s_addc_u32 s5, s5, 0")
        srd(a, 8, 4, 5, 1<<20)
        a(f"s_mul_i32 s6, s2, {nw}")
        a(f"s_add_u32 s6, s6, {self.wavereg}")
        a("s_lshl_b32 s6, s6, 6")
        a("v_mov_b32 v1, s6")
        for i in range(n):
            a(f"v_mov_b32 v2, s{self.base+2*i}")
            a(f"buffer_store_dword v2, v1, s[8:11], 0 offen offset:{4*i}")
        a("s_waitcnt vmcnt(0)")

def mfma(a, d, x, y, c):
    cs = c if isinstance(c, str) else vr(c, 16)
    a(f"v_mfma_f32_32x32x16_bf16 {vr(d,16)}, {vr(x,4)}, {vr(y,4)}, {cs}")

WS, XB, WB, XA, WA, DBG = 4, 8, 12, 16, 20, 24
NONCE = 28
S_H, S_QB, S_G, S_TB = 30, 31, 32, 33
SLOT = 32768
BKV = 131072

def gen_fused(a):
    QA = [4, 8]; QB = 12
    OACC = [16, 32]
    CNEG = [48, 64]
    SB = [[80, 96], [112, 128]]
    PP = [144, 152]
    VF = [160, 168]
    KF = 176
    MHI, MLO = 212, 228
    VKA, VVA, TMP, LIN, MX, MX1 = 244, 245, 246, 247, 248, 249
    T0, T1, T2, T3 = 250, 251, 252, 253
    VKN, VVN = 254, 255
    VLO = 3
    XCH = 98304
    QBL = 122880
    FA, FB = F_BASE, F_BASE + 65536
    PUB = int(os.environ.get("PUB", "9"))
    FO = F_BASE + 131072
    WOA, WOB, OUT = 8, 12, 16

    a.raw(".p2align 8")
    a.raw(".type concat_heads__softmax_full_mha__sliding_block__prompt_kernel,@function")
    a.label("concat_heads__softmax_full_mha__sliding_block__prompt_kernel")
    a("s_cmp_ge_u32 s2, 256")
    a("s_cbranch_scc1 Lfa_end")
    st = Stamper(a, "fa", 0, "s3")
    st(0)
    a("s_load_dwordx4 s[36:39], s[0:1], 0")
    a("s_load_dwordx2 s[34:35], s[0:1], 24")
    a("s_load_dwordx2 s[42:43], s[0:1], 32")
    a("s_load_dwordx4 s[44:47], s[0:1], 56")
    a("v_and_b32 v1, 63, v0")
    a("v_lshrrev_b32 v2, 6, v0")
    a(f"s_and_b32 s{S_H}, s2, 31")
    a("v_readfirstlane_b32 s3, v2")
    a(f"s_lshr_b32 s{S_QB}, s2, 5")
    a("s_lshr_b32 s48, s2, 3")
    a("s_and_b32 s49, s2, 1")
    a("s_lshl_b32 s49, s49, 2")
    a("s_and_b32 s50, s48, 3")
    a(f"s_add_u32 s{S_G}, s49, s50")
    a("s_bfe_u32 s49, s2, 0x20001")
    a("s_lshl_b32 s49, s49, 3")
    a("s_lshr_b32 s50, s48, 2")
    a(f"s_add_u32 s{S_TB}, s49, s50")
    a(f"s_and_b32 s29, s{S_G}, 3")
    a("s_lshl_b32 s29, s29, 1")
    a(f"s_add_u32 s29, s29, s{S_TB}")
    a("s_and_b32 s29, s29, 7")
    a("s_cmp_lt_u32 s3, 4")
    a("s_cbranch_scc1 Lfa_compute")

    def early_setup():
        a(f"v_lshlrev_b32 v{LIN}, 4, v1")
        a(f"v_lshrrev_b32 v{T0}, 5, v1")
        a(f"v_lshlrev_b32 v{VLO}, 8, v{T0}")
        a(f"v_and_b32 v{T1}, 15, v1")
        a(f"v_lshlrev_b32 v{T1}, 4, v{T1}")
        a(f"v_add_u32 v{VLO}, v{VLO}, v{T1}")
        a(f"v_add_u32 v{VLO}, 1024, v{VLO}")
        a(f"v_and_b32 v{T1}, 27, v1")
        a(f"v_cmp_eq_u32 vcc, 16, v{T1}")
        a(f"v_mov_b32 v{T2}, 0x3f803f80")
        a(f"v_mov_b32 v{T3}, 0")
        a("s_nop 0")
        for r in range(16):
            a(f"v_cndmask_b32 v{VF[0]+r}, v{T3}, v{T2}, vcc")
        a(f"v_and_b32 v{T1}, 31, v1")
        a(f"v_lshlrev_b32 v{T0}, 2, v{T0}")
        a(f"v_sub_u32 v{T1}, v{T1}, v{T0}")
        a(f"v_mov_b32 v{T2}, 0xff800000")
        for r in range(16):
            cr = 8*(r//4) + r % 4
            a(f"v_cmp_le_i32 s[{62+2*(r%4)}:{63+2*(r%4)}], {cr}, v{T1}")
            if r % 4 == 3:
                a("s_nop 1")
                for q in range(r-3, r+1):
                    a(f"v_cndmask_b32 v{MHI+q}, v{T2}, v{T3}, s[{62+2*(q%4)}:{63+2*(q%4)}]")
                    a(f"v_cndmask_b32 v{MLO+q}, v{T3}, v{T2}, s[{62+2*(q%4)}:{63+2*(q%4)}]")
        a("s_lshr_b32 s70, s3, 2")
        a("s_lshl_b32 s71, s70, 14")
        a(f"s_add_u32 s72, s71, {BKV}")
        a(f"v_add_u32 v{VKN}, s71, v{LIN}")
        a(f"v_add_u32 v{VVN}, s71, v{VLO}")
        a(f"v_add_u32 v{VKA}, s72, v{LIN}")
        a(f"v_add_u32 v{VVA}, s72, v{VLO}")
        a("s_mov_b32 s73, 0")
        a("s_mov_b32 s40, 0x0000ffff")
        a("s_mov_b32 s41, 0x0000ffff")

    a("s_sub_u32 s48, s3, 4")
    a("v_lshrrev_b32 v2, 3, v1")
    a("v_lshlrev_b32 v2, 10, v2")
    a("v_and_b32 v3, 7, v1")
    a("v_lshrrev_b32 v6, 4, v1")
    a("v_xor_b32 v3, v3, v6")
    a("v_lshlrev_b32 v3, 4, v3")
    a("v_add_u32 v4, v2, v3")
    a("v_xor_b32 v5, 64, v4")
    a(f"s_lshl_b32 s50, s{S_TB}, 6")
    a("s_lshl_b32 s49, s48, 4")
    a("s_add_u32 s50, s50, s49")
    a("s_lshl_b32 s50, s50, 10")
    a("s_lshl_b32 s51, s48, 11")
    a("s_mul_i32 s52, s48, 49152")
    a(f"s_lshl_b32 s49, s{S_G}, 7")
    a("s_add_u32 s52, s52, s49")
    a("s_mul_i32 s53, s48, 6144")
    a("s_add_u32 s53, s53, 8192")
    a("s_movk_i32 s49, 171")
    a("s_movk_i32 s55, 3072")
    for v in range(3):
        a(f"v_add_u32 v2, {64*v}, v1")
        a("v_mul_lo_u32 v3, v2, s49")
        a("v_lshrrev_b32 v3, 12, v3")
        a("v_mul_u32_u24 v9, 24, v3")
        a("v_sub_u32 v9, v2, v9")
        a("v_bfe_u32 v10, v3, 1, 1")
        a("v_lshlrev_b32 v10, 2, v10")
        a("v_xor_b32 v9, v9, v10")
        a("v_mul_lo_u32 v3, v3, s55")
        a("v_lshrrev_b32 v10, 3, v9")
        a("v_lshlrev_b32 v10, 10, v10")
        a("v_add_u32 v3, v3, v10")
        a("v_and_b32 v9, 7, v9")
        a("v_lshlrev_b32 v9, 4, v9")
        a(f"v_add_u32 v{6+v}, v3, v9")
    a("s_waitcnt lgkmcnt(0)")
    srd(a, XA, 36, 37, 2048*1024)
    srd(a, WA, 38, 39, 512*3072)
    def dma_chunk(i, ldsbase=None):
        c = i % 8
        base = (i % 4)*SLOT if ldsbase is None else ldsbase
        xs, wsr = (XA, WA) if i < 8 else (XB, WB)
        a(f"s_add_u32 s58, s29, {c}")
        a("s_and_b32 s58, s58, 7")
        a("s_lshl_b32 s59, s58, 7")
        a("s_add_u32 s59, s59, s50")
        a(f"s_mul_i32 s58, s58, {64*3072}")
        a("s_add_u32 s58, s58, s52")
        for u in range(2):
            a(f"s_add_u32 m0, s51, {base + u*1024}")
            a(f"s_add_u32 s54, s59, {u*8192}")
            a(f"buffer_load_dwordx4 v{4 + u}, s[{xs}:{xs+3}], s54 offen lds")
        for u in range(6):
            up, v = divmod(u, 3)
            a(f"s_add_u32 m0, s53, {base + u*1024}")
            a(f"s_add_u32 s54, s58, {8*up*3072}")
            a(f"buffer_load_dwordx4 v{6 + v}, s[{wsr}:{wsr+3}], s54 offen lds")
    dma_chunk(0)
    dma_chunk(1)
    srd(a, XB, 34, 35, 2048*1024)
    srd(a, WB, 42, 43, 512*3072)
    srd(a, WS, 46, 47, WS_SIZE)
    srd(a, DBG, 44, 45, 256)
    a("s_cmp_eq_u32 s2, 0")
    a("s_cselect_b32 s49, s48, 1")
    a("s_cmp_eq_u32 s49, 0")
    a("s_cbranch_scc0 Lfa_nononce")
    a("s_memrealtime s[56:57]")
    a("s_waitcnt lgkmcnt(0)")
    a("s_or_b32 s56, s56, 1")
    a("v_mov_b32 v10, s56")
    a("v_mov_b32 v11, 0")
    a(f"buffer_store_dword v10, v11, s[{DBG}:{DBG+3}], 0 offen sc1")
    a.label("Lfa_nononce")
    NCHK = 3
    C8AT = int(os.environ.get("C8AT", "-1"))
    if C8AT < 0:
        dma_chunk(8, BKV)
    early_setup()
    a(f"s_lshr_b32 s56, s{S_H}, 2")
    a("s_lshl_b32 s56, s56, 12")
    a(f"s_add_u32 s56, s56, {FA}")
    a("v_and_b32 v12, 31, v1")
    a("v_lshlrev_b32 v12, 7, v12")
    a("v_add_u32 v12, s56, v12")
    a(f"s_lshl_b32 s56, s{S_G}, 5")
    a(f"s_add_u32 s56, s56, s{S_TB}")
    a("s_lshl_b32 s74, s56, 7")
    a("v_and_b32 v2, 7, v1")
    a(f"s_lshl_b32 s49, s{S_QB}, 2")
    a("s_sub_u32 s49, s49, 4")
    a("v_add_u32 v2, s49, v2")
    a("v_max_i32 v2, 0, v2")
    a(f"s_lshr_b32 s49, s{S_H}, 2")
    a("s_lshl_b32 s49, s49, 5")
    a("v_add_u32 v2, s49, v2")
    a("v_lshlrev_b32 v2, 7, v2")
    a(f"v_add_u32 v2, {FB}, v2")
    a("v_mov_b32 v11, 0")
    st(1)
    def write_flag(base):
        a(f"s_add_u32 s56, s74, {base}")
        a("v_mov_b32 v14, s56")
        a(f"v_mov_b32 v15, s{NONCE}")
        a("s_mov_b64 exec, 1")
        a(f"buffer_store_dword v15, v14, s[{WS}:{WS+3}], 0 offen sc1")
        a("s_mov_b64 exec, -1")
    def a_loads():
        a(f"s_mul_i32 s64, s{S_H}, {HEAD_STRIDE}")
        a("s_lshl_b32 s65, s48, 10")
        a("s_add_u32 s64, s64, s65")
        for u in range(8):
            a(f"s_add_u32 m0, s65, {BKV + (u&3)*4096 + (u>>2)*16384}")
            a(f"s_add_u32 s66, s64, {65536 + (u&3)*4096 + (u>>2)*65536}")
            a(f"buffer_load_dwordx4 v{LIN}, s[{WS}:{WS+3}], s66 offen sc1 lds")
        a(f"s_lshl_b32 s67, s{S_QB}, 13")
        a("s_add_u32 s67, s67, s64")
        for u in range(2):
            a(f"s_add_u32 m0, s65, {32768 + u*4096}")
            a(f"s_add_u32 s66, s67, {u*4096}")
            a(f"buffer_load_dwordx4 v{LIN}, s[{WS}:{WS+3}], s66 offen sc1 lds")
        for u in range(8):
            a(f"s_add_u32 m0, s65, {(u&3)*4096 + (u>>2)*16384}")
            a(f"s_add_u32 s66, s64, {65536 + 16384 + (u&3)*4096 + (u>>2)*65536}")
            a(f"buffer_load_dwordx4 v{LIN}, s[{WS}:{WS+3}], s66 offen sc1 lds")
    order = ["c0"]*8 + ["c1"]*8
    if C8AT < 0: order += ["c8"]*8
    waits = {}
    for i in range(16):
        last = max(k for k, t in enumerate(order) if t == f"c{i}")
        if i == NCHK: last = max(last, max(k for k, t in enumerate(order) if t == "nonce"))
        waits[i] = len(order) - 1 - last
        if i == 0: order += ["nonce"]
        if C8AT == i: order += ["c8"]*8
        if i + 2 <= 15 and i + 2 != 8: order += [f"c{i+2}"]*8
        if i == 13: order += ["poll"]
    for i in range(16):
        w = waits[i]
        a(f"s_waitcnt vmcnt({w})")
        if i == NCHK:
            a(f"s_mov_b32 s55, {SPIN}")
            a.label("Lfa_nspin")
            a(f"v_readfirstlane_b32 s{NONCE}, v10")
            a("s_nop 3")
            a(f"s_cmp_lg_u32 s{NONCE}, 0")
            a("s_cbranch_scc1 Lfa_ngot")
            a("s_sleep 1")
            a(f"buffer_load_dword v10, v11, s[{DBG}:{DBG+3}], 0 offen sc1")
            a("s_waitcnt vmcnt(0)")
            a("s_sub_u32 s55, s55, 1")
            a("s_cmp_lg_u32 s55, 0")
            a("s_cbranch_scc1 Lfa_nspin")
            a.label("Lfa_ngot")
        a("s_barrier")
        if i in (0,1,2,4,6,8,10,12,14,15): st.p({0:1,1:2,2:3,4:4,6:5,8:6,10:7,12:8,14:9,15:10}[i])
        if i == 0:
            a(f"buffer_load_dword v10, v11, s[{DBG}:{DBG+3}], 0 offen sc1")
        if C8AT == i:
            dma_chunk(8, BKV)
        if i + 2 <= 15 and i + 2 != 8:
            dma_chunk(i + 2)
        if i == PUB + 1:
            a("s_cmp_eq_u32 s48, 0")
            a("s_cbranch_scc0 Lfa_nf")
            write_flag(FA)
            a.label("Lfa_nf")
        if i == 13:
            a(f"buffer_load_dword v13, v12, s[{WS}:{WS+3}], 0 offen sc1")
    st(2)
    a(f"s_mov_b32 s55, {SPIN}")
    a.label("Lfa_aspin")
    a("s_waitcnt vmcnt(0)")
    a(f"v_cmp_eq_u32 vcc, s{NONCE}, v13")
    a("s_nop 4")
    a("s_cmp_eq_u64 vcc, -1")
    a("s_cbranch_scc1 Lfa_agot")
    a("s_sleep 1")
    a(f"buffer_load_dword v13, v12, s[{WS}:{WS+3}], 0 offen sc1")
    a("s_sub_u32 s55, s55, 1")
    a("s_cmp_lg_u32 s55, 0")
    a("s_cbranch_scc1 Lfa_aspin")
    a("s_waitcnt vmcnt(0)")
    a.label("Lfa_agot")
    a_loads()
    st(3)
    a("s_branch Lfa_attn")

    a.label("Lfa_compute")
    a("s_lshr_b32 s48, s3, 1")
    a("s_and_b32 s49, s3, 1")
    a("v_and_b32 v2, 31, v1")
    a("v_lshrrev_b32 v3, 5, v1")
    a("v_bfe_u32 v9, v2, 1, 3")
    a("v_xor_b32 v9, v9, v3")
    a("s_lshl_b32 s50, s48, 12")
    a("v_lshlrev_b32 v18, 7, v2")
    a("v_add_u32 v18, s50, v18")
    for s in range(4):
        a(f"v_xor_b32 v19, {2*s}, v9")
        a("v_lshlrev_b32 v19, 4, v19")
        a(f"v_add_u32 v{10+s}, v18, v19")
        a(f"v_add_u32 v{14+s}, 0x10000, v{10+s}")
    a("v_lshlrev_b32 v24, 3, v3")
    a("v_bfe_u32 v25, v1, 2, 2")
    a("v_add_u32 v24, v24, v25")
    a("s_movk_i32 s50, 384")
    a("v_mul_lo_u32 v24, v24, s50")
    a("v_bfe_u32 v25, v1, 4, 1")
    a("v_lshlrev_b32 v25, 5, v25")
    a("v_add_u32 v24, v24, v25")
    a("v_and_b32 v25, 3, v1")
    a("v_lshlrev_b32 v25, 3, v25")
    a("v_add_u32 v24, v24, v25")
    a("v_add_u32 v24, 8192, v24")
    a("v_bfe_u32 v25, v1, 3, 1")
    a("s_mul_i32 s50, s49, 3")
    for ct in range(3):
        a(f"s_add_u32 s51, s50, {ct}")
        a("v_xor_b32 v26, s51, v25")
        a("v_lshlrev_b32 v26, 6, v26")
        a(f"v_add_u32 v{18+ct}, v24, v26")
        a(f"v_add_u32 v{21+ct}, 0x10000, v{18+ct}")
    a("v_lshlrev_b32 v24, 4, v1")
    a("v_bfe_u32 v25, v1, 4, 1")
    a(f"s_mov_b32 s50, {HEAD_STRIDE}")
    a("v_mul_lo_u32 v25, v25, s50")
    a("v_lshlrev_b32 v26, 8, v3")
    a("v_add_u32 v25, v25, v26")
    a("v_and_b32 v26, 15, v1")
    a("v_lshlrev_b32 v26, 4, v26")
    a("v_add_u32 v25, v25, v26")
    a(f"s_mul_i32 s52, s{S_G}, {4*HEAD_STRIDE}")
    a(f"s_lshl_b32 s53, s{S_TB}, 1")
    a("s_add_u32 s53, s53, s48")
    a("s_lshl_b32 s54, s53, 11")
    a("s_add_u32 s54, s54, 65536")
    a("s_lshl_b32 s53, s53, 10")
    a(f"s_mov_b32 s55, {f32bits(QSCALE):#x}")
    ACC = 64
    for r in range(48): a(f"v_mov_b32 v{ACC+r}, 0")
    early_setup()
    a("s_waitcnt lgkmcnt(0)")
    srd(a, WS, 46, 47, WS_SIZE)
    TLBW = int(os.environ.get("TLBW", "0"))
    if TLBW:
        if TLBW < 3:
            a("s_lshr_b32 s80, s2, 3" if TLBW == 1 else "s_bfe_u32 s80, s2, 0x30003")
            a("s_cmp_eq_u32 s80, 0")
            a("s_cbranch_scc0 Lfa_ntlb")
        a("v_lshlrev_b32 v129, 20, v1")
        a("s_cmp_eq_u32 s3, 0")
        a("s_cbranch_scc0 Lfa_tlb1")
        a(f"buffer_load_dword v131, v129, s[{WS}:{WS+3}], 0 offen")
        a("s_branch Lfa_ntlb")
        a.label("Lfa_tlb1")
        a("s_load_dwordx2 s[80:81], s[0:1], 48")
        a("s_load_dwordx2 s[82:83], s[0:1], 16")
        a("s_load_dwordx2 s[84:85], s[0:1], 40")
        a("s_waitcnt lgkmcnt(0)")
        a("s_cmp_eq_u32 s3, 1")
        a("s_cselect_b32 s86, s80, s82")
        a("s_cselect_b32 s87, s81, s83")
        a("s_cmp_eq_u32 s3, 3")
        a("s_cselect_b32 s86, s84, s86")
        a("s_cselect_b32 s87, s85, s87")
        a("s_mov_b32 s88, s86")
        a("s_and_b32 s89, s87, 0xffff")
        a("s_cmp_eq_u32 s3, 1")
        a(f"s_mov_b32 s90, {512*1024}")
        a(f"s_cselect_b32 s90, {2048*2048}, s90")
        a("s_mov_b32 s91, 0x00020000")
        a("buffer_load_dword v131, v129, s[88:91], 0 offen")
        a.label("Lfa_ntlb")
    if os.environ.get("XTOUCH", "0") == "1":
        a("s_cmp_eq_u32 s3, 3")
        a("s_cbranch_scc0 Lfa_nxt")
        srd(a, XB, 34, 35, 2048*1024)
        a("v_lshrrev_b32 v129, 3, v1")
        a("v_lshlrev_b32 v129, 10, v129")
        a("v_and_b32 v130, 7, v1")
        a("v_lshlrev_b32 v130, 7, v130")
        a("v_add_u32 v129, v129, v130")
        a(f"s_lshl_b32 s60, s{S_TB}, 16")
        a(f"s_and_b32 s61, s{S_G}, 3")
        a("s_lshl_b32 s61, s61, 14")
        a("s_add_u32 s60, s60, s61")
        a("s_add_u32 s61, s60, 8192")
        a(f"buffer_load_dword v131, v129, s[{XB}:{XB+3}], s60 offen")
        a(f"buffer_load_dword v132, v129, s[{XB}:{XB+3}], s61 offen")
        a.label("Lfa_nxt")
    XF = [28, 32]; WF = [36, 48]; PK = 112
    def read_frags(slot, s, buf):
        xr = (10 if slot < 2 else 14) + s
        a(f"ds_read_b128 {vr(XF[buf],4)}, v{xr} offset:{(slot%2)*SLOT}")
        for ct in range(3):
            reg = (18 if slot < 2 else 21) + ct
            off = (slot % 2) * SLOT + s * 6144
            a(f"ds_read_b64_tr_b16 {vr(WF[buf]+4*ct,2)}, v{reg} offset:{off}")
            a(f"ds_read_b64_tr_b16 {vr(WF[buf]+4*ct+2,2)}, v{reg} offset:{off+1536}")
    def body(types, tag):
        L = f"Lpj{tag}"
        st(1)
        a("s_mov_b32 s57, 0")
        a.label(L + "_loop")
        for slot in range(4):
            a("s_barrier")
            if slot == 0:
                a("s_cmp_eq_u32 s57, 2")
                a(f"s_cselect_b32 s58, {BKV}, 0")
                for r in (10, 11, 12, 13, 18, 19, 20):
                    a(f"v_add_u32 v{r}, s58, v{r}")
            if slot == PUB % 4:
                a(f"s_cmp_eq_u32 s57, {PUB // 4}")
                a(f"s_cbranch_scc0 {L}_np")
                a("s_waitcnt vmcnt(0)")
                a.label(L + "_np")
            read_frags(slot, 0, 0)
            for s in range(4):
                buf = s % 2
                if s < 3:
                    read_frags(slot, s+1, buf ^ 1)
                    a("s_waitcnt lgkmcnt(7)")
                else:
                    a("s_waitcnt lgkmcnt(0)")
                for ct in range(3):
                    acc = ACC + ct*16
                    if types[ct] == 'V':
                        mfma(a, acc, XF[buf], WF[buf]+4*ct, acc)
                    else:
                        mfma(a, acc, WF[buf]+4*ct, XF[buf], acc)
            if slot == 0:
                for r in (10, 11, 12, 13, 18, 19, 20):
                    a(f"v_subrev_u32 v{r}, s58, v{r}")
        a("s_add_u32 s57, s57, 1")
        a("s_bitcmp1_b32 s57, 0")
        a(f"s_cbranch_scc1 {L}_loop")
        a("s_nop 15")
        n = 0
        for ct in range(3):
            acc = ACC + ct*16
            c = tag*3 + ct
            ty = types[ct]
            for e in range(2):
                pk = PK + (n % 4)*4; n += 1
                if ty == 'Q':
                    for r in range(8):
                        a(f"v_mul_f32 v{acc+8*e+r}, s55, v{acc+8*e+r}")
                for r in range(4):
                    a(f"v_cvt_pk_bf16_f32 v{pk+r}, v{acc+2*r+8*e}, v{acc+8*e+2*r+1}")
                if ty == 'Q':
                    a(f"s_add_u32 s59, s52, {(2*(c%2)+e)*HEAD_STRIDE}")
                    a("s_add_u32 s59, s59, s53")
                    a(f"buffer_store_dwordx4 {vr(pk,4)}, v24, s[{WS}:{WS+3}], s59 offen sc1")
                elif ty == 'K':
                    a(f"s_add_u32 s59, s52, {(2*(c%2)+e)*HEAD_STRIDE}")
                    a("s_add_u32 s59, s59, s54")
                    a(f"buffer_store_dwordx4 {vr(pk,4)}, v24, s[{WS}:{WS+3}], s59 offen sc1")
                else:
                    a(f"s_add_u32 s59, s52, {(2*(c%2))*HEAD_STRIDE + 1024 + 512*e}")
                    a("s_add_u32 s59, s59, s54")
                    a(f"buffer_store_dwordx4 {vr(pk,4)}, v25, s[{WS}:{WS+3}], s59 offen sc1")
        for r in range(48): a(f"v_mov_b32 v{ACC+r}, 0")
        a(f"s_add_u32 s52, s52, {PROB_STRIDE}")
        a("s_cmp_lt_u32 s57, 4")
        a(f"s_cbranch_scc1 {L}_loop")
        st(2); st(3)
        a("s_branch Lfa_attn")
    a("s_cmp_eq_u32 s49, 0")
    a("s_cbranch_scc0 Lfa_wn1")
    body(['Q', 'Q', 'K'], 0)
    a.label("Lfa_wn1")
    body(['K', 'V', 'V'], 1)

    a.label("Lfa_attn")
    a("s_and_b32 s64, s3, 3")
    a("s_lshl_b32 s64, s64, 11")
    a(f"s_add_u32 s64, s64, 32768")
    a(f"v_add_u32 v{T0}, s64, v{LIN}")
    a(f"v_add_u32 v{T1}, {BKV}, v{LIN}")
    a(f"s_mul_i32 s62, s{S_H}, {HEAD_STRIDE}")
    a("s_lshl_b32 s63, s3, 10")
    a("s_add_u32 s62, s62, s63")
    WOV = 0
    a("v_lshrrev_b32 v0, 3, v1")
    a("v_lshlrev_b32 v0, 10, v0")
    a(f"v_bfe_u32 v{T2}, v1, 4, 1")
    a(f"v_lshlrev_b32 v{T2}, 2, v{T2}")
    a(f"v_and_b32 v{T3}, 7, v1")
    a(f"v_xor_b32 v{T2}, v{T2}, v{T3}")
    a(f"v_lshlrev_b32 v{T2}, 4, v{T2}")
    a(f"v_add_u32 v0, v0, v{T2}")
    a(f"s_lshl_b32 s34, s{S_QB}, 3")
    a("s_add_u32 s34, s34, s3")
    a("s_min_u32 s35, s34, 8")
    a(f"s_mul_i32 s36, s{S_H}, {HEAD_STRIDE}")
    a(f"s_add_u32 s36, s36, {PROB_STRIDE}")
    a("s_load_dwordx2 s[44:45], s[0:1], 16")
    a("s_load_dwordx4 s[48:51], s[0:1], 40")
    a("s_bfe_u32 s75, s2, 0x20001")
    a("s_and_b32 s52, s2, 1")
    a("s_lshl_b32 s52, s52, 2")
    a("s_bfe_u32 s53, s2, 0x20003")
    a("s_add_u32 s39, s52, s53")
    a("s_lshl_b32 s42, s3, 13")
    a("s_lshl_b32 s52, s39, 7")
    a("s_add_u32 s42, s42, s52")
    a("s_waitcnt lgkmcnt(0)")
    srd(a, WOA, 44, 45, 512*1024)
    srd(a, WOB, 48, 49, 512*1024)
    srd(a, OUT, 50, 51, 2048*2048)
    st(4)
    st.l(1)
    a("s_waitcnt vmcnt(8)")
    a("s_barrier")
    st(5)
    st.l(2)
    a(f"ds_read_b128 {vr(QA[0],4)}, v{T0}")
    a(f"ds_read_b128 {vr(QA[1],4)}, v{T0} offset:1024")
    a(f"ds_read_b128 {vr(KF,4)}, v{T1}")
    a("s_waitcnt lgkmcnt(0)")
    mfma(a, SB[0][0], KF, QA[0], "0")
    mfma(a, SB[1][0], KF, QA[1], "0")
    a("s_cmp_eq_u32 s3, 4")
    a("s_cbranch_scc0 La_nnw")
    a(f"v_mov_b32 v{T0}, {XCH + 512}")
    a(f"v_mov_b32 v{T1}, s{NONCE}")
    a(f"ds_write_b32 v{T0}, v{T1}")
    a("s_waitcnt lgkmcnt(0)")
    a.label("La_nnw")
    a("s_barrier")
    a(f"v_mov_b32 v{T0}, {XCH + 512}")
    a(f"ds_read_b32 v{T0}, v{T0}")
    for r in range(4): a(f"v_mov_b32 v{188+r}, -1")
    a(f"s_lshl_b32 s68, s{S_H}, 16")
    a("s_lshl_b32 s69, s34, 10")
    a("s_add_u32 s68, s68, s69")
    a(f"s_add_u32 s68, s68, {O_BASE + O_PROB}")
    a(f"buffer_store_dwordx4 v[188:191], v{LIN}, s[{WS}:{WS+3}], s68 offen sc1")
    a("s_waitcnt lgkmcnt(0)")
    a(f"v_readfirstlane_b32 s{NONCE}, v{T0}")
    for q in range(2):
        for r in range(16):
            a(f"v_mov_b32 v{OACC[q]+r}, 0") if r < 6 else None
    for q, m in ((0, MX), (1, MX1)):
        s = SB[q][0]
        a(f"v_max_f32 v{m}, v{s}, v{s+1}")
        for r in range(1, 8):
            a(f"v_max3_f32 v{m}, v{s+2*r}, v{s+2*r+1}, v{m}")
    def halves_max(m, t):
        a(f"v_mov_b32 v{t}, v{m}")
        a("s_nop 1")
        a(f"v_permlane32_swap_b32 v{m}, v{t}")
        a("s_nop 1")
        a(f"v_max_f32 v{m}, v{m}, v{t}")
    def read_v(buf, areg, off):
        a("s_mov_b64 exec, s[40:41]")
        a(f"ds_read_b128 {vr(buf,4)}, v{areg} offset:{off}")
        a(f"ds_read_b128 {vr(buf+4,4)}, v{areg} offset:{off+512}")
        a("s_mov_b64 exec, -1")
    def step(cur, p, o, early, qk, pre_pv0, mid, pre_pv1, vb):
        E = lambda i: a(f"v_exp_f32 v{cur+i}, v{cur+i}")
        C = lambda j: a(f"v_cvt_pk_bf16_f32 v{p+j}, v{cur+2*j}, v{cur+2*j+1}")
        E(0); E(1)
        early()
        E(2); E(3); C(0); E(4); C(1); E(5)
        qk()
        E(6); E(7); C(2); E(8); C(3); E(9); E(10)
        pre_pv0()
        mfma(a, o, vb, p, o)
        E(11); C(4); E(12); C(5); E(13); E(14); E(15); C(6); C(7)
        mid()
        pre_pv1()
        mfma(a, o, vb+4, p+4, o)
    nop = lambda: None
    a.label("La_main")
    a(f"ds_read_b128 {vr(KF,4)}, v{VKA}")
    read_v(VF[0], VVA, 0)
    a(f"ds_read_b128 {vr(KF+4,4)}, v{VKA} offset:2048")
    halves_max(MX, TMP)
    halves_max(MX1, TMP)
    for q, m in ((0, MX), (1, MX1)):
        for r in range(16):
            a(f"v_sub_f32 v{CNEG[q]+r}, 0, v{m}")
    a("s_waitcnt lgkmcnt(3)")
    mfma(a, SB[0][0], KF, QA[0], CNEG[0])
    mfma(a, SB[1][0], KF, QA[1], CNEG[1])
    for q in range(2):
        for r in range(16):
            a(f"v_mov_b32 v{OACC[q]+r}, 0")
    U = 8
    SCHED = 1
    for r in range(4): a(f"v_mov_b32 v{PP[1]+4+r}, 0")
    def kv_dma(j):
        for u in range(4):
            a(f"s_add_u32 m0, s63, {(j-1)*32768 + (u&1)*8192 + (u>>1)*16384}")
            a(f"s_add_u32 s66, s62, {65536 + j*16384 + (u&1)*8192 + (u>>1)*65536}")
            a(f"buffer_load_dwordx4 v{LIN}, s[{WS}:{WS+3}], s66 offen sc1 lds")
    def wo_dma(srdr, half, ldsbase):
        for u in range(4):
            a(f"s_add_u32 m0, s63, {ldsbase + u*8192}")
            a(f"s_add_u32 s66, s42, {(256*half + 64*u)*1024}")
            a(f"buffer_load_dwordx4 v{WOV}, s[{srdr}:{srdr+3}], s66 offen lds")
    def tile_pair(n, kread, vread, last=False):
        vb = VF[n % 2]
        for q in range(2):
            cur, nxt = SB[q][n % 2], SB[q][(n+1) % 2]
            p = PP[q]
            E = lambda i: a(f"v_exp_f32 v{cur+i}, v{cur+i}")
            C = lambda j: a(f"v_cvt_pk_bf16_f32 v{p+j}, v{cur+2*j}, v{cur+2*j+1}")
            pq = 1 - q
            pvb = VF[n % 2] if q == 1 else VF[(n+1) % 2]
            E(0); E(1)
            mfma(a, OACC[pq], pvb+4, PP[pq]+4, OACC[pq])
            E(2); E(3); E(4); C(0); E(5); C(1)
            if q == 0: a("s_waitcnt lgkmcnt(0)")
            if not last:
                mfma(a, nxt, KF+4*((n+1) % 2), QA[q], CNEG[q])
            if q == 1: kread(KF+4*(n % 2))
            E(6); E(7); E(8); C(2); E(9); C(3); E(10); E(11)
            mfma(a, OACC[q], vb, p, OACC[q])
            E(12); C(4); E(13); C(5); E(14); E(15)
            if q == 0: vread(VF[(n+1) % 2])
            C(6); C(7)
    a("s_cmp_lg_u32 s73, 0")
    a("s_cbranch_scc1 La_rolled")
    KA3, VA3 = 184, 185
    a(f"v_add_u32 v{KA3}, 0x10000, v{VKN}")
    a(f"v_add_u32 v{VA3}, 0x10000, v{VVN}")
    def addr(t, kreg0, kreg1, kreg3):
        j, n = divmod(t, 8)
        if j == 0: return kreg0, n*2048
        if j == 3: return kreg3, n*2048
        return kreg1, (j-1)*32768 + n*2048
    a.raw(".p2align 6")
    for t in range(32):
        j, n = divmod(t, 8)
        if n == 0: st.l(3 + j)
        if t == 14 and os.environ.get("WOT", "0") == "1":
            a(f"v_lshlrev_b32 v186, 10, v1")
            a("s_lshl_b32 s64, s3, 16")
            a("s_lshl_b32 s65, s39, 7")
            a("s_add_u32 s64, s64, s65")
            a(f"buffer_load_dword v187, v186, s[{WOA}:{WOA+3}], s64 offen")
            a(f"buffer_load_dword v188, v186, s[{WOB}:{WOB+3}], s64 offen")
        if t == 17:
            a("s_cmp_lt_u32 s3, 4")
            a("s_cbranch_scc1 La_s17")
            a(f"buffer_load_dword v{T2}, v2, s[{WS}:{WS+3}], 0 offen sc1")
            a.label("La_s17")
        if t == 25:
            a("s_cmp_lt_u32 s3, 4")
            a("s_cbranch_scc1 La_s25")
            a(f"s_mov_b32 s67, {SPIN}")
            a.label("La_bspin")
            a("s_waitcnt vmcnt(0)")
            a(f"v_cmp_eq_u32 vcc, s{NONCE}, v{T2}")
            a("s_nop 4")
            a("s_cmp_eq_u64 vcc, -1")
            a("s_cbranch_scc1 La_bgot")
            a("s_sleep 1")
            a(f"buffer_load_dword v{T2}, v2, s[{WS}:{WS+3}], 0 offen sc1")
            a("s_sub_u32 s67, s67, 1")
            a("s_cmp_lg_u32 s67, 0")
            a("s_cbranch_scc1 La_bspin")
            a("s_waitcnt vmcnt(0)")
            a.label("La_bgot")
            b_loads(a, LIN, QBL)
            a.label("La_s25")
        if t == 27:
            wo_dma(WOA, 0, 0)
        if n == 5 and j < 3:
            a(f"s_waitcnt vmcnt({[0, 0, 2 if os.environ.get('WOT', '0') == '1' else 1][j]})")
            a("s_barrier")
            if j < 2: kv_dma(2 + j)
            if j == 0:
                a("s_cmp_eq_u32 s3, 4")
                a("s_cbranch_scc0 La_nfb")
                a(f"s_add_u32 s56, s74, {FB}")
                a(f"v_mov_b32 v{T0}, s56")
                a(f"v_mov_b32 v{T1}, s{NONCE}")
                a("s_mov_b64 exec, 1")
                a(f"buffer_store_dword v{T1}, v{T0}, s[{WS}:{WS+3}], 0 offen sc1")
                a("s_mov_b64 exec, -1")
                a.label("La_nfb")
        def kread(buf, t=t):
            if t + 2 < 32:
                r, o = addr(t + 2, VKA, VKN, KA3)
                a(f"ds_read_b128 {vr(buf,4)}, v{r} offset:{o}")
        def vread(buf, t=t):
            if t + 1 < 32:
                r, o = addr(t + 1, VVA, VVN, VA3)
                read_v(buf, r, o)
            else:
                a("s_nop 0")
        tile_pair(n, kread, vread, last=(t == 31))
    a("s_branch La_post")
    a.label("La_rolled")
    a("s_mov_b32 s38, 0")
    a.label("La_loop")
    for n in range(U):
        def kread(buf, n=n):
            if n + 2 < U: a(f"ds_read_b128 {vr(buf,4)}, v{VKA} offset:{(n+2)*2048}")
            else: a(f"ds_read_b128 {vr(buf,4)}, v{VKN} offset:{(n+2-U)*2048}")
        def vread(buf, n=n):
            if n + 1 < U: read_v(buf, VVA, (n+1)*2048)
            else: read_v(buf, VVN, 0)
        tile_pair(n, kread, vread)
    a(f"v_mov_b32 v{VKA}, v{VKN}")
    a(f"v_mov_b32 v{VVA}, v{VVN}")
    a(f"v_add_u32 v{VKN}, 32768, v{VKN}")
    a(f"v_add_u32 v{VVN}, 32768, v{VVN}")
    a("s_add_u32 s38, s38, 1")
    a("s_cmp_lg_u32 s38, 4")
    a("s_cbranch_scc1 La_loop")
    a.label("La_post")
    a("s_nop 1")
    mfma(a, OACC[1], VF[1]+4, PP[1]+4, OACC[1])
    st(6)
    st.l(7)
    a("s_waitcnt lgkmcnt(0)")
    a("s_nop 15")
    a(f"v_mov_b32 v{TMP}, 0x71800000")
    a(f"v_cmp_lt_f32 vcc, v{OACC[0]+8}, v{TMP}")
    a(f"v_cmp_lt_f32 s[58:59], v{OACC[1]+8}, v{TMP}")
    a("s_nop 4")
    a("s_and_b64 s[58:59], s[58:59], vcc")
    a("s_cmp_eq_u64 s[58:59], -1")
    a("s_cselect_b32 s64, 0, 1")
    a("s_cmp_lg_u32 s73, 0")
    a("s_cselect_b32 s64, 0, s64")
    a("s_lshl_b32 s65, s3, 2")
    a(f"s_add_u32 s65, s65, {XCH}")
    a(f"v_mov_b32 v{T0}, s65")
    a(f"v_mov_b32 v{T1}, s64")
    a(f"ds_write_b32 v{T0}, v{T1}")
    a("s_mul_i32 s65, s3, 2560")
    a(f"s_add_u32 s65, s65, {XCH + 1024}")
    a(f"v_add_u32 v{T0}, s65, v{LIN}")
    a(f"v_lshrrev_b32 v{T1}, 2, v{LIN}")
    a(f"v_add_u32 v{T1}, s65, v{T1}")
    a("s_cmp_eq_u32 s70, 0")
    a("s_cbranch_scc0 La_sendq0")
    for lab, qs in (("La_sendq1", 1), ("La_sendq0", 0)):
        if qs == 0: a.label(lab)
        a(f"ds_write_b128 v{T0}, {vr(OACC[qs],4)}")
        a(f"ds_write_b128 v{T0}, {vr(OACC[qs]+4,4)} offset:1024")
        a(f"ds_write_b32 v{T1}, v{OACC[qs]+8} offset:2048")
        if qs == 1:
            a("s_branch La_sent")
        else:
            for r in range(9):
                a(f"v_mov_b32 v{OACC[0]+r}, v{OACC[1]+r}")
    a.label("La_sent")
    a("s_waitcnt vmcnt(0) lgkmcnt(0)")
    a("s_barrier")
    a(f"v_and_b32 v{T2}, 7, v1")
    a(f"v_lshlrev_b32 v{T2}, 2, v{T2}")
    a(f"v_add_u32 v{T2}, {XCH}, v{T2}")
    a(f"ds_read_b32 v{T2}, v{T2}")
    a("s_xor_b32 s64, s3, 4")
    a("s_mul_i32 s65, s64, 2560")
    a(f"s_add_u32 s65, s65, {XCH + 1024}")
    a(f"v_add_u32 v{T0}, s65, v{LIN}")
    a(f"v_lshrrev_b32 v{T1}, 2, v{LIN}")
    a(f"v_add_u32 v{T1}, s65, v{T1}")
    a(f"ds_read_b128 {vr(SB[0][0],4)}, v{T0}")
    a(f"ds_read_b128 {vr(SB[0][0]+4,4)}, v{T0} offset:1024")
    a(f"ds_read_b32 v{SB[0][0]+8}, v{T1} offset:2048")
    a("s_lshl_b32 s37, s3, 11")
    a(f"s_add_u32 s37, s37, {BKV}")
    a("s_waitcnt lgkmcnt(0)")
    a(f"v_cmp_ne_u32 vcc, 0, v{T2}")
    a("s_nop 4")
    a("s_cmp_eq_u64 vcc, 0")
    a("s_cbranch_scc1 La_done")
    a("s_barrier")
    a("s_mov_b32 s73, 1")
    for u in range(4):
        a(f"s_add_u32 m0, s63, {BKV + (u&1)*8192 + (u>>1)*16384}")
        a(f"s_add_u32 s66, s62, {65536 + (u&1)*8192 + (u>>1)*65536}")
        a(f"buffer_load_dwordx4 v{LIN}, s[{WS}:{WS+3}], s66 offen sc1 lds")
    kv_dma(1)
    a("s_waitcnt vmcnt(0)")
    a("s_barrier")
    a(f"v_mov_b32 v{MX}, 0xff800000")
    a(f"v_mov_b32 v{MX1}, 0xff800000")
    a("s_mov_b32 s38, 0")
    a.label("La_fb")
    a("s_bfe_u32 s64, s38, 0x20003")
    a("s_sub_u32 s65, s64, 1")
    a("s_lshl_b32 s65, s65, 15")
    a("s_cmp_eq_u32 s64, 0")
    a(f"s_cselect_b32 s65, {BKV}, s65")
    a("s_lshr_b32 s64, s38, 5")
    a("s_lshl_b32 s64, s64, 14")
    a("s_add_u32 s65, s65, s64")
    a("s_and_b32 s64, s38, 7")
    a("s_lshl_b32 s64, s64, 11")
    a("s_add_u32 s65, s65, s64")
    a(f"v_add_u32 v{T0}, s65, v{LIN}")
    a(f"ds_read_b128 {vr(KF,4)}, v{T0}")
    a("s_waitcnt lgkmcnt(0)")
    mfma(a, SB[0][0], KF, QA[0], "0")
    mfma(a, SB[1][0], KF, QA[1], "0")
    a("s_nop 15")
    for q, m in ((0, MX), (1, MX1)):
        s = SB[q][0]
        for r in range(8):
            a(f"v_max3_f32 v{m}, v{s+2*r}, v{s+2*r+1}, v{m}")
    a("s_add_u32 s38, s38, 1")
    a("s_cmp_lg_u32 s38, 64")
    a("s_cbranch_scc1 La_fb")
    a(f"v_add_u32 v{VKN}, s71, v{LIN}")
    a(f"v_add_u32 v{VVN}, s71, v{VLO}")
    a(f"v_add_u32 v{VKA}, s72, v{LIN}")
    a(f"v_add_u32 v{VVA}, s72, v{VLO}")
    a("s_branch La_main")
    a.label("La_done")
    a("s_cmp_eq_u32 s73, 0")
    a("s_cbranch_scc1 La_bok")
    a("s_barrier")
    wo_dma(WOA, 0, 0)
    a("s_cmp_lt_u32 s3, 4")
    a("s_cbranch_scc1 La_brl")
    b_loads(a, LIN, QBL)
    a.label("La_brl")
    a("s_waitcnt vmcnt(0)")
    a("s_barrier")
    a.label("La_bok")
    a(f"v_add_u32 v{VKA}, s37, v{LIN}")
    a(f"v_add_u32 v{VVA}, s37, v{VLO}")
    a("s_lshl_b32 s64, s3, 10")
    a(f"s_add_u32 s64, s64, {QBL}")
    a(f"v_add_u32 v{T0}, s64, v{LIN}")
    a(f"ds_read_b128 {vr(QB,4)}, v{T0}")
    for i in range(8, -1, -1):
        a(f"ds_read_b128 {vr(KF+4*i,4)}, v{VKA} offset:{i*2048}")
    for r in range(9):
        a(f"v_add_f32 v{OACC[0]+r}, v{OACC[0]+r}, v{SB[0][0]+r}")
    a("s_and_b32 s64, s3, 3")
    a("s_lshl_b32 s64, s64, 1")
    a("s_add_u32 s64, s64, s70")
    a(f"s_lshl_b32 s65, s{S_QB}, 3")
    a("s_add_u32 s64, s64, s65")
    a("s_lshl_b32 s64, s64, 10")
    a(f"s_lshl_b32 s68, s{S_H}, 16")
    a("s_add_u32 s68, s68, s64")
    a(f"s_add_u32 s68, s68, {O_BASE}")
    def finish_o(o, lreg, soff):
        a(f"v_rcp_f32 v{TMP}, v{lreg}")
        a("s_nop 1")
        for r in range(8):
            a(f"v_mul_f32 v{o+r}, v{o+r}, v{TMP}")
        for r in range(4):
            a(f"v_cvt_pk_bf16_f32 v{PP[1]+r}, v{o+2*r}, v{o+2*r+1}")
        a(f"buffer_store_dwordx4 {vr(PP[1],4)}, v{LIN}, s[{WS}:{WS+3}], {soff} offen sc1")
    def o_flag(p):
        a("s_lshl_b32 s56, s2, 3")
        a("s_add_u32 s56, s56, s3")
        a("s_lshl_b32 s56, s56, 7")
        a(f"s_add_u32 s56, s56, {FO + p*262144}")
        a(f"v_mov_b32 v{T0}, s56")
        a(f"v_mov_b32 v{T1}, s{NONCE}")
        a("s_mov_b64 exec, 1")
        a(f"buffer_store_dword v{T1}, v{T0}, s[{WS}:{WS+3}], 0 offen sc1")
        a("s_mov_b64 exec, -1")
    a("s_waitcnt lgkmcnt(6)")
    SP = [80, 96, 112, 128]
    def qk1(i):
        c = MHI if i == 8 else (MLO if i == 0 else "0")
        mfma(a, SP[(8-i) % 4], KF+4*i, QB, c)
    qk1(8); qk1(7); qk1(6)
    finish_o(OACC[0], OACC[0]+8, "s68")
    st(7)
    st.l(8)
    a("s_waitcnt lgkmcnt(0)")
    a("s_barrier")
    read_v(VF[0], VVA, 8*2048)
    a("s_nop 0")
    a("s_mov_b32 s38, s35")
    for i in range(8, -1, -1):
        s = SP[(8-i) % 4]
        if i == 8:
            a(f"v_max_f32 v{MX}, v{s}, v{s+1}")
            for r in range(1, 8):
                a(f"v_max3_f32 v{MX}, v{s+2*r}, v{s+2*r+1}, v{MX}")
        else:
            for r in range(8):
                a(f"v_max3_f32 v{MX}, v{s+2*r}, v{s+2*r+1}, v{MX}")
        if i > 0:
            a("s_cmp_eq_u32 s38, 0")
            a("s_cbranch_scc1 Lb_p1_done")
            a("s_sub_u32 s38, s38, 1")
        if i - 3 >= 0:
            qk1(i - 3)
    a.label("Lb_p1_done")
    halves_max(MX, TMP)
    st(8)
    st.l(9)
    a("s_waitcnt vmcnt(0)")
    o_flag(0)
    a("s_mov_b32 s43, 0")
    for r in range(16):
        a(f"v_sub_f32 v{MHI+r}, v{MHI+r}, v{MX}")
    a("s_nop 1")
    mfma(a, SP[0], KF+4*8, QB, MHI)
    for r in range(16):
        a(f"v_sub_f32 v{CNEG[0]+r}, 0, v{MX}")
        a(f"v_sub_f32 v{MLO+r}, v{MLO+r}, v{MX}")
        a(f"v_mov_b32 v{OACC[0]+r}, 0")
    a("s_lshr_b32 s52, s3, 2")
    a("s_and_b32 s53, s3, 1")
    a("s_bfe_u32 s54, s3, 0x10001")
    a("s_lshl_b32 s55, s75, 1")
    a("s_add_u32 s55, s55, s53")
    a("s_lshl_b32 s56, s53, 2")
    a("s_add_u32 s56, s56, s75")
    a("s_cmp_eq_u32 s52, 0")
    a("s_cselect_b32 s56, s56, s55")
    a(f"s_lshl_b32 s57, s{S_QB}, 5")
    a("s_lshl_b32 s58, s54, 4")
    a("s_add_u32 s57, s57, s58")
    a("s_lshl_b32 s57, s57, 3")
    a("s_add_u32 s57, s57, s56")
    a("s_lshl_b32 s57, s57, 7")
    a(f"s_add_u32 s57, s57, {FO}")
    a(f"v_and_b32 v{T2}, 15, v1")
    a(f"v_lshlrev_b32 v{T2}, 10, v{T2}")
    a(f"v_add_u32 v{T2}, s57, v{T2}")
    a("s_mov_b32 s44, 0")
    WG = [(WOA, 1, 32768), (WOB, 0, 65536), (WOB, 1, 98304)]
    wo_dma(*WG[0])
    a("s_mov_b32 s43, 1")
    a("s_mov_b32 s38, s35")
    for n, i in enumerate(range(8, -1, -1)):
        cur, nxt = SP[n % 2], SP[(n+1) % 2]
        vb = VF[n % 2]
        if i > 0:
            cn = MLO if i - 1 == 0 else CNEG[0]
            step(cur, PP[0], OACC[0],
                 lambda: read_v(VF[(n+1) % 2], VVA, (i-1)*2048),
                 lambda: mfma(a, nxt, KF+4*(i-1), QB, cn),
                 lambda: a("s_waitcnt lgkmcnt(2)"),
                 lambda: a("s_nop 1"), nop, vb)
            if n in (1, 3):
                wo_dma(*WG[1 if n == 1 else 2])
                a(f"s_mov_b32 s43, {2 if n == 1 else 3}")
            if n == 5 and os.environ.get("EPOLL", "0") == "1":
                a(f"buffer_load_dword v{T3}, v{T2}, s[{WS}:{WS+3}], 0 offen sc1")
                a("s_mov_b32 s44, 1")
            a("s_cmp_eq_u32 s38, 0")
            a("s_cbranch_scc1 Lb_p2_done")
            a("s_sub_u32 s38, s38, 1")
        else:
            step(cur, PP[0], OACC[0], nop, nop,
                 lambda: a("s_waitcnt lgkmcnt(0)"),
                 lambda: a("s_nop 1"), nop, vb)
    a.label("Lb_p2_done")
    st(9)
    st.l(10)
    st.t(1)
    a("s_cmp_ge_u32 s43, 2")
    a("s_cbranch_scc1 Lb_g1")
    wo_dma(*WG[1])
    a.label("Lb_g1")
    a("s_cmp_ge_u32 s43, 3")
    a("s_cbranch_scc1 Lb_g2")
    wo_dma(*WG[2])
    a.label("Lb_g2")
    a("s_cmp_eq_u32 s44, 1")
    a("s_cbranch_scc1 Lb_g3")
    a(f"buffer_load_dword v{T3}, v{T2}, s[{WS}:{WS+3}], 0 offen sc1")
    a.label("Lb_g3")
    a("s_nop 15")
    a(f"s_lshl_b32 s68, s{S_H}, 16")
    a("s_lshl_b32 s69, s34, 10")
    a("s_add_u32 s68, s68, s69")
    a(f"s_add_u32 s68, s68, {O_BASE + O_PROB}")
    finish_o(OACC[0], OACC[0]+8, "s68")
    OF, ACC2, WF2 = 16, 208, 112
    a(f"s_lshl_b32 s59, s{S_QB}, 3")
    a("s_add_u32 s59, s59, s55")
    a("s_lshl_b32 s60, s59, 10")
    a(f"s_mul_i32 s61, s52, {O_PROB}")
    a("s_add_u32 s60, s60, s61")
    a(f"s_add_u32 s60, s60, {O_BASE}")
    a("s_bfe_u32 s61, s2, 0x20003")
    a("s_lshl_b32 s61, s61, 2")
    a(f"v_lshrrev_b32 v{T0}, 5, v1")
    a(f"v_lshlrev_b32 v{T1}, 2, v{T0}")
    a(f"v_bfe_u32 v{TMP}, v1, 2, 2")
    a(f"v_add_u32 v{T1}, v{T1}, v{TMP}")
    a(f"v_lshlrev_b32 v{T1}, 7, v{T1}")
    a(f"v_bfe_u32 v{TMP}, v1, 4, 1")
    a(f"v_lshlrev_b32 v{TMP}, 5, v{TMP}")
    a(f"v_add_u32 v{T1}, v{T1}, v{TMP}")
    a(f"v_and_b32 v{TMP}, 3, v1")
    a(f"v_lshlrev_b32 v{TMP}, 3, v{TMP}")
    a(f"v_add_u32 v{T1}, v{T1}, v{TMP}")
    a(f"v_bfe_u32 v{TMP}, v1, 3, 1")
    a(f"v_lshlrev_b32 v{TMP}, 6, v{TMP}")
    a("s_lshl_b32 s62, s52, 16")
    a("s_lshl_b32 s63, s54, 15")
    a("s_add_u32 s62, s62, s63")
    a(f"v_add_u32 v{T1}, s62, v{T1}")
    a(f"v_add_u32 v{VKA}, v{T1}, v{TMP}")
    a(f"v_xor_b32 v{TMP}, 64, v{TMP}")
    a(f"v_add_u32 v{VVA}, v{T1}, v{TMP}")
    a(f"v_and_b32 v{VKN}, 31, v1")
    a(f"v_lshlrev_b32 v{VKN}, 11, v{VKN}")
    a(f"v_lshlrev_b32 v{T0}, 4, v{T0}")
    a(f"v_add_u32 v{VKN}, v{VKN}, v{T0}")
    st.t(2)
    st(10)
    a("s_lshl_b32 s63, s54, 20")
    a("s_add_u32 s60, s60, s63")
    a("s_waitcnt vmcnt(2)")
    a("s_barrier")
    WFA = 80
    for hh in range(16):
        for ct, reg in ((0, VKA), (1, VVA)):
            b = WFA + 8*hh + 4*ct
            a(f"ds_read_b64_tr_b16 {vr(b,2)}, v{reg} offset:{hh*2048}")
            a(f"ds_read_b64_tr_b16 {vr(b+2,2)}, v{reg} offset:{hh*2048+1024}")
        if hh % 3 == 2: a("s_waitcnt lgkmcnt(8)")
    st.t(3)
    a(f"s_mov_b32 s67, {SPIN}")
    a("s_waitcnt vmcnt(1)")
    a.label("Lo_spin")
    a(f"v_cmp_eq_u32 vcc, s{NONCE}, v{T3}")
    a("s_nop 4")
    a("s_cmp_eq_u64 vcc, -1")
    a("s_cbranch_scc1 Lo_got")
    a("s_sleep 1")
    a(f"buffer_load_dword v{T3}, v{T2}, s[{WS}:{WS+3}], 0 offen sc1")
    a("s_waitcnt vmcnt(0)")
    a("s_sub_u32 s67, s67, 1")
    a("s_cmp_lg_u32 s67, 0")
    a("s_cbranch_scc1 Lo_spin")
    a.label("Lo_got")
    st.t(4)
    a(f"s_mov_b32 s67, {SPIN}")
    a.label("Lo_ld")
    for hh in range(16):
        a(f"s_add_u32 s64, s60, {hh*65536}")
        a(f"buffer_load_dwordx4 {vr(OF+4*hh,4)}, v{LIN}, s[{WS}:{WS+3}], s64 offen sc1")
    a("s_cmp_eq_u32 s52, 0")
    a("s_cbranch_scc1 Lo_rdy")
    a("s_waitcnt vmcnt(0)")
    a(f"v_max_u32 v{T3}, v{OF}, v{OF+1}")
    for r in range(1, 32):
        a(f"v_max3_u32 v{T3}, v{OF+2*r}, v{OF+2*r+1}, v{T3}")
    a(f"v_cmp_eq_u32 vcc, -1, v{T3}")
    a("s_nop 4")
    a("s_cmp_eq_u64 vcc, 0")
    a("s_cbranch_scc1 Lo_rdy")
    a("s_sub_u32 s67, s67, 1")
    a("s_cmp_lg_u32 s67, 0")
    a("s_cbranch_scc1 Lo_ld")
    a.label("Lo_rdy")
    st.t(5)
    a("s_waitcnt lgkmcnt(0)")
    for hh in range(16):
        a(f"s_waitcnt vmcnt({15-hh})")
        for ct in range(2):
            acc = ACC2 + 16*ct
            mfma(a, acc, WFA+8*hh+4*ct, OF+4*hh, "0" if hh == 0 else acc)
    st.t(6)
    a("s_lshl_b32 s64, s3, 12")
    a(f"s_add_u32 s64, s64, {BKV}")
    a(f"v_add_u32 v{T0}, s64, v{LIN}")
    a("s_xor_b32 s65, s3, 2")
    a("s_lshl_b32 s65, s65, 12")
    a(f"s_add_u32 s65, s65, {BKV}")
    a(f"v_add_u32 v{T1}, s65, v{LIN}")
    a("s_nop 15")
    a("s_cmp_eq_u32 s54, 0")
    a("s_cbranch_scc0 Lo_send0")
    for r in range(4):
        a(f"ds_write_b128 v{T0}, {vr(ACC2+16+4*r,4)} offset:{r*1024}")
    a("s_branch Lo_sent")
    a.label("Lo_send0")
    for r in range(4):
        a(f"ds_write_b128 v{T0}, {vr(ACC2+4*r,4)} offset:{r*1024}")
    for r in range(16):
        a(f"v_mov_b32 v{ACC2+r}, v{ACC2+16+r}")
    a.label("Lo_sent")
    a("s_waitcnt lgkmcnt(0)")
    a("s_barrier")
    st.t(7)
    for r in range(4):
        a(f"ds_read_b128 {vr(OF+4*r,4)}, v{T1} offset:{r*1024}")
    a("s_lshl_b32 s64, s59, 16")
    a("s_lshl_b32 s65, s52, 10")
    a("s_add_u32 s64, s64, s65")
    a("s_lshl_b32 s65, s39, 7")
    a("s_add_u32 s64, s64, s65")
    a("s_lshl_b32 s65, s54, 6")
    a("s_add_u32 s64, s64, s65")
    a("s_waitcnt lgkmcnt(0)")
    for r in range(16):
        a(f"v_add_f32 v{ACC2+r}, v{ACC2+r}, v{OF+r}")
    for pr in range(2):
        b = ACC2 + 8*pr
        pk = WF2 + 4*pr
        for r in range(4):
            a(f"v_cvt_pk_bf16_f32 v{pk+r}, v{b+2*r}, v{b+2*r+1}")
        a("s_nop 1")
        a(f"v_permlane32_swap_b32 v{pk}, v{pk+2}")
        a(f"v_permlane32_swap_b32 v{pk+1}, v{pk+3}")
        a("s_nop 1")
        a(f"buffer_store_dwordx4 {vr(pk,4)}, v{VKN}, s[{OUT}:{OUT+3}], s64 offen offset:{pr*32} {os.environ.get('OUTF','')}")
    st.t(8)
    if st.ft: a("s_waitcnt vmcnt(0)")
    st.t(9); st.t(10)
    st(11)
    st.p(11)
    st.flush(8, 12)
    a.label("Lfa_end")
    a("s_endpgm")

def b_loads(a, LIN, QBL):
    a("s_sub_u32 s51, s3, 4")
    a("s_lshl_b32 s51, s51, 10")
    a(f"s_lshl_b32 s50, s{S_QB}, 14")
    a("s_add_u32 s50, s50, s51")
    a("s_sub_u32 s50, s50, 16384")
    for u in range(8):
        a(f"s_add_u32 m0, s51, {BKV + u*4096}")
        a(f"s_add_u32 s54, s50, {u*4096}")
        a("s_max_i32 s54, s54, 0")
        a("s_add_u32 s54, s54, s36")
        a("s_add_u32 s54, s54, 65536")
        a(f"buffer_load_dwordx4 v{LIN}, s[{WS}:{WS+3}], s54 offen sc1 lds")
    a(f"s_lshl_b32 s50, s{S_QB}, 13")
    a("s_add_u32 s50, s50, s36")
    a("s_add_u32 s50, s50, s51")
    for u in range(2):
        a(f"s_add_u32 m0, s51, {QBL + u*4096}")
        a(f"s_add_u32 s54, s50, {u*4096}")
        a(f"buffer_load_dwordx4 v{LIN}, s[{WS}:{WS+3}], s54 offen sc1 lds")

def gen_oproj(a):
    a.raw(".p2align 8")
    a.raw(".type oproj_kernel,@function")
    a.label("oproj_kernel")
    a("s_cmp_ge_u32 s2, 256")
    a("s_cbranch_scc1 Lop_end")
    st = Stamper(a, "oproj", 1, "s20")
    st()
    a("s_load_dwordx2 s[4:5], s[0:1], 16")
    a("s_load_dwordx2 s[26:27], s[0:1], 40")
    a("s_load_dwordx2 s[28:29], s[0:1], 48")
    a("s_load_dwordx2 s[30:31], s[0:1], 64")
    a("s_and_b32 s32, s2, 7")
    a("s_lshr_b32 s33, s2, 3")
    a("s_lshr_b32 s23, s32, 2")
    a("s_and_b32 s34, s32, 3")
    a("s_lshl_b32 s34, s34, 2")
    a("s_and_b32 s35, s33, 3")
    a("s_add_u32 s24, s34, s35")
    a("s_lshr_b32 s25, s33, 2")
    a("v_and_b32 v1, 63, v0")
    a("v_lshrrev_b32 v2, 6, v0")
    a("s_nop 0")
    a("v_readfirstlane_b32 s20, v2")
    a("v_lshrrev_b32 v2, 3, v1")
    a("v_lshlrev_b32 v2, 10, v2")
    a("v_bfe_u32 v3, v1, 4, 1")
    a("v_lshlrev_b32 v3, 2, v3")
    a("v_and_b32 v5, 7, v1")
    a("v_xor_b32 v3, v3, v5")
    a("v_lshlrev_b32 v3, 4, v3")
    a("v_add_u32 v4, v2, v3")
    a("v_lshlrev_b32 v5, 4, v1")
    a("s_waitcnt lgkmcnt(0)")
    a("s_cmp_eq_u32 s23, 0")
    a("s_cselect_b32 s4, s4, s26")
    a("s_cselect_b32 s5, s5, s27")
    srd(a, 8, 4, 5, 512*1024)
    a(f"s_mul_i32 s36, s23, {O_PROB}")
    a(f"s_add_u32 s36, s36, {O_BASE}")
    a("s_add_u32 s30, s30, s36")
    a("s_addc_u32 s31, s31, 0")
    srd(a, 12, 30, 31, O_PROB)
    a("s_lshl_b32 s40, s20, 13")
    a("s_lshl_b32 s36, s25, 7")
    a("s_add_u32 s40, s40, s36")
    a("s_lshl_b32 s41, s20, 10")
    OF = 64
    a("s_lshl_b32 s42, s24, 2")
    a("s_add_u32 s42, s42, s20")
    a("s_lshl_b32 s43, s42, 10")
    a("s_lshl_b32 s49, s25, 2")
    a("s_and_b32 s47, s24, 3")
    a("s_lshl_b32 s47, s47, 3")
    a("s_add_u32 s49, s49, s47")
    a("s_lshl_b32 s46, s49, 4")
    a("s_lshl_b32 s47, s20, 3")
    a("s_add_u32 s46, s46, s47")
    a("s_lshl_b32 s48, s25, 7")
    def wdma(u):
        a(f"s_add_u32 m0, s41, {u*4096}")
        a(f"s_add_u32 s44, s46, {u*32}")
        a("s_and_b32 s44, s44, 511")
        a("s_lshl_b32 s44, s44, 10")
        a("s_add_u32 s44, s44, s48")
        a("buffer_load_dwordx4 v4, s[8:11], s44 offen lds")
    def oload(H):
        a(f"s_add_u32 s44, s49, {H}")
        a("s_and_b32 s44, s44, 31")
        a("s_lshl_b32 s44, s44, 16")
        a("s_add_u32 s44, s44, s43")
        a(f"buffer_load_dwordx4 {vr(OF+4*H,4)}, v5, s[12:15], s44 offen")
    for q in range(4):
        for u in range(4): wdma(4*q+u)
        for H in range(8): oload(8*q+H)
    srd(a, 16, 28, 29, 2048*2048)
    a("v_lshrrev_b32 v2, 5, v1")
    a("v_lshlrev_b32 v3, 2, v2")
    a("v_bfe_u32 v8, v1, 2, 2")
    a("v_add_u32 v3, v3, v8")
    a("v_lshlrev_b32 v3, 7, v3")
    a("v_bfe_u32 v8, v1, 4, 1")
    a("v_lshlrev_b32 v8, 5, v8")
    a("v_add_u32 v3, v3, v8")
    a("v_and_b32 v8, 3, v1")
    a("v_lshlrev_b32 v8, 3, v8")
    a("v_add_u32 v3, v3, v8")
    a("v_bfe_u32 v8, v1, 3, 1")
    a("v_lshlrev_b32 v8, 6, v8")
    a("v_add_u32 v6, v3, v8")
    a("v_xor_b32 v8, 64, v8")
    a("v_add_u32 v7, v3, v8")
    a("v_and_b32 v8, 31, v1")
    a("v_lshlrev_b32 v8, 11, v8")
    a("v_lshlrev_b32 v9, 4, v2")
    a("v_add_u32 v8, v8, v9")
    ACC = 16
    st()
    WF = [48, 56]
    def rd(H, buf):
        for ct in range(2):
            a(f"ds_read_b64_tr_b16 {vr(WF[buf]+4*ct,2)}, v{6+ct} offset:{H*2048}")
            a(f"ds_read_b64_tr_b16 {vr(WF[buf]+4*ct+2,2)}, v{6+ct} offset:{H*2048+1024}")
    for q in range(4):
        a(f"s_waitcnt vmcnt({8 + 12*(3-q)})")
        a("s_barrier")
        rd(8*q, 0)
        for hh in range(8):
            H = 8*q + hh
            buf = hh % 2
            if hh < 7:
                rd(H+1, buf ^ 1)
                a(f"s_waitcnt vmcnt({7-hh + 12*(3-q)}) lgkmcnt(4)")
            else:
                a(f"s_waitcnt vmcnt({12*(3-q)}) lgkmcnt(0)")
            for ct in range(2):
                acc = ACC+16*ct
                mfma(a, acc, WF[buf]+4*ct, OF+4*H, "0" if H == 0 else acc)
    a("s_nop 15")
    st()
    a("s_lshl_b32 s44, s42, 16")
    a("s_lshl_b32 s45, s23, 10")
    a("s_add_u32 s44, s44, s45")
    a("s_lshl_b32 s45, s25, 7")
    a("s_add_u32 s44, s44, s45")
    for ct in range(2):
        for pr in range(2):
            b = ACC + 16*ct + 8*pr
            pk = 48 + (ct*2+pr)*4
            for r in range(4):
                a(f"v_cvt_pk_bf16_f32 v{pk+r}, v{b+2*r}, v{b+2*r+1}")
            a("s_nop 1")
            a(f"v_permlane32_swap_b32 v{pk}, v{pk+2}")
            a(f"v_permlane32_swap_b32 v{pk+1}, v{pk+3}")
            a("s_nop 1")
            a(f"buffer_store_dwordx4 {vr(pk,4)}, v8, s[16:19], s44 offen offset:{ct*64+pr*32}")
    st()
    st.flush(4)
    a.label("Lop_end")
    a("s_endpgm")

def kd(name, vgpr, sgpr=102):
    acc = (vgpr + 3)//4*4
    return f""".section .rodata,"a"
.p2align 6
.amdhsa_kernel {name}
  .amdhsa_next_free_vgpr {vgpr}
  .amdhsa_next_free_sgpr {sgpr}
  .amdhsa_accum_offset {acc}
  .amdhsa_group_segment_fixed_size 0
  .amdhsa_kernarg_size 72
  .amdhsa_user_sgpr_count 2
  .amdhsa_user_sgpr_kernarg_segment_ptr 1
  .amdhsa_system_sgpr_workgroup_id_x 1
.end_amdhsa_kernel
"""

HEADER = """; Kernarg layout for this problem (72 bytes, ptrs only, base s[0:1]):
;   offset   0: d_in[0] A_x  shape=(1, 2048, 512) dtype=bfloat16
;   offset   8: d_in[1] A_wqkv  shape=(512, 1536) dtype=bfloat16
;   offset  16: d_in[2] A_wo  shape=(512, 512) dtype=bfloat16
;   offset  24: d_in[3] B_x  shape=(1, 2048, 512) dtype=bfloat16
;   offset  32: d_in[4] B_wqkv  shape=(512, 1536) dtype=bfloat16
;   offset  40: d_in[5] B_wo  shape=(512, 512) dtype=bfloat16
;   offset  48: d_out     shape=(1, 2048, 1024) dtype=bfloat16
;   offset  56: d_debug   256 bytes
;   offset  64: d_ws      268435456 bytes workspace
; @launch grid=(256,1,1) block=(512,1,1) lds=163840
.amdgcn_target "amdgcn-amd-amdhsa--gfx950"
.text
.globl concat_heads__softmax_full_mha__sliding_block__prompt_kernel
"""

def main(path):
    a = Asm()
    gen_fused(a)
    txt = HEADER + a.text() + kd("concat_heads__softmax_full_mha__sliding_block__prompt_kernel", 256)
    open(path, "w").write(txt)

if __name__ == "__main__":
    main(sys.argv[1] if len(sys.argv) > 1 else f"cdna_kernels/{NAME}.s")
```

```python
import sys, os, struct

NAME = "concat_heads__softmax_full_mha__sliding_block__prompt"
STAMPS = os.environ.get("STAMPS", "")

class Asm:
    def __init__(self): self.lines = []
    def __call__(self, s): self.lines.append("  " + s)
    def label(self, s): self.lines.append(s + ":")
    def raw(self, s): self.lines.append(s)
    def text(self): return "\n".join(self.lines) + "\n"

def vr(b, n=1): return f"v{b}" if n == 1 else f"v[{b}:{b+n-1}]"
def f32bits(x): return struct.unpack("<I", struct.pack("<f", x))[0]

HEAD_STRIDE = 196608
PROB_STRIDE = 32 * HEAD_STRIDE
O_BASE = 2 * PROB_STRIDE
O_PROB = 32 * 65536
F_BASE = 16 << 20
WS_SIZE = 17 << 20
QSCALE = 0.25 * 1.4426950408889634
SPIN = 1 << 16

def srd(a, d, lo, hi, nrec):
    a(f"s_mov_b32 s{d}, s{lo}")
    a(f"s_and_b32 s{d+1}, s{hi}, 0xffff")
    a(f"s_mov_b32 s{d+2}, {nrec}")
    a(f"s_mov_b32 s{d+3}, 0x00020000")

class Stamper:
    def __init__(self, a, kname, kidx, wavereg, base=76):
        self.a=a; self.on=(STAMPS==kname or (STAMPS in ("fp","fs","fl","ft") and kname=="fa")); self.fp=(STAMPS in ("fp","fs","fl","ft")); self.ft=(STAMPS=="ft"); self.fs=(STAMPS=="fs"); self.fl=(STAMPS=="fl"); self.rt=(STAMPS=="rt"); self.n=0; self.base=base; self.wavereg=wavereg; self.kidx=kidx
        if self.rt:
            a("s_memrealtime s[76:77]"); a("s_memtime s[78:79]")
    def p(self, idx):
        if self.fp and ((not self.fs and not self.fl and not self.ft) or idx==11): self._st(idx)
    def t(self, idx):
        if self.ft: self._st(idx)
    def l(self, idx):
        if self.fl: self._st(idx)
    def ldyn(self, base, uid):
        if not self.fl: return
        a=self.a
        for j in range(4):
            a(f"s_cmp_eq_u32 s38, {j}")
            a(f"s_cbranch_scc0 Lst{uid}_{j}")
            self._st(base+j)
            a.label(f"Lst{uid}_{j}")
    def f(self, idx):
        if self.fs: self._st(idx)
    def __call__(self, idx=None):
        if STAMPS == "dbg" and self.kidx == 0:
            m = {0:0, 2:1, 5:2, 6:3, 9:4, 10:5, 11:6}
            if idx in m:
                self.a(f"s_memrealtime s[{76+2*m[idx]}:{77+2*m[idx]}]")
                self.a("s_waitcnt lgkmcnt(0)")
            return
        if not self.on: return
        if self.fp and idx not in (0,): return
        self._st(idx)
    def _st(self, idx=None):
        if idx is not None: self.n = idx
        assert self.base+2*self.n+1 < 102
        self.a(f"s_memtime s[{self.base+2*self.n}:{self.base+2*self.n+1}]")
        self.a("s_waitcnt lgkmcnt(0)")
        self.n+=1
    def flush(self, nw, n=None):
        if STAMPS == "dbg":
            a=self.a
            a("s_cmp_eq_u32 s3, 4"); a("s_cbranch_scc0 Ldbg_skip")
            a("s_cmp_eq_u32 s2, 0"); a("s_cselect_b32 s6, 4, 0")
            a("s_cmp_eq_u32 s2, 131"); a("s_cselect_b32 s6, 32, s6")
            a("s_cmp_eq_u32 s6, 0"); a("s_cbranch_scc1 Ldbg_skip")
            a("v_mov_b32 v1, s6")
            for i in range(1,7):
                a(f"s_sub_u32 s7, s{76+2*i}, s76")
                a("v_mov_b32 v2, s7")
                a(f"buffer_store_dword v2, v1, s[{DBG}:{DBG+3}], 0 offen offset:{4*(i-1)}")
            a("v_mov_b32 v2, s76")
            a(f"buffer_store_dword v2, v1, s[{DBG}:{DBG+3}], 0 offen offset:24")
            a("s_waitcnt vmcnt(0)")
            a.label("Ldbg_skip")
            return
        if not (self.on or self.rt): return
        a=self.a
        n = n or self.n
        if self.rt:
            a("s_waitcnt vmcnt(0)"); a("s_memrealtime s[80:81]"); a("s_memtime s[82:83]"); n=4
        a("s_load_dwordx2 s[4:5], s[0:1], 64")
        a("s_waitcnt vmcnt(0) lgkmcnt(0)")
        a(f"s_add_u32 s4, s4, {(64<<20) + (self.kidx<<20 if self.rt else 0)}")
        a("s_addc_u32 s5, s5, 0")
        srd(a, 8, 4, 5, 1<<20)
        a(f"s_mul_i32 s6, s2, {nw}")
        a(f"s_add_u32 s6, s6, {self.wavereg}")
        a("s_lshl_b32 s6, s6, 6")
        a("v_mov_b32 v1, s6")
        for i in range(n):
            a(f"v_mov_b32 v2, s{self.base+2*i}")
            a(f"buffer_store_dword v2, v1, s[8:11], 0 offen offset:{4*i}")
        a("s_waitcnt vmcnt(0)")

def mfma(a, d, x, y, c):
    cs = c if isinstance(c, str) else vr(c, 16)
    a(f"v_mfma_f32_32x32x16_bf16 {vr(d,16)}, {vr(x,4)}, {vr(y,4)}, {cs}")

WS, XB, WB, XA, WA, DBG = 4, 8, 12, 16, 20, 24
NONCE = 28
S_H, S_QB, S_G, S_TB = 30, 31, 32, 33
SLOT = 32768
BKV = 131072

def gen_fused(a):
    QA = [4, 8]; QB = 12
    OACC = [16, 32]
    CNEG = [48, 64]
    SB = [[80, 96], [112, 128]]
    PP = [144, 152]
    VF = [160, 168]
    KF = 176
    MHI, MLO = 212, 228
    VKA, VVA, TMP, LIN, MX, MX1 = 244, 245, 246, 247, 248, 249
    T0, T1, T2, T3 = 250, 251, 252, 253
    VKN, VVN = 254, 255
    VLO = 3
    XCH = 98304
    QBL = 122880
    FA, FB = F_BASE, F_BASE + 65536
    PUB = int(os.environ.get("PUB", "9"))
    FO = F_BASE + 131072
    WOA, WOB, OUT = 8, 12, 16

    a.raw(".p2align 8")
    a.raw(".type concat_heads__softmax_full_mha__sliding_block__prompt_kernel,@function")
    a.label("concat_heads__softmax_full_mha__sliding_block__prompt_kernel")
    a("s_cmp_ge_u32 s2, 256")
    a("s_cbranch_scc1 Lfa_end")
    st = Stamper(a, "fa", 0, "s3")
    st(0)
    a("s_load_dwordx4 s[36:39], s[0:1], 0")
    a("s_load_dwordx2 s[34:35], s[0:1], 24")
    a("s_load_dwordx2 s[42:43], s[0:1], 32")
    a("s_load_dwordx4 s[44:47], s[0:1], 56")
    a("v_and_b32 v1, 63, v0")
    a("v_lshrrev_b32 v2, 6, v0")
    a(f"s_and_b32 s{S_H}, s2, 31")
    a("v_readfirstlane_b32 s3, v2")
    a(f"s_lshr_b32 s{S_QB}, s2, 5")
    a("s_lshr_b32 s48, s2, 3")
    a("s_and_b32 s49, s2, 1")
    a("s_lshl_b32 s49, s49, 2")
    a("s_and_b32 s50, s48, 3")
    a(f"s_add_u32 s{S_G}, s49, s50")
    a("s_bfe_u32 s49, s2, 0x20001")
    a("s_lshl_b32 s49, s49, 3")
    a("s_lshr_b32 s50, s48, 2")
    a(f"s_add_u32 s{S_TB}, s49, s50")
    a(f"s_and_b32 s29, s{S_G}, 3")
    a("s_lshl_b32 s29, s29, 1")
    a(f"s_add_u32 s29, s29, s{S_TB}")
    a("s_and_b32 s29, s29, 7")
    a("s_cmp_lt_u32 s3, 4")
    a("s_cbranch_scc1 Lfa_compute")

    def early_setup():
        a(f"v_lshlrev_b32 v{LIN}, 4, v1")
        a(f"v_lshrrev_b32 v{T0}, 5, v1")
        a(f"v_lshlrev_b32 v{VLO}, 8, v{T0}")
        a(f"v_and_b32 v{T1}, 15, v1")
        a(f"v_lshlrev_b32 v{T1}, 4, v{T1}")
        a(f"v_add_u32 v{VLO}, v{VLO}, v{T1}")
        a(f"v_add_u32 v{VLO}, 1024, v{VLO}")
        a(f"v_and_b32 v{T1}, 27, v1")
        a(f"v_cmp_eq_u32 vcc, 16, v{T1}")
        a(f"v_mov_b32 v{T2}, 0x3f803f80")
        a(f"v_mov_b32 v{T3}, 0")
        a("s_nop 0")
        for r in range(16):
            a(f"v_cndmask_b32 v{VF[0]+r}, v{T3}, v{T2}, vcc")
        a(f"v_and_b32 v{T1}, 31, v1")
        a(f"v_lshlrev_b32 v{T0}, 2, v{T0}")
        a(f"v_sub_u32 v{T1}, v{T1}, v{T0}")
        a(f"v_mov_b32 v{T2}, 0xff800000")
        for r in range(16):
            cr = 8*(r//4) + r % 4
            a(f"v_cmp_le_i32 s[{62+2*(r%4)}:{63+2*(r%4)}], {cr}, v{T1}")
            if r % 4 == 3:
                a("s_nop 1")
                for q in range(r-3, r+1):
                    a(f"v_cndmask_b32 v{MHI+q}, v{T2}, v{T3}, s[{62+2*(q%4)}:{63+2*(q%4)}]")
                    a(f"v_cndmask_b32 v{MLO+q}, v{T3}, v{T2}, s[{62+2*(q%4)}:{63+2*(q%4)}]")
        a("s_lshr_b32 s70, s3, 2")
        a("s_lshl_b32 s71, s70, 14")
        a(f"s_add_u32 s72, s71, {BKV}")
        a(f"v_add_u32 v{VKN}, s71, v{LIN}")
        a(f"v_add_u32 v{VVN}, s71, v{VLO}")
        a(f"v_add_u32 v{VKA}, s72, v{LIN}")
        a(f"v_add_u32 v{VVA}, s72, v{VLO}")
        a("s_mov_b32 s73, 0")
        a("s_mov_b32 s40, 0x0000ffff")
        a("s_mov_b32 s41, 0x0000ffff")

    a("s_sub_u32 s48, s3, 4")
    a("v_lshrrev_b32 v2, 3, v1")
    a("v_lshlrev_b32 v2, 10, v2")
    a("v_and_b32 v3, 7, v1")
    a("v_lshrrev_b32 v6, 4, v1")
    a("v_xor_b32 v3, v3, v6")
    a("v_lshlrev_b32 v3, 4, v3")
    a("v_add_u32 v4, v2, v3")
    a("v_xor_b32 v5, 64, v4")
    a(f"s_lshl_b32 s50, s{S_TB}, 6")
    a("s_lshl_b32 s49, s48, 4")
    a("s_add_u32 s50, s50, s49")
    a("s_lshl_b32 s50, s50, 10")
    a("s_lshl_b32 s51, s48, 11")
    a("s_mul_i32 s52, s48, 49152")
    a(f"s_lshl_b32 s49, s{S_G}, 7")
    a("s_add_u32 s52, s52, s49")
    a("s_mul_i32 s53, s48, 6144")
    a("s_add_u32 s53, s53, 8192")
    a("s_movk_i32 s49, 171")
    a("s_movk_i32 s55, 3072")
    for v in range(3):
        a(f"v_add_u32 v2, {64*v}, v1")
        a("v_mul_lo_u32 v3, v2, s49")
        a("v_lshrrev_b32 v3, 12, v3")
        a("v_mul_u32_u24 v9, 24, v3")
        a("v_sub_u32 v9, v2, v9")
        a("v_bfe_u32 v10, v3, 1, 1")
        a("v_lshlrev_b32 v10, 2, v10")
        a("v_xor_b32 v9, v9, v10")
        a("v_mul_lo_u32 v3, v3, s55")
        a("v_lshrrev_b32 v10, 3, v9")
        a("v_lshlrev_b32 v10, 10, v10")
        a("v_add_u32 v3, v3, v10")
        a("v_and_b32 v9, 7, v9")
        a("v_lshlrev_b32 v9, 4, v9")
        a(f"v_add_u32 v{6+v}, v3, v9")
    a("s_waitcnt lgkmcnt(0)")
    srd(a, XA, 36, 37, 2048*1024)
    srd(a, WA, 38, 39, 512*3072)
    def dma_chunk(i, ldsbase=None):
        c = i % 8
        base = (i % 4)*SLOT if ldsbase is None else ldsbase
        xs, wsr = (XA, WA) if i < 8 else (XB, WB)
        a(f"s_add_u32 s58, s29, {c}")
        a("s_and_b32 s58, s58, 7")
        a("s_lshl_b32 s59, s58, 7")
        a("s_add_u32 s59, s59, s50")
        a(f"s_mul_i32 s58, s58, {64*3072}")
        a("s_add_u32 s58, s58, s52")
        for u in range(2):
            a(f"s_add_u32 m0, s51, {base + u*1024}")
            a(f"s_add_u32 s54, s59, {u*8192}")
            a(f"buffer_load_dwordx4 v{4 + u}, s[{xs}:{xs+3}], s54 offen lds")
        for u in range(6):
            up, v = divmod(u, 3)
            a(f"s_add_u32 m0, s53, {base + u*1024}")
            a(f"s_add_u32 s54, s58, {8*up*3072}")
            a(f"buffer_load_dwordx4 v{6 + v}, s[{wsr}:{wsr+3}], s54 offen lds")
    dma_chunk(0)
    dma_chunk(1)
    srd(a, XB, 34, 35, 2048*1024)
    srd(a, WB, 42, 43, 512*3072)
    srd(a, WS, 46, 47, WS_SIZE)
    srd(a, DBG, 44, 45, 256)
    a("s_cmp_eq_u32 s2, 0")
    a("s_cselect_b32 s49, s48, 1")
    a("s_cmp_eq_u32 s49, 0")
    a("s_cbranch_scc0 Lfa_nononce")
    a("s_memrealtime s[56:57]")
    a("s_waitcnt lgkmcnt(0)")
    a("s_or_b32 s56, s56, 1")
    a("v_mov_b32 v10, s56")
    a("v_mov_b32 v11, 0")
    a(f"buffer_store_dword v10, v11, s[{DBG}:{DBG+3}], 0 offen sc1")
    a.label("Lfa_nononce")
    NCHK = 3
    C8AT = int(os.environ.get("C8AT", "-1"))
    if C8AT < 0:
        dma_chunk(8, BKV)
    early_setup()
    a(f"s_lshr_b32 s56, s{S_H}, 2")
    a("s_lshl_b32 s56, s56, 12")
    a(f"s_add_u32 s56, s56, {FA}")
    a("v_and_b32 v12, 31, v1")
    a("v_lshlrev_b32 v12, 7, v12")
    a("v_add_u32 v12, s56, v12")
    a(f"s_lshl_b32 s56, s{S_G}, 5")
    a(f"s_add_u32 s56, s56, s{S_TB}")
    a("s_lshl_b32 s74, s56, 7")
    a("v_and_b32 v2, 7, v1")
    a(f"s_lshl_b32 s49, s{S_QB}, 2")
    a("s_sub_u32 s49, s49, 4")
    a("v_add_u32 v2, s49, v2")
    a("v_max_i32 v2, 0, v2")
    a(f"s_lshr_b32 s49, s{S_H}, 2")
    a("s_lshl_b32 s49, s49, 5")
    a("v_add_u32 v2, s49, v2")
    a("v_lshlrev_b32 v2, 7, v2")
    a(f"v_add_u32 v2, {FB}, v2")
    a("v_mov_b32 v11, 0")
    st(1)
    def write_flag(base):
        a(f"s_add_u32 s56, s74, {base}")
        a("v_mov_b32 v14, s56")
        a(f"v_mov_b32 v15, s{NONCE}")
        a("s_mov_b64 exec, 1")
        a(f"buffer_store_dword v15, v14, s[{WS}:{WS+3}], 0 offen sc1")
        a("s_mov_b64 exec, -1")
    def a_loads():
        a(f"s_mul_i32 s64, s{S_H}, {HEAD_STRIDE}")
        a("s_lshl_b32 s65, s48, 10")
        a("s_add_u32 s64, s64, s65")
        for u in range(8):
            a(f"s_add_u32 m0, s65, {BKV + (u&3)*4096 + (u>>2)*16384}")
            a(f"s_add_u32 s66, s64, {65536 + (u&3)*4096 + (u>>2)*65536}")
            a(f"buffer_load_dwordx4 v{LIN}, s[{WS}:{WS+3}], s66 offen sc1 lds")
        a(f"s_lshl_b32 s67, s{S_QB}, 13")
        a("s_add_u32 s67, s67, s64")
        for u in range(2):
            a(f"s_add_u32 m0, s65, {32768 + u*4096}")
            a(f"s_add_u32 s66, s67, {u*4096}")
            a(f"buffer_load_dwordx4 v{LIN}, s[{WS}:{WS+3}], s66 offen sc1 lds")
        for u in range(8):
            a(f"s_add_u32 m0, s65, {(u&3)*4096 + (u>>2)*16384}")
            a(f"s_add_u32 s66, s64, {65536 + 16384 + (u&3)*4096 + (u>>2)*65536}")
            a(f"buffer_load_dwordx4 v{LIN}, s[{WS}:{WS+3}], s66 offen sc1 lds")
    order = ["c0"]*8 + ["c1"]*8
    if C8AT < 0: order += ["c8"]*8
    waits = {}
    for i in range(16):
        last = max(k for k, t in enumerate(order) if t == f"c{i}")
        if i == NCHK: last = max(last, max(k for k, t in enumerate(order) if t == "nonce"))
        waits[i] = len(order) - 1 - last
        if i == 0: order += ["nonce"]
        if C8AT == i: order += ["c8"]*8
        if i + 2 <= 15 and i + 2 != 8: order += [f"c{i+2}"]*8
        pass
    for i in range(16):
        w = waits[i]
        if i == 15:
            a("s_cmp_eq_u32 s48, 0")
            a("s_cbranch_scc0 Lfa_w15")
            a(f"s_waitcnt vmcnt({w+1})")
            a("s_branch Lfa_w15d")
            a.label("Lfa_w15")
            a(f"s_waitcnt vmcnt({w})")
            a.label("Lfa_w15d")
        else:
            a(f"s_waitcnt vmcnt({w})")
        if i == NCHK:
            a(f"s_mov_b32 s55, {SPIN}")
            a.label("Lfa_nspin")
            a(f"v_readfirstlane_b32 s{NONCE}, v10")
            a("s_nop 3")
            a(f"s_cmp_lg_u32 s{NONCE}, 0")
            a("s_cbranch_scc1 Lfa_ngot")
            a("s_sleep 1")
            a(f"buffer_load_dword v10, v11, s[{DBG}:{DBG+3}], 0 offen sc1")
            a("s_waitcnt vmcnt(0)")
            a("s_sub_u32 s55, s55, 1")
            a("s_cmp_lg_u32 s55, 0")
            a("s_cbranch_scc1 Lfa_nspin")
            a.label("Lfa_ngot")
        a("s_barrier")
        if i in (0,1,2,4,6,8,10,12,14,15): st.p({0:1,1:2,2:3,4:4,6:5,8:6,10:7,12:8,14:9,15:10}[i])
        if i == 0:
            a(f"buffer_load_dword v10, v11, s[{DBG}:{DBG+3}], 0 offen sc1")
        if C8AT == i:
            dma_chunk(8, BKV)
        if i + 2 <= 15 and i + 2 != 8:
            dma_chunk(i + 2)
        if i == PUB + 1:
            a("s_cmp_eq_u32 s48, 0")
            a("s_cbranch_scc0 Lfa_nf")
            write_flag(FA)
            a.label("Lfa_nf")
        if i == 13:
            a("s_cmp_eq_u32 s48, 0")
            a("s_cbranch_scc0 Lfa_np13")
            a(f"buffer_load_dword v13, v12, s[{WS}:{WS+3}], 0 offen sc1")
            a.label("Lfa_np13")
        if i == 14:
            a("s_cmp_eq_u32 s48, 0")
            a("s_cbranch_scc0 Lfa_np14")
            a("v_mov_b32 v14, 49152")
            a("v_mov_b32 v16, 0")
            a("ds_write_b32 v14, v16")
            a("s_waitcnt lgkmcnt(0)")
            a.label("Lfa_np14")
    st(2)
    a(f"s_mov_b32 s55, {SPIN}")
    a("v_mov_b32 v14, 49152")
    a("s_cmp_eq_u32 s48, 0")
    a("s_cbranch_scc0 Lfa_lspin")
    a.label("Lfa_aspin")
    a("s_waitcnt vmcnt(0)")
    a(f"v_cmp_eq_u32 vcc, s{NONCE}, v13")
    a("s_nop 4")
    a("s_cmp_eq_u64 vcc, -1")
    a("s_cbranch_scc1 Lfa_aok")
    a("s_sleep 2")
    a(f"buffer_load_dword v13, v12, s[{WS}:{WS+3}], 0 offen sc1")
    a("s_sub_u32 s55, s55, 1")
    a("s_cmp_lg_u32 s55, 0")
    a("s_cbranch_scc1 Lfa_aspin")
    a("s_waitcnt vmcnt(0)")
    a.label("Lfa_aok")
    a("v_mov_b32 v16, 1")
    a("ds_write_b32 v14, v16")
    a("s_branch Lfa_agot")
    a.label("Lfa_lspin")
    a(f"s_mov_b32 s55, {SPIN*8}")
    a.label("Lfa_lspin2")
    a("ds_read_b32 v16, v14")
    a("s_waitcnt lgkmcnt(0)")
    a("v_readfirstlane_b32 s56, v16")
    a("s_nop 3")
    a("s_cmp_lg_u32 s56, 0")
    a("s_cbranch_scc1 Lfa_agot")
    a("s_sleep 1")
    a("s_sub_u32 s55, s55, 1")
    a("s_cmp_lg_u32 s55, 0")
    a("s_cbranch_scc1 Lfa_lspin2")
    a.label("Lfa_agot")
    a_loads()
    st(3)
    a("s_branch Lfa_attn")

    a.label("Lfa_compute")
    a("s_lshr_b32 s48, s3, 1")
    a("s_and_b32 s49, s3, 1")
    a("v_and_b32 v2, 31, v1")
    a("v_lshrrev_b32 v3, 5, v1")
    a("v_bfe_u32 v9, v2, 1, 3")
    a("v_xor_b32 v9, v9, v3")
    a("s_lshl_b32 s50, s48, 12")
    a("v_lshlrev_b32 v18, 7, v2")
    a("v_add_u32 v18, s50, v18")
    for s in range(4):
        a(f"v_xor_b32 v19, {2*s}, v9")
        a("v_lshlrev_b32 v19, 4, v19")
        a(f"v_add_u32 v{10+s}, v18, v19")
        a(f"v_add_u32 v{14+s}, 0x10000, v{10+s}")
    a("v_lshlrev_b32 v24, 3, v3")
    a("v_bfe_u32 v25, v1, 2, 2")
    a("v_add_u32 v24, v24, v25")
    a("s_movk_i32 s50, 384")
    a("v_mul_lo_u32 v24, v24, s50")
    a("v_bfe_u32 v25, v1, 4, 1")
    a("v_lshlrev_b32 v25, 5, v25")
    a("v_add_u32 v24, v24, v25")
    a("v_and_b32 v25, 3, v1")
    a("v_lshlrev_b32 v25, 3, v25")
    a("v_add_u32 v24, v24, v25")
    a("v_add_u32 v24, 8192, v24")
    a("v_bfe_u32 v25, v1, 3, 1")
    a("s_mul_i32 s50, s49, 3")
    for ct in range(3):
        a(f"s_add_u32 s51, s50, {ct}")
        a("v_xor_b32 v26, s51, v25")
        a("v_lshlrev_b32 v26, 6, v26")
        a(f"v_add_u32 v{18+ct}, v24, v26")
        a(f"v_add_u32 v{21+ct}, 0x10000, v{18+ct}")
    a("v_lshlrev_b32 v24, 4, v1")
    a("v_bfe_u32 v25, v1, 4, 1")
    a(f"s_mov_b32 s50, {HEAD_STRIDE}")
    a("v_mul_lo_u32 v25, v25, s50")
    a("v_lshlrev_b32 v26, 8, v3")
    a("v_add_u32 v25, v25, v26")
    a("v_and_b32 v26, 15, v1")
    a("v_lshlrev_b32 v26, 4, v26")
    a("v_add_u32 v25, v25, v26")
    a(f"s_mul_i32 s52, s{S_G}, {4*HEAD_STRIDE}")
    a(f"s_lshl_b32 s53, s{S_TB}, 1")
    a("s_add_u32 s53, s53, s48")
    a("s_lshl_b32 s54, s53, 11")
    a("s_add_u32 s54, s54, 65536")
    a("s_lshl_b32 s53, s53, 10")
    a(f"s_mov_b32 s55, {f32bits(QSCALE):#x}")
    ACC = 64
    for r in range(48): a(f"v_mov_b32 v{ACC+r}, 0")
    early_setup()
    a("s_waitcnt lgkmcnt(0)")
    srd(a, WS, 46, 47, WS_SIZE)
    TLBW = int(os.environ.get("TLBW", "0"))
    if TLBW:
        if TLBW < 3:
            a("s_lshr_b32 s80, s2, 3" if TLBW == 1 else "s_bfe_u32 s80, s2, 0x30003")
            a("s_cmp_eq_u32 s80, 0")
            a("s_cbranch_scc0 Lfa_ntlb")
        a("v_lshlrev_b32 v129, 20, v1")
        a("s_cmp_eq_u32 s3, 0")
        a("s_cbranch_scc0 Lfa_tlb1")
        a(f"buffer_load_dword v131, v129, s[{WS}:{WS+3}], 0 offen")
        a("s_branch Lfa_ntlb")
        a.label("Lfa_tlb1")
        a("s_load_dwordx2 s[80:81], s[0:1], 48")
        a("s_load_dwordx2 s[82:83], s[0:1], 16")
        a("s_load_dwordx2 s[84:85], s[0:1], 40")
        a("s_waitcnt lgkmcnt(0)")
        a("s_cmp_eq_u32 s3, 1")
        a("s_cselect_b32 s86, s80, s82")
        a("s_cselect_b32 s87, s81, s83")
        a("s_cmp_eq_u32 s3, 3")
        a("s_cselect_b32 s86, s84, s86")
        a("s_cselect_b32 s87, s85, s87")
        a("s_mov_b32 s88, s86")
        a("s_and_b32 s89, s87, 0xffff")
        a("s_cmp_eq_u32 s3, 1")
        a(f"s_mov_b32 s90, {512*1024}")
        a(f"s_cselect_b32 s90, {2048*2048}, s90")
        a("s_mov_b32 s91, 0x00020000")
        a("buffer_load_dword v131, v129, s[88:91], 0 offen")
        a.label("Lfa_ntlb")
    if os.environ.get("XTOUCH", "0") == "1":
        a("s_cmp_eq_u32 s3, 3")
        a("s_cbranch_scc0 Lfa_nxt")
        srd(a, XB, 34, 35, 2048*1024)
        a("v_lshrrev_b32 v129, 3, v1")
        a("v_lshlrev_b32 v129, 10, v129")
        a("v_and_b32 v130, 7, v1")
        a("v_lshlrev_b32 v130, 7, v130")
        a("v_add_u32 v129, v129, v130")
        a(f"s_lshl_b32 s60, s{S_TB}, 16")
        a(f"s_and_b32 s61, s{S_G}, 3")
        a("s_lshl_b32 s61, s61, 14")
        a("s_add_u32 s60, s60, s61")
        a("s_add_u32 s61, s60, 8192")
        a(f"buffer_load_dword v131, v129, s[{XB}:{XB+3}], s60 offen")
        a(f"buffer_load_dword v132, v129, s[{XB}:{XB+3}], s61 offen")
        a.label("Lfa_nxt")
    XF = [28, 32]; WF = [36, 48]; PK = 112
    def read_frags(slot, s, buf):
        xr = (10 if slot < 2 else 14) + s
        a(f"ds_read_b128 {vr(XF[buf],4)}, v{xr} offset:{(slot%2)*SLOT}")
        for ct in range(3):
            reg = (18 if slot < 2 else 21) + ct
            off = (slot % 2) * SLOT + s * 6144
            a(f"ds_read_b64_tr_b16 {vr(WF[buf]+4*ct,2)}, v{reg} offset:{off}")
            a(f"ds_read_b64_tr_b16 {vr(WF[buf]+4*ct+2,2)}, v{reg} offset:{off+1536}")
    ACCA = [64, 80, 96]
    ACCB = [128, 144, 176]
    def body(types, tag):
        L = f"Lpj{tag}"
        def epi_part(ct, accs, pofs):
            acc = accs[ct]
            c = tag*3 + ct
            ty = types[ct]
            for e in range(2):
                pk = PK + ((2*ct + e) % 4)*4
                if ty == 'Q':
                    for r in range(8):
                        a(f"v_mul_f32 v{acc+8*e+r}, s55, v{acc+8*e+r}")
                for r in range(4):
                    a(f"v_cvt_pk_bf16_f32 v{pk+r}, v{acc+2*r+8*e}, v{acc+8*e+2*r+1}")
                if ty == 'Q':
                    a(f"s_add_u32 s59, s52, {pofs + (2*(c%2)+e)*HEAD_STRIDE}")
                    a("s_add_u32 s59, s59, s53")
                    a(f"buffer_store_dwordx4 {vr(pk,4)}, v24, s[{WS}:{WS+3}], s59 offen sc1")
                elif ty == 'K':
                    a(f"s_add_u32 s59, s52, {pofs + (2*(c%2)+e)*HEAD_STRIDE}")
                    a("s_add_u32 s59, s59, s54")
                    a(f"buffer_store_dwordx4 {vr(pk,4)}, v24, s[{WS}:{WS+3}], s59 offen sc1")
                else:
                    a(f"s_add_u32 s59, s52, {pofs + (2*(c%2))*HEAD_STRIDE + 1024 + 512*e}")
                    a("s_add_u32 s59, s59, s54")
                    a(f"buffer_store_dwordx4 {vr(pk,4)}, v25, s[{WS}:{WS+3}], s59 offen sc1")
        def chunk(slot, accs, first=False, after_step=None):
            read_frags(slot, 0, 0)
            for s_ in range(4):
                buf = s_ % 2
                if s_ < 3:
                    read_frags(slot, s_+1, buf ^ 1)
                    a("s_waitcnt lgkmcnt(7)")
                else:
                    a("s_waitcnt lgkmcnt(0)")
                for ct in range(3):
                    acc = accs[ct]
                    cin = "0" if (first and s_ == 0) else acc
                    if types[ct] == 'V':
                        mfma(a, acc, XF[buf], WF[buf]+4*ct, cin)
                    else:
                        mfma(a, acc, WF[buf]+4*ct, XF[buf], cin)
                if after_step: after_step(s_)
        st(1)
        a("s_mov_b32 s57, 0")
        a.label(L + "_loop")
        for slot in range(4):
            a("s_barrier")
            chunk(slot, ACCA)
        a("s_add_u32 s57, s57, 1")
        a("s_cmp_lt_u32 s57, 2")
        a(f"s_cbranch_scc1 {L}_loop")
        for i in range(8, 16):
            slot = i % 4
            a("s_barrier")
            if i == 8:
                for r in (10, 11, 12, 13, 18, 19, 20):
                    a(f"v_add_u32 v{r}, {BKV}, v{r}")
                a("s_nop 7")
                chunk(0, ACCB, first=True, after_step=lambda s_: epi_part(s_, ACCA, 0) if s_ < 3 else None)
                for r in (10, 11, 12, 13, 18, 19, 20):
                    a(f"v_subrev_u32 v{r}, {BKV}, v{r}")
            else:
                if i == PUB:
                    a("s_waitcnt vmcnt(0)")
                chunk(slot, ACCB)
        a("s_nop 15")
        for ct in range(3): epi_part(ct, ACCB, PROB_STRIDE)
        st(2); st(3)
        a("s_branch Lfa_attn")
    a("s_cmp_eq_u32 s49, 0")
    a("s_cbranch_scc0 Lfa_wn1")
    body(['Q', 'Q', 'K'], 0)
    a.label("Lfa_wn1")
    body(['K', 'V', 'V'], 1)

    a.label("Lfa_attn")
    a("s_and_b32 s64, s3, 3")
    a("s_lshl_b32 s64, s64, 11")
    a(f"s_add_u32 s64, s64, 32768")
    a(f"v_add_u32 v{T0}, s64, v{LIN}")
    a(f"v_add_u32 v{T1}, {BKV}, v{LIN}")
    a(f"s_mul_i32 s62, s{S_H}, {HEAD_STRIDE}")
    a("s_lshl_b32 s63, s3, 10")
    a("s_add_u32 s62, s62, s63")
    WOV = 0
    a("v_lshrrev_b32 v0, 3, v1")
    a("v_lshlrev_b32 v0, 10, v0")
    a(f"v_bfe_u32 v{T2}, v1, 4, 1")
    a(f"v_lshlrev_b32 v{T2}, 2, v{T2}")
    a(f"v_and_b32 v{T3}, 7, v1")
    a(f"v_xor_b32 v{T2}, v{T2}, v{T3}")
    a(f"v_lshlrev_b32 v{T2}, 4, v{T2}")
    a(f"v_add_u32 v0, v0, v{T2}")
    a(f"s_lshl_b32 s34, s{S_QB}, 3")
    a("s_add_u32 s34, s34, s3")
    a("s_min_u32 s35, s34, 8")
    a(f"s_mul_i32 s36, s{S_H}, {HEAD_STRIDE}")
    a(f"s_add_u32 s36, s36, {PROB_STRIDE}")
    a("s_load_dwordx2 s[44:45], s[0:1], 16")
    a("s_load_dwordx4 s[48:51], s[0:1], 40")
    a("s_bfe_u32 s75, s2, 0x20001")
    a("s_and_b32 s52, s2, 1")
    a("s_lshl_b32 s52, s52, 2")
    a("s_bfe_u32 s53, s2, 0x20003")
    a("s_add_u32 s39, s52, s53")
    a("s_lshl_b32 s42, s3, 13")
    a("s_lshl_b32 s52, s39, 7")
    a("s_add_u32 s42, s42, s52")
    a("s_waitcnt lgkmcnt(0)")
    srd(a, WOA, 44, 45, 512*1024)
    srd(a, WOB, 48, 49, 512*1024)
    srd(a, OUT, 50, 51, 2048*2048)
    st(4)
    st.l(1)
    a("s_waitcnt vmcnt(8)")
    a("s_barrier")
    st(5)
    st.l(2)
    a(f"ds_read_b128 {vr(QA[0],4)}, v{T0}")
    a(f"ds_read_b128 {vr(QA[1],4)}, v{T0} offset:1024")
    a(f"ds_read_b128 {vr(KF,4)}, v{T1}")
    a("s_waitcnt lgkmcnt(0)")
    mfma(a, SB[0][0], KF, QA[0], "0")
    mfma(a, SB[1][0], KF, QA[1], "0")
    a("s_cmp_eq_u32 s3, 4")
    a("s_cbranch_scc0 La_nnw")
    a(f"v_mov_b32 v{T0}, {XCH + 512}")
    a(f"v_mov_b32 v{T1}, s{NONCE}")
    a(f"ds_write_b32 v{T0}, v{T1}")
    a("s_waitcnt lgkmcnt(0)")
    a.label("La_nnw")
    a("s_barrier")
    a(f"v_mov_b32 v{T0}, {XCH + 512}")
    a(f"ds_read_b32 v{T0}, v{T0}")
    for r in range(4): a(f"v_mov_b32 v{188+r}, -1")
    a(f"s_lshl_b32 s68, s{S_H}, 16")
    a("s_lshl_b32 s69, s34, 10")
    a("s_add_u32 s68, s68, s69")
    a(f"s_add_u32 s68, s68, {O_BASE + O_PROB}")
    a(f"buffer_store_dwordx4 v[188:191], v{LIN}, s[{WS}:{WS+3}], s68 offen sc1")
    a("s_waitcnt lgkmcnt(0)")
    a(f"v_readfirstlane_b32 s{NONCE}, v{T0}")
    for q in range(2):
        for r in range(16):
            a(f"v_mov_b32 v{OACC[q]+r}, 0") if r < 6 else None
    for q, m in ((0, MX), (1, MX1)):
        s = SB[q][0]
        a(f"v_max_f32 v{m}, v{s}, v{s+1}")
        for r in range(1, 8):
            a(f"v_max3_f32 v{m}, v{s+2*r}, v{s+2*r+1}, v{m}")
    def halves_max(m, t):
        a(f"v_mov_b32 v{t}, v{m}")
        a("s_nop 1")
        a(f"v_permlane32_swap_b32 v{m}, v{t}")
        a("s_nop 1")
        a(f"v_max_f32 v{m}, v{m}, v{t}")
    def read_v(buf, areg, off):
        a("s_mov_b64 exec, s[40:41]")
        a(f"ds_read_b128 {vr(buf,4)}, v{areg} offset:{off}")
        a(f"ds_read_b128 {vr(buf+4,4)}, v{areg} offset:{off+512}")
        a("s_mov_b64 exec, -1")
    def step(cur, p, o, early, qk, pre_pv0, mid, pre_pv1, vb):
        E = lambda i: a(f"v_exp_f32 v{cur+i}, v{cur+i}")
        C = lambda j: a(f"v_cvt_pk_bf16_f32 v{p+j}, v{cur+2*j}, v{cur+2*j+1}")
        E(0); E(1)
        early()
        E(2); E(3); C(0); E(4); C(1); E(5)
        qk()
        E(6); E(7); C(2); E(8); C(3); E(9); E(10)
        pre_pv0()
        mfma(a, o, vb, p, o)
        E(11); C(4); E(12); C(5); E(13); E(14); E(15); C(6); C(7)
        mid()
        pre_pv1()
        mfma(a, o, vb+4, p+4, o)
    nop = lambda: None
    a.label("La_main")
    a(f"ds_read_b128 {vr(KF,4)}, v{VKA}")
    read_v(VF[0], VVA, 0)
    a(f"ds_read_b128 {vr(KF+4,4)}, v{VKA} offset:2048")
    halves_max(MX, TMP)
    halves_max(MX1, TMP)
    for q, m in ((0, MX), (1, MX1)):
        for r in range(16):
            a(f"v_sub_f32 v{CNEG[q]+r}, 0, v{m}")
    a("s_waitcnt lgkmcnt(3)")
    mfma(a, SB[0][0], KF, QA[0], CNEG[0])
    mfma(a, SB[1][0], KF, QA[1], CNEG[1])
    U = 8
    SCHED = 1
    def kv_dma(j):
        for u in range(4):
            a(f"s_add_u32 m0, s63, {(j-1)*32768 + (u&1)*8192 + (u>>1)*16384}")
            a(f"s_add_u32 s66, s62, {65536 + j*16384 + (u&1)*8192 + (u>>1)*65536}")
            a(f"buffer_load_dwordx4 v{LIN}, s[{WS}:{WS+3}], s66 offen sc1 lds")
    def wo_dma(srdr, half, ldsbase):
        for u in range(4):
            a(f"s_add_u32 m0, s63, {ldsbase + u*8192}")
            a(f"s_add_u32 s66, s42, {(256*half + 64*u)*1024}")
            a(f"buffer_load_dwordx4 v{WOV}, s[{srdr}:{srdr+3}], s66 offen lds")
    def tile_pair(n, kread, vread, last=False, first=False):
        vb = VF[n % 2]
        for q in range(2):
            cur, nxt = SB[q][n % 2], SB[q][(n+1) % 2]
            p = PP[q]
            E = lambda i: a(f"v_exp_f32 v{cur+i}, v{cur+i}")
            C = lambda j: a(f"v_cvt_pk_bf16_f32 v{p+j}, v{cur+2*j}, v{cur+2*j+1}")
            pq = 1 - q
            pvb = VF[n % 2] if q == 1 else VF[(n+1) % 2]
            E(0); E(1)
            if not (first and q == 0):
                mfma(a, OACC[pq], pvb+4, PP[pq]+4, OACC[pq])
            E(2); E(3); E(4); C(0); E(5); C(1)
            if q == 0: a("s_waitcnt lgkmcnt(0)")
            if not last:
                mfma(a, nxt, KF+4*((n+1) % 2), QA[q], CNEG[q])
            if q == 1: kread(KF+4*(n % 2))
            E(6); E(7); E(8); C(2); E(9); C(3); E(10); E(11)
            mfma(a, OACC[q], vb, p, "0" if first else OACC[q])
            E(12); C(4); E(13); C(5); E(14); E(15)
            if q == 0: vread(VF[(n+1) % 2])
            C(6); C(7)
    a("s_cmp_lg_u32 s73, 0")
    a("s_cbranch_scc1 La_rolled")
    KA3, VA3 = 184, 185
    a(f"v_add_u32 v{KA3}, 0x10000, v{VKN}")
    a(f"v_add_u32 v{VA3}, 0x10000, v{VVN}")
    a("s_nop 7")
    def addr(t, kreg0, kreg1, kreg3):
        j, n = divmod(t, 8)
        if j == 0: return kreg0, n*2048
        if j == 3: return kreg3, n*2048
        return kreg1, (j-1)*32768 + n*2048
    a.raw(".p2align 6")
    for t in range(32):
        j, n = divmod(t, 8)
        if n == 0: st.l(3 + j)
        if t == 14 and os.environ.get("WOT", "0") == "1":
            a(f"v_lshlrev_b32 v186, 10, v1")
            a("s_lshl_b32 s64, s3, 16")
            a("s_lshl_b32 s65, s39, 7")
            a("s_add_u32 s64, s64, s65")
            a(f"buffer_load_dword v187, v186, s[{WOA}:{WOA+3}], s64 offen")
            a(f"buffer_load_dword v188, v186, s[{WOB}:{WOB+3}], s64 offen")
        if t == 17:
            a("s_cmp_lt_u32 s3, 4")
            a("s_cbranch_scc1 La_s17")
            a(f"buffer_load_dword v{T2}, v2, s[{WS}:{WS+3}], 0 offen sc1")
            a.label("La_s17")
        if t == 25:
            a("s_cmp_lt_u32 s3, 4")
            a("s_cbranch_scc1 La_s25")
            a(f"s_mov_b32 s67, {SPIN}")
            a.label("La_bspin")
            a("s_waitcnt vmcnt(0)")
            a(f"v_cmp_eq_u32 vcc, s{NONCE}, v{T2}")
            a("s_nop 4")
            a("s_cmp_eq_u64 vcc, -1")
            a("s_cbranch_scc1 La_bgot")
            a("s_sleep 1")
            a(f"buffer_load_dword v{T2}, v2, s[{WS}:{WS+3}], 0 offen sc1")
            a("s_sub_u32 s67, s67, 1")
            a("s_cmp_lg_u32 s67, 0")
            a("s_cbranch_scc1 La_bspin")
            a("s_waitcnt vmcnt(0)")
            a.label("La_bgot")
            b_loads(a, LIN, QBL)
            a.label("La_s25")
        if t == 27:
            wo_dma(WOA, 0, 0)
        if n == 5 and j < 3:
            a(f"s_waitcnt vmcnt({[0, 0, 2 if os.environ.get('WOT', '0') == '1' else 1][j]})")
            a("s_barrier")
            if j < 2: kv_dma(2 + j)
            if j == 0:
                a("s_cmp_eq_u32 s3, 4")
                a("s_cbranch_scc0 La_nfb")
                a(f"s_add_u32 s56, s74, {FB}")
                a(f"v_mov_b32 v{T0}, s56")
                a(f"v_mov_b32 v{T1}, s{NONCE}")
                a("s_mov_b64 exec, 1")
                a(f"buffer_store_dword v{T1}, v{T0}, s[{WS}:{WS+3}], 0 offen sc1")
                a("s_mov_b64 exec, -1")
                a.label("La_nfb")
        def kread(buf, t=t):
            if t + 2 < 32:
                r, o = addr(t + 2, VKA, VKN, KA3)
                a(f"ds_read_b128 {vr(buf,4)}, v{r} offset:{o}")
        def vread(buf, t=t):
            if t + 1 < 32:
                r, o = addr(t + 1, VVA, VVN, VA3)
                read_v(buf, r, o)
            else:
                a("s_nop 0")
        tile_pair(n, kread, vread, last=(t == 31), first=(t == 0))
    a("s_branch La_post")
    a.label("La_rolled")
    for q in range(2):
        for r in range(16):
            a(f"v_mov_b32 v{OACC[q]+r}, 0")
    for r in range(4): a(f"v_mov_b32 v{PP[1]+4+r}, 0")
    a("s_mov_b32 s38, 0")
    a.label("La_loop")
    for n in range(U):
        def kread(buf, n=n):
            if n + 2 < U: a(f"ds_read_b128 {vr(buf,4)}, v{VKA} offset:{(n+2)*2048}")
            else: a(f"ds_read_b128 {vr(buf,4)}, v{VKN} offset:{(n+2-U)*2048}")
        def vread(buf, n=n):
            if n + 1 < U: read_v(buf, VVA, (n+1)*2048)
            else: read_v(buf, VVN, 0)
        tile_pair(n, kread, vread)
    a(f"v_mov_b32 v{VKA}, v{VKN}")
    a(f"v_mov_b32 v{VVA}, v{VVN}")
    a(f"v_add_u32 v{VKN}, 32768, v{VKN}")
    a(f"v_add_u32 v{VVN}, 32768, v{VVN}")
    a("s_add_u32 s38, s38, 1")
    a("s_cmp_lg_u32 s38, 4")
    a("s_cbranch_scc1 La_loop")
    a.label("La_post")
    a("s_nop 1")
    mfma(a, OACC[1], VF[1]+4, PP[1]+4, OACC[1])
    st(6)
    st.l(7)
    a("s_waitcnt lgkmcnt(0)")
    a("s_nop 15")
    a(f"v_mov_b32 v{TMP}, 0x71800000")
    a(f"v_cmp_lt_f32 vcc, v{OACC[0]+8}, v{TMP}")
    a(f"v_cmp_lt_f32 s[58:59], v{OACC[1]+8}, v{TMP}")
    a("s_nop 4")
    a("s_and_b64 s[58:59], s[58:59], vcc")
    a("s_cmp_eq_u64 s[58:59], -1")
    a("s_cselect_b32 s64, 0, 1")
    a("s_cmp_lg_u32 s73, 0")
    a("s_cselect_b32 s64, 0, s64")
    a("s_lshl_b32 s65, s3, 2")
    a(f"s_add_u32 s65, s65, {XCH}")
    a(f"v_mov_b32 v{T0}, s65")
    a(f"v_mov_b32 v{T1}, s64")
    a(f"ds_write_b32 v{T0}, v{T1}")
    a("s_mul_i32 s65, s3, 2560")
    a(f"s_add_u32 s65, s65, {XCH + 1024}")
    a(f"v_add_u32 v{T0}, s65, v{LIN}")
    a(f"v_lshrrev_b32 v{T1}, 2, v{LIN}")
    a(f"v_add_u32 v{T1}, s65, v{T1}")
    a("s_cmp_eq_u32 s70, 0")
    a("s_cbranch_scc0 La_sendq0")
    for lab, qs in (("La_sendq1", 1), ("La_sendq0", 0)):
        if qs == 0: a.label(lab)
        a(f"ds_write_b128 v{T0}, {vr(OACC[qs],4)}")
        a(f"ds_write_b128 v{T0}, {vr(OACC[qs]+4,4)} offset:1024")
        a(f"ds_write_b32 v{T1}, v{OACC[qs]+8} offset:2048")
        if qs == 1:
            a("s_branch La_sent")
        else:
            for r in range(9):
                a(f"v_mov_b32 v{OACC[0]+r}, v{OACC[1]+r}")
    a.label("La_sent")
    a("s_waitcnt vmcnt(0) lgkmcnt(0)")
    a("s_barrier")
    a(f"v_and_b32 v{T2}, 7, v1")
    a(f"v_lshlrev_b32 v{T2}, 2, v{T2}")
    a(f"v_add_u32 v{T2}, {XCH}, v{T2}")
    a(f"ds_read_b32 v{T2}, v{T2}")
    a("s_xor_b32 s64, s3, 4")
    a("s_mul_i32 s65, s64, 2560")
    a(f"s_add_u32 s65, s65, {XCH + 1024}")
    a(f"v_add_u32 v{T0}, s65, v{LIN}")
    a(f"v_lshrrev_b32 v{T1}, 2, v{LIN}")
    a(f"v_add_u32 v{T1}, s65, v{T1}")
    a(f"ds_read_b128 {vr(SB[0][0],4)}, v{T0}")
    a(f"ds_read_b128 {vr(SB[0][0]+4,4)}, v{T0} offset:1024")
    a(f"ds_read_b32 v{SB[0][0]+8}, v{T1} offset:2048")
    a("s_lshl_b32 s37, s3, 11")
    a(f"s_add_u32 s37, s37, {BKV}")
    a("s_waitcnt lgkmcnt(0)")
    a(f"v_cmp_ne_u32 vcc, 0, v{T2}")
    a("s_nop 4")
    a("s_cmp_eq_u64 vcc, 0")
    a("s_cbranch_scc1 La_done")
    a("s_barrier")
    a("s_mov_b32 s73, 1")
    for u in range(4):
        a(f"s_add_u32 m0, s63, {BKV + (u&1)*8192 + (u>>1)*16384}")
        a(f"s_add_u32 s66, s62, {65536 + (u&1)*8192 + (u>>1)*65536}")
        a(f"buffer_load_dwordx4 v{LIN}, s[{WS}:{WS+3}], s66 offen sc1 lds")
    kv_dma(1)
    a("s_waitcnt vmcnt(0)")
    a("s_barrier")
    a(f"v_mov_b32 v{MX}, 0xff800000")
    a(f"v_mov_b32 v{MX1}, 0xff800000")
    a("s_mov_b32 s38, 0")
    a.label("La_fb")
    a("s_bfe_u32 s64, s38, 0x20003")
    a("s_sub_u32 s65, s64, 1")
    a("s_lshl_b32 s65, s65, 15")
    a("s_cmp_eq_u32 s64, 0")
    a(f"s_cselect_b32 s65, {BKV}, s65")
    a("s_lshr_b32 s64, s38, 5")
    a("s_lshl_b32 s64, s64, 14")
    a("s_add_u32 s65, s65, s64")
    a("s_and_b32 s64, s38, 7")
    a("s_lshl_b32 s64, s64, 11")
    a("s_add_u32 s65, s65, s64")
    a(f"v_add_u32 v{T0}, s65, v{LIN}")
    a(f"ds_read_b128 {vr(KF,4)}, v{T0}")
    a("s_waitcnt lgkmcnt(0)")
    mfma(a, SB[0][0], KF, QA[0], "0")
    mfma(a, SB[1][0], KF, QA[1], "0")
    a("s_nop 15")
    for q, m in ((0, MX), (1, MX1)):
        s = SB[q][0]
        for r in range(8):
            a(f"v_max3_f32 v{m}, v{s+2*r}, v{s+2*r+1}, v{m}")
    a("s_add_u32 s38, s38, 1")
    a("s_cmp_lg_u32 s38, 64")
    a("s_cbranch_scc1 La_fb")
    a(f"v_add_u32 v{VKN}, s71, v{LIN}")
    a(f"v_add_u32 v{VVN}, s71, v{VLO}")
    a(f"v_add_u32 v{VKA}, s72, v{LIN}")
    a(f"v_add_u32 v{VVA}, s72, v{VLO}")
    a("s_branch La_main")
    a.label("La_done")
    a("s_cmp_eq_u32 s73, 0")
    a("s_cbranch_scc1 La_bok")
    a("s_barrier")
    wo_dma(WOA, 0, 0)
    a("s_cmp_lt_u32 s3, 4")
    a("s_cbranch_scc1 La_brl")
    b_loads(a, LIN, QBL)
    a.label("La_brl")
    a("s_waitcnt vmcnt(0)")
    a("s_barrier")
    a.label("La_bok")
    a(f"v_add_u32 v{VKA}, s37, v{LIN}")
    a(f"v_add_u32 v{VVA}, s37, v{VLO}")
    a("s_lshl_b32 s64, s3, 10")
    a(f"s_add_u32 s64, s64, {QBL}")
    a(f"v_add_u32 v{T0}, s64, v{LIN}")
    a(f"ds_read_b128 {vr(QB,4)}, v{T0}")
    for i in range(8, -1, -1):
        a(f"ds_read_b128 {vr(KF+4*i,4)}, v{VKA} offset:{i*2048}")
    for r in range(9):
        a(f"v_add_f32 v{OACC[0]+r}, v{OACC[0]+r}, v{SB[0][0]+r}")
    a("s_and_b32 s64, s3, 3")
    a("s_lshl_b32 s64, s64, 1")
    a("s_add_u32 s64, s64, s70")
    a(f"s_lshl_b32 s65, s{S_QB}, 3")
    a("s_add_u32 s64, s64, s65")
    a("s_lshl_b32 s64, s64, 10")
    a(f"s_lshl_b32 s68, s{S_H}, 16")
    a("s_add_u32 s68, s68, s64")
    a(f"s_add_u32 s68, s68, {O_BASE}")
    def finish_o(o, lreg, soff):
        a(f"v_rcp_f32 v{TMP}, v{lreg}")
        a("s_nop 1")
        for r in range(8):
            a(f"v_mul_f32 v{o+r}, v{o+r}, v{TMP}")
        for r in range(4):
            a(f"v_cvt_pk_bf16_f32 v{PP[1]+r}, v{o+2*r}, v{o+2*r+1}")
        a(f"buffer_store_dwordx4 {vr(PP[1],4)}, v{LIN}, s[{WS}:{WS+3}], {soff} offen sc1")
    def o_flag(p):
        a("s_lshl_b32 s56, s2, 3")
        a("s_add_u32 s56, s56, s3")
        a("s_lshl_b32 s56, s56, 7")
        a(f"s_add_u32 s56, s56, {FO + p*262144}")
        a(f"v_mov_b32 v{T0}, s56")
        a(f"v_mov_b32 v{T1}, s{NONCE}")
        a("s_mov_b64 exec, 1")
        a(f"buffer_store_dword v{T1}, v{T0}, s[{WS}:{WS+3}], 0 offen sc1")
        a("s_mov_b64 exec, -1")
    a("s_waitcnt lgkmcnt(6)")
    SP = [80, 96, 112, 128]
    def qk1(i):
        c = MHI if i == 8 else (MLO if i == 0 else "0")
        mfma(a, SP[(8-i) % 4], KF+4*i, QB, c)
    qk1(8); qk1(7); qk1(6)
    finish_o(OACC[0], OACC[0]+8, "s68")
    st(7)
    st.l(8)
    a("s_waitcnt lgkmcnt(0)")
    a("s_barrier")
    read_v(VF[0], VVA, 8*2048)
    a("s_nop 0")
    a("s_mov_b32 s38, s35")
    for i in range(8, -1, -1):
        s = SP[(8-i) % 4]
        if i == 8:
            a(f"v_max_f32 v{MX}, v{s}, v{s+1}")
            for r in range(1, 8):
                a(f"v_max3_f32 v{MX}, v{s+2*r}, v{s+2*r+1}, v{MX}")
        else:
            for r in range(8):
                a(f"v_max3_f32 v{MX}, v{s+2*r}, v{s+2*r+1}, v{MX}")
        if i > 0:
            a("s_cmp_eq_u32 s38, 0")
            a("s_cbranch_scc1 Lb_p1_done")
            a("s_sub_u32 s38, s38, 1")
        if i - 3 >= 0:
            qk1(i - 3)
    a.label("Lb_p1_done")
    halves_max(MX, TMP)
    st(8)
    st.l(9)
    a("s_waitcnt vmcnt(0)")
    o_flag(0)
    a("s_mov_b32 s43, 0")
    for r in range(16):
        a(f"v_sub_f32 v{MHI+r}, v{MHI+r}, v{MX}")
    a("s_nop 1")
    mfma(a, SP[0], KF+4*8, QB, MHI)
    for r in range(16):
        a(f"v_sub_f32 v{CNEG[0]+r}, 0, v{MX}")
        a(f"v_sub_f32 v{MLO+r}, v{MLO+r}, v{MX}")
        a(f"v_mov_b32 v{OACC[0]+r}, 0")
    a("s_lshr_b32 s52, s3, 2")
    a("s_and_b32 s53, s3, 1")
    a("s_bfe_u32 s54, s3, 0x10001")
    a("s_lshl_b32 s55, s75, 1")
    a("s_add_u32 s55, s55, s53")
    a("s_lshl_b32 s56, s53, 2")
    a("s_add_u32 s56, s56, s75")
    a("s_cmp_eq_u32 s52, 0")
    a("s_cselect_b32 s56, s56, s55")
    a(f"s_lshl_b32 s57, s{S_QB}, 5")
    a("s_lshl_b32 s58, s54, 4")
    a("s_add_u32 s57, s57, s58")
    a("s_lshl_b32 s57, s57, 3")
    a("s_add_u32 s57, s57, s56")
    a("s_lshl_b32 s57, s57, 7")
    a(f"s_add_u32 s57, s57, {FO}")
    a(f"v_and_b32 v{T2}, 15, v1")
    a(f"v_lshlrev_b32 v{T2}, 10, v{T2}")
    a(f"v_add_u32 v{T2}, s57, v{T2}")
    a("s_mov_b32 s44, 0")
    WG = [(WOA, 1, 32768), (WOB, 0, 65536), (WOB, 1, 98304)]
    wo_dma(*WG[0])
    a("s_mov_b32 s43, 1")
    a("s_mov_b32 s38, s35")
    for n, i in enumerate(range(8, -1, -1)):
        cur, nxt = SP[n % 2], SP[(n+1) % 2]
        vb = VF[n % 2]
        if i > 0:
            cn = MLO if i - 1 == 0 else CNEG[0]
            step(cur, PP[0], OACC[0],
                 lambda: read_v(VF[(n+1) % 2], VVA, (i-1)*2048),
                 lambda: mfma(a, nxt, KF+4*(i-1), QB, cn),
                 lambda: a("s_waitcnt lgkmcnt(2)"),
                 lambda: a("s_nop 1"), nop, vb)
            if n in (1, 3):
                wo_dma(*WG[1 if n == 1 else 2])
                a(f"s_mov_b32 s43, {2 if n == 1 else 3}")
            if n == 5 and os.environ.get("EPOLL", "0") == "1":
                a(f"buffer_load_dword v{T3}, v{T2}, s[{WS}:{WS+3}], 0 offen sc1")
                a("s_mov_b32 s44, 1")
            a("s_cmp_eq_u32 s38, 0")
            a("s_cbranch_scc1 Lb_p2_done")
            a("s_sub_u32 s38, s38, 1")
        else:
            step(cur, PP[0], OACC[0], nop, nop,
                 lambda: a("s_waitcnt lgkmcnt(0)"),
                 lambda: a("s_nop 1"), nop, vb)
    a.label("Lb_p2_done")
    st(9)
    st.l(10)
    st.t(1)
    a("s_cmp_ge_u32 s43, 2")
    a("s_cbranch_scc1 Lb_g1")
    wo_dma(*WG[1])
    a.label("Lb_g1")
    a("s_cmp_ge_u32 s43, 3")
    a("s_cbranch_scc1 Lb_g2")
    wo_dma(*WG[2])
    a.label("Lb_g2")
    a("s_cmp_eq_u32 s44, 1")
    a("s_cbranch_scc1 Lb_g3")
    a(f"buffer_load_dword v{T3}, v{T2}, s[{WS}:{WS+3}], 0 offen sc1")
    a.label("Lb_g3")
    a("s_nop 15")
    a(f"s_lshl_b32 s68, s{S_H}, 16")
    a("s_lshl_b32 s69, s34, 10")
    a("s_add_u32 s68, s68, s69")
    a(f"s_add_u32 s68, s68, {O_BASE + O_PROB}")
    finish_o(OACC[0], OACC[0]+8, "s68")
    OF, ACC2, WF2 = 16, 208, 112
    a(f"s_lshl_b32 s59, s{S_QB}, 3")
    a("s_add_u32 s59, s59, s55")
    a("s_lshl_b32 s60, s59, 10")
    a(f"s_mul_i32 s61, s52, {O_PROB}")
    a("s_add_u32 s60, s60, s61")
    a(f"s_add_u32 s60, s60, {O_BASE}")
    a("s_bfe_u32 s61, s2, 0x20003")
    a("s_lshl_b32 s61, s61, 2")
    a(f"v_lshrrev_b32 v{T0}, 5, v1")
    a(f"v_lshlrev_b32 v{T1}, 2, v{T0}")
    a(f"v_bfe_u32 v{TMP}, v1, 2, 2")
    a(f"v_add_u32 v{T1}, v{T1}, v{TMP}")
    a(f"v_lshlrev_b32 v{T1}, 7, v{T1}")
    a(f"v_bfe_u32 v{TMP}, v1, 4, 1")
    a(f"v_lshlrev_b32 v{TMP}, 5, v{TMP}")
    a(f"v_add_u32 v{T1}, v{T1}, v{TMP}")
    a(f"v_and_b32 v{TMP}, 3, v1")
    a(f"v_lshlrev_b32 v{TMP}, 3, v{TMP}")
    a(f"v_add_u32 v{T1}, v{T1}, v{TMP}")
    a(f"v_bfe_u32 v{TMP}, v1, 3, 1")
    a(f"v_lshlrev_b32 v{TMP}, 6, v{TMP}")
    a("s_lshl_b32 s62, s52, 16")
    a("s_lshl_b32 s63, s54, 15")
    a("s_add_u32 s62, s62, s63")
    a(f"v_add_u32 v{T1}, s62, v{T1}")
    a(f"v_add_u32 v{VKA}, v{T1}, v{TMP}")
    a(f"v_xor_b32 v{TMP}, 64, v{TMP}")
    a(f"v_add_u32 v{VVA}, v{T1}, v{TMP}")
    a(f"v_and_b32 v{VKN}, 31, v1")
    a(f"v_lshlrev_b32 v{VKN}, 11, v{VKN}")
    a(f"v_lshlrev_b32 v{T0}, 4, v{T0}")
    a(f"v_add_u32 v{VKN}, v{VKN}, v{T0}")
    st.t(2)
    st(10)
    a("s_lshl_b32 s63, s54, 20")
    a("s_add_u32 s60, s60, s63")
    a("s_waitcnt vmcnt(2)")
    a("s_barrier")
    WFA = 80
    for hh in range(16):
        for ct, reg in ((0, VKA), (1, VVA)):
            b = WFA + 8*hh + 4*ct
            a(f"ds_read_b64_tr_b16 {vr(b,2)}, v{reg} offset:{hh*2048}")
            a(f"ds_read_b64_tr_b16 {vr(b+2,2)}, v{reg} offset:{hh*2048+1024}")
        if hh % 3 == 2: a("s_waitcnt lgkmcnt(8)")
    st.t(3)
    a(f"s_mov_b32 s67, {SPIN}")
    a("s_waitcnt vmcnt(1)")
    a.label("Lo_spin")
    a(f"v_cmp_eq_u32 vcc, s{NONCE}, v{T3}")
    a("s_nop 4")
    a("s_cmp_eq_u64 vcc, -1")
    a("s_cbranch_scc1 Lo_got")
    a("s_sleep 1")
    a(f"buffer_load_dword v{T3}, v{T2}, s[{WS}:{WS+3}], 0 offen sc1")
    a("s_waitcnt vmcnt(0)")
    a("s_sub_u32 s67, s67, 1")
    a("s_cmp_lg_u32 s67, 0")
    a("s_cbranch_scc1 Lo_spin")
    a.label("Lo_got")
    st.t(4)
    a(f"s_mov_b32 s67, {SPIN}")
    a.label("Lo_ld")
    for hh in range(16):
        a(f"s_add_u32 s64, s60, {hh*65536}")
        a(f"buffer_load_dwordx4 {vr(OF+4*hh,4)}, v{LIN}, s[{WS}:{WS+3}], s64 offen sc1")
    a("s_cmp_eq_u32 s52, 0")
    a("s_cbranch_scc1 Lo_rdy")
    a("s_waitcnt vmcnt(0)")
    a(f"v_max_u32 v{T3}, v{OF}, v{OF+1}")
    for r in range(1, 32):
        a(f"v_max3_u32 v{T3}, v{OF+2*r}, v{OF+2*r+1}, v{T3}")
    a(f"v_cmp_eq_u32 vcc, -1, v{T3}")
    a("s_nop 4")
    a("s_cmp_eq_u64 vcc, 0")
    a("s_cbranch_scc1 Lo_rdy")
    a("s_sub_u32 s67, s67, 1")
    a("s_cmp_lg_u32 s67, 0")
    a("s_cbranch_scc1 Lo_ld")
    a.label("Lo_rdy")
    st.t(5)
    a("s_waitcnt lgkmcnt(0)")
    for hh in range(16):
        a(f"s_waitcnt vmcnt({15-hh})")
        for ct in range(2):
            acc = ACC2 + 16*ct
            mfma(a, acc, WFA+8*hh+4*ct, OF+4*hh, "0" if hh == 0 else acc)
    st.t(6)
    a("s_lshl_b32 s64, s3, 12")
    a(f"s_add_u32 s64, s64, {BKV}")
    a(f"v_add_u32 v{T0}, s64, v{LIN}")
    a("s_xor_b32 s65, s3, 2")
    a("s_lshl_b32 s65, s65, 12")
    a(f"s_add_u32 s65, s65, {BKV}")
    a(f"v_add_u32 v{T1}, s65, v{LIN}")
    a("s_nop 15")
    a("s_cmp_eq_u32 s54, 0")
    a("s_cbranch_scc0 Lo_send0")
    for r in range(4):
        a(f"ds_write_b128 v{T0}, {vr(ACC2+16+4*r,4)} offset:{r*1024}")
    a("s_branch Lo_sent")
    a.label("Lo_send0")
    for r in range(4):
        a(f"ds_write_b128 v{T0}, {vr(ACC2+4*r,4)} offset:{r*1024}")
    for r in range(16):
        a(f"v_mov_b32 v{ACC2+r}, v{ACC2+16+r}")
    a.label("Lo_sent")
    a("s_waitcnt lgkmcnt(0)")
    a("s_barrier")
    st.t(7)
    for r in range(4):
        a(f"ds_read_b128 {vr(OF+4*r,4)}, v{T1} offset:{r*1024}")
    a("s_lshl_b32 s64, s59, 16")
    a("s_lshl_b32 s65, s52, 10")
    a("s_add_u32 s64, s64, s65")
    a("s_lshl_b32 s65, s39, 7")
    a("s_add_u32 s64, s64, s65")
    a("s_lshl_b32 s65, s54, 6")
    a("s_add_u32 s64, s64, s65")
    a("s_waitcnt lgkmcnt(0)")
    for r in range(16):
        a(f"v_add_f32 v{ACC2+r}, v{ACC2+r}, v{OF+r}")
    for pr in range(2):
        b = ACC2 + 8*pr
        pk = WF2 + 4*pr
        for r in range(4):
            a(f"v_cvt_pk_bf16_f32 v{pk+r}, v{b+2*r}, v{b+2*r+1}")
        a("s_nop 1")
        a(f"v_permlane32_swap_b32 v{pk}, v{pk+2}")
        a(f"v_permlane32_swap_b32 v{pk+1}, v{pk+3}")
        a("s_nop 1")
        a(f"buffer_store_dwordx4 {vr(pk,4)}, v{VKN}, s[{OUT}:{OUT+3}], s64 offen offset:{pr*32} {os.environ.get('OUTF','')}")
    st.t(8)
    if st.ft: a("s_waitcnt vmcnt(0)")
    st.t(9); st.t(10)
    st(11)
    st.p(11)
    st.flush(8, 12)
    a.label("Lfa_end")
    a("s_endpgm")

def b_loads(a, LIN, QBL):
    a("s_sub_u32 s51, s3, 4")
    a("s_lshl_b32 s51, s51, 10")
    a(f"s_lshl_b32 s50, s{S_QB}, 14")
    a("s_add_u32 s50, s50, s51")
    a("s_sub_u32 s50, s50, 16384")
    for u in range(8):
        a(f"s_add_u32 m0, s51, {BKV + u*4096}")
        a(f"s_add_u32 s54, s50, {u*4096}")
        a("s_max_i32 s54, s54, 0")
        a("s_add_u32 s54, s54, s36")
        a("s_add_u32 s54, s54, 65536")
        a(f"buffer_load_dwordx4 v{LIN}, s[{WS}:{WS+3}], s54 offen sc1 lds")
    a(f"s_lshl_b32 s50, s{S_QB}, 13")
    a("s_add_u32 s50, s50, s36")
    a("s_add_u32 s50, s50, s51")
    for u in range(2):
        a(f"s_add_u32 m0, s51, {QBL + u*4096}")
        a(f"s_add_u32 s54, s50, {u*4096}")
        a(f"buffer_load_dwordx4 v{LIN}, s[{WS}:{WS+3}], s54 offen sc1 lds")

def gen_oproj(a):
    a.raw(".p2align 8")
    a.raw(".type oproj_kernel,@function")
    a.label("oproj_kernel")
    a("s_cmp_ge_u32 s2, 256")
    a("s_cbranch_scc1 Lop_end")
    st = Stamper(a, "oproj", 1, "s20")
    st()
    a("s_load_dwordx2 s[4:5], s[0:1], 16")
    a("s_load_dwordx2 s[26:27], s[0:1], 40")
    a("s_load_dwordx2 s[28:29], s[0:1], 48")
    a("s_load_dwordx2 s[30:31], s[0:1], 64")
    a("s_and_b32 s32, s2, 7")
    a("s_lshr_b32 s33, s2, 3")
    a("s_lshr_b32 s23, s32, 2")
    a("s_and_b32 s34, s32, 3")
    a("s_lshl_b32 s34, s34, 2")
    a("s_and_b32 s35, s33, 3")
    a("s_add_u32 s24, s34, s35")
    a("s_lshr_b32 s25, s33, 2")
    a("v_and_b32 v1, 63, v0")
    a("v_lshrrev_b32 v2, 6, v0")
    a("s_nop 0")
    a("v_readfirstlane_b32 s20, v2")
    a("v_lshrrev_b32 v2, 3, v1")
    a("v_lshlrev_b32 v2, 10, v2")
    a("v_bfe_u32 v3, v1, 4, 1")
    a("v_lshlrev_b32 v3, 2, v3")
    a("v_and_b32 v5, 7, v1")
    a("v_xor_b32 v3, v3, v5")
    a("v_lshlrev_b32 v3, 4, v3")
    a("v_add_u32 v4, v2, v3")
    a("v_lshlrev_b32 v5, 4, v1")
    a("s_waitcnt lgkmcnt(0)")
    a("s_cmp_eq_u32 s23, 0")
    a("s_cselect_b32 s4, s4, s26")
    a("s_cselect_b32 s5, s5, s27")
    srd(a, 8, 4, 5, 512*1024)
    a(f"s_mul_i32 s36, s23, {O_PROB}")
    a(f"s_add_u32 s36, s36, {O_BASE}")
    a("s_add_u32 s30, s30, s36")
    a("s_addc_u32 s31, s31, 0")
    srd(a, 12, 30, 31, O_PROB)
    a("s_lshl_b32 s40, s20, 13")
    a("s_lshl_b32 s36, s25, 7")
    a("s_add_u32 s40, s40, s36")
    a("s_lshl_b32 s41, s20, 10")
    OF = 64
    a("s_lshl_b32 s42, s24, 2")
    a("s_add_u32 s42, s42, s20")
    a("s_lshl_b32 s43, s42, 10")
    a("s_lshl_b32 s49, s25, 2")
    a("s_and_b32 s47, s24, 3")
    a("s_lshl_b32 s47, s47, 3")
    a("s_add_u32 s49, s49, s47")
    a("s_lshl_b32 s46, s49, 4")
    a("s_lshl_b32 s47, s20, 3")
    a("s_add_u32 s46, s46, s47")
    a("s_lshl_b32 s48, s25, 7")
    def wdma(u):
        a(f"s_add_u32 m0, s41, {u*4096}")
        a(f"s_add_u32 s44, s46, {u*32}")
        a("s_and_b32 s44, s44, 511")
        a("s_lshl_b32 s44, s44, 10")
        a("s_add_u32 s44, s44, s48")
        a("buffer_load_dwordx4 v4, s[8:11], s44 offen lds")
    def oload(H):
        a(f"s_add_u32 s44, s49, {H}")
        a("s_and_b32 s44, s44, 31")
        a("s_lshl_b32 s44, s44, 16")
        a("s_add_u32 s44, s44, s43")
        a(f"buffer_load_dwordx4 {vr(OF+4*H,4)}, v5, s[12:15], s44 offen")
    for q in range(4):
        for u in range(4): wdma(4*q+u)
        for H in range(8): oload(8*q+H)
    srd(a, 16, 28, 29, 2048*2048)
    a("v_lshrrev_b32 v2, 5, v1")
    a("v_lshlrev_b32 v3, 2, v2")
    a("v_bfe_u32 v8, v1, 2, 2")
    a("v_add_u32 v3, v3, v8")
    a("v_lshlrev_b32 v3, 7, v3")
    a("v_bfe_u32 v8, v1, 4, 1")
    a("v_lshlrev_b32 v8, 5, v8")
    a("v_add_u32 v3, v3, v8")
    a("v_and_b32 v8, 3, v1")
    a("v_lshlrev_b32 v8, 3, v8")
    a("v_add_u32 v3, v3, v8")
    a("v_bfe_u32 v8, v1, 3, 1")
    a("v_lshlrev_b32 v8, 6, v8")
    a("v_add_u32 v6, v3, v8")
    a("v_xor_b32 v8, 64, v8")
    a("v_add_u32 v7, v3, v8")
    a("v_and_b32 v8, 31, v1")
    a("v_lshlrev_b32 v8, 11, v8")
    a("v_lshlrev_b32 v9, 4, v2")
    a("v_add_u32 v8, v8, v9")
    ACC = 16
    st()
    WF = [48, 56]
    def rd(H, buf):
        for ct in range(2):
            a(f"ds_read_b64_tr_b16 {vr(WF[buf]+4*ct,2)}, v{6+ct} offset:{H*2048}")
            a(f"ds_read_b64_tr_b16 {vr(WF[buf]+4*ct+2,2)}, v{6+ct} offset:{H*2048+1024}")
    for q in range(4):
        a(f"s_waitcnt vmcnt({8 + 12*(3-q)})")
        a("s_barrier")
        rd(8*q, 0)
        for hh in range(8):
            H = 8*q + hh
            buf = hh % 2
            if hh < 7:
                rd(H+1, buf ^ 1)
                a(f"s_waitcnt vmcnt({7-hh + 12*(3-q)}) lgkmcnt(4)")
            else:
                a(f"s_waitcnt vmcnt({12*(3-q)}) lgkmcnt(0)")
            for ct in range(2):
                acc = ACC+16*ct
                mfma(a, acc, WF[buf]+4*ct, OF+4*H, "0" if H == 0 else acc)
    a("s_nop 15")
    st()
    a("s_lshl_b32 s44, s42, 16")
    a("s_lshl_b32 s45, s23, 10")
    a("s_add_u32 s44, s44, s45")
    a("s_lshl_b32 s45, s25, 7")
    a("s_add_u32 s44, s44, s45")
    for ct in range(2):
        for pr in range(2):
            b = ACC + 16*ct + 8*pr
            pk = 48 + (ct*2+pr)*4
            for r in range(4):
                a(f"v_cvt_pk_bf16_f32 v{pk+r}, v{b+2*r}, v{b+2*r+1}")
            a("s_nop 1")
            a(f"v_permlane32_swap_b32 v{pk}, v{pk+2}")
            a(f"v_permlane32_swap_b32 v{pk+1}, v{pk+3}")
            a("s_nop 1")
            a(f"buffer_store_dwordx4 {vr(pk,4)}, v8, s[16:19], s44 offen offset:{ct*64+pr*32}")
    st()
    st.flush(4)
    a.label("Lop_end")
    a("s_endpgm")

def kd(name, vgpr, sgpr=102):
    acc = (vgpr + 3)//4*4
    return f""".section .rodata,"a"
.p2align 6
.amdhsa_kernel {name}
  .amdhsa_next_free_vgpr {vgpr}
  .amdhsa_next_free_sgpr {sgpr}
  .amdhsa_accum_offset {acc}
  .amdhsa_group_segment_fixed_size 0
  .amdhsa_kernarg_size 72
  .amdhsa_user_sgpr_count 2
  .amdhsa_user_sgpr_kernarg_segment_ptr 1
  .amdhsa_system_sgpr_workgroup_id_x 1
.end_amdhsa_kernel
"""

HEADER = """; Kernarg layout for this problem (72 bytes, ptrs only, base s[0:1]):
;   offset   0: d_in[0] A_x  shape=(1, 2048, 512) dtype=bfloat16
;   offset   8: d_in[1] A_wqkv  shape=(512, 1536) dtype=bfloat16
;   offset  16: d_in[2] A_wo  shape=(512, 512) dtype=bfloat16
;   offset  24: d_in[3] B_x  shape=(1, 2048, 512) dtype=bfloat16
;   offset  32: d_in[4] B_wqkv  shape=(512, 1536) dtype=bfloat16
;   offset  40: d_in[5] B_wo  shape=(512, 512) dtype=bfloat16
;   offset  48: d_out     shape=(1, 2048, 1024) dtype=bfloat16
;   offset  56: d_debug   256 bytes
;   offset  64: d_ws      268435456 bytes workspace
; @launch grid=(256,1,1) block=(512,1,1) lds=163840
.amdgcn_target "amdgcn-amd-amdhsa--gfx950"
.text
.globl concat_heads__softmax_full_mha__sliding_block__prompt_kernel
"""

def main(path):
    a = Asm()
    gen_fused(a)
    txt = HEADER + a.text() + kd("concat_heads__softmax_full_mha__sliding_block__prompt_kernel", 256)
    open(path, "w").write(txt)

if __name__ == "__main__":
    main(sys.argv[1] if len(sys.argv) > 1 else f"cdna_kernels/{NAME}.s")
```

```python
import sys, os, struct

NAME = "concat_heads__softmax_full_mha__sliding_block__prompt"
STAMPS = os.environ.get("STAMPS", "")

class Asm:
    def __init__(self): self.lines = []
    def __call__(self, s): self.lines.append("  " + s)
    def label(self, s): self.lines.append(s + ":")
    def raw(self, s): self.lines.append(s)
    def text(self): return "\n".join(self.lines) + "\n"

def vr(b, n=1): return f"v{b}" if n == 1 else f"v[{b}:{b+n-1}]"
def f32bits(x): return struct.unpack("<I", struct.pack("<f", x))[0]

HEAD_STRIDE = 196608
PROB_STRIDE = 32 * HEAD_STRIDE
O_BASE = 2 * PROB_STRIDE
O_PROB = 32 * 65536
F_BASE = 16 << 20
WS_SIZE = 17 << 20
QSCALE = 0.25 * 1.4426950408889634
SPIN = 1 << 16

def srd(a, d, lo, hi, nrec):
    a(f"s_mov_b32 s{d}, s{lo}")
    a(f"s_and_b32 s{d+1}, s{hi}, 0xffff")
    a(f"s_mov_b32 s{d+2}, {nrec}")
    a(f"s_mov_b32 s{d+3}, 0x00020000")

class Stamper:
    def __init__(self, a, kname, kidx, wavereg, base=76):
        self.a=a; self.on=(STAMPS==kname or (STAMPS in ("fp","fs","fl","ft") and kname=="fa")); self.fp=(STAMPS in ("fp","fs","fl","ft")); self.ft=(STAMPS=="ft"); self.fs=(STAMPS=="fs"); self.fl=(STAMPS=="fl"); self.rt=(STAMPS=="rt"); self.n=0; self.base=base; self.wavereg=wavereg; self.kidx=kidx
        if self.rt:
            a("s_memrealtime s[76:77]"); a("s_memtime s[78:79]")
    def p(self, idx):
        if self.fp and ((not self.fs and not self.fl and not self.ft) or idx==11): self._st(idx)
    def t(self, idx):
        if self.ft: self._st(idx)
    def l(self, idx):
        if self.fl: self._st(idx)
    def ldyn(self, base, uid):
        if not self.fl: return
        a=self.a
        for j in range(4):
            a(f"s_cmp_eq_u32 s38, {j}")
            a(f"s_cbranch_scc0 Lst{uid}_{j}")
            self._st(base+j)
            a.label(f"Lst{uid}_{j}")
    def f(self, idx):
        if self.fs: self._st(idx)
    def __call__(self, idx=None):
        if STAMPS == "dbg" and self.kidx == 0:
            m = {0:0, 2:1, 5:2, 6:3, 9:4, 10:5, 11:6}
            if idx in m:
                self.a(f"s_memrealtime s[{76+2*m[idx]}:{77+2*m[idx]}]")
                self.a("s_waitcnt lgkmcnt(0)")
            return
        if not self.on: return
        if self.fp and idx not in (0,): return
        self._st(idx)
    def _st(self, idx=None):
        if idx is not None: self.n = idx
        assert self.base+2*self.n+1 < 102
        self.a(f"s_memtime s[{self.base+2*self.n}:{self.base+2*self.n+1}]")
        self.a("s_waitcnt lgkmcnt(0)")
        self.n+=1
    def flush(self, nw, n=None):
        if STAMPS == "dbg":
            a=self.a
            a("s_cmp_eq_u32 s3, 4"); a("s_cbranch_scc0 Ldbg_skip")
            a("s_cmp_eq_u32 s2, 0"); a("s_cselect_b32 s6, 4, 0")
            a("s_cmp_eq_u32 s2, 131"); a("s_cselect_b32 s6, 32, s6")
            a("s_cmp_eq_u32 s6, 0"); a("s_cbranch_scc1 Ldbg_skip")
            a("v_mov_b32 v1, s6")
            for i in range(1,7):
                a(f"s_sub_u32 s7, s{76+2*i}, s76")
                a("v_mov_b32 v2, s7")
                a(f"buffer_store_dword v2, v1, s[{DBG}:{DBG+3}], 0 offen offset:{4*(i-1)}")
            a("v_mov_b32 v2, s76")
            a(f"buffer_store_dword v2, v1, s[{DBG}:{DBG+3}], 0 offen offset:24")
            a("s_waitcnt vmcnt(0)")
            a.label("Ldbg_skip")
            return
        if not (self.on or self.rt): return
        a=self.a
        n = n or self.n
        if self.rt:
            a("s_waitcnt vmcnt(0)"); a("s_memrealtime s[80:81]"); a("s_memtime s[82:83]"); n=4
        a("s_load_dwordx2 s[4:5], s[0:1], 64")
        a("s_waitcnt vmcnt(0) lgkmcnt(0)")
        a(f"s_add_u32 s4, s4, {(64<<20) + (self.kidx<<20 if self.rt else 0)}")
        a("s_addc_u32 s5, s5, 0")
        srd(a, 8, 4, 5, 1<<20)
        a(f"s_mul_i32 s6, s2, {nw}")
        a(f"s_add_u32 s6, s6, {self.wavereg}")
        a("s_lshl_b32 s6, s6, 6")
        a("v_mov_b32 v1, s6")
        for i in range(n):
            a(f"v_mov_b32 v2, s{self.base+2*i}")
            a(f"buffer_store_dword v2, v1, s[8:11], 0 offen offset:{4*i}")
        a("s_waitcnt vmcnt(0)")

def mfma(a, d, x, y, c):
    cs = c if isinstance(c, str) else vr(c, 16)
    a(f"v_mfma_f32_32x32x16_bf16 {vr(d,16)}, {vr(x,4)}, {vr(y,4)}, {cs}")

WS, XB, WB, XA, WA, DBG = 4, 8, 12, 16, 20, 24
NONCE = 28
S_H, S_QB, S_G, S_TB = 30, 31, 32, 33
SLOT = 32768
BKV = 131072

def gen_fused(a):
    QA = [4, 8]; QB = 12
    OACC = [16, 32]
    CNEG = [48, 64]
    SB = [[80, 96], [112, 128]]
    PP = [144, 152]
    VF = [160, 168]
    KF = 176
    MHI, MLO = 212, 228
    VKA, VVA, TMP, LIN, MX, MX1 = 244, 245, 246, 247, 248, 249
    T0, T1, T2, T3 = 250, 251, 252, 253
    VKN, VVN = 254, 255
    VLO = 3
    XCH = 98304
    QBL = 122880
    FA, FB = F_BASE, F_BASE + 65536
    PUB = int(os.environ.get("PUB", "9"))
    FO = F_BASE + 131072
    WOA, WOB, OUT = 8, 12, 16

    a.raw(".p2align 8")
    a.raw(".type concat_heads__softmax_full_mha__sliding_block__prompt_kernel,@function")
    a.label("concat_heads__softmax_full_mha__sliding_block__prompt_kernel")
    a("s_cmp_ge_u32 s2, 256")
    a("s_cbranch_scc1 Lfa_end")
    st = Stamper(a, "fa", 0, "s3")
    st(0)
    a("s_load_dwordx4 s[36:39], s[0:1], 0")
    a("s_load_dwordx2 s[34:35], s[0:1], 24")
    a("s_load_dwordx2 s[42:43], s[0:1], 32")
    a("s_load_dwordx4 s[44:47], s[0:1], 56")
    a("v_and_b32 v1, 63, v0")
    a("v_lshrrev_b32 v2, 6, v0")
    a(f"s_and_b32 s{S_H}, s2, 31")
    a("v_readfirstlane_b32 s3, v2")
    a(f"s_lshr_b32 s{S_QB}, s2, 5")
    a("s_lshr_b32 s48, s2, 3")
    a("s_and_b32 s49, s2, 1")
    a("s_lshl_b32 s49, s49, 2")
    a("s_and_b32 s50, s48, 3")
    a(f"s_add_u32 s{S_G}, s49, s50")
    a("s_bfe_u32 s49, s2, 0x20001")
    a("s_lshl_b32 s49, s49, 3")
    a("s_lshr_b32 s50, s48, 2")
    a(f"s_add_u32 s{S_TB}, s49, s50")
    a(f"s_and_b32 s29, s{S_G}, 3")
    a("s_lshl_b32 s29, s29, 1")
    a(f"s_add_u32 s29, s29, s{S_TB}")
    a("s_and_b32 s29, s29, 7")
    a("s_cmp_lt_u32 s3, 4")
    a("s_cbranch_scc1 Lfa_compute")

    def early_setup():
        a(f"v_lshlrev_b32 v{LIN}, 4, v1")
        a(f"v_lshrrev_b32 v{T0}, 5, v1")
        a(f"v_lshlrev_b32 v{VLO}, 8, v{T0}")
        a(f"v_and_b32 v{T1}, 15, v1")
        a(f"v_lshlrev_b32 v{T1}, 4, v{T1}")
        a(f"v_add_u32 v{VLO}, v{VLO}, v{T1}")
        a(f"v_add_u32 v{VLO}, 1024, v{VLO}")
        a(f"v_and_b32 v{T1}, 27, v1")
        a(f"v_cmp_eq_u32 vcc, 16, v{T1}")
        a(f"v_mov_b32 v{T2}, 0x3f803f80")
        a(f"v_mov_b32 v{T3}, 0")
        a("s_nop 0")
        for r in range(16):
            a(f"v_cndmask_b32 v{VF[0]+r}, v{T3}, v{T2}, vcc")
        a(f"v_and_b32 v{T1}, 31, v1")
        a(f"v_lshlrev_b32 v{T0}, 2, v{T0}")
        a(f"v_sub_u32 v{T1}, v{T1}, v{T0}")
        a(f"v_mov_b32 v{T2}, 0xff800000")
        for r in range(16):
            cr = 8*(r//4) + r % 4
            a(f"v_cmp_le_i32 s[{62+2*(r%4)}:{63+2*(r%4)}], {cr}, v{T1}")
            if r % 4 == 3:
                a("s_nop 1")
                for q in range(r-3, r+1):
                    a(f"v_cndmask_b32 v{MHI+q}, v{T2}, v{T3}, s[{62+2*(q%4)}:{63+2*(q%4)}]")
                    a(f"v_cndmask_b32 v{MLO+q}, v{T3}, v{T2}, s[{62+2*(q%4)}:{63+2*(q%4)}]")
        a("s_lshr_b32 s70, s3, 2")
        a("s_lshl_b32 s71, s70, 14")
        a(f"s_add_u32 s72, s71, {BKV}")
        a(f"v_add_u32 v{VKN}, s71, v{LIN}")
        a(f"v_add_u32 v{VVN}, s71, v{VLO}")
        a(f"v_add_u32 v{VKA}, s72, v{LIN}")
        a(f"v_add_u32 v{VVA}, s72, v{VLO}")
        a("s_mov_b32 s73, 0")
        a("s_mov_b32 s40, 0x0000ffff")
        a("s_mov_b32 s41, 0x0000ffff")

    a("s_sub_u32 s48, s3, 4")
    a("v_lshrrev_b32 v2, 3, v1")
    a("v_lshlrev_b32 v2, 10, v2")
    a("v_and_b32 v3, 7, v1")
    a("v_lshrrev_b32 v6, 4, v1")
    a("v_xor_b32 v3, v3, v6")
    a("v_lshlrev_b32 v3, 4, v3")
    a("v_add_u32 v4, v2, v3")
    a("v_xor_b32 v5, 64, v4")
    a(f"s_lshl_b32 s50, s{S_TB}, 6")
    a("s_lshl_b32 s49, s48, 4")
    a("s_add_u32 s50, s50, s49")
    a("s_lshl_b32 s50, s50, 10")
    a("s_lshl_b32 s51, s48, 11")
    a("s_mul_i32 s52, s48, 49152")
    a(f"s_lshl_b32 s49, s{S_G}, 7")
    a("s_add_u32 s52, s52, s49")
    a("s_mul_i32 s53, s48, 6144")
    a("s_add_u32 s53, s53, 8192")
    a("s_movk_i32 s49, 171")
    a("s_movk_i32 s55, 3072")
    for v in range(3):
        a(f"v_add_u32 v2, {64*v}, v1")
        a("v_mul_lo_u32 v3, v2, s49")
        a("v_lshrrev_b32 v3, 12, v3")
        a("v_mul_u32_u24 v9, 24, v3")
        a("v_sub_u32 v9, v2, v9")
        a("v_bfe_u32 v10, v3, 1, 1")
        a("v_lshlrev_b32 v10, 2, v10")
        a("v_xor_b32 v9, v9, v10")
        a("v_mul_lo_u32 v3, v3, s55")
        a("v_lshrrev_b32 v10, 3, v9")
        a("v_lshlrev_b32 v10, 10, v10")
        a("v_add_u32 v3, v3, v10")
        a("v_and_b32 v9, 7, v9")
        a("v_lshlrev_b32 v9, 4, v9")
        a(f"v_add_u32 v{6+v}, v3, v9")
    a("s_waitcnt lgkmcnt(0)")
    srd(a, XA, 36, 37, 2048*1024)
    srd(a, WA, 38, 39, 512*3072)
    def dma_chunk(i, ldsbase=None):
        c = i % 8
        base = (i % 4)*SLOT if ldsbase is None else ldsbase
        xs, wsr = (XA, WA) if i < 8 else (XB, WB)
        a(f"s_add_u32 s58, s29, {c}")
        a("s_and_b32 s58, s58, 7")
        a("s_lshl_b32 s59, s58, 7")
        a("s_add_u32 s59, s59, s50")
        a(f"s_mul_i32 s58, s58, {64*3072}")
        a("s_add_u32 s58, s58, s52")
        for u in range(2):
            a(f"s_add_u32 m0, s51, {base + u*1024}")
            a(f"s_add_u32 s54, s59, {u*8192}")
            a(f"buffer_load_dwordx4 v{4 + u}, s[{xs}:{xs+3}], s54 offen lds")
        for u in range(6):
            up, v = divmod(u, 3)
            a(f"s_add_u32 m0, s53, {base + u*1024}")
            a(f"s_add_u32 s54, s58, {8*up*3072}")
            a(f"buffer_load_dwordx4 v{6 + v}, s[{wsr}:{wsr+3}], s54 offen lds")
    dma_chunk(0)
    dma_chunk(1)
    srd(a, XB, 34, 35, 2048*1024)
    srd(a, WB, 42, 43, 512*3072)
    srd(a, WS, 46, 47, WS_SIZE)
    srd(a, DBG, 44, 45, 256)
    a("s_cmp_eq_u32 s2, 0")
    a("s_cselect_b32 s49, s48, 1")
    a("s_cmp_eq_u32 s49, 0")
    a("s_cbranch_scc0 Lfa_nononce")
    a("s_memrealtime s[56:57]")
    a("s_waitcnt lgkmcnt(0)")
    a("s_or_b32 s56, s56, 1")
    a("v_mov_b32 v10, s56")
    a("v_mov_b32 v11, 0")
    a(f"buffer_store_dword v10, v11, s[{DBG}:{DBG+3}], 0 offen sc1")
    a.label("Lfa_nononce")
    NCHK = 3
    C8AT = int(os.environ.get("C8AT", "-1"))
    if C8AT < 0:
        dma_chunk(8, BKV)
    early_setup()
    a(f"s_lshr_b32 s56, s{S_H}, 2")
    a("s_lshl_b32 s56, s56, 12")
    a(f"s_add_u32 s56, s56, {FA}")
    a("v_and_b32 v12, 31, v1")
    a("v_lshlrev_b32 v12, 7, v12")
    a("v_add_u32 v12, s56, v12")
    a(f"s_lshl_b32 s56, s{S_G}, 5")
    a(f"s_add_u32 s56, s56, s{S_TB}")
    a("s_lshl_b32 s74, s56, 7")
    a("v_and_b32 v2, 7, v1")
    a(f"s_lshl_b32 s49, s{S_QB}, 2")
    a("s_sub_u32 s49, s49, 4")
    a("v_add_u32 v2, s49, v2")
    a("v_max_i32 v2, 0, v2")
    a(f"s_lshr_b32 s49, s{S_H}, 2")
    a("s_lshl_b32 s49, s49, 5")
    a("v_add_u32 v2, s49, v2")
    a("v_lshlrev_b32 v2, 7, v2")
    a(f"v_add_u32 v2, {FB}, v2")
    a("v_mov_b32 v11, 0")
    st(1)
    def write_flag(base):
        a(f"s_add_u32 s56, s74, {base}")
        a("v_mov_b32 v14, s56")
        a(f"v_mov_b32 v15, s{NONCE}")
        a("s_mov_b64 exec, 1")
        a(f"buffer_store_dword v15, v14, s[{WS}:{WS+3}], 0 offen sc1")
        a("s_mov_b64 exec, -1")
    def a_loads():
        a(f"s_mul_i32 s64, s{S_H}, {HEAD_STRIDE}")
        a("s_lshl_b32 s65, s48, 10")
        a("s_add_u32 s64, s64, s65")
        for u in range(8):
            a(f"s_add_u32 m0, s65, {BKV + (u&3)*4096 + (u>>2)*16384}")
            a(f"s_add_u32 s66, s64, {65536 + (u&3)*4096 + (u>>2)*65536}")
            a(f"buffer_load_dwordx4 v{LIN}, s[{WS}:{WS+3}], s66 offen sc1 lds")
        a(f"s_lshl_b32 s67, s{S_QB}, 13")
        a("s_add_u32 s67, s67, s64")
        for u in range(2):
            a(f"s_add_u32 m0, s65, {32768 + u*4096}")
            a(f"s_add_u32 s66, s67, {u*4096}")
            a(f"buffer_load_dwordx4 v{LIN}, s[{WS}:{WS+3}], s66 offen sc1 lds")
        for u in range(8):
            a(f"s_add_u32 m0, s65, {(u&3)*4096 + (u>>2)*16384}")
            a(f"s_add_u32 s66, s64, {65536 + 16384 + (u&3)*4096 + (u>>2)*65536}")
            a(f"buffer_load_dwordx4 v{LIN}, s[{WS}:{WS+3}], s66 offen sc1 lds")
    order = ["c0"]*8 + ["c1"]*8
    if C8AT < 0: order += ["c8"]*8
    waits = {}
    for i in range(16):
        last = max(k for k, t in enumerate(order) if t == f"c{i}")
        if i == NCHK: last = max(last, max(k for k, t in enumerate(order) if t == "nonce"))
        waits[i] = len(order) - 1 - last
        if i == 0: order += ["nonce"]
        if C8AT == i: order += ["c8"]*8
        if i + 2 <= 15 and i + 2 != 8: order += [f"c{i+2}"]*8
        pass
    for i in range(16):
        w = waits[i]
        if i == 15:
            a("s_cmp_eq_u32 s48, 0")
            a("s_cbranch_scc0 Lfa_w15")
            a(f"s_waitcnt vmcnt({w+1})")
            a("s_branch Lfa_w15d")
            a.label("Lfa_w15")
            a(f"s_waitcnt vmcnt({w})")
            a.label("Lfa_w15d")
        else:
            a(f"s_waitcnt vmcnt({w})")
        if i == NCHK:
            a(f"s_mov_b32 s55, {SPIN}")
            a.label("Lfa_nspin")
            a(f"v_readfirstlane_b32 s{NONCE}, v10")
            a("s_nop 3")
            a(f"s_cmp_lg_u32 s{NONCE}, 0")
            a("s_cbranch_scc1 Lfa_ngot")
            a("s_sleep 1")
            a(f"buffer_load_dword v10, v11, s[{DBG}:{DBG+3}], 0 offen sc1")
            a("s_waitcnt vmcnt(0)")
            a("s_sub_u32 s55, s55, 1")
            a("s_cmp_lg_u32 s55, 0")
            a("s_cbranch_scc1 Lfa_nspin")
            a.label("Lfa_ngot")
        a("s_barrier")
        if i in (0,1,2,4,6,8,10,12,14,15): st.p({0:1,1:2,2:3,4:4,6:5,8:6,10:7,12:8,14:9,15:10}[i])
        if i == 0:
            a(f"buffer_load_dword v10, v11, s[{DBG}:{DBG+3}], 0 offen sc1")
        if C8AT == i:
            dma_chunk(8, BKV)
        if i + 2 <= 15 and i + 2 != 8:
            dma_chunk(i + 2)
        if i == PUB + 1:
            a("s_cmp_eq_u32 s48, 0")
            a("s_cbranch_scc0 Lfa_nf")
            write_flag(FA)
            a.label("Lfa_nf")
        if i == 13:
            a("s_cmp_eq_u32 s48, 0")
            a("s_cbranch_scc0 Lfa_np13")
            a(f"buffer_load_dword v13, v12, s[{WS}:{WS+3}], 0 offen sc1")
            a.label("Lfa_np13")
        if i == 14:
            a("s_cmp_eq_u32 s48, 0")
            a("s_cbranch_scc0 Lfa_np14")
            a("v_mov_b32 v14, 49152")
            a("v_mov_b32 v16, 0")
            a("ds_write_b32 v14, v16")
            a("s_waitcnt lgkmcnt(0)")
            a.label("Lfa_np14")
    st(2)
    a(f"s_mov_b32 s55, {SPIN}")
    a("v_mov_b32 v14, 49152")
    a("s_cmp_eq_u32 s48, 0")
    a("s_cbranch_scc0 Lfa_lspin")
    a.label("Lfa_aspin")
    a("s_waitcnt vmcnt(0)")
    a(f"v_cmp_eq_u32 vcc, s{NONCE}, v13")
    a("s_nop 4")
    a("s_cmp_eq_u64 vcc, -1")
    a("s_cbranch_scc1 Lfa_aok")
    a("s_sleep 2")
    a(f"buffer_load_dword v13, v12, s[{WS}:{WS+3}], 0 offen sc1")
    a("s_sub_u32 s55, s55, 1")
    a("s_cmp_lg_u32 s55, 0")
    a("s_cbranch_scc1 Lfa_aspin")
    a("s_waitcnt vmcnt(0)")
    a.label("Lfa_aok")
    a("v_mov_b32 v16, 1")
    a("ds_write_b32 v14, v16")
    a("s_branch Lfa_agot")
    a.label("Lfa_lspin")
    a(f"s_mov_b32 s55, {SPIN*8}")
    a.label("Lfa_lspin2")
    a("ds_read_b32 v16, v14")
    a("s_waitcnt lgkmcnt(0)")
    a("v_readfirstlane_b32 s56, v16")
    a("s_nop 3")
    a("s_cmp_lg_u32 s56, 0")
    a("s_cbranch_scc1 Lfa_agot")
    a("s_sleep 1")
    a("s_sub_u32 s55, s55, 1")
    a("s_cmp_lg_u32 s55, 0")
    a("s_cbranch_scc1 Lfa_lspin2")
    a.label("Lfa_agot")
    a_loads()
    st(3)
    a("s_branch Lfa_attn")

    a.label("Lfa_compute")
    a("s_lshr_b32 s48, s3, 1")
    a("s_and_b32 s49, s3, 1")
    a("v_and_b32 v2, 31, v1")
    a("v_lshrrev_b32 v3, 5, v1")
    a("v_bfe_u32 v9, v2, 1, 3")
    a("v_xor_b32 v9, v9, v3")
    a("s_lshl_b32 s50, s48, 12")
    a("v_lshlrev_b32 v18, 7, v2")
    a("v_add_u32 v18, s50, v18")
    for s in range(4):
        a(f"v_xor_b32 v19, {2*s}, v9")
        a("v_lshlrev_b32 v19, 4, v19")
        a(f"v_add_u32 v{10+s}, v18, v19")
        a(f"v_add_u32 v{14+s}, 0x10000, v{10+s}")
    a("v_lshlrev_b32 v24, 3, v3")
    a("v_bfe_u32 v25, v1, 2, 2")
    a("v_add_u32 v24, v24, v25")
    a("s_movk_i32 s50, 384")
    a("v_mul_lo_u32 v24, v24, s50")
    a("v_bfe_u32 v25, v1, 4, 1")
    a("v_lshlrev_b32 v25, 5, v25")
    a("v_add_u32 v24, v24, v25")
    a("v_and_b32 v25, 3, v1")
    a("v_lshlrev_b32 v25, 3, v25")
    a("v_add_u32 v24, v24, v25")
    a("v_add_u32 v24, 8192, v24")
    a("v_bfe_u32 v25, v1, 3, 1")
    a("s_mul_i32 s50, s49, 3")
    for ct in range(3):
        a(f"s_add_u32 s51, s50, {ct}")
        a("v_xor_b32 v26, s51, v25")
        a("v_lshlrev_b32 v26, 6, v26")
        a(f"v_add_u32 v{18+ct}, v24, v26")
        a(f"v_add_u32 v{21+ct}, 0x10000, v{18+ct}")
    a("v_lshlrev_b32 v24, 4, v1")
    a("v_bfe_u32 v25, v1, 4, 1")
    a(f"s_mov_b32 s50, {HEAD_STRIDE}")
    a("v_mul_lo_u32 v25, v25, s50")
    a("v_lshlrev_b32 v26, 8, v3")
    a("v_add_u32 v25, v25, v26")
    a("v_and_b32 v26, 15, v1")
    a("v_lshlrev_b32 v26, 4, v26")
    a("v_add_u32 v25, v25, v26")
    a(f"s_mul_i32 s52, s{S_G}, {4*HEAD_STRIDE}")
    a(f"s_lshl_b32 s53, s{S_TB}, 1")
    a("s_add_u32 s53, s53, s48")
    a("s_lshl_b32 s54, s53, 11")
    a("s_add_u32 s54, s54, 65536")
    a("s_lshl_b32 s53, s53, 10")
    a(f"s_mov_b32 s55, {f32bits(QSCALE):#x}")
    ACC = 64
    for r in range(48): a(f"v_mov_b32 v{ACC+r}, 0")
    early_setup()
    a("s_waitcnt lgkmcnt(0)")
    srd(a, WS, 46, 47, WS_SIZE)
    TLBW = int(os.environ.get("TLBW", "0"))
    if TLBW:
        if TLBW < 3:
            a("s_lshr_b32 s80, s2, 3" if TLBW == 1 else "s_bfe_u32 s80, s2, 0x30003")
            a("s_cmp_eq_u32 s80, 0")
            a("s_cbranch_scc0 Lfa_ntlb")
        a("v_lshlrev_b32 v129, 20, v1")
        a("s_cmp_eq_u32 s3, 0")
        a("s_cbranch_scc0 Lfa_tlb1")
        a(f"buffer_load_dword v131, v129, s[{WS}:{WS+3}], 0 offen")
        a("s_branch Lfa_ntlb")
        a.label("Lfa_tlb1")
        a("s_load_dwordx2 s[80:81], s[0:1], 48")
        a("s_load_dwordx2 s[82:83], s[0:1], 16")
        a("s_load_dwordx2 s[84:85], s[0:1], 40")
        a("s_waitcnt lgkmcnt(0)")
        a("s_cmp_eq_u32 s3, 1")
        a("s_cselect_b32 s86, s80, s82")
        a("s_cselect_b32 s87, s81, s83")
        a("s_cmp_eq_u32 s3, 3")
        a("s_cselect_b32 s86, s84, s86")
        a("s_cselect_b32 s87, s85, s87")
        a("s_mov_b32 s88, s86")
        a("s_and_b32 s89, s87, 0xffff")
        a("s_cmp_eq_u32 s3, 1")
        a(f"s_mov_b32 s90, {512*1024}")
        a(f"s_cselect_b32 s90, {2048*2048}, s90")
        a("s_mov_b32 s91, 0x00020000")
        a("buffer_load_dword v131, v129, s[88:91], 0 offen")
        a.label("Lfa_ntlb")
    if os.environ.get("XTOUCH", "0") == "1":
        a("s_cmp_eq_u32 s3, 3")
        a("s_cbranch_scc0 Lfa_nxt")
        srd(a, XB, 34, 35, 2048*1024)
        a("v_lshrrev_b32 v129, 3, v1")
        a("v_lshlrev_b32 v129, 10, v129")
        a("v_and_b32 v130, 7, v1")
        a("v_lshlrev_b32 v130, 7, v130")
        a("v_add_u32 v129, v129, v130")
        a(f"s_lshl_b32 s60, s{S_TB}, 16")
        a(f"s_and_b32 s61, s{S_G}, 3")
        a("s_lshl_b32 s61, s61, 14")
        a("s_add_u32 s60, s60, s61")
        a("s_add_u32 s61, s60, 8192")
        a(f"buffer_load_dword v131, v129, s[{XB}:{XB+3}], s60 offen")
        a(f"buffer_load_dword v132, v129, s[{XB}:{XB+3}], s61 offen")
        a.label("Lfa_nxt")
    XF = [28, 32]; WF = [36, 48]; PK = 112
    def read_frags(slot, s, buf):
        xr = (10 if slot < 2 else 14) + s
        a(f"ds_read_b128 {vr(XF[buf],4)}, v{xr} offset:{(slot%2)*SLOT}")
        for ct in range(3):
            reg = (18 if slot < 2 else 21) + ct
            off = (slot % 2) * SLOT + s * 6144
            a(f"ds_read_b64_tr_b16 {vr(WF[buf]+4*ct,2)}, v{reg} offset:{off}")
            a(f"ds_read_b64_tr_b16 {vr(WF[buf]+4*ct+2,2)}, v{reg} offset:{off+1536}")
    ACCA = [64, 80, 96]
    ACCB = [128, 144, 176]
    def body(types, tag):
        L = f"Lpj{tag}"
        def epi_part(ct, accs, pofs):
            acc = accs[ct]
            c = tag*3 + ct
            ty = types[ct]
            for e in range(2):
                pk = PK + ((2*ct + e) % 4)*4
                if ty == 'Q':
                    for r in range(8):
                        a(f"v_mul_f32 v{acc+8*e+r}, s55, v{acc+8*e+r}")
                for r in range(4):
                    a(f"v_cvt_pk_bf16_f32 v{pk+r}, v{acc+2*r+8*e}, v{acc+8*e+2*r+1}")
                if ty == 'Q':
                    a(f"s_add_u32 s59, s52, {pofs + (2*(c%2)+e)*HEAD_STRIDE}")
                    a("s_add_u32 s59, s59, s53")
                    a(f"buffer_store_dwordx4 {vr(pk,4)}, v24, s[{WS}:{WS+3}], s59 offen sc1")
                elif ty == 'K':
                    a(f"s_add_u32 s59, s52, {pofs + (2*(c%2)+e)*HEAD_STRIDE}")
                    a("s_add_u32 s59, s59, s54")
                    a(f"buffer_store_dwordx4 {vr(pk,4)}, v24, s[{WS}:{WS+3}], s59 offen sc1")
                else:
                    a(f"s_add_u32 s59, s52, {pofs + (2*(c%2))*HEAD_STRIDE + 1024 + 512*e}")
                    a("s_add_u32 s59, s59, s54")
                    a(f"buffer_store_dwordx4 {vr(pk,4)}, v25, s[{WS}:{WS+3}], s59 offen sc1")
        def chunk(slot, accs, first=False, after_step=None):
            read_frags(slot, 0, 0)
            for s_ in range(4):
                buf = s_ % 2
                if s_ < 3:
                    read_frags(slot, s_+1, buf ^ 1)
                    a("s_waitcnt lgkmcnt(7)")
                else:
                    a("s_waitcnt lgkmcnt(0)")
                for ct in range(3):
                    acc = accs[ct]
                    cin = "0" if (first and s_ == 0) else acc
                    if types[ct] == 'V':
                        mfma(a, acc, XF[buf], WF[buf]+4*ct, cin)
                    else:
                        mfma(a, acc, WF[buf]+4*ct, XF[buf], cin)
                if after_step: after_step(s_)
        st(1)
        a("s_mov_b32 s57, 0")
        a.label(L + "_loop")
        for slot in range(4):
            a("s_barrier")
            chunk(slot, ACCA)
        a("s_add_u32 s57, s57, 1")
        a("s_cmp_lt_u32 s57, 2")
        a(f"s_cbranch_scc1 {L}_loop")
        for i in range(8, 16):
            slot = i % 4
            a("s_barrier")
            if i == 8:
                for r in (10, 11, 12, 13, 18, 19, 20):
                    a(f"v_add_u32 v{r}, {BKV}, v{r}")
                a("s_nop 7")
                chunk(0, ACCB, first=True, after_step=lambda s_: epi_part(s_, ACCA, 0) if s_ < 3 else None)
                for r in (10, 11, 12, 13, 18, 19, 20):
                    a(f"v_subrev_u32 v{r}, {BKV}, v{r}")
            else:
                if i == PUB:
                    a("s_waitcnt vmcnt(0)")
                chunk(slot, ACCB)
        a("s_nop 15")
        for ct in range(3): epi_part(ct, ACCB, PROB_STRIDE)
        st(2); st(3)
        a("s_branch Lfa_attn")
    a("s_cmp_eq_u32 s49, 0")
    a("s_cbranch_scc0 Lfa_wn1")
    body(['Q', 'Q', 'K'], 0)
    a.label("Lfa_wn1")
    body(['K', 'V', 'V'], 1)

    a.label("Lfa_attn")
    a("s_and_b32 s64, s3, 3")
    a("s_lshl_b32 s64, s64, 11")
    a(f"s_add_u32 s64, s64, 32768")
    a(f"v_add_u32 v{T0}, s64, v{LIN}")
    a(f"v_add_u32 v{T1}, {BKV}, v{LIN}")
    a(f"s_mul_i32 s62, s{S_H}, {HEAD_STRIDE}")
    a("s_lshl_b32 s63, s3, 10")
    a("s_add_u32 s62, s62, s63")
    WOV = 0
    a("v_lshrrev_b32 v0, 3, v1")
    a("v_lshlrev_b32 v0, 10, v0")
    a(f"v_bfe_u32 v{T2}, v1, 4, 1")
    a(f"v_lshlrev_b32 v{T2}, 2, v{T2}")
    a(f"v_and_b32 v{T3}, 7, v1")
    a(f"v_xor_b32 v{T2}, v{T2}, v{T3}")
    a(f"v_lshlrev_b32 v{T2}, 4, v{T2}")
    a(f"v_add_u32 v0, v0, v{T2}")
    a(f"s_lshl_b32 s34, s{S_QB}, 3")
    a("s_add_u32 s34, s34, s3")
    a("s_min_u32 s35, s34, 8")
    a(f"s_mul_i32 s36, s{S_H}, {HEAD_STRIDE}")
    a(f"s_add_u32 s36, s36, {PROB_STRIDE}")
    a("s_load_dwordx2 s[44:45], s[0:1], 16")
    a("s_load_dwordx4 s[48:51], s[0:1], 40")
    a("s_bfe_u32 s75, s2, 0x20001")
    a("s_and_b32 s52, s2, 1")
    a("s_lshl_b32 s52, s52, 2")
    a("s_bfe_u32 s53, s2, 0x20003")
    a("s_add_u32 s39, s52, s53")
    a("s_lshl_b32 s42, s3, 13")
    a("s_lshl_b32 s52, s39, 7")
    a("s_add_u32 s42, s42, s52")
    a("s_waitcnt lgkmcnt(0)")
    srd(a, WOA, 44, 45, 512*1024)
    srd(a, WOB, 48, 49, 512*1024)
    srd(a, OUT, 50, 51, 2048*2048)
    st(4)
    st.l(1)
    a("s_waitcnt vmcnt(8)")
    a("s_barrier")
    st(5)
    st.l(2)
    a(f"ds_read_b128 {vr(QA[0],4)}, v{T0}")
    a(f"ds_read_b128 {vr(QA[1],4)}, v{T0} offset:1024")
    a(f"ds_read_b128 {vr(KF,4)}, v{T1}")
    a("s_waitcnt lgkmcnt(0)")
    mfma(a, SB[0][0], KF, QA[0], "0")
    mfma(a, SB[1][0], KF, QA[1], "0")
    a("s_cmp_eq_u32 s3, 4")
    a("s_cbranch_scc0 La_nnw")
    a(f"v_mov_b32 v{T0}, {XCH + 512}")
    a(f"v_mov_b32 v{T1}, s{NONCE}")
    a(f"ds_write_b32 v{T0}, v{T1}")
    a("s_waitcnt lgkmcnt(0)")
    a.label("La_nnw")
    for q in range(2):
        for r in range(16):
            a(f"v_mov_b32 v{OACC[q]+r}, 0") if r < 6 else None
    for q, m in ((0, MX), (1, MX1)):
        s = SB[q][0]
        a(f"v_max_f32 v{m}, v{s}, v{s+1}")
        for r in range(1, 8):
            a(f"v_max3_f32 v{m}, v{s+2*r}, v{s+2*r+1}, v{m}")
    def halves_max(m, t):
        a(f"v_mov_b32 v{t}, v{m}")
        a("s_nop 1")
        a(f"v_permlane32_swap_b32 v{m}, v{t}")
        a("s_nop 1")
        a(f"v_max_f32 v{m}, v{m}, v{t}")
    def read_v(buf, areg, off):
        a("s_mov_b64 exec, s[40:41]")
        a(f"ds_read_b128 {vr(buf,4)}, v{areg} offset:{off}")
        a(f"ds_read_b128 {vr(buf+4,4)}, v{areg} offset:{off+512}")
        a("s_mov_b64 exec, -1")
    def step(cur, p, o, early, qk, pre_pv0, mid, pre_pv1, vb):
        E = lambda i: a(f"v_exp_f32 v{cur+i}, v{cur+i}")
        C = lambda j: a(f"v_cvt_pk_bf16_f32 v{p+j}, v{cur+2*j}, v{cur+2*j+1}")
        E(0); E(1)
        early()
        E(2); E(3); C(0); E(4); C(1); E(5)
        qk()
        E(6); E(7); C(2); E(8); C(3); E(9); E(10)
        pre_pv0()
        mfma(a, o, vb, p, o)
        E(11); C(4); E(12); C(5); E(13); E(14); E(15); C(6); C(7)
        mid()
        pre_pv1()
        mfma(a, o, vb+4, p+4, o)
    nop = lambda: None
    a.label("La_main")
    a(f"ds_read_b128 {vr(KF,4)}, v{VKA}")
    read_v(VF[0], VVA, 0)
    a(f"ds_read_b128 {vr(KF+4,4)}, v{VKA} offset:2048")
    halves_max(MX, TMP)
    halves_max(MX1, TMP)
    for q, m in ((0, MX), (1, MX1)):
        for r in range(16):
            a(f"v_sub_f32 v{CNEG[q]+r}, 0, v{m}")
    a("s_waitcnt lgkmcnt(3)")
    mfma(a, SB[0][0], KF, QA[0], CNEG[0])
    mfma(a, SB[1][0], KF, QA[1], CNEG[1])
    U = 8
    SCHED = 1
    def kv_dma(j):
        for u in range(4):
            a(f"s_add_u32 m0, s63, {(j-1)*32768 + (u&1)*8192 + (u>>1)*16384}")
            a(f"s_add_u32 s66, s62, {65536 + j*16384 + (u&1)*8192 + (u>>1)*65536}")
            a(f"buffer_load_dwordx4 v{LIN}, s[{WS}:{WS+3}], s66 offen sc1 lds")
    def wo_dma(srdr, half, ldsbase):
        for u in range(4):
            a(f"s_add_u32 m0, s63, {ldsbase + u*8192}")
            a(f"s_add_u32 s66, s42, {(256*half + 64*u)*1024}")
            a(f"buffer_load_dwordx4 v{WOV}, s[{srdr}:{srdr+3}], s66 offen lds")
    def tile_pair(n, kread, vread, last=False, first=False):
        vb = VF[n % 2]
        for q in range(2):
            cur, nxt = SB[q][n % 2], SB[q][(n+1) % 2]
            p = PP[q]
            E = lambda i: a(f"v_exp_f32 v{cur+i}, v{cur+i}")
            C = lambda j: a(f"v_cvt_pk_bf16_f32 v{p+j}, v{cur+2*j}, v{cur+2*j+1}")
            pq = 1 - q
            pvb = VF[n % 2] if q == 1 else VF[(n+1) % 2]
            E(0); E(1)
            if not (first and q == 0):
                mfma(a, OACC[pq], pvb+4, PP[pq]+4, OACC[pq])
            E(2); E(3); E(4); C(0); E(5); C(1)
            if q == 0: a("s_waitcnt lgkmcnt(0)")
            if not last:
                mfma(a, nxt, KF+4*((n+1) % 2), QA[q], CNEG[q])
            if q == 1: kread(KF+4*(n % 2))
            E(6); E(7); E(8); C(2); E(9); C(3); E(10); E(11)
            mfma(a, OACC[q], vb, p, "0" if first else OACC[q])
            E(12); C(4); E(13); C(5); E(14); E(15)
            if q == 0: vread(VF[(n+1) % 2])
            C(6); C(7)
    a("s_cmp_lg_u32 s73, 0")
    a("s_cbranch_scc1 La_rolled")
    KA3, VA3 = 184, 185
    a(f"v_add_u32 v{KA3}, 0x10000, v{VKN}")
    a(f"v_add_u32 v{VA3}, 0x10000, v{VVN}")
    a("s_nop 7")
    def addr(t, kreg0, kreg1, kreg3):
        j, n = divmod(t, 8)
        if j == 0: return kreg0, n*2048
        if j == 3: return kreg3, n*2048
        return kreg1, (j-1)*32768 + n*2048
    a.raw(".p2align 6")
    for t in range(32):
        j, n = divmod(t, 8)
        if n == 0: st.l(3 + j)
        if t == 14 and os.environ.get("WOT", "0") == "1":
            a(f"v_lshlrev_b32 v186, 10, v1")
            a("s_lshl_b32 s64, s3, 16")
            a("s_lshl_b32 s65, s39, 7")
            a("s_add_u32 s64, s64, s65")
            a(f"buffer_load_dword v187, v186, s[{WOA}:{WOA+3}], s64 offen")
            a(f"buffer_load_dword v188, v186, s[{WOB}:{WOB+3}], s64 offen")
        if t == 17:
            a("s_cmp_lt_u32 s3, 4")
            a("s_cbranch_scc1 La_s17")
            a(f"buffer_load_dword v{T2}, v2, s[{WS}:{WS+3}], 0 offen sc1")
            a.label("La_s17")
        if t == 25:
            a("s_cmp_lt_u32 s3, 4")
            a("s_cbranch_scc1 La_s25")
            a(f"s_mov_b32 s67, {SPIN}")
            a.label("La_bspin")
            a("s_waitcnt vmcnt(0)")
            a(f"v_cmp_eq_u32 vcc, s{NONCE}, v{T2}")
            a("s_nop 4")
            a("s_cmp_eq_u64 vcc, -1")
            a("s_cbranch_scc1 La_bgot")
            a("s_sleep 1")
            a(f"buffer_load_dword v{T2}, v2, s[{WS}:{WS+3}], 0 offen sc1")
            a("s_sub_u32 s67, s67, 1")
            a("s_cmp_lg_u32 s67, 0")
            a("s_cbranch_scc1 La_bspin")
            a("s_waitcnt vmcnt(0)")
            a.label("La_bgot")
            b_loads(a, LIN, QBL)
            a.label("La_s25")
        if t == 27:
            wo_dma(WOA, 0, 0)
        if n == 5 and j < 3:
            a(f"s_waitcnt vmcnt({[0, 0, 2 if os.environ.get('WOT', '0') == '1' else 1][j]})")
            a("s_barrier")
            if j < 2: kv_dma(2 + j)
            if j == 0:
                a(f"v_mov_b32 v{T0}, {XCH + 512}")
                a(f"ds_read_b32 v{T0}, v{T0}")
                for r in range(4): a(f"v_mov_b32 v{188+r}, -1")
                a(f"s_lshl_b32 s68, s{S_H}, 16")
                a("s_lshl_b32 s69, s34, 10")
                a("s_add_u32 s68, s68, s69")
                a(f"s_add_u32 s68, s68, {O_BASE + O_PROB}")
                a(f"buffer_store_dwordx4 v[188:191], v{LIN}, s[{WS}:{WS+3}], s68 offen sc1")
                a("s_waitcnt lgkmcnt(0)")
                a(f"v_readfirstlane_b32 s{NONCE}, v{T0}")
                a("s_cmp_eq_u32 s3, 4")
                a("s_cbranch_scc0 La_nfb")
                a(f"s_add_u32 s56, s74, {FB}")
                a(f"v_mov_b32 v{T0}, s56")
                a(f"v_mov_b32 v{T1}, s{NONCE}")
                a("s_mov_b64 exec, 1")
                a(f"buffer_store_dword v{T1}, v{T0}, s[{WS}:{WS+3}], 0 offen sc1")
                a("s_mov_b64 exec, -1")
                a.label("La_nfb")
        def kread(buf, t=t):
            if t + 2 < 32:
                r, o = addr(t + 2, VKA, VKN, KA3)
                a(f"ds_read_b128 {vr(buf,4)}, v{r} offset:{o}")
        def vread(buf, t=t):
            if t + 1 < 32:
                r, o = addr(t + 1, VVA, VVN, VA3)
                read_v(buf, r, o)
            else:
                a("s_nop 0")
        tile_pair(n, kread, vread, last=(t == 31), first=(t == 0))
    a("s_branch La_post")
    a.label("La_rolled")
    for q in range(2):
        for r in range(16):
            a(f"v_mov_b32 v{OACC[q]+r}, 0")
    for r in range(4): a(f"v_mov_b32 v{PP[1]+4+r}, 0")
    a("s_mov_b32 s38, 0")
    a.label("La_loop")
    for n in range(U):
        def kread(buf, n=n):
            if n + 2 < U: a(f"ds_read_b128 {vr(buf,4)}, v{VKA} offset:{(n+2)*2048}")
            else: a(f"ds_read_b128 {vr(buf,4)}, v{VKN} offset:{(n+2-U)*2048}")
        def vread(buf, n=n):
            if n + 1 < U: read_v(buf, VVA, (n+1)*2048)
            else: read_v(buf, VVN, 0)
        tile_pair(n, kread, vread)
    a(f"v_mov_b32 v{VKA}, v{VKN}")
    a(f"v_mov_b32 v{VVA}, v{VVN}")
    a(f"v_add_u32 v{VKN}, 32768, v{VKN}")
    a(f"v_add_u32 v{VVN}, 32768, v{VVN}")
    a("s_add_u32 s38, s38, 1")
    a("s_cmp_lg_u32 s38, 4")
    a("s_cbranch_scc1 La_loop")
    a.label("La_post")
    a("s_nop 1")
    mfma(a, OACC[1], VF[1]+4, PP[1]+4, OACC[1])
    st(6)
    st.l(7)
    a("s_waitcnt lgkmcnt(0)")
    a("s_nop 15")
    a(f"v_mov_b32 v{TMP}, 0x5f800000")
    a(f"v_cmp_lt_f32 vcc, v{OACC[0]+8}, v{TMP}")
    a(f"v_cmp_lt_f32 s[58:59], v{OACC[1]+8}, v{TMP}")
    a("s_nop 4")
    a("s_and_b64 s[58:59], s[58:59], vcc")
    a("s_cmp_eq_u64 s[58:59], -1")
    a("s_cselect_b32 s64, 0, 1")
    a("s_cmp_lg_u32 s73, 0")
    a("s_cselect_b32 s64, 0, s64")
    a("s_lshl_b32 s65, s3, 2")
    a(f"s_add_u32 s65, s65, {XCH}")
    a(f"v_mov_b32 v{T0}, s65")
    a(f"v_mov_b32 v{T1}, s64")
    a(f"ds_write_b32 v{T0}, v{T1}")
    a("s_mul_i32 s65, s3, 2560")
    a(f"s_add_u32 s65, s65, {XCH + 1024}")
    a(f"v_add_u32 v{T0}, s65, v{LIN}")
    a(f"v_lshrrev_b32 v{T1}, 2, v{LIN}")
    a(f"v_add_u32 v{T1}, s65, v{T1}")
    a("s_cmp_eq_u32 s70, 0")
    a("s_cbranch_scc0 La_sendq0")
    for lab, qs in (("La_sendq1", 1), ("La_sendq0", 0)):
        if qs == 0: a.label(lab)
        a(f"ds_write_b128 v{T0}, {vr(OACC[qs],4)}")
        a(f"ds_write_b128 v{T0}, {vr(OACC[qs]+4,4)} offset:1024")
        a(f"ds_write_b32 v{T1}, v{OACC[qs]+8} offset:2048")
        if qs == 1:
            a("s_branch La_sent")
        else:
            for r in range(9):
                a(f"v_mov_b32 v{OACC[0]+r}, v{OACC[1]+r}")
    a.label("La_sent")
    a("s_waitcnt vmcnt(0) lgkmcnt(0)")
    a("s_barrier")
    a(f"v_and_b32 v{T2}, 7, v1")
    a(f"v_lshlrev_b32 v{T2}, 2, v{T2}")
    a(f"v_add_u32 v{T2}, {XCH}, v{T2}")
    a(f"ds_read_b32 v{T2}, v{T2}")
    a("s_xor_b32 s64, s3, 4")
    a("s_mul_i32 s65, s64, 2560")
    a(f"s_add_u32 s65, s65, {XCH + 1024}")
    a(f"v_add_u32 v{T0}, s65, v{LIN}")
    a(f"v_lshrrev_b32 v{T1}, 2, v{LIN}")
    a(f"v_add_u32 v{T1}, s65, v{T1}")
    a(f"ds_read_b128 {vr(SB[0][0],4)}, v{T0}")
    a(f"ds_read_b128 {vr(SB[0][0]+4,4)}, v{T0} offset:1024")
    a(f"ds_read_b32 v{SB[0][0]+8}, v{T1} offset:2048")
    a("s_lshl_b32 s37, s3, 11")
    a(f"s_add_u32 s37, s37, {BKV}")
    a("s_waitcnt lgkmcnt(0)")
    a(f"v_cmp_ne_u32 vcc, 0, v{T2}")
    a("s_nop 4")
    a("s_cmp_eq_u64 vcc, 0")
    a("s_cbranch_scc1 La_done")
    a("s_barrier")
    a("s_mov_b32 s73, 1")
    for u in range(4):
        a(f"s_add_u32 m0, s63, {BKV + (u&1)*8192 + (u>>1)*16384}")
        a(f"s_add_u32 s66, s62, {65536 + (u&1)*8192 + (u>>1)*65536}")
        a(f"buffer_load_dwordx4 v{LIN}, s[{WS}:{WS+3}], s66 offen sc1 lds")
    kv_dma(1)
    a("s_waitcnt vmcnt(0)")
    a("s_barrier")
    a(f"v_mov_b32 v{MX}, 0xff800000")
    a(f"v_mov_b32 v{MX1}, 0xff800000")
    a("s_mov_b32 s38, 0")
    a.label("La_fb")
    a("s_bfe_u32 s64, s38, 0x20003")
    a("s_sub_u32 s65, s64, 1")
    a("s_lshl_b32 s65, s65, 15")
    a("s_cmp_eq_u32 s64, 0")
    a(f"s_cselect_b32 s65, {BKV}, s65")
    a("s_lshr_b32 s64, s38, 5")
    a("s_lshl_b32 s64, s64, 14")
    a("s_add_u32 s65, s65, s64")
    a("s_and_b32 s64, s38, 7")
    a("s_lshl_b32 s64, s64, 11")
    a("s_add_u32 s65, s65, s64")
    a(f"v_add_u32 v{T0}, s65, v{LIN}")
    a(f"ds_read_b128 {vr(KF,4)}, v{T0}")
    a("s_waitcnt lgkmcnt(0)")
    mfma(a, SB[0][0], KF, QA[0], "0")
    mfma(a, SB[1][0], KF, QA[1], "0")
    a("s_nop 15")
    for q, m in ((0, MX), (1, MX1)):
        s = SB[q][0]
        for r in range(8):
            a(f"v_max3_f32 v{m}, v{s+2*r}, v{s+2*r+1}, v{m}")
    a("s_add_u32 s38, s38, 1")
    a("s_cmp_lg_u32 s38, 64")
    a("s_cbranch_scc1 La_fb")
    a(f"v_add_u32 v{VKN}, s71, v{LIN}")
    a(f"v_add_u32 v{VVN}, s71, v{VLO}")
    a(f"v_add_u32 v{VKA}, s72, v{LIN}")
    a(f"v_add_u32 v{VVA}, s72, v{VLO}")
    a("s_branch La_main")
    a.label("La_done")
    a("s_cmp_eq_u32 s73, 0")
    a("s_cbranch_scc1 La_bok")
    a("s_barrier")
    wo_dma(WOA, 0, 0)
    a("s_cmp_lt_u32 s3, 4")
    a("s_cbranch_scc1 La_brl")
    b_loads(a, LIN, QBL)
    a.label("La_brl")
    a("s_waitcnt vmcnt(0)")
    a("s_barrier")
    a.label("La_bok")
    a(f"v_add_u32 v{VKA}, s37, v{LIN}")
    a(f"v_add_u32 v{VVA}, s37, v{VLO}")
    a("s_lshl_b32 s64, s3, 10")
    a(f"s_add_u32 s64, s64, {QBL}")
    a(f"v_add_u32 v{T0}, s64, v{LIN}")
    a(f"ds_read_b128 {vr(QB,4)}, v{T0}")
    for i in range(8, -1, -1):
        a(f"ds_read_b128 {vr(KF+4*i,4)}, v{VKA} offset:{i*2048}")
    for r in range(9):
        a(f"v_add_f32 v{OACC[0]+r}, v{OACC[0]+r}, v{SB[0][0]+r}")
    a("s_and_b32 s64, s3, 3")
    a("s_lshl_b32 s64, s64, 1")
    a("s_add_u32 s64, s64, s70")
    a(f"s_lshl_b32 s65, s{S_QB}, 3")
    a("s_add_u32 s64, s64, s65")
    a("s_lshl_b32 s64, s64, 10")
    a(f"s_lshl_b32 s68, s{S_H}, 16")
    a("s_add_u32 s68, s68, s64")
    a(f"s_add_u32 s68, s68, {O_BASE}")
    def finish_o(o, lreg, soff):
        a(f"v_rcp_f32 v{TMP}, v{lreg}")
        a("s_nop 1")
        for r in range(8):
            a(f"v_mul_f32 v{o+r}, v{o+r}, v{TMP}")
        for r in range(4):
            a(f"v_cvt_pk_bf16_f32 v{PP[1]+r}, v{o+2*r}, v{o+2*r+1}")
        a(f"buffer_store_dwordx4 {vr(PP[1],4)}, v{LIN}, s[{WS}:{WS+3}], {soff} offen sc1")
    def o_flag(p):
        a("s_lshl_b32 s56, s2, 3")
        a("s_add_u32 s56, s56, s3")
        a("s_lshl_b32 s56, s56, 7")
        a(f"s_add_u32 s56, s56, {FO + p*262144}")
        a(f"v_mov_b32 v{T0}, s56")
        a(f"v_mov_b32 v{T1}, s{NONCE}")
        a("s_mov_b64 exec, 1")
        a(f"buffer_store_dword v{T1}, v{T0}, s[{WS}:{WS+3}], 0 offen sc1")
        a("s_mov_b64 exec, -1")
    a("s_waitcnt lgkmcnt(6)")
    SP = [80, 96, 112, 128]
    def qk1(i):
        c = MHI if i == 8 else (MLO if i == 0 else "0")
        mfma(a, SP[(8-i) % 4], KF+4*i, QB, c)
    qk1(8); qk1(7); qk1(6)
    finish_o(OACC[0], OACC[0]+8, "s68")
    st(7)
    st.l(8)
    a("s_waitcnt lgkmcnt(0)")
    a("s_barrier")
    read_v(VF[0], VVA, 8*2048)
    a("s_nop 0")
    a("s_mov_b32 s38, s35")
    for i in range(8, -1, -1):
        s = SP[(8-i) % 4]
        if i == 8:
            a(f"v_max_f32 v{MX}, v{s}, v{s+1}")
            for r in range(1, 8):
                a(f"v_max3_f32 v{MX}, v{s+2*r}, v{s+2*r+1}, v{MX}")
        else:
            for r in range(8):
                a(f"v_max3_f32 v{MX}, v{s+2*r}, v{s+2*r+1}, v{MX}")
        if i > 0:
            a("s_cmp_eq_u32 s38, 0")
            a("s_cbranch_scc1 Lb_p1_done")
            a("s_sub_u32 s38, s38, 1")
        if i - 3 >= 0:
            qk1(i - 3)
    a.label("Lb_p1_done")
    halves_max(MX, TMP)
    st(8)
    st.l(9)
    a("s_waitcnt vmcnt(0)")
    o_flag(0)
    a("s_mov_b32 s43, 0")
    for r in range(16):
        a(f"v_sub_f32 v{MHI+r}, v{MHI+r}, v{MX}")
    a("s_nop 1")
    mfma(a, SP[0], KF+4*8, QB, MHI)
    for r in range(16):
        a(f"v_sub_f32 v{CNEG[0]+r}, 0, v{MX}")
        a(f"v_sub_f32 v{MLO+r}, v{MLO+r}, v{MX}")
        a(f"v_mov_b32 v{OACC[0]+r}, 0")
    a("s_lshr_b32 s52, s3, 2")
    a("s_and_b32 s53, s3, 1")
    a("s_bfe_u32 s54, s3, 0x10001")
    a("s_lshl_b32 s55, s75, 1")
    a("s_add_u32 s55, s55, s53")
    a("s_lshl_b32 s56, s53, 2")
    a("s_add_u32 s56, s56, s75")
    a("s_cmp_eq_u32 s52, 0")
    a("s_cselect_b32 s56, s56, s55")
    a(f"s_lshl_b32 s57, s{S_QB}, 5")
    a("s_lshl_b32 s58, s54, 4")
    a("s_add_u32 s57, s57, s58")
    a("s_lshl_b32 s57, s57, 3")
    a("s_add_u32 s57, s57, s56")
    a("s_lshl_b32 s57, s57, 7")
    a(f"s_add_u32 s57, s57, {FO}")
    a(f"v_and_b32 v{T2}, 15, v1")
    a(f"v_lshlrev_b32 v{T2}, 10, v{T2}")
    a(f"v_add_u32 v{T2}, s57, v{T2}")
    a("s_mov_b32 s44, 0")
    WG = [(WOA, 1, 32768), (WOB, 0, 65536), (WOB, 1, 98304)]
    wo_dma(*WG[0])
    a("s_mov_b32 s43, 1")
    a("s_mov_b32 s38, s35")
    for n, i in enumerate(range(8, -1, -1)):
        cur, nxt = SP[n % 2], SP[(n+1) % 2]
        vb = VF[n % 2]
        if i > 0:
            cn = MLO if i - 1 == 0 else CNEG[0]
            step(cur, PP[0], OACC[0],
                 lambda: read_v(VF[(n+1) % 2], VVA, (i-1)*2048),
                 lambda: mfma(a, nxt, KF+4*(i-1), QB, cn),
                 lambda: a("s_waitcnt lgkmcnt(2)"),
                 lambda: a("s_nop 1"), nop, vb)
            if n in (1, 3):
                wo_dma(*WG[1 if n == 1 else 2])
                a(f"s_mov_b32 s43, {2 if n == 1 else 3}")
            if n == 5 and os.environ.get("EPOLL", "0") == "1":
                a(f"buffer_load_dword v{T3}, v{T2}, s[{WS}:{WS+3}], 0 offen sc1")
                a("s_mov_b32 s44, 1")
            a("s_cmp_eq_u32 s38, 0")
            a("s_cbranch_scc1 Lb_p2_done")
            a("s_sub_u32 s38, s38, 1")
        else:
            step(cur, PP[0], OACC[0], nop, nop,
                 lambda: a("s_waitcnt lgkmcnt(0)"),
                 lambda: a("s_nop 1"), nop, vb)
    a.label("Lb_p2_done")
    st(9)
    st.l(10)
    st.t(1)
    a("s_cmp_ge_u32 s43, 2")
    a("s_cbranch_scc1 Lb_g1")
    wo_dma(*WG[1])
    a.label("Lb_g1")
    a("s_cmp_ge_u32 s43, 3")
    a("s_cbranch_scc1 Lb_g2")
    wo_dma(*WG[2])
    a.label("Lb_g2")
    a("s_cmp_eq_u32 s44, 1")
    a("s_cbranch_scc1 Lb_g3")
    a(f"buffer_load_dword v{T3}, v{T2}, s[{WS}:{WS+3}], 0 offen sc1")
    a.label("Lb_g3")
    a("s_nop 15")
    a(f"s_lshl_b32 s68, s{S_H}, 16")
    a("s_lshl_b32 s69, s34, 10")
    a("s_add_u32 s68, s68, s69")
    a(f"s_add_u32 s68, s68, {O_BASE + O_PROB}")
    finish_o(OACC[0], OACC[0]+8, "s68")
    OF, ACC2, WF2 = 16, 208, 112
    a(f"s_lshl_b32 s59, s{S_QB}, 3")
    a("s_add_u32 s59, s59, s55")
    a("s_lshl_b32 s60, s59, 10")
    a(f"s_mul_i32 s61, s52, {O_PROB}")
    a("s_add_u32 s60, s60, s61")
    a(f"s_add_u32 s60, s60, {O_BASE}")
    a("s_bfe_u32 s61, s2, 0x20003")
    a("s_lshl_b32 s61, s61, 2")
    a(f"v_lshrrev_b32 v{T0}, 5, v1")
    a(f"v_lshlrev_b32 v{T1}, 2, v{T0}")
    a(f"v_bfe_u32 v{TMP}, v1, 2, 2")
    a(f"v_add_u32 v{T1}, v{T1}, v{TMP}")
    a(f"v_lshlrev_b32 v{T1}, 7, v{T1}")
    a(f"v_bfe_u32 v{TMP}, v1, 4, 1")
    a(f"v_lshlrev_b32 v{TMP}, 5, v{TMP}")
    a(f"v_add_u32 v{T1}, v{T1}, v{TMP}")
    a(f"v_and_b32 v{TMP}, 3, v1")
    a(f"v_lshlrev_b32 v{TMP}, 3, v{TMP}")
    a(f"v_add_u32 v{T1}, v{T1}, v{TMP}")
    a(f"v_bfe_u32 v{TMP}, v1, 3, 1")
    a(f"v_lshlrev_b32 v{TMP}, 6, v{TMP}")
    a("s_lshl_b32 s62, s52, 16")
    a("s_lshl_b32 s63, s54, 15")
    a("s_add_u32 s62, s62, s63")
    a(f"v_add_u32 v{T1}, s62, v{T1}")
    a(f"v_add_u32 v{VKA}, v{T1}, v{TMP}")
    a(f"v_xor_b32 v{TMP}, 64, v{TMP}")
    a(f"v_add_u32 v{VVA}, v{T1}, v{TMP}")
    a(f"v_and_b32 v{VKN}, 31, v1")
    a(f"v_lshlrev_b32 v{VKN}, 11, v{VKN}")
    a(f"v_lshlrev_b32 v{T0}, 4, v{T0}")
    a(f"v_add_u32 v{VKN}, v{VKN}, v{T0}")
    st.t(2)
    st(10)
    a("s_lshl_b32 s63, s54, 20")
    a("s_add_u32 s60, s60, s63")
    a("s_waitcnt vmcnt(2)")
    a("s_barrier")
    WFA = 80
    for hh in range(16):
        for ct, reg in ((0, VKA), (1, VVA)):
            b = WFA + 8*hh + 4*ct
            a(f"ds_read_b64_tr_b16 {vr(b,2)}, v{reg} offset:{hh*2048}")
            a(f"ds_read_b64_tr_b16 {vr(b+2,2)}, v{reg} offset:{hh*2048+1024}")
        if hh % 3 == 2: a("s_waitcnt lgkmcnt(8)")
    st.t(3)
    a(f"s_mov_b32 s67, {SPIN}")
    a("s_waitcnt vmcnt(1)")
    a.label("Lo_spin")
    a(f"v_cmp_eq_u32 vcc, s{NONCE}, v{T3}")
    a("s_nop 4")
    a("s_cmp_eq_u64 vcc, -1")
    a("s_cbranch_scc1 Lo_got")
    a("s_sleep 1")
    a(f"buffer_load_dword v{T3}, v{T2}, s[{WS}:{WS+3}], 0 offen sc1")
    a("s_waitcnt vmcnt(0)")
    a("s_sub_u32 s67, s67, 1")
    a("s_cmp_lg_u32 s67, 0")
    a("s_cbranch_scc1 Lo_spin")
    a.label("Lo_got")
    st.t(4)
    a(f"s_mov_b32 s67, {SPIN}")
    a.label("Lo_ld")
    for hh in range(16):
        a(f"s_add_u32 s64, s60, {hh*65536}")
        a(f"buffer_load_dwordx4 {vr(OF+4*hh,4)}, v{LIN}, s[{WS}:{WS+3}], s64 offen sc1")
    a("s_cmp_eq_u32 s52, 0")
    a("s_cbranch_scc1 Lo_rdy")
    a("s_waitcnt vmcnt(0)")
    a(f"v_max_u32 v{T3}, v{OF}, v{OF+1}")
    for r in range(1, 32):
        a(f"v_max3_u32 v{T3}, v{OF+2*r}, v{OF+2*r+1}, v{T3}")
    a(f"v_cmp_eq_u32 vcc, -1, v{T3}")
    a("s_nop 4")
    a("s_cmp_eq_u64 vcc, 0")
    a("s_cbranch_scc1 Lo_rdy")
    a("s_sub_u32 s67, s67, 1")
    a("s_cmp_lg_u32 s67, 0")
    a("s_cbranch_scc1 Lo_ld")
    a.label("Lo_rdy")
    st.t(5)
    a("s_waitcnt lgkmcnt(0)")
    for hh in range(16):
        a(f"s_waitcnt vmcnt({15-hh})")
        for ct in range(2):
            acc = ACC2 + 16*ct
            mfma(a, acc, WFA+8*hh+4*ct, OF+4*hh, "0" if hh == 0 else acc)
    st.t(6)
    a("s_lshl_b32 s64, s3, 12")
    a(f"s_add_u32 s64, s64, {BKV}")
    a(f"v_add_u32 v{T0}, s64, v{LIN}")
    a("s_xor_b32 s65, s3, 2")
    a("s_lshl_b32 s65, s65, 12")
    a(f"s_add_u32 s65, s65, {BKV}")
    a(f"v_add_u32 v{T1}, s65, v{LIN}")
    a("s_nop 15")
    a("s_cmp_eq_u32 s54, 0")
    a("s_cbranch_scc0 Lo_send0")
    for r in range(4):
        a(f"ds_write_b128 v{T0}, {vr(ACC2+16+4*r,4)} offset:{r*1024}")
    a("s_branch Lo_sent")
    a.label("Lo_send0")
    for r in range(4):
        a(f"ds_write_b128 v{T0}, {vr(ACC2+4*r,4)} offset:{r*1024}")
    for r in range(16):
        a(f"v_mov_b32 v{ACC2+r}, v{ACC2+16+r}")
    a.label("Lo_sent")
    a("s_waitcnt lgkmcnt(0)")
    a("s_barrier")
    st.t(7)
    for r in range(4):
        a(f"ds_read_b128 {vr(OF+4*r,4)}, v{T1} offset:{r*1024}")
    a("s_lshl_b32 s64, s59, 16")
    a("s_lshl_b32 s65, s52, 10")
    a("s_add_u32 s64, s64, s65")
    a("s_lshl_b32 s65, s39, 7")
    a("s_add_u32 s64, s64, s65")
    a("s_lshl_b32 s65, s54, 6")
    a("s_add_u32 s64, s64, s65")
    a("s_waitcnt lgkmcnt(0)")
    for r in range(16):
        a(f"v_add_f32 v{ACC2+r}, v{ACC2+r}, v{OF+r}")
    for pr in range(2):
        b = ACC2 + 8*pr
        pk = WF2 + 4*pr
        for r in range(4):
            a(f"v_cvt_pk_bf16_f32 v{pk+r}, v{b+2*r}, v{b+2*r+1}")
        a("s_nop 1")
        a(f"v_permlane32_swap_b32 v{pk}, v{pk+2}")
        a(f"v_permlane32_swap_b32 v{pk+1}, v{pk+3}")
        a("s_nop 1")
        a(f"buffer_store_dwordx4 {vr(pk,4)}, v{VKN}, s[{OUT}:{OUT+3}], s64 offen offset:{pr*32} {os.environ.get('OUTF','')}")
    st.t(8)
    if st.ft: a("s_waitcnt vmcnt(0)")
    st.t(9); st.t(10)
    st(11)
    st.p(11)
    st.flush(8, 12)
    a.label("Lfa_end")
    a("s_endpgm")

def b_loads(a, LIN, QBL):
    a("s_sub_u32 s51, s3, 4")
    a("s_lshl_b32 s51, s51, 10")
    a(f"s_lshl_b32 s50, s{S_QB}, 14")
    a("s_add_u32 s50, s50, s51")
    a("s_sub_u32 s50, s50, 16384")
    for u in range(8):
        a(f"s_add_u32 m0, s51, {BKV + u*4096}")
        a(f"s_add_u32 s54, s50, {u*4096}")
        a("s_max_i32 s54, s54, 0")
        a("s_add_u32 s54, s54, s36")
        a("s_add_u32 s54, s54, 65536")
        a(f"buffer_load_dwordx4 v{LIN}, s[{WS}:{WS+3}], s54 offen sc1 lds")
    a(f"s_lshl_b32 s50, s{S_QB}, 13")
    a("s_add_u32 s50, s50, s36")
    a("s_add_u32 s50, s50, s51")
    for u in range(2):
        a(f"s_add_u32 m0, s51, {QBL + u*4096}")
        a(f"s_add_u32 s54, s50, {u*4096}")
        a(f"buffer_load_dwordx4 v{LIN}, s[{WS}:{WS+3}], s54 offen sc1 lds")

def gen_oproj(a):
    a.raw(".p2align 8")
    a.raw(".type oproj_kernel,@function")
    a.label("oproj_kernel")
    a("s_cmp_ge_u32 s2, 256")
    a("s_cbranch_scc1 Lop_end")
    st = Stamper(a, "oproj", 1, "s20")
    st()
    a("s_load_dwordx2 s[4:5], s[0:1], 16")
    a("s_load_dwordx2 s[26:27], s[0:1], 40")
    a("s_load_dwordx2 s[28:29], s[0:1], 48")
    a("s_load_dwordx2 s[30:31], s[0:1], 64")
    a("s_and_b32 s32, s2, 7")
    a("s_lshr_b32 s33, s2, 3")
    a("s_lshr_b32 s23, s32, 2")
    a("s_and_b32 s34, s32, 3")
    a("s_lshl_b32 s34, s34, 2")
    a("s_and_b32 s35, s33, 3")
    a("s_add_u32 s24, s34, s35")
    a("s_lshr_b32 s25, s33, 2")
    a("v_and_b32 v1, 63, v0")
    a("v_lshrrev_b32 v2, 6, v0")
    a("s_nop 0")
    a("v_readfirstlane_b32 s20, v2")
    a("v_lshrrev_b32 v2, 3, v1")
    a("v_lshlrev_b32 v2, 10, v2")
    a("v_bfe_u32 v3, v1, 4, 1")
    a("v_lshlrev_b32 v3, 2, v3")
    a("v_and_b32 v5, 7, v1")
    a("v_xor_b32 v3, v3, v5")
    a("v_lshlrev_b32 v3, 4, v3")
    a("v_add_u32 v4, v2, v3")
    a("v_lshlrev_b32 v5, 4, v1")
    a("s_waitcnt lgkmcnt(0)")
    a("s_cmp_eq_u32 s23, 0")
    a("s_cselect_b32 s4, s4, s26")
    a("s_cselect_b32 s5, s5, s27")
    srd(a, 8, 4, 5, 512*1024)
    a(f"s_mul_i32 s36, s23, {O_PROB}")
    a(f"s_add_u32 s36, s36, {O_BASE}")
    a("s_add_u32 s30, s30, s36")
    a("s_addc_u32 s31, s31, 0")
    srd(a, 12, 30, 31, O_PROB)
    a("s_lshl_b32 s40, s20, 13")
    a("s_lshl_b32 s36, s25, 7")
    a("s_add_u32 s40, s40, s36")
    a("s_lshl_b32 s41, s20, 10")
    OF = 64
    a("s_lshl_b32 s42, s24, 2")
    a("s_add_u32 s42, s42, s20")
    a("s_lshl_b32 s43, s42, 10")
    a("s_lshl_b32 s49, s25, 2")
    a("s_and_b32 s47, s24, 3")
    a("s_lshl_b32 s47, s47, 3")
    a("s_add_u32 s49, s49, s47")
    a("s_lshl_b32 s46, s49, 4")
    a("s_lshl_b32 s47, s20, 3")
    a("s_add_u32 s46, s46, s47")
    a("s_lshl_b32 s48, s25, 7")
    def wdma(u):
        a(f"s_add_u32 m0, s41, {u*4096}")
        a(f"s_add_u32 s44, s46, {u*32}")
        a("s_and_b32 s44, s44, 511")
        a("s_lshl_b32 s44, s44, 10")
        a("s_add_u32 s44, s44, s48")
        a("buffer_load_dwordx4 v4, s[8:11], s44 offen lds")
    def oload(H):
        a(f"s_add_u32 s44, s49, {H}")
        a("s_and_b32 s44, s44, 31")
        a("s_lshl_b32 s44, s44, 16")
        a("s_add_u32 s44, s44, s43")
        a(f"buffer_load_dwordx4 {vr(OF+4*H,4)}, v5, s[12:15], s44 offen")
    for q in range(4):
        for u in range(4): wdma(4*q+u)
        for H in range(8): oload(8*q+H)
    srd(a, 16, 28, 29, 2048*2048)
    a("v_lshrrev_b32 v2, 5, v1")
    a("v_lshlrev_b32 v3, 2, v2")
    a("v_bfe_u32 v8, v1, 2, 2")
    a("v_add_u32 v3, v3, v8")
    a("v_lshlrev_b32 v3, 7, v3")
    a("v_bfe_u32 v8, v1, 4, 1")
    a("v_lshlrev_b32 v8, 5, v8")
    a("v_add_u32 v3, v3, v8")
    a("v_and_b32 v8, 3, v1")
    a("v_lshlrev_b32 v8, 3, v8")
    a("v_add_u32 v3, v3, v8")
    a("v_bfe_u32 v8, v1, 3, 1")
    a("v_lshlrev_b32 v8, 6, v8")
    a("v_add_u32 v6, v3, v8")
    a("v_xor_b32 v8, 64, v8")
    a("v_add_u32 v7, v3, v8")
    a("v_and_b32 v8, 31, v1")
    a("v_lshlrev_b32 v8, 11, v8")
    a("v_lshlrev_b32 v9, 4, v2")
    a("v_add_u32 v8, v8, v9")
    ACC = 16
    st()
    WF = [48, 56]
    def rd(H, buf):
        for ct in range(2):
            a(f"ds_read_b64_tr_b16 {vr(WF[buf]+4*ct,2)}, v{6+ct} offset:{H*2048}")
            a(f"ds_read_b64_tr_b16 {vr(WF[buf]+4*ct+2,2)}, v{6+ct} offset:{H*2048+1024}")
    for q in range(4):
        a(f"s_waitcnt vmcnt({8 + 12*(3-q)})")
        a("s_barrier")
        rd(8*q, 0)
        for hh in range(8):
            H = 8*q + hh
            buf = hh % 2
            if hh < 7:
                rd(H+1, buf ^ 1)
                a(f"s_waitcnt vmcnt({7-hh + 12*(3-q)}) lgkmcnt(4)")
            else:
                a(f"s_waitcnt vmcnt({12*(3-q)}) lgkmcnt(0)")
            for ct in range(2):
                acc = ACC+16*ct
                mfma(a, acc, WF[buf]+4*ct, OF+4*H, "0" if H == 0 else acc)
    a("s_nop 15")
    st()
    a("s_lshl_b32 s44, s42, 16")
    a("s_lshl_b32 s45, s23, 10")
    a("s_add_u32 s44, s44, s45")
    a("s_lshl_b32 s45, s25, 7")
    a("s_add_u32 s44, s44, s45")
    for ct in range(2):
        for pr in range(2):
            b = ACC + 16*ct + 8*pr
            pk = 48 + (ct*2+pr)*4
            for r in range(4):
                a(f"v_cvt_pk_bf16_f32 v{pk+r}, v{b+2*r}, v{b+2*r+1}")
            a("s_nop 1")
            a(f"v_permlane32_swap_b32 v{pk}, v{pk+2}")
            a(f"v_permlane32_swap_b32 v{pk+1}, v{pk+3}")
            a("s_nop 1")
            a(f"buffer_store_dwordx4 {vr(pk,4)}, v8, s[16:19], s44 offen offset:{ct*64+pr*32}")
    st()
    st.flush(4)
    a.label("Lop_end")
    a("s_endpgm")

def kd(name, vgpr, sgpr=102):
    acc = (vgpr + 3)//4*4
    return f""".section .rodata,"a"
.p2align 6
.amdhsa_kernel {name}
  .amdhsa_next_free_vgpr {vgpr}
  .amdhsa_next_free_sgpr {sgpr}
  .amdhsa_accum_offset {acc}
  .amdhsa_group_segment_fixed_size 0
  .amdhsa_kernarg_size 72
  .amdhsa_user_sgpr_count 2
  .amdhsa_user_sgpr_kernarg_segment_ptr 1
  .amdhsa_system_sgpr_workgroup_id_x 1
.end_amdhsa_kernel
"""

HEADER = """; Kernarg layout for this problem (72 bytes, ptrs only, base s[0:1]):
;   offset   0: d_in[0] A_x  shape=(1, 2048, 512) dtype=bfloat16
;   offset   8: d_in[1] A_wqkv  shape=(512, 1536) dtype=bfloat16
;   offset  16: d_in[2] A_wo  shape=(512, 512) dtype=bfloat16
;   offset  24: d_in[3] B_x  shape=(1, 2048, 512) dtype=bfloat16
;   offset  32: d_in[4] B_wqkv  shape=(512, 1536) dtype=bfloat16
;   offset  40: d_in[5] B_wo  shape=(512, 512) dtype=bfloat16
;   offset  48: d_out     shape=(1, 2048, 1024) dtype=bfloat16
;   offset  56: d_debug   256 bytes
;   offset  64: d_ws      268435456 bytes workspace
;            written as MFMA-ready fragments to d_ws with write-through stores and published through per-workgroup flags
;            (flag value = per-launch nonce handed out through the zeroed d_debug word).
;            m is a stand-in (true max over the first key tile); a run-time check (row sum < 2^64) falls back to the
;   phase 4: output projections (fragments exchanged through d_ws, flags / sentinel polling).
; @launch grid=(256,1,1) block=(512,1,1) lds=163840
.amdgcn_target "amdgcn-amd-amdhsa--gfx950"
.text
.globl concat_heads__softmax_full_mha__sliding_block__prompt_kernel
"""

def main(path):
    a = Asm()
    gen_fused(a)
    txt = HEADER + a.text() + kd("concat_heads__softmax_full_mha__sliding_block__prompt_kernel", 256)
    open(path, "w").write(txt)

if __name__ == "__main__":
    main(sys.argv[1] if len(sys.argv) > 1 else f"cdna_kernels/{NAME}.s")
```

```python
import sys, os, struct

NAME = "concat_heads__softmax_full_mha__sliding_block__prompt"
STAMPS = os.environ.get("STAMPS", "")

class Asm:
    def __init__(self): self.lines = []
    def __call__(self, s): self.lines.append("  " + s)
    def label(self, s): self.lines.append(s + ":")
    def raw(self, s): self.lines.append(s)
    def text(self): return "\n".join(self.lines) + "\n"

def vr(b, n=1): return f"v{b}" if n == 1 else f"v[{b}:{b+n-1}]"
def f32bits(x): return struct.unpack("<I", struct.pack("<f", x))[0]

HEAD_STRIDE = 196608
PROB_STRIDE = 32 * HEAD_STRIDE
O_BASE = 2 * PROB_STRIDE
O_PROB = 32 * 65536
F_BASE = 16 << 20
WS_SIZE = 17 << 20
QSCALE = 0.25 * 1.4426950408889634
SPIN = 1 << 16

def srd(a, d, lo, hi, nrec):
    a(f"s_mov_b32 s{d}, s{lo}")
    a(f"s_and_b32 s{d+1}, s{hi}, 0xffff")
    a(f"s_mov_b32 s{d+2}, {nrec}")
    a(f"s_mov_b32 s{d+3}, 0x00020000")

class Stamper:
    def __init__(self, a, kname, kidx, wavereg, base=76):
        self.a=a; self.on=(STAMPS==kname or (STAMPS in ("fp","fs","fl","ft") and kname=="fa")); self.fp=(STAMPS in ("fp","fs","fl","ft")); self.ft=(STAMPS=="ft"); self.fs=(STAMPS=="fs"); self.fl=(STAMPS=="fl"); self.rt=(STAMPS=="rt"); self.n=0; self.base=base; self.wavereg=wavereg; self.kidx=kidx
        if self.rt:
            a("s_memrealtime s[76:77]"); a("s_memtime s[78:79]")
    def p(self, idx):
        if self.fp and ((not self.fs and not self.fl and not self.ft) or idx==11): self._st(idx)
    def t(self, idx):
        if self.ft: self._st(idx)
    def l(self, idx):
        if self.fl: self._st(idx)
    def ldyn(self, base, uid):
        if not self.fl: return
        a=self.a
        for j in range(4):
            a(f"s_cmp_eq_u32 s38, {j}")
            a(f"s_cbranch_scc0 Lst{uid}_{j}")
            self._st(base+j)
            a.label(f"Lst{uid}_{j}")
    def f(self, idx):
        if self.fs: self._st(idx)
    def __call__(self, idx=None):
        if STAMPS == "dbg" and self.kidx == 0:
            m = {0:0, 2:1, 5:2, 6:3, 9:4, 10:5, 11:6}
            if idx in m:
                self.a(f"s_memrealtime s[{76+2*m[idx]}:{77+2*m[idx]}]")
                self.a("s_waitcnt lgkmcnt(0)")
            return
        if not self.on: return
        if self.fp and idx not in (0,): return
        self._st(idx)
    def _st(self, idx=None):
        if idx is not None: self.n = idx
        assert self.base+2*self.n+1 < 102
        self.a(f"s_memtime s[{self.base+2*self.n}:{self.base+2*self.n+1}]")
        self.a("s_waitcnt lgkmcnt(0)")
        self.n+=1
    def flush(self, nw, n=None):
        if STAMPS == "dbg":
            a=self.a
            a("s_cmp_eq_u32 s3, 4"); a("s_cbranch_scc0 Ldbg_skip")
            a("s_cmp_eq_u32 s2, 0"); a("s_cselect_b32 s6, 4, 0")
            a("s_cmp_eq_u32 s2, 131"); a("s_cselect_b32 s6, 32, s6")
            a("s_cmp_eq_u32 s6, 0"); a("s_cbranch_scc1 Ldbg_skip")
            a("v_mov_b32 v1, s6")
            for i in range(1,7):
                a(f"s_sub_u32 s7, s{76+2*i}, s76")
                a("v_mov_b32 v2, s7")
                a(f"buffer_store_dword v2, v1, s[{DBG}:{DBG+3}], 0 offen offset:{4*(i-1)}")
            a("v_mov_b32 v2, s76")
            a(f"buffer_store_dword v2, v1, s[{DBG}:{DBG+3}], 0 offen offset:24")
            a("s_waitcnt vmcnt(0)")
            a.label("Ldbg_skip")
            return
        if not (self.on or self.rt): return
        a=self.a
        n = n or self.n
        if self.rt:
            a("s_waitcnt vmcnt(0)"); a("s_memrealtime s[80:81]"); a("s_memtime s[82:83]"); n=4
        a("s_load_dwordx2 s[4:5], s[0:1], 64")
        a("s_waitcnt vmcnt(0) lgkmcnt(0)")
        a(f"s_add_u32 s4, s4, {(64<<20) + (self.kidx<<20 if self.rt else 0)}")
        a("s_addc_u32 s5, s5, 0")
        srd(a, 8, 4, 5, 1<<20)
        a(f"s_mul_i32 s6, s2, {nw}")
        a(f"s_add_u32 s6, s6, {self.wavereg}")
        a("s_lshl_b32 s6, s6, 6")
        a("v_mov_b32 v1, s6")
        for i in range(n):
            a(f"v_mov_b32 v2, s{self.base+2*i}")
            a(f"buffer_store_dword v2, v1, s[8:11], 0 offen offset:{4*i}")
        a("s_waitcnt vmcnt(0)")

def mfma(a, d, x, y, c):
    cs = c if isinstance(c, str) else vr(c, 16)
    a(f"v_mfma_f32_32x32x16_bf16 {vr(d,16)}, {vr(x,4)}, {vr(y,4)}, {cs}")

WS, XB, WB, XA, WA, DBG = 4, 8, 12, 16, 20, 24
NONCE = 28
S_H, S_QB, S_G, S_TB = 30, 31, 32, 33
SLOT = 32768
BKV = 131072

def gen_fused(a):
    QA = [4, 8]; QB = 12
    OACC = [16, 32]
    CNEG = [48, 64]
    SB = [[80, 96], [112, 128]]
    PP = [144, 152]
    VF = [160, 168]
    KF = 176
    MHI, MLO = 212, 228
    VKA, VVA, TMP, LIN, MX, MX1 = 244, 245, 246, 247, 248, 249
    T0, T1, T2, T3 = 250, 251, 252, 253
    VKN, VVN = 254, 255
    VLO = 3
    XCH = 98304
    QBL = 122880
    FA, FB = F_BASE, F_BASE + 65536
    PUB = int(os.environ.get("PUB", "9"))
    FO = F_BASE + 131072
    WOA, WOB, OUT = 8, 12, 16

    a.raw(".p2align 8")
    a.raw(".type concat_heads__softmax_full_mha__sliding_block__prompt_kernel,@function")
    a.label("concat_heads__softmax_full_mha__sliding_block__prompt_kernel")
    a("s_cmp_ge_u32 s2, 256")
    a("s_cbranch_scc1 Lfa_end")
    st = Stamper(a, "fa", 0, "s3")
    st(0)
    a("s_load_dwordx4 s[36:39], s[0:1], 0")
    a("s_load_dwordx2 s[34:35], s[0:1], 24")
    a("s_load_dwordx2 s[42:43], s[0:1], 32")
    a("s_load_dwordx4 s[44:47], s[0:1], 56")
    a("v_and_b32 v1, 63, v0")
    a("v_lshrrev_b32 v2, 6, v0")
    a(f"s_and_b32 s{S_H}, s2, 31")
    a("v_readfirstlane_b32 s3, v2")
    a(f"s_lshr_b32 s{S_QB}, s2, 5")
    a("s_lshr_b32 s48, s2, 3")
    a("s_and_b32 s49, s2, 1")
    a("s_lshl_b32 s49, s49, 2")
    a("s_and_b32 s50, s48, 3")
    a(f"s_add_u32 s{S_G}, s49, s50")
    a("s_bfe_u32 s49, s2, 0x20001")
    a("s_lshl_b32 s49, s49, 3")
    a("s_lshr_b32 s50, s48, 2")
    a(f"s_add_u32 s{S_TB}, s49, s50")
    a(f"s_and_b32 s29, s{S_G}, 3")
    a("s_lshl_b32 s29, s29, 1")
    a(f"s_add_u32 s29, s29, s{S_TB}")
    a("s_and_b32 s29, s29, 7")
    a("s_cmp_lt_u32 s3, 4")
    a("s_cbranch_scc1 Lfa_compute")

    def early_setup():
        a(f"v_lshlrev_b32 v{LIN}, 4, v1")
        a(f"v_lshrrev_b32 v{T0}, 5, v1")
        a(f"v_lshlrev_b32 v{VLO}, 8, v{T0}")
        a(f"v_and_b32 v{T1}, 15, v1")
        a(f"v_lshlrev_b32 v{T1}, 4, v{T1}")
        a(f"v_add_u32 v{VLO}, v{VLO}, v{T1}")
        a(f"v_add_u32 v{VLO}, 1024, v{VLO}")
        a(f"v_and_b32 v{T1}, 27, v1")
        a(f"v_cmp_eq_u32 vcc, 16, v{T1}")
        a(f"v_mov_b32 v{T2}, 0x3f803f80")
        a(f"v_mov_b32 v{T3}, 0")
        a("s_nop 0")
        for r in range(16):
            a(f"v_cndmask_b32 v{VF[0]+r}, v{T3}, v{T2}, vcc")
        a(f"v_and_b32 v{T1}, 31, v1")
        a(f"v_lshlrev_b32 v{T0}, 2, v{T0}")
        a(f"v_sub_u32 v{T1}, v{T1}, v{T0}")
        a(f"v_mov_b32 v{T2}, 0xff800000")
        for r in range(16):
            cr = 8*(r//4) + r % 4
            a(f"v_cmp_le_i32 s[{62+2*(r%4)}:{63+2*(r%4)}], {cr}, v{T1}")
            if r % 4 == 3:
                a("s_nop 1")
                for q in range(r-3, r+1):
                    a(f"v_cndmask_b32 v{MHI+q}, v{T2}, v{T3}, s[{62+2*(q%4)}:{63+2*(q%4)}]")
                    a(f"v_cndmask_b32 v{MLO+q}, v{T3}, v{T2}, s[{62+2*(q%4)}:{63+2*(q%4)}]")
        a("s_lshr_b32 s70, s3, 2")
        a("s_lshl_b32 s71, s70, 14")
        a(f"s_add_u32 s72, s71, {BKV}")
        a(f"v_add_u32 v{VKN}, s71, v{LIN}")
        a(f"v_add_u32 v{VVN}, s71, v{VLO}")
        a(f"v_add_u32 v{VKA}, s72, v{LIN}")
        a(f"v_add_u32 v{VVA}, s72, v{VLO}")
        a("s_mov_b32 s73, 0")
        a("s_mov_b32 s40, 0x0000ffff")
        a("s_mov_b32 s41, 0x0000ffff")

    a("s_sub_u32 s48, s3, 4")
    if os.environ.get("LPRIO", "0") == "1": a("s_setprio 3")
    a("v_lshrrev_b32 v2, 3, v1")
    a("v_lshlrev_b32 v2, 10, v2")
    a("v_and_b32 v3, 7, v1")
    a("v_lshrrev_b32 v6, 4, v1")
    a("v_xor_b32 v3, v3, v6")
    a("v_lshlrev_b32 v3, 4, v3")
    a("v_add_u32 v4, v2, v3")
    a("v_xor_b32 v5, 64, v4")
    a(f"s_lshl_b32 s50, s{S_TB}, 6")
    a("s_lshl_b32 s49, s48, 4")
    a("s_add_u32 s50, s50, s49")
    a("s_lshl_b32 s50, s50, 10")
    a("s_lshl_b32 s51, s48, 11")
    a("s_mul_i32 s52, s48, 49152")
    a(f"s_lshl_b32 s49, s{S_G}, 7")
    a("s_add_u32 s52, s52, s49")
    a("s_mul_i32 s53, s48, 6144")
    a("s_add_u32 s53, s53, 8192")
    a("s_movk_i32 s49, 171")
    a("s_movk_i32 s55, 3072")
    for v in range(3):
        a(f"v_add_u32 v2, {64*v}, v1")
        a("v_mul_lo_u32 v3, v2, s49")
        a("v_lshrrev_b32 v3, 12, v3")
        a("v_mul_u32_u24 v9, 24, v3")
        a("v_sub_u32 v9, v2, v9")
        a("v_bfe_u32 v10, v3, 1, 1")
        a("v_lshlrev_b32 v10, 2, v10")
        a("v_xor_b32 v9, v9, v10")
        a("v_mul_lo_u32 v3, v3, s55")
        a("v_lshrrev_b32 v10, 3, v9")
        a("v_lshlrev_b32 v10, 10, v10")
        a("v_add_u32 v3, v3, v10")
        a("v_and_b32 v9, 7, v9")
        a("v_lshlrev_b32 v9, 4, v9")
        a(f"v_add_u32 v{6+v}, v3, v9")
    a("s_waitcnt lgkmcnt(0)")
    srd(a, XA, 36, 37, 2048*1024)
    srd(a, WA, 38, 39, 512*3072)
    def dma_chunk(i, ldsbase=None):
        c = i % 8
        base = (i % 4)*SLOT if ldsbase is None else ldsbase
        xs, wsr = (XA, WA) if i < 8 else (XB, WB)
        a(f"s_add_u32 s58, s29, {c}")
        a("s_and_b32 s58, s58, 7")
        a("s_lshl_b32 s59, s58, 7")
        a("s_add_u32 s59, s59, s50")
        a(f"s_mul_i32 s58, s58, {64*3072}")
        a("s_add_u32 s58, s58, s52")
        for u in range(2):
            a(f"s_add_u32 m0, s51, {base + u*1024}")
            a(f"s_add_u32 s54, s59, {u*8192}")
            a(f"buffer_load_dwordx4 v{4 + u}, s[{xs}:{xs+3}], s54 offen lds")
        for u in range(6):
            up, v = divmod(u, 3)
            a(f"s_add_u32 m0, s53, {base + u*1024}")
            a(f"s_add_u32 s54, s58, {8*up*3072}")
            a(f"buffer_load_dwordx4 v{6 + v}, s[{wsr}:{wsr+3}], s54 offen lds")
    dma_chunk(0)
    dma_chunk(1)
    srd(a, XB, 34, 35, 2048*1024)
    srd(a, WB, 42, 43, 512*3072)
    srd(a, WS, 46, 47, WS_SIZE)
    srd(a, DBG, 44, 45, 256)
    a("s_cmp_eq_u32 s2, 0")
    a("s_cselect_b32 s49, s48, 1")
    a("s_cmp_eq_u32 s49, 0")
    a("s_cbranch_scc0 Lfa_nononce")
    a("s_memrealtime s[56:57]")
    a("s_waitcnt lgkmcnt(0)")
    a("s_or_b32 s56, s56, 1")
    a("v_mov_b32 v10, s56")
    a("v_mov_b32 v11, 0")
    a(f"buffer_store_dword v10, v11, s[{DBG}:{DBG+3}], 0 offen sc1")
    a.label("Lfa_nononce")
    NCHK = 3
    C8AT = int(os.environ.get("C8AT", "-1"))
    if C8AT < 0:
        dma_chunk(8, BKV)
    early_setup()
    a(f"s_lshr_b32 s56, s{S_H}, 2")
    a("s_lshl_b32 s56, s56, 12")
    a(f"s_add_u32 s56, s56, {FA}")
    a("v_and_b32 v12, 31, v1")
    a("v_lshlrev_b32 v12, 7, v12")
    a("v_add_u32 v12, s56, v12")
    a(f"s_lshl_b32 s56, s{S_G}, 5")
    a(f"s_add_u32 s56, s56, s{S_TB}")
    a("s_lshl_b32 s74, s56, 7")
    a("v_and_b32 v2, 7, v1")
    a(f"s_lshl_b32 s49, s{S_QB}, 2")
    a("s_sub_u32 s49, s49, 4")
    a("v_add_u32 v2, s49, v2")
    a("v_max_i32 v2, 0, v2")
    a(f"s_lshr_b32 s49, s{S_H}, 2")
    a("s_lshl_b32 s49, s49, 5")
    a("v_add_u32 v2, s49, v2")
    a("v_lshlrev_b32 v2, 7, v2")
    a(f"v_add_u32 v2, {FB}, v2")
    a("v_mov_b32 v11, 0")
    st(1)
    def write_flag(base):
        a(f"s_add_u32 s56, s74, {base}")
        a("v_mov_b32 v14, s56")
        a(f"v_mov_b32 v15, s{NONCE}")
        a("s_mov_b64 exec, 1")
        a(f"buffer_store_dword v15, v14, s[{WS}:{WS+3}], 0 offen sc1")
        a("s_mov_b64 exec, -1")
    def a_loads():
        a(f"s_mul_i32 s64, s{S_H}, {HEAD_STRIDE}")
        a("s_lshl_b32 s65, s48, 10")
        a("s_add_u32 s64, s64, s65")
        for u in range(8):
            a(f"s_add_u32 m0, s65, {BKV + (u&3)*4096 + (u>>2)*16384}")
            a(f"s_add_u32 s66, s64, {65536 + (u&3)*4096 + (u>>2)*65536}")
            a(f"buffer_load_dwordx4 v{LIN}, s[{WS}:{WS+3}], s66 offen sc1 lds")
        a(f"s_lshl_b32 s67, s{S_QB}, 13")
        a("s_add_u32 s67, s67, s64")
        for u in range(2):
            a(f"s_add_u32 m0, s65, {32768 + u*4096}")
            a(f"s_add_u32 s66, s67, {u*4096}")
            a(f"buffer_load_dwordx4 v{LIN}, s[{WS}:{WS+3}], s66 offen sc1 lds")
        for u in range(8):
            a(f"s_add_u32 m0, s65, {(u&3)*4096 + (u>>2)*16384}")
            a(f"s_add_u32 s66, s64, {65536 + 16384 + (u&3)*4096 + (u>>2)*65536}")
            a(f"buffer_load_dwordx4 v{LIN}, s[{WS}:{WS+3}], s66 offen sc1 lds")
    order = ["c0"]*8 + ["c1"]*8
    if C8AT < 0: order += ["c8"]*8
    waits = {}
    for i in range(16):
        last = max(k for k, t in enumerate(order) if t == f"c{i}")
        if i == NCHK: last = max(last, max(k for k, t in enumerate(order) if t == "nonce"))
        waits[i] = len(order) - 1 - last
        if i == 0: order += ["nonce"]
        if C8AT == i: order += ["c8"]*8
        if i + 2 <= 15 and i + 2 != 8: order += [f"c{i+2}"]*8
        pass
    for i in range(16):
        w = waits[i]
        if i == 15:
            a("s_cmp_eq_u32 s48, 0")
            a("s_cbranch_scc0 Lfa_w15")
            a(f"s_waitcnt vmcnt({w+1})")
            a("s_branch Lfa_w15d")
            a.label("Lfa_w15")
            a(f"s_waitcnt vmcnt({w})")
            a.label("Lfa_w15d")
        else:
            a(f"s_waitcnt vmcnt({w})")
        if i == NCHK:
            a(f"s_mov_b32 s55, {SPIN}")
            a.label("Lfa_nspin")
            a(f"v_readfirstlane_b32 s{NONCE}, v10")
            a("s_nop 3")
            a(f"s_cmp_lg_u32 s{NONCE}, 0")
            a("s_cbranch_scc1 Lfa_ngot")
            a("s_sleep 1")
            a(f"buffer_load_dword v10, v11, s[{DBG}:{DBG+3}], 0 offen sc1")
            a("s_waitcnt vmcnt(0)")
            a("s_sub_u32 s55, s55, 1")
            a("s_cmp_lg_u32 s55, 0")
            a("s_cbranch_scc1 Lfa_nspin")
            a.label("Lfa_ngot")
        a("s_barrier")
        if i in (0,1,2,4,6,8,10,12,14,15): st.p({0:1,1:2,2:3,4:4,6:5,8:6,10:7,12:8,14:9,15:10}[i])
        if i == 0:
            a(f"buffer_load_dword v10, v11, s[{DBG}:{DBG+3}], 0 offen sc1")
        if C8AT == i:
            dma_chunk(8, BKV)
        if i + 2 <= 15 and i + 2 != 8:
            dma_chunk(i + 2)
        if i == PUB + 1:
            a("s_cmp_eq_u32 s48, 0")
            a("s_cbranch_scc0 Lfa_nf")
            write_flag(FA)
            a.label("Lfa_nf")
        if i == 13:
            a("s_cmp_eq_u32 s48, 0")
            a("s_cbranch_scc0 Lfa_np13")
            a(f"buffer_load_dword v13, v12, s[{WS}:{WS+3}], 0 offen sc1")
            a.label("Lfa_np13")
        if i == 14:
            a("s_cmp_eq_u32 s48, 0")
            a("s_cbranch_scc0 Lfa_np14")
            a("v_mov_b32 v14, 49152")
            a("v_mov_b32 v16, 0")
            a("ds_write_b32 v14, v16")
            a("s_waitcnt lgkmcnt(0)")
            a.label("Lfa_np14")
    st(2)
    a(f"s_mov_b32 s55, {SPIN}")
    a("v_mov_b32 v14, 49152")
    a("s_cmp_eq_u32 s48, 0")
    a("s_cbranch_scc0 Lfa_lspin")
    a.label("Lfa_aspin")
    a("s_waitcnt vmcnt(0)")
    a(f"v_cmp_eq_u32 vcc, s{NONCE}, v13")
    a("s_nop 4")
    a("s_cmp_eq_u64 vcc, -1")
    a("s_cbranch_scc1 Lfa_aok")
    a("s_sleep 2")
    a(f"buffer_load_dword v13, v12, s[{WS}:{WS+3}], 0 offen sc1")
    a("s_sub_u32 s55, s55, 1")
    a("s_cmp_lg_u32 s55, 0")
    a("s_cbranch_scc1 Lfa_aspin")
    a("s_waitcnt vmcnt(0)")
    a.label("Lfa_aok")
    a("v_mov_b32 v16, 1")
    a("ds_write_b32 v14, v16")
    a("s_branch Lfa_agot")
    a.label("Lfa_lspin")
    a(f"s_mov_b32 s55, {SPIN*8}")
    a.label("Lfa_lspin2")
    a("ds_read_b32 v16, v14")
    a("s_waitcnt lgkmcnt(0)")
    a("v_readfirstlane_b32 s56, v16")
    a("s_nop 3")
    a("s_cmp_lg_u32 s56, 0")
    a("s_cbranch_scc1 Lfa_agot")
    a("s_sleep 1")
    a("s_sub_u32 s55, s55, 1")
    a("s_cmp_lg_u32 s55, 0")
    a("s_cbranch_scc1 Lfa_lspin2")
    a.label("Lfa_agot")
    a_loads()
    st(3)
    a("s_branch Lfa_attn")

    a.label("Lfa_compute")
    a("s_lshr_b32 s48, s3, 1")
    a("s_and_b32 s49, s3, 1")
    a("v_and_b32 v2, 31, v1")
    a("v_lshrrev_b32 v3, 5, v1")
    a("v_bfe_u32 v9, v2, 1, 3")
    a("v_xor_b32 v9, v9, v3")
    a("s_lshl_b32 s50, s48, 12")
    a("v_lshlrev_b32 v18, 7, v2")
    a("v_add_u32 v18, s50, v18")
    for s in range(4):
        a(f"v_xor_b32 v19, {2*s}, v9")
        a("v_lshlrev_b32 v19, 4, v19")
        a(f"v_add_u32 v{10+s}, v18, v19")
        a(f"v_add_u32 v{14+s}, 0x10000, v{10+s}")
    a("v_lshlrev_b32 v24, 3, v3")
    a("v_bfe_u32 v25, v1, 2, 2")
    a("v_add_u32 v24, v24, v25")
    a("s_movk_i32 s50, 384")
    a("v_mul_lo_u32 v24, v24, s50")
    a("v_bfe_u32 v25, v1, 4, 1")
    a("v_lshlrev_b32 v25, 5, v25")
    a("v_add_u32 v24, v24, v25")
    a("v_and_b32 v25, 3, v1")
    a("v_lshlrev_b32 v25, 3, v25")
    a("v_add_u32 v24, v24, v25")
    a("v_add_u32 v24, 8192, v24")
    a("v_bfe_u32 v25, v1, 3, 1")
    a("s_mul_i32 s50, s49, 3")
    for ct in range(3):
        a(f"s_add_u32 s51, s50, {ct}")
        a("v_xor_b32 v26, s51, v25")
        a("v_lshlrev_b32 v26, 6, v26")
        a(f"v_add_u32 v{18+ct}, v24, v26")
        a(f"v_add_u32 v{21+ct}, 0x10000, v{18+ct}")
    a("v_lshlrev_b32 v24, 4, v1")
    a("v_bfe_u32 v25, v1, 4, 1")
    a(f"s_mov_b32 s50, {HEAD_STRIDE}")
    a("v_mul_lo_u32 v25, v25, s50")
    a("v_lshlrev_b32 v26, 8, v3")
    a("v_add_u32 v25, v25, v26")
    a("v_and_b32 v26, 15, v1")
    a("v_lshlrev_b32 v26, 4, v26")
    a("v_add_u32 v25, v25, v26")
    a(f"s_mul_i32 s52, s{S_G}, {4*HEAD_STRIDE}")
    a(f"s_lshl_b32 s53, s{S_TB}, 1")
    a("s_add_u32 s53, s53, s48")
    a("s_lshl_b32 s54, s53, 11")
    a("s_add_u32 s54, s54, 65536")
    a("s_lshl_b32 s53, s53, 10")
    a(f"s_mov_b32 s55, {f32bits(QSCALE):#x}")
    ACC = 64
    for r in range(48): a(f"v_mov_b32 v{ACC+r}, 0")
    early_setup()
    a("s_waitcnt lgkmcnt(0)")
    srd(a, WS, 46, 47, WS_SIZE)
    TLBW = int(os.environ.get("TLBW", "0"))
    if TLBW:
        if TLBW < 3:
            a("s_lshr_b32 s80, s2, 3" if TLBW == 1 else "s_bfe_u32 s80, s2, 0x30003")
            a("s_cmp_eq_u32 s80, 0")
            a("s_cbranch_scc0 Lfa_ntlb")
        a("v_lshlrev_b32 v129, 20, v1")
        a("s_cmp_eq_u32 s3, 0")
        a("s_cbranch_scc0 Lfa_tlb1")
        a(f"buffer_load_dword v131, v129, s[{WS}:{WS+3}], 0 offen")
        a("s_branch Lfa_ntlb")
        a.label("Lfa_tlb1")
        a("s_load_dwordx2 s[80:81], s[0:1], 48")
        a("s_load_dwordx2 s[82:83], s[0:1], 16")
        a("s_load_dwordx2 s[84:85], s[0:1], 40")
        a("s_waitcnt lgkmcnt(0)")
        a("s_cmp_eq_u32 s3, 1")
        a("s_cselect_b32 s86, s80, s82")
        a("s_cselect_b32 s87, s81, s83")
        a("s_cmp_eq_u32 s3, 3")
        a("s_cselect_b32 s86, s84, s86")
        a("s_cselect_b32 s87, s85, s87")
        a("s_mov_b32 s88, s86")
        a("s_and_b32 s89, s87, 0xffff")
        a("s_cmp_eq_u32 s3, 1")
        a(f"s_mov_b32 s90, {512*1024}")
        a(f"s_cselect_b32 s90, {2048*2048}, s90")
        a("s_mov_b32 s91, 0x00020000")
        a("buffer_load_dword v131, v129, s[88:91], 0 offen")
        a.label("Lfa_ntlb")
    if os.environ.get("XTOUCH", "0") == "1":
        a("s_cmp_eq_u32 s3, 3")
        a("s_cbranch_scc0 Lfa_nxt")
        srd(a, XB, 34, 35, 2048*1024)
        a("v_lshrrev_b32 v129, 3, v1")
        a("v_lshlrev_b32 v129, 10, v129")
        a("v_and_b32 v130, 7, v1")
        a("v_lshlrev_b32 v130, 7, v130")
        a("v_add_u32 v129, v129, v130")
        a(f"s_lshl_b32 s60, s{S_TB}, 16")
        a(f"s_and_b32 s61, s{S_G}, 3")
        a("s_lshl_b32 s61, s61, 14")
        a("s_add_u32 s60, s60, s61")
        a("s_add_u32 s61, s60, 8192")
        a(f"buffer_load_dword v131, v129, s[{XB}:{XB+3}], s60 offen")
        a(f"buffer_load_dword v132, v129, s[{XB}:{XB+3}], s61 offen")
        a.label("Lfa_nxt")
    XF = [28, 32]; WF = [36, 48]; PK = 112
    def read_frags(slot, s, buf):
        xr = (10 if slot < 2 else 14) + s
        a(f"ds_read_b128 {vr(XF[buf],4)}, v{xr} offset:{(slot%2)*SLOT}")
        for ct in range(3):
            reg = (18 if slot < 2 else 21) + ct
            off = (slot % 2) * SLOT + s * 6144
            a(f"ds_read_b64_tr_b16 {vr(WF[buf]+4*ct,2)}, v{reg} offset:{off}")
            a(f"ds_read_b64_tr_b16 {vr(WF[buf]+4*ct+2,2)}, v{reg} offset:{off+1536}")
    def body(types, tag):
        L = f"Lpj{tag}"
        st(1)
        a("s_mov_b32 s57, 0")
        a.label(L + "_loop")
        for slot in range(4):
            a("s_barrier")
            if slot == 0:
                a("s_cmp_eq_u32 s57, 2")
                a(f"s_cselect_b32 s58, {BKV}, 0")
                for r in (10, 11, 12, 13, 18, 19, 20):
                    a(f"v_add_u32 v{r}, s58, v{r}")
            if slot == PUB % 4:
                a(f"s_cmp_eq_u32 s57, {PUB // 4}")
                a(f"s_cbranch_scc0 {L}_np")
                a("s_waitcnt vmcnt(0)")
                a.label(L + "_np")
            read_frags(slot, 0, 0)
            for s in range(4):
                buf = s % 2
                if s < 3:
                    read_frags(slot, s+1, buf ^ 1)
                    a("s_waitcnt lgkmcnt(7)")
                else:
                    a("s_waitcnt lgkmcnt(0)")
                for ct in range(3):
                    acc = ACC + ct*16
                    if types[ct] == 'V':
                        mfma(a, acc, XF[buf], WF[buf]+4*ct, acc)
                    else:
                        mfma(a, acc, WF[buf]+4*ct, XF[buf], acc)
            if slot == 0:
                for r in (10, 11, 12, 13, 18, 19, 20):
                    a(f"v_subrev_u32 v{r}, s58, v{r}")
        a("s_add_u32 s57, s57, 1")
        a("s_bitcmp1_b32 s57, 0")
        a(f"s_cbranch_scc1 {L}_loop")
        a("s_nop 15")
        n = 0
        for ct in range(3):
            acc = ACC + ct*16
            c = tag*3 + ct
            ty = types[ct]
            for e in range(2):
                pk = PK + (n % 4)*4; n += 1
                if ty == 'Q':
                    for r in range(8):
                        a(f"v_mul_f32 v{acc+8*e+r}, s55, v{acc+8*e+r}")
                for r in range(4):
                    a(f"v_cvt_pk_bf16_f32 v{pk+r}, v{acc+2*r+8*e}, v{acc+8*e+2*r+1}")
                if ty == 'Q':
                    a(f"s_add_u32 s59, s52, {(2*(c%2)+e)*HEAD_STRIDE}")
                    a("s_add_u32 s59, s59, s53")
                    a(f"buffer_store_dwordx4 {vr(pk,4)}, v24, s[{WS}:{WS+3}], s59 offen sc1")
                elif ty == 'K':
                    a(f"s_add_u32 s59, s52, {(2*(c%2)+e)*HEAD_STRIDE}")
                    a("s_add_u32 s59, s59, s54")
                    a(f"buffer_store_dwordx4 {vr(pk,4)}, v24, s[{WS}:{WS+3}], s59 offen sc1")
                else:
                    a(f"s_add_u32 s59, s52, {(2*(c%2))*HEAD_STRIDE + 1024 + 512*e}")
                    a("s_add_u32 s59, s59, s54")
                    a(f"buffer_store_dwordx4 {vr(pk,4)}, v25, s[{WS}:{WS+3}], s59 offen sc1")
        for r in range(48): a(f"v_mov_b32 v{ACC+r}, 0")
        a(f"s_add_u32 s52, s52, {PROB_STRIDE}")
        a("s_cmp_lt_u32 s57, 4")
        a(f"s_cbranch_scc1 {L}_loop")
        st(2); st(3)
        a("s_branch Lfa_attn")
    a("s_cmp_eq_u32 s49, 0")
    a("s_cbranch_scc0 Lfa_wn1")
    body(['Q', 'Q', 'K'], 0)
    a.label("Lfa_wn1")
    body(['K', 'V', 'V'], 1)

    a.label("Lfa_attn")
    if os.environ.get("LPRIO", "0") == "1": a("s_setprio 0")
    a("s_and_b32 s64, s3, 3")
    a("s_lshl_b32 s64, s64, 11")
    a(f"s_add_u32 s64, s64, 32768")
    a(f"v_add_u32 v{T0}, s64, v{LIN}")
    a(f"v_add_u32 v{T1}, {BKV}, v{LIN}")
    a(f"s_mul_i32 s62, s{S_H}, {HEAD_STRIDE}")
    a("s_lshl_b32 s63, s3, 10")
    a("s_add_u32 s62, s62, s63")
    WOV = 0
    a("v_lshrrev_b32 v0, 3, v1")
    a("v_lshlrev_b32 v0, 10, v0")
    a(f"v_bfe_u32 v{T2}, v1, 4, 1")
    a(f"v_lshlrev_b32 v{T2}, 2, v{T2}")
    a(f"v_and_b32 v{T3}, 7, v1")
    a(f"v_xor_b32 v{T2}, v{T2}, v{T3}")
    a(f"v_lshlrev_b32 v{T2}, 4, v{T2}")
    a(f"v_add_u32 v0, v0, v{T2}")
    a(f"s_lshl_b32 s34, s{S_QB}, 3")
    a("s_add_u32 s34, s34, s3")
    a("s_min_u32 s35, s34, 8")
    a(f"s_mul_i32 s36, s{S_H}, {HEAD_STRIDE}")
    a(f"s_add_u32 s36, s36, {PROB_STRIDE}")
    a("s_load_dwordx2 s[44:45], s[0:1], 16")
    a("s_load_dwordx4 s[48:51], s[0:1], 40")
    a("s_bfe_u32 s75, s2, 0x20001")
    a("s_and_b32 s52, s2, 1")
    a("s_lshl_b32 s52, s52, 2")
    a("s_bfe_u32 s53, s2, 0x20003")
    a("s_add_u32 s39, s52, s53")
    a("s_lshl_b32 s42, s3, 13")
    a("s_lshl_b32 s52, s39, 7")
    a("s_add_u32 s42, s42, s52")
    a("s_waitcnt lgkmcnt(0)")
    srd(a, WOA, 44, 45, 512*1024)
    srd(a, WOB, 48, 49, 512*1024)
    srd(a, OUT, 50, 51, 2048*2048)
    st(4)
    st.l(1)
    a("s_waitcnt vmcnt(8)")
    a("s_barrier")
    st(5)
    st.l(2)
    a(f"ds_read_b128 {vr(QA[0],4)}, v{T0}")
    a(f"ds_read_b128 {vr(QA[1],4)}, v{T0} offset:1024")
    a(f"ds_read_b128 {vr(KF,4)}, v{T1}")
    a("s_waitcnt lgkmcnt(0)")
    mfma(a, SB[0][0], KF, QA[0], "0")
    mfma(a, SB[1][0], KF, QA[1], "0")
    a("s_cmp_eq_u32 s3, 4")
    a("s_cbranch_scc0 La_nnw")
    a(f"v_mov_b32 v{T0}, {XCH + 512}")
    a(f"v_mov_b32 v{T1}, s{NONCE}")
    a(f"ds_write_b32 v{T0}, v{T1}")
    a("s_waitcnt lgkmcnt(0)")
    a.label("La_nnw")
    for q in range(2):
        for r in range(16):
            a(f"v_mov_b32 v{OACC[q]+r}, 0") if r < 6 else None
    for q, m in ((0, MX), (1, MX1)):
        s = SB[q][0]
        a(f"v_max_f32 v{m}, v{s}, v{s+1}")
        for r in range(1, 8):
            a(f"v_max3_f32 v{m}, v{s+2*r}, v{s+2*r+1}, v{m}")
    def halves_max(m, t):
        a(f"v_mov_b32 v{t}, v{m}")
        a("s_nop 1")
        a(f"v_permlane32_swap_b32 v{m}, v{t}")
        a("s_nop 1")
        a(f"v_max_f32 v{m}, v{m}, v{t}")
    def read_v(buf, areg, off):
        a("s_mov_b64 exec, s[40:41]")
        a(f"ds_read_b128 {vr(buf,4)}, v{areg} offset:{off}")
        a(f"ds_read_b128 {vr(buf+4,4)}, v{areg} offset:{off+512}")
        a("s_mov_b64 exec, -1")
    def step(cur, p, o, early, qk, pre_pv0, mid, pre_pv1, vb):
        E = lambda i: a(f"v_exp_f32 v{cur+i}, v{cur+i}")
        C = lambda j: a(f"v_cvt_pk_bf16_f32 v{p+j}, v{cur+2*j}, v{cur+2*j+1}")
        E(0); E(1)
        early()
        E(2); E(3); C(0); E(4); C(1); E(5)
        qk()
        E(6); E(7); C(2); E(8); C(3); E(9); E(10)
        pre_pv0()
        mfma(a, o, vb, p, o)
        E(11); C(4); E(12); C(5); E(13); E(14); E(15); C(6); C(7)
        mid()
        pre_pv1()
        mfma(a, o, vb+4, p+4, o)
    nop = lambda: None
    a.label("La_main")
    a(f"ds_read_b128 {vr(KF,4)}, v{VKA}")
    read_v(VF[0], VVA, 0)
    a(f"ds_read_b128 {vr(KF+4,4)}, v{VKA} offset:2048")
    halves_max(MX, TMP)
    halves_max(MX1, TMP)
    for q, m in ((0, MX), (1, MX1)):
        for r in range(16):
            a(f"v_sub_f32 v{CNEG[q]+r}, 0, v{m}")
    a("s_waitcnt lgkmcnt(3)")
    mfma(a, SB[0][0], KF, QA[0], CNEG[0])
    mfma(a, SB[1][0], KF, QA[1], CNEG[1])
    U = 8
    SCHED = 1
    def kv_dma(j):
        for u in range(4):
            a(f"s_add_u32 m0, s63, {(j-1)*32768 + (u&1)*8192 + (u>>1)*16384}")
            a(f"s_add_u32 s66, s62, {65536 + j*16384 + (u&1)*8192 + (u>>1)*65536}")
            a(f"buffer_load_dwordx4 v{LIN}, s[{WS}:{WS+3}], s66 offen sc1 lds")
    def wo_dma(srdr, half, ldsbase):
        for u in range(4):
            a(f"s_add_u32 m0, s63, {ldsbase + u*8192}")
            a(f"s_add_u32 s66, s42, {(256*half + 64*u)*1024}")
            a(f"buffer_load_dwordx4 v{WOV}, s[{srdr}:{srdr+3}], s66 offen lds")
    def tile_pair(n, kread, vread, last=False, first=False):
        vb = VF[n % 2]
        for q in range(2):
            cur, nxt = SB[q][n % 2], SB[q][(n+1) % 2]
            p = PP[q]
            E = lambda i: a(f"v_exp_f32 v{cur+i}, v{cur+i}")
            C = lambda j: a(f"v_cvt_pk_bf16_f32 v{p+j}, v{cur+2*j}, v{cur+2*j+1}")
            pq = 1 - q
            pvb = VF[n % 2] if q == 1 else VF[(n+1) % 2]
            E(0); E(1)
            if not (first and q == 0):
                mfma(a, OACC[pq], pvb+4, PP[pq]+4, OACC[pq])
            E(2); E(3); E(4); C(0); E(5); C(1)
            if q == 0: a("s_waitcnt lgkmcnt(0)")
            if not last:
                mfma(a, nxt, KF+4*((n+1) % 2), QA[q], CNEG[q])
            if q == 1: kread(KF+4*(n % 2))
            E(6); E(7); E(8); C(2); E(9); C(3); E(10); E(11)
            mfma(a, OACC[q], vb, p, "0" if first else OACC[q])
            E(12); C(4); E(13); C(5); E(14); E(15)
            if q == 0: vread(VF[(n+1) % 2])
            C(6); C(7)
    a("s_cmp_lg_u32 s73, 0")
    a("s_cbranch_scc1 La_rolled")
    KA3, VA3 = 184, 185
    a(f"v_add_u32 v{KA3}, 0x10000, v{VKN}")
    a(f"v_add_u32 v{VA3}, 0x10000, v{VVN}")
    a("s_nop 7")
    def addr(t, kreg0, kreg1, kreg3):
        j, n = divmod(t, 8)
        if j == 0: return kreg0, n*2048
        if j == 3: return kreg3, n*2048
        return kreg1, (j-1)*32768 + n*2048
    a.raw(".p2align 6")
    for t in range(32):
        j, n = divmod(t, 8)
        if n == 0: st.l(3 + j)
        if t == 14 and os.environ.get("WOT", "0") == "1":
            a(f"v_lshlrev_b32 v186, 10, v1")
            a("s_lshl_b32 s64, s3, 16")
            a("s_lshl_b32 s65, s39, 7")
            a("s_add_u32 s64, s64, s65")
            a(f"buffer_load_dword v187, v186, s[{WOA}:{WOA+3}], s64 offen")
            a(f"buffer_load_dword v188, v186, s[{WOB}:{WOB+3}], s64 offen")
        if t == 17:
            a("s_cmp_lt_u32 s3, 4")
            a("s_cbranch_scc1 La_s17")
            a(f"buffer_load_dword v{T2}, v2, s[{WS}:{WS+3}], 0 offen sc1")
            a.label("La_s17")
        if t == 25:
            a("s_cmp_lt_u32 s3, 4")
            a("s_cbranch_scc1 La_s25")
            a(f"s_mov_b32 s67, {SPIN}")
            a.label("La_bspin")
            a("s_waitcnt vmcnt(0)")
            a(f"v_cmp_eq_u32 vcc, s{NONCE}, v{T2}")
            a("s_nop 4")
            a("s_cmp_eq_u64 vcc, -1")
            a("s_cbranch_scc1 La_bgot")
            a("s_sleep 1")
            a(f"buffer_load_dword v{T2}, v2, s[{WS}:{WS+3}], 0 offen sc1")
            a("s_sub_u32 s67, s67, 1")
            a("s_cmp_lg_u32 s67, 0")
            a("s_cbranch_scc1 La_bspin")
            a("s_waitcnt vmcnt(0)")
            a.label("La_bgot")
            b_loads(a, LIN, QBL)
            a.label("La_s25")
        if t == 27:
            wo_dma(WOA, 0, 0)
        if n == 5 and j < 3:
            a(f"s_waitcnt vmcnt({[0, 0, 2 if os.environ.get('WOT', '0') == '1' else 1][j]})")
            a("s_barrier")
            if j < 2: kv_dma(2 + j)
            if j == 0:
                a(f"v_mov_b32 v{T0}, {XCH + 512}")
                a(f"ds_read_b32 v{T0}, v{T0}")
                for r in range(4): a(f"v_mov_b32 v{188+r}, -1")
                a(f"s_lshl_b32 s68, s{S_H}, 16")
                a("s_lshl_b32 s69, s34, 10")
                a("s_add_u32 s68, s68, s69")
                a(f"s_add_u32 s68, s68, {O_BASE + O_PROB}")
                a(f"buffer_store_dwordx4 v[188:191], v{LIN}, s[{WS}:{WS+3}], s68 offen sc1")
                a("s_waitcnt lgkmcnt(0)")
                a(f"v_readfirstlane_b32 s{NONCE}, v{T0}")
                a("s_cmp_eq_u32 s3, 4")
                a("s_cbranch_scc0 La_nfb")
                a(f"s_add_u32 s56, s74, {FB}")
                a(f"v_mov_b32 v{T0}, s56")
                a(f"v_mov_b32 v{T1}, s{NONCE}")
                a("s_mov_b64 exec, 1")
                a(f"buffer_store_dword v{T1}, v{T0}, s[{WS}:{WS+3}], 0 offen sc1")
                a("s_mov_b64 exec, -1")
                a.label("La_nfb")
        def kread(buf, t=t):
            if t + 2 < 32:
                r, o = addr(t + 2, VKA, VKN, KA3)
                a(f"ds_read_b128 {vr(buf,4)}, v{r} offset:{o}")
        def vread(buf, t=t):
            if t + 1 < 32:
                r, o = addr(t + 1, VVA, VVN, VA3)
                read_v(buf, r, o)
            else:
                a("s_nop 0")
        tile_pair(n, kread, vread, last=(t == 31), first=(t == 0))
    a("s_branch La_post")
    a.label("La_rolled")
    for q in range(2):
        for r in range(16):
            a(f"v_mov_b32 v{OACC[q]+r}, 0")
    for r in range(4): a(f"v_mov_b32 v{PP[1]+4+r}, 0")
    a("s_mov_b32 s38, 0")
    a.label("La_loop")
    for n in range(U):
        def kread(buf, n=n):
            if n + 2 < U: a(f"ds_read_b128 {vr(buf,4)}, v{VKA} offset:{(n+2)*2048}")
            else: a(f"ds_read_b128 {vr(buf,4)}, v{VKN} offset:{(n+2-U)*2048}")
        def vread(buf, n=n):
            if n + 1 < U: read_v(buf, VVA, (n+1)*2048)
            else: read_v(buf, VVN, 0)
        tile_pair(n, kread, vread)
    a(f"v_mov_b32 v{VKA}, v{VKN}")
    a(f"v_mov_b32 v{VVA}, v{VVN}")
    a(f"v_add_u32 v{VKN}, 32768, v{VKN}")
    a(f"v_add_u32 v{VVN}, 32768, v{VVN}")
    a("s_add_u32 s38, s38, 1")
    a("s_cmp_lg_u32 s38, 4")
    a("s_cbranch_scc1 La_loop")
    a.label("La_post")
    a("s_nop 1")
    mfma(a, OACC[1], VF[1]+4, PP[1]+4, OACC[1])
    st(6)
    st.l(7)
    a("s_waitcnt lgkmcnt(0)")
    a("s_nop 15")
    a(f"v_mov_b32 v{TMP}, 0x5f800000")
    a(f"v_cmp_lt_f32 vcc, v{OACC[0]+8}, v{TMP}")
    a(f"v_cmp_lt_f32 s[58:59], v{OACC[1]+8}, v{TMP}")
    a("s_nop 4")
    a("s_and_b64 s[58:59], s[58:59], vcc")
    a("s_cmp_eq_u64 s[58:59], -1")
    a("s_cselect_b32 s64, 0, 1")
    a("s_cmp_lg_u32 s73, 0")
    a("s_cselect_b32 s64, 0, s64")
    a("s_lshl_b32 s65, s3, 2")
    a(f"s_add_u32 s65, s65, {XCH}")
    a(f"v_mov_b32 v{T0}, s65")
    a(f"v_mov_b32 v{T1}, s64")
    a(f"ds_write_b32 v{T0}, v{T1}")
    a("s_mul_i32 s65, s3, 2560")
    a(f"s_add_u32 s65, s65, {XCH + 1024}")
    a(f"v_add_u32 v{T0}, s65, v{LIN}")
    a(f"v_lshrrev_b32 v{T1}, 2, v{LIN}")
    a(f"v_add_u32 v{T1}, s65, v{T1}")
    a("s_cmp_eq_u32 s70, 0")
    a("s_cbranch_scc0 La_sendq0")
    for lab, qs in (("La_sendq1", 1), ("La_sendq0", 0)):
        if qs == 0: a.label(lab)
        a(f"ds_write_b128 v{T0}, {vr(OACC[qs],4)}")
        a(f"ds_write_b128 v{T0}, {vr(OACC[qs]+4,4)} offset:1024")
        a(f"ds_write_b32 v{T1}, v{OACC[qs]+8} offset:2048")
        if qs == 1:
            a("s_branch La_sent")
        else:
            for r in range(9):
                a(f"v_mov_b32 v{OACC[0]+r}, v{OACC[1]+r}")
    a.label("La_sent")
    a("s_waitcnt vmcnt(0) lgkmcnt(0)")
    a("s_barrier")
    a(f"v_and_b32 v{T2}, 7, v1")
    a(f"v_lshlrev_b32 v{T2}, 2, v{T2}")
    a(f"v_add_u32 v{T2}, {XCH}, v{T2}")
    a(f"ds_read_b32 v{T2}, v{T2}")
    a("s_xor_b32 s64, s3, 4")
    a("s_mul_i32 s65, s64, 2560")
    a(f"s_add_u32 s65, s65, {XCH + 1024}")
    a(f"v_add_u32 v{T0}, s65, v{LIN}")
    a(f"v_lshrrev_b32 v{T1}, 2, v{LIN}")
    a(f"v_add_u32 v{T1}, s65, v{T1}")
    a(f"ds_read_b128 {vr(SB[0][0],4)}, v{T0}")
    a(f"ds_read_b128 {vr(SB[0][0]+4,4)}, v{T0} offset:1024")
    a(f"ds_read_b32 v{SB[0][0]+8}, v{T1} offset:2048")
    a("s_lshl_b32 s37, s3, 11")
    a(f"s_add_u32 s37, s37, {BKV}")
    a("s_waitcnt lgkmcnt(0)")
    a(f"v_cmp_ne_u32 vcc, 0, v{T2}")
    a("s_nop 4")
    a("s_cmp_eq_u64 vcc, 0")
    a("s_cbranch_scc1 La_done")
    a("s_barrier")
    a("s_mov_b32 s73, 1")
    for u in range(4):
        a(f"s_add_u32 m0, s63, {BKV + (u&1)*8192 + (u>>1)*16384}")
        a(f"s_add_u32 s66, s62, {65536 + (u&1)*8192 + (u>>1)*65536}")
        a(f"buffer_load_dwordx4 v{LIN}, s[{WS}:{WS+3}], s66 offen sc1 lds")
    kv_dma(1)
    a("s_waitcnt vmcnt(0)")
    a("s_barrier")
    a(f"v_mov_b32 v{MX}, 0xff800000")
    a(f"v_mov_b32 v{MX1}, 0xff800000")
    a("s_mov_b32 s38, 0")
    a.label("La_fb")
    a("s_bfe_u32 s64, s38, 0x20003")
    a("s_sub_u32 s65, s64, 1")
    a("s_lshl_b32 s65, s65, 15")
    a("s_cmp_eq_u32 s64, 0")
    a(f"s_cselect_b32 s65, {BKV}, s65")
    a("s_lshr_b32 s64, s38, 5")
    a("s_lshl_b32 s64, s64, 14")
    a("s_add_u32 s65, s65, s64")
    a("s_and_b32 s64, s38, 7")
    a("s_lshl_b32 s64, s64, 11")
    a("s_add_u32 s65, s65, s64")
    a(f"v_add_u32 v{T0}, s65, v{LIN}")
    a(f"ds_read_b128 {vr(KF,4)}, v{T0}")
    a("s_waitcnt lgkmcnt(0)")
    mfma(a, SB[0][0], KF, QA[0], "0")
    mfma(a, SB[1][0], KF, QA[1], "0")
    a("s_nop 15")
    for q, m in ((0, MX), (1, MX1)):
        s = SB[q][0]
        for r in range(8):
            a(f"v_max3_f32 v{m}, v{s+2*r}, v{s+2*r+1}, v{m}")
    a("s_add_u32 s38, s38, 1")
    a("s_cmp_lg_u32 s38, 64")
    a("s_cbranch_scc1 La_fb")
    a(f"v_add_u32 v{VKN}, s71, v{LIN}")
    a(f"v_add_u32 v{VVN}, s71, v{VLO}")
    a(f"v_add_u32 v{VKA}, s72, v{LIN}")
    a(f"v_add_u32 v{VVA}, s72, v{VLO}")
    a("s_branch La_main")
    a.label("La_done")
    a("s_cmp_eq_u32 s73, 0")
    a("s_cbranch_scc1 La_bok")
    a("s_barrier")
    wo_dma(WOA, 0, 0)
    a("s_cmp_lt_u32 s3, 4")
    a("s_cbranch_scc1 La_brl")
    b_loads(a, LIN, QBL)
    a.label("La_brl")
    a("s_waitcnt vmcnt(0)")
    a("s_barrier")
    a.label("La_bok")
    a(f"v_add_u32 v{VKA}, s37, v{LIN}")
    a(f"v_add_u32 v{VVA}, s37, v{VLO}")
    a("s_lshl_b32 s64, s3, 10")
    a(f"s_add_u32 s64, s64, {QBL}")
    a(f"v_add_u32 v{T0}, s64, v{LIN}")
    a(f"ds_read_b128 {vr(QB,4)}, v{T0}")
    for i in range(8, -1, -1):
        a(f"ds_read_b128 {vr(KF+4*i,4)}, v{VKA} offset:{i*2048}")
    for r in range(9):
        a(f"v_add_f32 v{OACC[0]+r}, v{OACC[0]+r}, v{SB[0][0]+r}")
    a("s_and_b32 s64, s3, 3")
    a("s_lshl_b32 s64, s64, 1")
    a("s_add_u32 s64, s64, s70")
    a(f"s_lshl_b32 s65, s{S_QB}, 3")
    a("s_add_u32 s64, s64, s65")
    a("s_lshl_b32 s64, s64, 10")
    a(f"s_lshl_b32 s68, s{S_H}, 16")
    a("s_add_u32 s68, s68, s64")
    a(f"s_add_u32 s68, s68, {O_BASE}")
    def finish_o(o, lreg, soff):
        a(f"v_rcp_f32 v{TMP}, v{lreg}")
        a("s_nop 1")
        for r in range(8):
            a(f"v_mul_f32 v{o+r}, v{o+r}, v{TMP}")
        for r in range(4):
            a(f"v_cvt_pk_bf16_f32 v{PP[1]+r}, v{o+2*r}, v{o+2*r+1}")
        a(f"buffer_store_dwordx4 {vr(PP[1],4)}, v{LIN}, s[{WS}:{WS+3}], {soff} offen sc1")
    def o_flag(p):
        a("s_lshl_b32 s56, s2, 3")
        a("s_add_u32 s56, s56, s3")
        a("s_lshl_b32 s56, s56, 7")
        a(f"s_add_u32 s56, s56, {FO + p*262144}")
        a(f"v_mov_b32 v{T0}, s56")
        a(f"v_mov_b32 v{T1}, s{NONCE}")
        a("s_mov_b64 exec, 1")
        a(f"buffer_store_dword v{T1}, v{T0}, s[{WS}:{WS+3}], 0 offen sc1")
        a("s_mov_b64 exec, -1")
    a("s_waitcnt lgkmcnt(6)")
    SP = [80, 96, 112, 128]
    def qk1(i):
        c = MHI if i == 8 else (MLO if i == 0 else "0")
        mfma(a, SP[(8-i) % 4], KF+4*i, QB, c)
    qk1(8); qk1(7); qk1(6)
    finish_o(OACC[0], OACC[0]+8, "s68")
    st(7)
    st.l(8)
    a("s_waitcnt lgkmcnt(0)")
    a("s_barrier")
    read_v(VF[0], VVA, 8*2048)
    a("s_nop 0")
    a("s_mov_b32 s38, s35")
    for i in range(8, -1, -1):
        s = SP[(8-i) % 4]
        if i == 8:
            a(f"v_max_f32 v{MX}, v{s}, v{s+1}")
            for r in range(1, 8):
                a(f"v_max3_f32 v{MX}, v{s+2*r}, v{s+2*r+1}, v{MX}")
        else:
            for r in range(8):
                a(f"v_max3_f32 v{MX}, v{s+2*r}, v{s+2*r+1}, v{MX}")
        if i > 0:
            a("s_cmp_eq_u32 s38, 0")
            a("s_cbranch_scc1 Lb_p1_done")
            a("s_sub_u32 s38, s38, 1")
        if i - 3 >= 0:
            qk1(i - 3)
    a.label("Lb_p1_done")
    halves_max(MX, TMP)
    st(8)
    st.l(9)
    a("s_waitcnt vmcnt(0)")
    o_flag(0)
    a("s_mov_b32 s43, 0")
    for r in range(16):
        a(f"v_sub_f32 v{MHI+r}, v{MHI+r}, v{MX}")
    a("s_nop 1")
    mfma(a, SP[0], KF+4*8, QB, MHI)
    for r in range(16):
        a(f"v_sub_f32 v{CNEG[0]+r}, 0, v{MX}")
        a(f"v_sub_f32 v{MLO+r}, v{MLO+r}, v{MX}")
        a(f"v_mov_b32 v{OACC[0]+r}, 0")
    a("s_lshr_b32 s52, s3, 2")
    a("s_and_b32 s53, s3, 1")
    a("s_bfe_u32 s54, s3, 0x10001")
    a("s_lshl_b32 s55, s75, 1")
    a("s_add_u32 s55, s55, s53")
    a("s_lshl_b32 s56, s53, 2")
    a("s_add_u32 s56, s56, s75")
    a("s_cmp_eq_u32 s52, 0")
    a("s_cselect_b32 s56, s56, s55")
    a(f"s_lshl_b32 s57, s{S_QB}, 5")
    a("s_lshl_b32 s58, s54, 4")
    a("s_add_u32 s57, s57, s58")
    a("s_lshl_b32 s57, s57, 3")
    a("s_add_u32 s57, s57, s56")
    a("s_lshl_b32 s57, s57, 7")
    a(f"s_add_u32 s57, s57, {FO}")
    a(f"v_and_b32 v{T2}, 15, v1")
    a(f"v_lshlrev_b32 v{T2}, 10, v{T2}")
    a(f"v_add_u32 v{T2}, s57, v{T2}")
    a("s_mov_b32 s44, 0")
    WG = [(WOA, 1, 32768), (WOB, 0, 65536), (WOB, 1, 98304)]
    wo_dma(*WG[0])
    a("s_mov_b32 s43, 1")
    a("s_mov_b32 s38, s35")
    for n, i in enumerate(range(8, -1, -1)):
        cur, nxt = SP[n % 2], SP[(n+1) % 2]
        vb = VF[n % 2]
        if i > 0:
            cn = MLO if i - 1 == 0 else CNEG[0]
            step(cur, PP[0], OACC[0],
                 lambda: read_v(VF[(n+1) % 2], VVA, (i-1)*2048),
                 lambda: mfma(a, nxt, KF+4*(i-1), QB, cn),
                 lambda: a("s_waitcnt lgkmcnt(2)"),
                 lambda: a("s_nop 1"), nop, vb)
            if n in (1, 3):
                wo_dma(*WG[1 if n == 1 else 2])
                a(f"s_mov_b32 s43, {2 if n == 1 else 3}")
            if n == 5 and os.environ.get("EPOLL", "0") == "1":
                a(f"buffer_load_dword v{T3}, v{T2}, s[{WS}:{WS+3}], 0 offen sc1")
                a("s_mov_b32 s44, 1")
            a("s_cmp_eq_u32 s38, 0")
            a("s_cbranch_scc1 Lb_p2_done")
            a("s_sub_u32 s38, s38, 1")
        else:
            step(cur, PP[0], OACC[0], nop, nop,
                 lambda: a("s_waitcnt lgkmcnt(0)"),
                 lambda: a("s_nop 1"), nop, vb)
    a.label("Lb_p2_done")
    st(9)
    st.l(10)
    st.t(1)
    a("s_cmp_ge_u32 s43, 2")
    a("s_cbranch_scc1 Lb_g1")
    wo_dma(*WG[1])
    a.label("Lb_g1")
    a("s_cmp_ge_u32 s43, 3")
    a("s_cbranch_scc1 Lb_g2")
    wo_dma(*WG[2])
    a.label("Lb_g2")
    a("s_cmp_eq_u32 s44, 1")
    a("s_cbranch_scc1 Lb_g3")
    a(f"buffer_load_dword v{T3}, v{T2}, s[{WS}:{WS+3}], 0 offen sc1")
    a.label("Lb_g3")
    a("s_nop 15")
    a(f"s_lshl_b32 s68, s{S_H}, 16")
    a("s_lshl_b32 s69, s34, 10")
    a("s_add_u32 s68, s68, s69")
    a(f"s_add_u32 s68, s68, {O_BASE + O_PROB}")
    finish_o(OACC[0], OACC[0]+8, "s68")
    OF, ACC2, WF2 = 16, 208, 112
    a(f"s_lshl_b32 s59, s{S_QB}, 3")
    a("s_add_u32 s59, s59, s55")
    a("s_lshl_b32 s60, s59, 10")
    a(f"s_mul_i32 s61, s52, {O_PROB}")
    a("s_add_u32 s60, s60, s61")
    a(f"s_add_u32 s60, s60, {O_BASE}")
    a("s_bfe_u32 s61, s2, 0x20003")
    a("s_lshl_b32 s61, s61, 2")
    a(f"v_lshrrev_b32 v{T0}, 5, v1")
    a(f"v_lshlrev_b32 v{T1}, 2, v{T0}")
    a(f"v_bfe_u32 v{TMP}, v1, 2, 2")
    a(f"v_add_u32 v{T1}, v{T1}, v{TMP}")
    a(f"v_lshlrev_b32 v{T1}, 7, v{T1}")
    a(f"v_bfe_u32 v{TMP}, v1, 4, 1")
    a(f"v_lshlrev_b32 v{TMP}, 5, v{TMP}")
    a(f"v_add_u32 v{T1}, v{T1}, v{TMP}")
    a(f"v_and_b32 v{TMP}, 3, v1")
    a(f"v_lshlrev_b32 v{TMP}, 3, v{TMP}")
    a(f"v_add_u32 v{T1}, v{T1}, v{TMP}")
    a(f"v_bfe_u32 v{TMP}, v1, 3, 1")
    a(f"v_lshlrev_b32 v{TMP}, 6, v{TMP}")
    a("s_lshl_b32 s62, s52, 16")
    a("s_lshl_b32 s63, s54, 15")
    a("s_add_u32 s62, s62, s63")
    a(f"v_add_u32 v{T1}, s62, v{T1}")
    a(f"v_add_u32 v{VKA}, v{T1}, v{TMP}")
    a(f"v_xor_b32 v{TMP}, 64, v{TMP}")
    a(f"v_add_u32 v{VVA}, v{T1}, v{TMP}")
    a(f"v_and_b32 v{VKN}, 31, v1")
    a(f"v_lshlrev_b32 v{VKN}, 11, v{VKN}")
    a(f"v_lshlrev_b32 v{T0}, 4, v{T0}")
    a(f"v_add_u32 v{VKN}, v{VKN}, v{T0}")
    st.t(2)
    st(10)
    a("s_lshl_b32 s63, s54, 20")
    a("s_add_u32 s60, s60, s63")
    a("s_waitcnt vmcnt(2)")
    a("s_barrier")
    WFA = 80
    for hh in range(16):
        for ct, reg in ((0, VKA), (1, VVA)):
            b = WFA + 8*hh + 4*ct
            a(f"ds_read_b64_tr_b16 {vr(b,2)}, v{reg} offset:{hh*2048}")
            a(f"ds_read_b64_tr_b16 {vr(b+2,2)}, v{reg} offset:{hh*2048+1024}")
        if hh % 3 == 2: a("s_waitcnt lgkmcnt(8)")
    st.t(3)
    a(f"s_mov_b32 s67, {SPIN}")
    a("s_waitcnt vmcnt(1)")
    a.label("Lo_spin")
    a(f"v_cmp_eq_u32 vcc, s{NONCE}, v{T3}")
    a("s_nop 4")
    a("s_cmp_eq_u64 vcc, -1")
    a("s_cbranch_scc1 Lo_got")
    a("s_sleep 1")
    a(f"buffer_load_dword v{T3}, v{T2}, s[{WS}:{WS+3}], 0 offen sc1")
    a("s_waitcnt vmcnt(0)")
    a("s_sub_u32 s67, s67, 1")
    a("s_cmp_lg_u32 s67, 0")
    a("s_cbranch_scc1 Lo_spin")
    a.label("Lo_got")
    st.t(4)
    a(f"s_mov_b32 s67, {SPIN}")
    a.label("Lo_ld")
    for hh in range(16):
        a(f"s_add_u32 s64, s60, {hh*65536}")
        a(f"buffer_load_dwordx4 {vr(OF+4*hh,4)}, v{LIN}, s[{WS}:{WS+3}], s64 offen sc1")
    a("s_cmp_eq_u32 s52, 0")
    a("s_cbranch_scc1 Lo_rdy")
    a("s_waitcnt vmcnt(0)")
    a(f"v_max_u32 v{T3}, v{OF}, v{OF+1}")
    for r in range(1, 32):
        a(f"v_max3_u32 v{T3}, v{OF+2*r}, v{OF+2*r+1}, v{T3}")
    a(f"v_cmp_eq_u32 vcc, -1, v{T3}")
    a("s_nop 4")
    a("s_cmp_eq_u64 vcc, 0")
    a("s_cbranch_scc1 Lo_rdy")
    a("s_sub_u32 s67, s67, 1")
    a("s_cmp_lg_u32 s67, 0")
    a("s_cbranch_scc1 Lo_ld")
    a.label("Lo_rdy")
    st.t(5)
    a("s_waitcnt lgkmcnt(0)")
    for hh in range(16):
        a(f"s_waitcnt vmcnt({15-hh})")
        for ct in range(2):
            acc = ACC2 + 16*ct
            mfma(a, acc, WFA+8*hh+4*ct, OF+4*hh, "0" if hh == 0 else acc)
    st.t(6)
    a("s_lshl_b32 s64, s3, 12")
    a(f"s_add_u32 s64, s64, {BKV}")
    a(f"v_add_u32 v{T0}, s64, v{LIN}")
    a("s_xor_b32 s65, s3, 2")
    a("s_lshl_b32 s65, s65, 12")
    a(f"s_add_u32 s65, s65, {BKV}")
    a(f"v_add_u32 v{T1}, s65, v{LIN}")
    a("s_nop 15")
    a("s_cmp_eq_u32 s54, 0")
    a("s_cbranch_scc0 Lo_send0")
    for r in range(4):
        a(f"ds_write_b128 v{T0}, {vr(ACC2+16+4*r,4)} offset:{r*1024}")
    a("s_branch Lo_sent")
    a.label("Lo_send0")
    for r in range(4):
        a(f"ds_write_b128 v{T0}, {vr(ACC2+4*r,4)} offset:{r*1024}")
    for r in range(16):
        a(f"v_mov_b32 v{ACC2+r}, v{ACC2+16+r}")
    a.label("Lo_sent")
    a("s_waitcnt lgkmcnt(0)")
    a("s_barrier")
    st.t(7)
    for r in range(4):
        a(f"ds_read_b128 {vr(OF+4*r,4)}, v{T1} offset:{r*1024}")
    a("s_lshl_b32 s64, s59, 16")
    a("s_lshl_b32 s65, s52, 10")
    a("s_add_u32 s64, s64, s65")
    a("s_lshl_b32 s65, s39, 7")
    a("s_add_u32 s64, s64, s65")
    a("s_lshl_b32 s65, s54, 6")
    a("s_add_u32 s64, s64, s65")
    a("s_waitcnt lgkmcnt(0)")
    for r in range(16):
        a(f"v_add_f32 v{ACC2+r}, v{ACC2+r}, v{OF+r}")
    for pr in range(2):
        b = ACC2 + 8*pr
        pk = WF2 + 4*pr
        for r in range(4):
            a(f"v_cvt_pk_bf16_f32 v{pk+r}, v{b+2*r}, v{b+2*r+1}")
        a("s_nop 1")
        a(f"v_permlane32_swap_b32 v{pk}, v{pk+2}")
        a(f"v_permlane32_swap_b32 v{pk+1}, v{pk+3}")
        a("s_nop 1")
        a(f"buffer_store_dwordx4 {vr(pk,4)}, v{VKN}, s[{OUT}:{OUT+3}], s64 offen offset:{pr*32} {os.environ.get('OUTF','')}")
    st.t(8)
    if st.ft: a("s_waitcnt vmcnt(0)")
    st.t(9); st.t(10)
    st(11)
    st.p(11)
    st.flush(8, 12)
    a.label("Lfa_end")
    a("s_endpgm")

def b_loads(a, LIN, QBL):
    a("s_sub_u32 s51, s3, 4")
    a("s_lshl_b32 s51, s51, 10")
    a(f"s_lshl_b32 s50, s{S_QB}, 14")
    a("s_add_u32 s50, s50, s51")
    a("s_sub_u32 s50, s50, 16384")
    for u in range(8):
        a(f"s_add_u32 m0, s51, {BKV + u*4096}")
        a(f"s_add_u32 s54, s50, {u*4096}")
        a("s_max_i32 s54, s54, 0")
        a("s_add_u32 s54, s54, s36")
        a("s_add_u32 s54, s54, 65536")
        a(f"buffer_load_dwordx4 v{LIN}, s[{WS}:{WS+3}], s54 offen sc1 lds")
    a(f"s_lshl_b32 s50, s{S_QB}, 13")
    a("s_add_u32 s50, s50, s36")
    a("s_add_u32 s50, s50, s51")
    for u in range(2):
        a(f"s_add_u32 m0, s51, {QBL + u*4096}")
        a(f"s_add_u32 s54, s50, {u*4096}")
        a(f"buffer_load_dwordx4 v{LIN}, s[{WS}:{WS+3}], s54 offen sc1 lds")

def gen_oproj(a):
    a.raw(".p2align 8")
    a.raw(".type oproj_kernel,@function")
    a.label("oproj_kernel")
    a("s_cmp_ge_u32 s2, 256")
    a("s_cbranch_scc1 Lop_end")
    st = Stamper(a, "oproj", 1, "s20")
    st()
    a("s_load_dwordx2 s[4:5], s[0:1], 16")
    a("s_load_dwordx2 s[26:27], s[0:1], 40")
    a("s_load_dwordx2 s[28:29], s[0:1], 48")
    a("s_load_dwordx2 s[30:31], s[0:1], 64")
    a("s_and_b32 s32, s2, 7")
    a("s_lshr_b32 s33, s2, 3")
    a("s_lshr_b32 s23, s32, 2")
    a("s_and_b32 s34, s32, 3")
    a("s_lshl_b32 s34, s34, 2")
    a("s_and_b32 s35, s33, 3")
    a("s_add_u32 s24, s34, s35")
    a("s_lshr_b32 s25, s33, 2")
    a("v_and_b32 v1, 63, v0")
    a("v_lshrrev_b32 v2, 6, v0")
    a("s_nop 0")
    a("v_readfirstlane_b32 s20, v2")
    a("v_lshrrev_b32 v2, 3, v1")
    a("v_lshlrev_b32 v2, 10, v2")
    a("v_bfe_u32 v3, v1, 4, 1")
    a("v_lshlrev_b32 v3, 2, v3")
    a("v_and_b32 v5, 7, v1")
    a("v_xor_b32 v3, v3, v5")
    a("v_lshlrev_b32 v3, 4, v3")
    a("v_add_u32 v4, v2, v3")
    a("v_lshlrev_b32 v5, 4, v1")
    a("s_waitcnt lgkmcnt(0)")
    a("s_cmp_eq_u32 s23, 0")
    a("s_cselect_b32 s4, s4, s26")
    a("s_cselect_b32 s5, s5, s27")
    srd(a, 8, 4, 5, 512*1024)
    a(f"s_mul_i32 s36, s23, {O_PROB}")
    a(f"s_add_u32 s36, s36, {O_BASE}")
    a("s_add_u32 s30, s30, s36")
    a("s_addc_u32 s31, s31, 0")
    srd(a, 12, 30, 31, O_PROB)
    a("s_lshl_b32 s40, s20, 13")
    a("s_lshl_b32 s36, s25, 7")
    a("s_add_u32 s40, s40, s36")
    a("s_lshl_b32 s41, s20, 10")
    OF = 64
    a("s_lshl_b32 s42, s24, 2")
    a("s_add_u32 s42, s42, s20")
    a("s_lshl_b32 s43, s42, 10")
    a("s_lshl_b32 s49, s25, 2")
    a("s_and_b32 s47, s24, 3")
    a("s_lshl_b32 s47, s47, 3")
    a("s_add_u32 s49, s49, s47")
    a("s_lshl_b32 s46, s49, 4")
    a("s_lshl_b32 s47, s20, 3")
    a("s_add_u32 s46, s46, s47")
    a("s_lshl_b32 s48, s25, 7")
    def wdma(u):
        a(f"s_add_u32 m0, s41, {u*4096}")
        a(f"s_add_u32 s44, s46, {u*32}")
        a("s_and_b32 s44, s44, 511")
        a("s_lshl_b32 s44, s44, 10")
        a("s_add_u32 s44, s44, s48")
        a("buffer_load_dwordx4 v4, s[8:11], s44 offen lds")
    def oload(H):
        a(f"s_add_u32 s44, s49, {H}")
        a("s_and_b32 s44, s44, 31")
        a("s_lshl_b32 s44, s44, 16")
        a("s_add_u32 s44, s44, s43")
        a(f"buffer_load_dwordx4 {vr(OF+4*H,4)}, v5, s[12:15], s44 offen")
    for q in range(4):
        for u in range(4): wdma(4*q+u)
        for H in range(8): oload(8*q+H)
    srd(a, 16, 28, 29, 2048*2048)
    a("v_lshrrev_b32 v2, 5, v1")
    a("v_lshlrev_b32 v3, 2, v2")
    a("v_bfe_u32 v8, v1, 2, 2")
    a("v_add_u32 v3, v3, v8")
    a("v_lshlrev_b32 v3, 7, v3")
    a("v_bfe_u32 v8, v1, 4, 1")
    a("v_lshlrev_b32 v8, 5, v8")
    a("v_add_u32 v3, v3, v8")
    a("v_and_b32 v8, 3, v1")
    a("v_lshlrev_b32 v8, 3, v8")
    a("v_add_u32 v3, v3, v8")
    a("v_bfe_u32 v8, v1, 3, 1")
    a("v_lshlrev_b32 v8, 6, v8")
    a("v_add_u32 v6, v3, v8")
    a("v_xor_b32 v8, 64, v8")
    a("v_add_u32 v7, v3, v8")
    a("v_and_b32 v8, 31, v1")
    a("v_lshlrev_b32 v8, 11, v8")
    a("v_lshlrev_b32 v9, 4, v2")
    a("v_add_u32 v8, v8, v9")
    ACC = 16
    st()
    WF = [48, 56]
    def rd(H, buf):
        for ct in range(2):
            a(f"ds_read_b64_tr_b16 {vr(WF[buf]+4*ct,2)}, v{6+ct} offset:{H*2048}")
            a(f"ds_read_b64_tr_b16 {vr(WF[buf]+4*ct+2,2)}, v{6+ct} offset:{H*2048+1024}")
    for q in range(4):
        a(f"s_waitcnt vmcnt({8 + 12*(3-q)})")
        a("s_barrier")
        rd(8*q, 0)
        for hh in range(8):
            H = 8*q + hh
            buf = hh % 2
            if hh < 7:
                rd(H+1, buf ^ 1)
                a(f"s_waitcnt vmcnt({7-hh + 12*(3-q)}) lgkmcnt(4)")
            else:
                a(f"s_waitcnt vmcnt({12*(3-q)}) lgkmcnt(0)")
            for ct in range(2):
                acc = ACC+16*ct
                mfma(a, acc, WF[buf]+4*ct, OF+4*H, "0" if H == 0 else acc)
    a("s_nop 15")
    st()
    a("s_lshl_b32 s44, s42, 16")
    a("s_lshl_b32 s45, s23, 10")
    a("s_add_u32 s44, s44, s45")
    a("s_lshl_b32 s45, s25, 7")
    a("s_add_u32 s44, s44, s45")
    for ct in range(2):
        for pr in range(2):
            b = ACC + 16*ct + 8*pr
            pk = 48 + (ct*2+pr)*4
            for r in range(4):
                a(f"v_cvt_pk_bf16_f32 v{pk+r}, v{b+2*r}, v{b+2*r+1}")
            a("s_nop 1")
            a(f"v_permlane32_swap_b32 v{pk}, v{pk+2}")
            a(f"v_permlane32_swap_b32 v{pk+1}, v{pk+3}")
            a("s_nop 1")
            a(f"buffer_store_dwordx4 {vr(pk,4)}, v8, s[16:19], s44 offen offset:{ct*64+pr*32}")
    st()
    st.flush(4)
    a.label("Lop_end")
    a("s_endpgm")

def kd(name, vgpr, sgpr=102):
    acc = (vgpr + 3)//4*4
    return f""".section .rodata,"a"
.p2align 6
.amdhsa_kernel {name}
  .amdhsa_next_free_vgpr {vgpr}
  .amdhsa_next_free_sgpr {sgpr}
  .amdhsa_accum_offset {acc}
  .amdhsa_group_segment_fixed_size 0
  .amdhsa_kernarg_size 72
  .amdhsa_user_sgpr_count 2
  .amdhsa_user_sgpr_kernarg_segment_ptr 1
  .amdhsa_system_sgpr_workgroup_id_x 1
.end_amdhsa_kernel
"""

HEADER = """; Kernarg layout for this problem (72 bytes, ptrs only, base s[0:1]):
;   offset   0: d_in[0] A_x  shape=(1, 2048, 512) dtype=bfloat16
;   offset   8: d_in[1] A_wqkv  shape=(512, 1536) dtype=bfloat16
;   offset  16: d_in[2] A_wo  shape=(512, 512) dtype=bfloat16
;   offset  24: d_in[3] B_x  shape=(1, 2048, 512) dtype=bfloat16
;   offset  32: d_in[4] B_wqkv  shape=(512, 1536) dtype=bfloat16
;   offset  40: d_in[5] B_wo  shape=(512, 512) dtype=bfloat16
;   offset  48: d_out     shape=(1, 2048, 1024) dtype=bfloat16
;   offset  56: d_debug   256 bytes
;   offset  64: d_ws      268435456 bytes workspace
;            written as MFMA-ready fragments to d_ws with write-through stores and published through per-workgroup flags
;            (flag value = per-launch nonce handed out through the zeroed d_debug word).
;            m is a stand-in (true max over the first key tile); a run-time check (row sum < 2^64) falls back to the
;   phase 4: output projections (fragments exchanged through d_ws, flags / sentinel polling).
; @launch grid=(256,1,1) block=(512,1,1) lds=163840
.amdgcn_target "amdgcn-amd-amdhsa--gfx950"
.text
.globl concat_heads__softmax_full_mha__sliding_block__prompt_kernel
"""

def main(path):
    a = Asm()
    gen_fused(a)
    txt = HEADER + a.text() + kd("concat_heads__softmax_full_mha__sliding_block__prompt_kernel", 256)
    open(path, "w").write(txt)

if __name__ == "__main__":
    main(sys.argv[1] if len(sys.argv) > 1 else f"cdna_kernels/{NAME}.s")
```

```python
import sys, os, struct

NAME = "concat_heads__softmax_full_mha__sliding_block__prompt"
STAMPS = os.environ.get("STAMPS", "")

class Asm:
    def __init__(self): self.lines = []
    def __call__(self, s): self.lines.append("  " + s)
    def label(self, s): self.lines.append(s + ":")
    def raw(self, s): self.lines.append(s)
    def text(self): return "\n".join(self.lines) + "\n"

def vr(b, n=1): return f"v{b}" if n == 1 else f"v[{b}:{b+n-1}]"
def f32bits(x): return struct.unpack("<I", struct.pack("<f", x))[0]

HEAD_STRIDE = 196608
PROB_STRIDE = 32 * HEAD_STRIDE
O_BASE = 2 * PROB_STRIDE
O_PROB = 32 * 65536
F_BASE = 16 << 20
WS_SIZE = 17 << 20
QSCALE = 0.25 * 1.4426950408889634
SPIN = 1 << 16

def srd(a, d, lo, hi, nrec):
    a(f"s_mov_b32 s{d}, s{lo}")
    a(f"s_and_b32 s{d+1}, s{hi}, 0xffff")
    a(f"s_mov_b32 s{d+2}, {nrec}")
    a(f"s_mov_b32 s{d+3}, 0x00020000")

class Stamper:
    def __init__(self, a, kname, kidx, wavereg, base=76):
        self.a=a; self.on=(STAMPS==kname or (STAMPS in ("fp","fs","fl","ft") and kname=="fa")); self.fp=(STAMPS in ("fp","fs","fl","ft")); self.ft=(STAMPS=="ft"); self.fs=(STAMPS=="fs"); self.fl=(STAMPS=="fl"); self.rt=(STAMPS=="rt"); self.n=0; self.base=base; self.wavereg=wavereg; self.kidx=kidx
        if self.rt:
            a("s_memrealtime s[76:77]"); a("s_memtime s[78:79]")
    def p(self, idx):
        if self.fp and ((not self.fs and not self.fl and not self.ft) or idx==11): self._st(idx)
    def t(self, idx):
        if self.ft: self._st(idx)
    def l(self, idx):
        if self.fl: self._st(idx)
    def ldyn(self, base, uid):
        if not self.fl: return
        a=self.a
        for j in range(4):
            a(f"s_cmp_eq_u32 s38, {j}")
            a(f"s_cbranch_scc0 Lst{uid}_{j}")
            self._st(base+j)
            a.label(f"Lst{uid}_{j}")
    def f(self, idx):
        if self.fs: self._st(idx)
    def __call__(self, idx=None):
        if STAMPS == "dbg" and self.kidx == 0:
            m = {0:0, 2:1, 5:2, 6:3, 9:4, 10:5, 11:6}
            if idx in m:
                self.a(f"s_memrealtime s[{76+2*m[idx]}:{77+2*m[idx]}]")
                self.a("s_waitcnt lgkmcnt(0)")
            return
        if not self.on: return
        if self.fp and idx not in (0,): return
        self._st(idx)
    def _st(self, idx=None):
        if idx is not None: self.n = idx
        assert self.base+2*self.n+1 < 102
        self.a(f"s_memtime s[{self.base+2*self.n}:{self.base+2*self.n+1}]")
        self.a("s_waitcnt lgkmcnt(0)")
        self.n+=1
    def flush(self, nw, n=None):
        if STAMPS == "dbg":
            a=self.a
            a("s_cmp_eq_u32 s3, 4"); a("s_cbranch_scc0 Ldbg_skip")
            a("s_cmp_eq_u32 s2, 0"); a("s_cselect_b32 s6, 4, 0")
            a("s_cmp_eq_u32 s2, 131"); a("s_cselect_b32 s6, 32, s6")
            a("s_cmp_eq_u32 s6, 0"); a("s_cbranch_scc1 Ldbg_skip")
            a("v_mov_b32 v1, s6")
            for i in range(1,7):
                a(f"s_sub_u32 s7, s{76+2*i}, s76")
                a("v_mov_b32 v2, s7")
                a(f"buffer_store_dword v2, v1, s[{DBG}:{DBG+3}], 0 offen offset:{4*(i-1)}")
            a("v_mov_b32 v2, s76")
            a(f"buffer_store_dword v2, v1, s[{DBG}:{DBG+3}], 0 offen offset:24")
            a("s_waitcnt vmcnt(0)")
            a.label("Ldbg_skip")
            return
        if not (self.on or self.rt): return
        a=self.a
        n = n or self.n
        if self.rt:
            a("s_waitcnt vmcnt(0)"); a("s_memrealtime s[80:81]"); a("s_memtime s[82:83]"); n=4
        a("s_load_dwordx2 s[4:5], s[0:1], 64")
        a("s_waitcnt vmcnt(0) lgkmcnt(0)")
        a(f"s_add_u32 s4, s4, {(64<<20) + (self.kidx<<20 if self.rt else 0)}")
        a("s_addc_u32 s5, s5, 0")
        srd(a, 8, 4, 5, 1<<20)
        a(f"s_mul_i32 s6, s2, {nw}")
        a(f"s_add_u32 s6, s6, {self.wavereg}")
        a("s_lshl_b32 s6, s6, 6")
        a("v_mov_b32 v1, s6")
        for i in range(n):
            a(f"v_mov_b32 v2, s{self.base+2*i}")
            a(f"buffer_store_dword v2, v1, s[8:11], 0 offen offset:{4*i}")
        a("s_waitcnt vmcnt(0)")

def mfma(a, d, x, y, c):
    cs = c if isinstance(c, str) else vr(c, 16)
    a(f"v_mfma_f32_32x32x16_bf16 {vr(d,16)}, {vr(x,4)}, {vr(y,4)}, {cs}")

WS, XB, WB, XA, WA, DBG = 4, 8, 12, 16, 20, 24
NONCE = 28
S_H, S_QB, S_G, S_TB = 30, 31, 32, 33
SLOT = 32768
BKV = 131072

def gen_fused(a):
    QA = [4, 8]; QB = 12
    OACC = [16, 32]
    CNEG = [48, 64]
    SB = [[80, 96], [112, 128]]
    PP = [144, 152]
    VF = [160, 168]
    KF = 176
    MHI, MLO = 212, 228
    VKA, VVA, TMP, LIN, MX, MX1 = 244, 245, 246, 247, 248, 249
    T0, T1, T2, T3 = 250, 251, 252, 253
    VKN, VVN = 254, 255
    VLO = 3
    XCH = 98304
    QBL = 122880
    FA, FB = F_BASE, F_BASE + 65536
    PUB = int(os.environ.get("PUB", "9"))
    FO = F_BASE + 131072
    WOA, WOB, OUT = 8, 12, 16

    a.raw(".p2align 8")
    a.raw(".type concat_heads__softmax_full_mha__sliding_block__prompt_kernel,@function")
    a.label("concat_heads__softmax_full_mha__sliding_block__prompt_kernel")
    a("s_cmp_ge_u32 s2, 256")
    a("s_cbranch_scc1 Lfa_end")
    st = Stamper(a, "fa", 0, "s3")
    st(0)
    a("s_load_dwordx4 s[36:39], s[0:1], 0")
    a("s_load_dwordx2 s[34:35], s[0:1], 24")
    a("s_load_dwordx2 s[42:43], s[0:1], 32")
    a("s_load_dwordx4 s[44:47], s[0:1], 56")
    a("v_and_b32 v1, 63, v0")
    a("v_lshrrev_b32 v2, 6, v0")
    a(f"s_and_b32 s{S_H}, s2, 31")
    a("v_readfirstlane_b32 s3, v2")
    a(f"s_lshr_b32 s{S_QB}, s2, 5")
    a("s_lshr_b32 s48, s2, 3")
    a("s_and_b32 s49, s2, 1")
    a("s_lshl_b32 s49, s49, 2")
    a("s_and_b32 s50, s48, 3")
    a(f"s_add_u32 s{S_G}, s49, s50")
    a("s_bfe_u32 s49, s2, 0x20001")
    a("s_lshl_b32 s49, s49, 3")
    a("s_lshr_b32 s50, s48, 2")
    a(f"s_add_u32 s{S_TB}, s49, s50")
    a(f"s_and_b32 s29, s{S_G}, 3")
    a("s_lshl_b32 s29, s29, 1")
    a(f"s_add_u32 s29, s29, s{S_TB}")
    a("s_and_b32 s29, s29, 7")
    a("s_cmp_lt_u32 s3, 4")
    a("s_cbranch_scc1 Lfa_compute")

    def early_setup():
        a(f"v_lshlrev_b32 v{LIN}, 4, v1")
        a(f"v_lshrrev_b32 v{T0}, 5, v1")
        a(f"v_lshlrev_b32 v{VLO}, 8, v{T0}")
        a(f"v_and_b32 v{T1}, 15, v1")
        a(f"v_lshlrev_b32 v{T1}, 4, v{T1}")
        a(f"v_add_u32 v{VLO}, v{VLO}, v{T1}")
        a(f"v_add_u32 v{VLO}, 1024, v{VLO}")
        a(f"v_and_b32 v{T1}, 27, v1")
        a(f"v_cmp_eq_u32 vcc, 16, v{T1}")
        a(f"v_mov_b32 v{T2}, 0x3f803f80")
        a(f"v_mov_b32 v{T3}, 0")
        a("s_nop 0")
        for r in range(16):
            a(f"v_cndmask_b32 v{VF[0]+r}, v{T3}, v{T2}, vcc")
        a(f"v_and_b32 v{T1}, 31, v1")
        a(f"v_lshlrev_b32 v{T0}, 2, v{T0}")
        a(f"v_sub_u32 v{T1}, v{T1}, v{T0}")
        a(f"v_mov_b32 v{T2}, 0xff800000")
        for r in range(16):
            cr = 8*(r//4) + r % 4
            a(f"v_cmp_le_i32 s[{62+2*(r%4)}:{63+2*(r%4)}], {cr}, v{T1}")
            if r % 4 == 3:
                a("s_nop 1")
                for q in range(r-3, r+1):
                    a(f"v_cndmask_b32 v{MHI+q}, v{T2}, v{T3}, s[{62+2*(q%4)}:{63+2*(q%4)}]")
                    a(f"v_cndmask_b32 v{MLO+q}, v{T3}, v{T2}, s[{62+2*(q%4)}:{63+2*(q%4)}]")
        a("s_lshr_b32 s70, s3, 2")
        a("s_lshl_b32 s71, s70, 14")
        a(f"s_add_u32 s72, s71, {BKV}")
        a(f"v_add_u32 v{VKN}, s71, v{LIN}")
        a(f"v_add_u32 v{VVN}, s71, v{VLO}")
        a(f"v_add_u32 v{VKA}, s72, v{LIN}")
        a(f"v_add_u32 v{VVA}, s72, v{VLO}")
        a("s_mov_b32 s73, 0")
        a("s_mov_b32 s40, 0x0000ffff")
        a("s_mov_b32 s41, 0x0000ffff")

    a("s_sub_u32 s48, s3, 4")
    if os.environ.get("LPRIO", "0") == "1": a("s_setprio 3")
    a("v_lshrrev_b32 v2, 3, v1")
    a("v_lshlrev_b32 v2, 10, v2")
    a("v_and_b32 v3, 7, v1")
    a("v_lshrrev_b32 v6, 4, v1")
    a("v_xor_b32 v3, v3, v6")
    a("v_lshlrev_b32 v3, 4, v3")
    a("v_add_u32 v4, v2, v3")
    a("v_xor_b32 v5, 64, v4")
    a(f"s_lshl_b32 s50, s{S_TB}, 6")
    a("s_lshl_b32 s49, s48, 4")
    a("s_add_u32 s50, s50, s49")
    a("s_lshl_b32 s50, s50, 10")
    a("s_lshl_b32 s51, s48, 11")
    a("s_mul_i32 s52, s48, 49152")
    a(f"s_lshl_b32 s49, s{S_G}, 7")
    a("s_add_u32 s52, s52, s49")
    a("s_mul_i32 s53, s48, 6144")
    a("s_add_u32 s53, s53, 8192")
    a("s_movk_i32 s49, 171")
    a("s_movk_i32 s55, 3072")
    for v in range(3):
        a(f"v_add_u32 v2, {64*v}, v1")
        a("v_mul_lo_u32 v3, v2, s49")
        a("v_lshrrev_b32 v3, 12, v3")
        a("v_mul_u32_u24 v9, 24, v3")
        a("v_sub_u32 v9, v2, v9")
        a("v_bfe_u32 v10, v3, 1, 1")
        a("v_lshlrev_b32 v10, 2, v10")
        a("v_xor_b32 v9, v9, v10")
        a("v_mul_lo_u32 v3, v3, s55")
        a("v_lshrrev_b32 v10, 3, v9")
        a("v_lshlrev_b32 v10, 10, v10")
        a("v_add_u32 v3, v3, v10")
        a("v_and_b32 v9, 7, v9")
        a("v_lshlrev_b32 v9, 4, v9")
        a(f"v_add_u32 v{6+v}, v3, v9")
    a("s_waitcnt lgkmcnt(0)")
    srd(a, XA, 36, 37, 2048*1024)
    srd(a, WA, 38, 39, 512*3072)
    def dma_chunk(i, ldsbase=None):
        c = i % 8
        base = (i % 4)*SLOT if ldsbase is None else ldsbase
        xs, wsr = (XA, WA) if i < 8 else (XB, WB)
        a(f"s_add_u32 s58, s29, {c}")
        a("s_and_b32 s58, s58, 7")
        a("s_lshl_b32 s59, s58, 7")
        a("s_add_u32 s59, s59, s50")
        a(f"s_mul_i32 s58, s58, {64*3072}")
        a("s_add_u32 s58, s58, s52")
        for u in range(2):
            a(f"s_add_u32 m0, s51, {base + u*1024}")
            a(f"s_add_u32 s54, s59, {u*8192}")
            a(f"buffer_load_dwordx4 v{4 + u}, s[{xs}:{xs+3}], s54 offen lds")
        for u in range(6):
            up, v = divmod(u, 3)
            a(f"s_add_u32 m0, s53, {base + u*1024}")
            a(f"s_add_u32 s54, s58, {8*up*3072}")
            a(f"buffer_load_dwordx4 v{6 + v}, s[{wsr}:{wsr+3}], s54 offen lds")
    dma_chunk(0)
    dma_chunk(1)
    srd(a, XB, 34, 35, 2048*1024)
    srd(a, WB, 42, 43, 512*3072)
    srd(a, WS, 46, 47, WS_SIZE)
    srd(a, DBG, 44, 45, 256)
    a("s_cmp_eq_u32 s2, 0")
    a("s_cselect_b32 s49, s48, 1")
    a("s_cmp_eq_u32 s49, 0")
    a("s_cbranch_scc0 Lfa_nononce")
    a("s_memrealtime s[56:57]")
    a("s_waitcnt lgkmcnt(0)")
    a("s_or_b32 s56, s56, 1")
    a("v_mov_b32 v10, s56")
    a("v_mov_b32 v11, 0")
    a(f"buffer_store_dword v10, v11, s[{DBG}:{DBG+3}], 0 offen sc1")
    a.label("Lfa_nononce")
    NCHK = 3
    C8AT = int(os.environ.get("C8AT", "-1"))
    if C8AT < 0:
        dma_chunk(8, BKV)
    early_setup()
    a(f"s_lshr_b32 s56, s{S_H}, 2")
    a("s_lshl_b32 s56, s56, 12")
    a(f"s_add_u32 s56, s56, {FA}")
    if os.environ.get("SUBPOLL", "0") == "1":
        a("v_and_b32 v12, 3, v1")
        a("v_bfe_u32 v13, v1, 2, 1")
        a("v_lshlrev_b32 v13, 4, v13")
        a("v_add_u32 v12, v12, v13")
        a("v_and_b32 v13, 3, v1")
        a(f"s_lshl_b32 s57, s{S_QB}, 2")
        a("v_add_u32 v13, s57, v13")
        a("v_cmp_gt_u32 vcc, 8, v1")
        a("s_nop 1")
        a("v_cndmask_b32 v12, v13, v12, vcc")
    else:
        a("v_and_b32 v12, 31, v1")
    a("v_lshlrev_b32 v12, 7, v12")
    a("v_add_u32 v12, s56, v12")
    a(f"s_lshl_b32 s56, s{S_G}, 5")
    a(f"s_add_u32 s56, s56, s{S_TB}")
    a("s_lshl_b32 s74, s56, 7")
    a("v_and_b32 v2, 7, v1")
    a(f"s_lshl_b32 s49, s{S_QB}, 2")
    a("s_sub_u32 s49, s49, 4")
    a("v_add_u32 v2, s49, v2")
    a("v_max_i32 v2, 0, v2")
    a(f"s_lshr_b32 s49, s{S_H}, 2")
    a("s_lshl_b32 s49, s49, 5")
    a("v_add_u32 v2, s49, v2")
    a("v_lshlrev_b32 v2, 7, v2")
    a(f"v_add_u32 v2, {FB}, v2")
    a("v_mov_b32 v11, 0")
    st(1)
    def write_flag(base):
        a(f"s_add_u32 s56, s74, {base}")
        a("v_mov_b32 v14, s56")
        a(f"v_mov_b32 v15, s{NONCE}")
        a("s_mov_b64 exec, 1")
        a(f"buffer_store_dword v15, v14, s[{WS}:{WS+3}], 0 offen sc1")
        a("s_mov_b64 exec, -1")
    def a_loads():
        a(f"s_mul_i32 s64, s{S_H}, {HEAD_STRIDE}")
        a("s_lshl_b32 s65, s48, 10")
        a("s_add_u32 s64, s64, s65")
        for u in range(8):
            a(f"s_add_u32 m0, s65, {BKV + (u&3)*4096 + (u>>2)*16384}")
            a(f"s_add_u32 s66, s64, {65536 + (u&3)*4096 + (u>>2)*65536}")
            a(f"buffer_load_dwordx4 v{LIN}, s[{WS}:{WS+3}], s66 offen sc1 lds")
        a(f"s_lshl_b32 s67, s{S_QB}, 13")
        a("s_add_u32 s67, s67, s64")
        for u in range(2):
            a(f"s_add_u32 m0, s65, {32768 + u*4096}")
            a(f"s_add_u32 s66, s67, {u*4096}")
            a(f"buffer_load_dwordx4 v{LIN}, s[{WS}:{WS+3}], s66 offen sc1 lds")
        for u in range(8):
            a(f"s_add_u32 m0, s65, {(u&3)*4096 + (u>>2)*16384}")
            a(f"s_add_u32 s66, s64, {65536 + 16384 + (u&3)*4096 + (u>>2)*65536}")
            a(f"buffer_load_dwordx4 v{LIN}, s[{WS}:{WS+3}], s66 offen sc1 lds")
    order = ["c0"]*8 + ["c1"]*8
    if C8AT < 0: order += ["c8"]*8
    waits = {}
    for i in range(16):
        last = max(k for k, t in enumerate(order) if t == f"c{i}")
        if i == NCHK: last = max(last, max(k for k, t in enumerate(order) if t == "nonce"))
        waits[i] = len(order) - 1 - last
        if i == 0: order += ["nonce"]
        if C8AT == i: order += ["c8"]*8
        if i + 2 <= 15 and i + 2 != 8: order += [f"c{i+2}"]*8
        pass
    for i in range(16):
        w = waits[i]
        if i == 15:
            a("s_cmp_eq_u32 s48, 0")
            a("s_cbranch_scc0 Lfa_w15")
            a(f"s_waitcnt vmcnt({w+1})")
            a("s_branch Lfa_w15d")
            a.label("Lfa_w15")
            a(f"s_waitcnt vmcnt({w})")
            a.label("Lfa_w15d")
        else:
            a(f"s_waitcnt vmcnt({w})")
        if i == NCHK:
            a(f"s_mov_b32 s55, {SPIN}")
            a.label("Lfa_nspin")
            a(f"v_readfirstlane_b32 s{NONCE}, v10")
            a("s_nop 3")
            a(f"s_cmp_lg_u32 s{NONCE}, 0")
            a("s_cbranch_scc1 Lfa_ngot")
            a("s_sleep 1")
            a(f"buffer_load_dword v10, v11, s[{DBG}:{DBG+3}], 0 offen sc1")
            a("s_waitcnt vmcnt(0)")
            a("s_sub_u32 s55, s55, 1")
            a("s_cmp_lg_u32 s55, 0")
            a("s_cbranch_scc1 Lfa_nspin")
            a.label("Lfa_ngot")
        a("s_barrier")
        if i in (0,1,2,4,6,8,10,12,14,15): st.p({0:1,1:2,2:3,4:4,6:5,8:6,10:7,12:8,14:9,15:10}[i])
        if i == 0:
            a(f"buffer_load_dword v10, v11, s[{DBG}:{DBG+3}], 0 offen sc1")
        if C8AT == i:
            dma_chunk(8, BKV)
        if i + 2 <= 15 and i + 2 != 8:
            dma_chunk(i + 2)
        if i == PUB + 1:
            a("s_cmp_eq_u32 s48, 0")
            a("s_cbranch_scc0 Lfa_nf")
            write_flag(FA)
            a.label("Lfa_nf")
        if i == 13:
            a("s_cmp_eq_u32 s48, 0")
            a("s_cbranch_scc0 Lfa_np13")
            a(f"buffer_load_dword v13, v12, s[{WS}:{WS+3}], 0 offen sc1")
            a.label("Lfa_np13")
        if i == 14:
            a("s_cmp_eq_u32 s48, 0")
            a("s_cbranch_scc0 Lfa_np14")
            a("v_mov_b32 v14, 49152")
            a("v_mov_b32 v16, 0")
            a("ds_write_b32 v14, v16")
            a("s_waitcnt lgkmcnt(0)")
            a.label("Lfa_np14")
    st(2)
    a(f"s_mov_b32 s55, {SPIN}")
    a("v_mov_b32 v14, 49152")
    a("s_cmp_eq_u32 s48, 0")
    a("s_cbranch_scc0 Lfa_lspin")
    a.label("Lfa_aspin")
    a("s_waitcnt vmcnt(0)")
    a(f"v_cmp_eq_u32 vcc, s{NONCE}, v13")
    a("s_nop 4")
    a("s_cmp_eq_u64 vcc, -1")
    a("s_cbranch_scc1 Lfa_aok")
    a("s_sleep 2")
    a(f"buffer_load_dword v13, v12, s[{WS}:{WS+3}], 0 offen sc1")
    a("s_sub_u32 s55, s55, 1")
    a("s_cmp_lg_u32 s55, 0")
    a("s_cbranch_scc1 Lfa_aspin")
    a("s_waitcnt vmcnt(0)")
    a.label("Lfa_aok")
    a("v_mov_b32 v16, 1")
    a("ds_write_b32 v14, v16")
    a("s_branch Lfa_agot")
    a.label("Lfa_lspin")
    a(f"s_mov_b32 s55, {SPIN*8}")
    a.label("Lfa_lspin2")
    a("ds_read_b32 v16, v14")
    a("s_waitcnt lgkmcnt(0)")
    a("v_readfirstlane_b32 s56, v16")
    a("s_nop 3")
    a("s_cmp_lg_u32 s56, 0")
    a("s_cbranch_scc1 Lfa_agot")
    a("s_sleep 1")
    a("s_sub_u32 s55, s55, 1")
    a("s_cmp_lg_u32 s55, 0")
    a("s_cbranch_scc1 Lfa_lspin2")
    a.label("Lfa_agot")
    a_loads()
    st(3)
    a("s_branch Lfa_attn")

    a.label("Lfa_compute")
    a("s_lshr_b32 s48, s3, 1")
    a("s_and_b32 s49, s3, 1")
    a("v_and_b32 v2, 31, v1")
    a("v_lshrrev_b32 v3, 5, v1")
    a("v_bfe_u32 v9, v2, 1, 3")
    a("v_xor_b32 v9, v9, v3")
    a("s_lshl_b32 s50, s48, 12")
    a("v_lshlrev_b32 v18, 7, v2")
    a("v_add_u32 v18, s50, v18")
    for s in range(4):
        a(f"v_xor_b32 v19, {2*s}, v9")
        a("v_lshlrev_b32 v19, 4, v19")
        a(f"v_add_u32 v{10+s}, v18, v19")
        a(f"v_add_u32 v{14+s}, 0x10000, v{10+s}")
    a("v_lshlrev_b32 v24, 3, v3")
    a("v_bfe_u32 v25, v1, 2, 2")
    a("v_add_u32 v24, v24, v25")
    a("s_movk_i32 s50, 384")
    a("v_mul_lo_u32 v24, v24, s50")
    a("v_bfe_u32 v25, v1, 4, 1")
    a("v_lshlrev_b32 v25, 5, v25")
    a("v_add_u32 v24, v24, v25")
    a("v_and_b32 v25, 3, v1")
    a("v_lshlrev_b32 v25, 3, v25")
    a("v_add_u32 v24, v24, v25")
    a("v_add_u32 v24, 8192, v24")
    a("v_bfe_u32 v25, v1, 3, 1")
    a("s_mul_i32 s50, s49, 3")
    for ct in range(3):
        a(f"s_add_u32 s51, s50, {ct}")
        a("v_xor_b32 v26, s51, v25")
        a("v_lshlrev_b32 v26, 6, v26")
        a(f"v_add_u32 v{18+ct}, v24, v26")
        a(f"v_add_u32 v{21+ct}, 0x10000, v{18+ct}")
    a("v_lshlrev_b32 v24, 4, v1")
    a("v_bfe_u32 v25, v1, 4, 1")
    a(f"s_mov_b32 s50, {HEAD_STRIDE}")
    a("v_mul_lo_u32 v25, v25, s50")
    a("v_lshlrev_b32 v26, 8, v3")
    a("v_add_u32 v25, v25, v26")
    a("v_and_b32 v26, 15, v1")
    a("v_lshlrev_b32 v26, 4, v26")
    a("v_add_u32 v25, v25, v26")
    a(f"s_mul_i32 s52, s{S_G}, {4*HEAD_STRIDE}")
    a(f"s_lshl_b32 s53, s{S_TB}, 1")
    a("s_add_u32 s53, s53, s48")
    a("s_lshl_b32 s54, s53, 11")
    a("s_add_u32 s54, s54, 65536")
    a("s_lshl_b32 s53, s53, 10")
    a(f"s_mov_b32 s55, {f32bits(QSCALE):#x}")
    ACC = 64
    for r in range(48): a(f"v_mov_b32 v{ACC+r}, 0")
    early_setup()
    a("s_waitcnt lgkmcnt(0)")
    srd(a, WS, 46, 47, WS_SIZE)
    TLBW = int(os.environ.get("TLBW", "0"))
    if TLBW:
        if TLBW < 3:
            a("s_lshr_b32 s80, s2, 3" if TLBW == 1 else "s_bfe_u32 s80, s2, 0x30003")
            a("s_cmp_eq_u32 s80, 0")
            a("s_cbranch_scc0 Lfa_ntlb")
        a("v_lshlrev_b32 v129, 20, v1")
        a("s_cmp_eq_u32 s3, 0")
        a("s_cbranch_scc0 Lfa_tlb1")
        a(f"buffer_load_dword v131, v129, s[{WS}:{WS+3}], 0 offen")
        a("s_branch Lfa_ntlb")
        a.label("Lfa_tlb1")
        a("s_load_dwordx2 s[80:81], s[0:1], 48")
        a("s_load_dwordx2 s[82:83], s[0:1], 16")
        a("s_load_dwordx2 s[84:85], s[0:1], 40")
        a("s_waitcnt lgkmcnt(0)")
        a("s_cmp_eq_u32 s3, 1")
        a("s_cselect_b32 s86, s80, s82")
        a("s_cselect_b32 s87, s81, s83")
        a("s_cmp_eq_u32 s3, 3")
        a("s_cselect_b32 s86, s84, s86")
        a("s_cselect_b32 s87, s85, s87")
        a("s_mov_b32 s88, s86")
        a("s_and_b32 s89, s87, 0xffff")
        a("s_cmp_eq_u32 s3, 1")
        a(f"s_mov_b32 s90, {512*1024}")
        a(f"s_cselect_b32 s90, {2048*2048}, s90")
        a("s_mov_b32 s91, 0x00020000")
        a("buffer_load_dword v131, v129, s[88:91], 0 offen")
        a.label("Lfa_ntlb")
    if os.environ.get("XTOUCH", "0") == "1":
        a("s_cmp_eq_u32 s3, 3")
        a("s_cbranch_scc0 Lfa_nxt")
        srd(a, XB, 34, 35, 2048*1024)
        a("v_lshrrev_b32 v129, 3, v1")
        a("v_lshlrev_b32 v129, 10, v129")
        a("v_and_b32 v130, 7, v1")
        a("v_lshlrev_b32 v130, 7, v130")
        a("v_add_u32 v129, v129, v130")
        a(f"s_lshl_b32 s60, s{S_TB}, 16")
        a(f"s_and_b32 s61, s{S_G}, 3")
        a("s_lshl_b32 s61, s61, 14")
        a("s_add_u32 s60, s60, s61")
        a("s_add_u32 s61, s60, 8192")
        a(f"buffer_load_dword v131, v129, s[{XB}:{XB+3}], s60 offen")
        a(f"buffer_load_dword v132, v129, s[{XB}:{XB+3}], s61 offen")
        a.label("Lfa_nxt")
    XF = [28, 32]; WF = [36, 48]; PK = 112
    def read_frags(slot, s, buf):
        xr = (10 if slot < 2 else 14) + s
        a(f"ds_read_b128 {vr(XF[buf],4)}, v{xr} offset:{(slot%2)*SLOT}")
        for ct in range(3):
            reg = (18 if slot < 2 else 21) + ct
            off = (slot % 2) * SLOT + s * 6144
            a(f"ds_read_b64_tr_b16 {vr(WF[buf]+4*ct,2)}, v{reg} offset:{off}")
            a(f"ds_read_b64_tr_b16 {vr(WF[buf]+4*ct+2,2)}, v{reg} offset:{off+1536}")
    ACCA = [64, 80, 96]
    ACCB = [128, 144, 176]
    def body(types, tag):
        L = f"Lpj{tag}"
        def epi_part(ct, accs, pofs):
            acc = accs[ct]
            c = tag*3 + ct
            ty = types[ct]
            for e in range(2):
                pk = PK + ((2*ct + e) % 4)*4
                if ty == 'Q':
                    for r in range(8):
                        a(f"v_mul_f32 v{acc+8*e+r}, s55, v{acc+8*e+r}")
                for r in range(4):
                    a(f"v_cvt_pk_bf16_f32 v{pk+r}, v{acc+2*r+8*e}, v{acc+8*e+2*r+1}")
                if ty == 'Q':
                    a(f"s_add_u32 s59, s52, {pofs + (2*(c%2)+e)*HEAD_STRIDE}")
                    a("s_add_u32 s59, s59, s53")
                    a(f"buffer_store_dwordx4 {vr(pk,4)}, v24, s[{WS}:{WS+3}], s59 offen sc1")
                elif ty == 'K':
                    a(f"s_add_u32 s59, s52, {pofs + (2*(c%2)+e)*HEAD_STRIDE}")
                    a("s_add_u32 s59, s59, s54")
                    a(f"buffer_store_dwordx4 {vr(pk,4)}, v24, s[{WS}:{WS+3}], s59 offen sc1")
                else:
                    a(f"s_add_u32 s59, s52, {pofs + (2*(c%2))*HEAD_STRIDE + 1024 + 512*e}")
                    a("s_add_u32 s59, s59, s54")
                    a(f"buffer_store_dwordx4 {vr(pk,4)}, v25, s[{WS}:{WS+3}], s59 offen sc1")
        def chunk(slot, accs, first=False, after_step=None):
            read_frags(slot, 0, 0)
            for s_ in range(4):
                buf = s_ % 2
                if s_ < 3:
                    read_frags(slot, s_+1, buf ^ 1)
                    a("s_waitcnt lgkmcnt(7)")
                else:
                    a("s_waitcnt lgkmcnt(0)")
                for ct in range(3):
                    acc = accs[ct]
                    cin = "0" if (first and s_ == 0) else acc
                    if types[ct] == 'V':
                        mfma(a, acc, XF[buf], WF[buf]+4*ct, cin)
                    else:
                        mfma(a, acc, WF[buf]+4*ct, XF[buf], cin)
                if after_step: after_step(s_)
        st(1)
        a("s_mov_b32 s57, 0")
        a.label(L + "_loop")
        for slot in range(4):
            a("s_barrier")
            chunk(slot, ACCA)
        a("s_add_u32 s57, s57, 1")
        a("s_cmp_lt_u32 s57, 2")
        a(f"s_cbranch_scc1 {L}_loop")
        for i in range(8, 16):
            slot = i % 4
            a("s_barrier")
            if i == 8:
                for r in (10, 11, 12, 13, 18, 19, 20):
                    a(f"v_add_u32 v{r}, {BKV}, v{r}")
                a("s_nop 7")
                chunk(0, ACCB, first=True, after_step=lambda s_: epi_part(s_, ACCA, 0) if s_ < 3 else None)
                for r in (10, 11, 12, 13, 18, 19, 20):
                    a(f"v_subrev_u32 v{r}, {BKV}, v{r}")
            else:
                if i == PUB:
                    a("s_waitcnt vmcnt(0)")
                chunk(slot, ACCB)
        a("s_nop 15")
        for ct in range(3): epi_part(ct, ACCB, PROB_STRIDE)
        st(2); st(3)
        a("s_branch Lfa_attn")
    a("s_cmp_eq_u32 s49, 0")
    a("s_cbranch_scc0 Lfa_wn1")
    body(['Q', 'Q', 'K'], 0)
    a.label("Lfa_wn1")
    body(['K', 'V', 'V'], 1)

    a.label("Lfa_attn")
    if os.environ.get("LPRIO", "0") == "1": a("s_setprio 0")
    a("s_and_b32 s64, s3, 3")
    a("s_lshl_b32 s64, s64, 11")
    a(f"s_add_u32 s64, s64, 32768")
    a(f"v_add_u32 v{T0}, s64, v{LIN}")
    a(f"v_add_u32 v{T1}, {BKV}, v{LIN}")
    a(f"s_mul_i32 s62, s{S_H}, {HEAD_STRIDE}")
    a("s_lshl_b32 s63, s3, 10")
    a("s_add_u32 s62, s62, s63")
    WOV = 0
    a("v_lshrrev_b32 v0, 3, v1")
    a("v_lshlrev_b32 v0, 10, v0")
    a(f"v_bfe_u32 v{T2}, v1, 4, 1")
    a(f"v_lshlrev_b32 v{T2}, 2, v{T2}")
    a(f"v_and_b32 v{T3}, 7, v1")
    a(f"v_xor_b32 v{T2}, v{T2}, v{T3}")
    a(f"v_lshlrev_b32 v{T2}, 4, v{T2}")
    a(f"v_add_u32 v0, v0, v{T2}")
    a(f"s_lshl_b32 s34, s{S_QB}, 3")
    a("s_add_u32 s34, s34, s3")
    a("s_min_u32 s35, s34, 8")
    a(f"s_mul_i32 s36, s{S_H}, {HEAD_STRIDE}")
    a(f"s_add_u32 s36, s36, {PROB_STRIDE}")
    a("s_load_dwordx2 s[44:45], s[0:1], 16")
    a("s_load_dwordx4 s[48:51], s[0:1], 40")
    a("s_bfe_u32 s75, s2, 0x20001")
    a("s_and_b32 s52, s2, 1")
    a("s_lshl_b32 s52, s52, 2")
    a("s_bfe_u32 s53, s2, 0x20003")
    a("s_add_u32 s39, s52, s53")
    a("s_lshl_b32 s42, s3, 13")
    a("s_lshl_b32 s52, s39, 7")
    a("s_add_u32 s42, s42, s52")
    a("s_waitcnt lgkmcnt(0)")
    srd(a, WOA, 44, 45, 512*1024)
    srd(a, WOB, 48, 49, 512*1024)
    srd(a, OUT, 50, 51, 2048*2048)
    st(4)
    st.l(1)
    a("s_waitcnt vmcnt(8)")
    a("s_barrier")
    st(5)
    st.l(2)
    a(f"ds_read_b128 {vr(QA[0],4)}, v{T0}")
    a(f"ds_read_b128 {vr(QA[1],4)}, v{T0} offset:1024")
    a(f"ds_read_b128 {vr(KF,4)}, v{T1}")
    a("s_waitcnt lgkmcnt(0)")
    mfma(a, SB[0][0], KF, QA[0], "0")
    mfma(a, SB[1][0], KF, QA[1], "0")
    a("s_cmp_eq_u32 s3, 4")
    a("s_cbranch_scc0 La_nnw")
    a(f"v_mov_b32 v{T0}, {XCH + 512}")
    a(f"v_mov_b32 v{T1}, s{NONCE}")
    a(f"ds_write_b32 v{T0}, v{T1}")
    a("s_waitcnt lgkmcnt(0)")
    a.label("La_nnw")
    for q in range(2):
        for r in range(16):
            a(f"v_mov_b32 v{OACC[q]+r}, 0") if r < 6 else None
    for q, m in ((0, MX), (1, MX1)):
        s = SB[q][0]
        a(f"v_max_f32 v{m}, v{s}, v{s+1}")
        for r in range(1, 8):
            a(f"v_max3_f32 v{m}, v{s+2*r}, v{s+2*r+1}, v{m}")
    def halves_max(m, t):
        a(f"v_mov_b32 v{t}, v{m}")
        a("s_nop 1")
        a(f"v_permlane32_swap_b32 v{m}, v{t}")
        a("s_nop 1")
        a(f"v_max_f32 v{m}, v{m}, v{t}")
    def read_v(buf, areg, off):
        a("s_mov_b64 exec, s[40:41]")
        a(f"ds_read_b128 {vr(buf,4)}, v{areg} offset:{off}")
        a(f"ds_read_b128 {vr(buf+4,4)}, v{areg} offset:{off+512}")
        a("s_mov_b64 exec, -1")
    def step(cur, p, o, early, qk, pre_pv0, mid, pre_pv1, vb):
        E = lambda i: a(f"v_exp_f32 v{cur+i}, v{cur+i}")
        C = lambda j: a(f"v_cvt_pk_bf16_f32 v{p+j}, v{cur+2*j}, v{cur+2*j+1}")
        E(0); E(1)
        early()
        E(2); E(3); C(0); E(4); C(1); E(5)
        qk()
        E(6); E(7); C(2); E(8); C(3); E(9); E(10)
        pre_pv0()
        mfma(a, o, vb, p, o)
        E(11); C(4); E(12); C(5); E(13); E(14); E(15); C(6); C(7)
        mid()
        pre_pv1()
        mfma(a, o, vb+4, p+4, o)
    nop = lambda: None
    a.label("La_main")
    a(f"ds_read_b128 {vr(KF,4)}, v{VKA}")
    read_v(VF[0], VVA, 0)
    a(f"ds_read_b128 {vr(KF+4,4)}, v{VKA} offset:2048")
    halves_max(MX, TMP)
    halves_max(MX1, TMP)
    for q, m in ((0, MX), (1, MX1)):
        for r in range(16):
            a(f"v_sub_f32 v{CNEG[q]+r}, 0, v{m}")
    a("s_waitcnt lgkmcnt(3)")
    mfma(a, SB[0][0], KF, QA[0], CNEG[0])
    mfma(a, SB[1][0], KF, QA[1], CNEG[1])
    U = 8
    SCHED = 1
    def kv_dma(j):
        for u in range(4):
            a(f"s_add_u32 m0, s63, {(j-1)*32768 + (u&1)*8192 + (u>>1)*16384}")
            a(f"s_add_u32 s66, s62, {65536 + j*16384 + (u&1)*8192 + (u>>1)*65536}")
            a(f"buffer_load_dwordx4 v{LIN}, s[{WS}:{WS+3}], s66 offen sc1 lds")
    def wo_dma(srdr, half, ldsbase):
        for u in range(4):
            a(f"s_add_u32 m0, s63, {ldsbase + u*8192}")
            a(f"s_add_u32 s66, s42, {(256*half + 64*u)*1024}")
            a(f"buffer_load_dwordx4 v{WOV}, s[{srdr}:{srdr+3}], s66 offen lds")
    def tile_pair(n, kread, vread, last=False, first=False):
        vb = VF[n % 2]
        for q in range(2):
            cur, nxt = SB[q][n % 2], SB[q][(n+1) % 2]
            p = PP[q]
            E = lambda i: a(f"v_exp_f32 v{cur+i}, v{cur+i}")
            C = lambda j: a(f"v_cvt_pk_bf16_f32 v{p+j}, v{cur+2*j}, v{cur+2*j+1}")
            pq = 1 - q
            pvb = VF[n % 2] if q == 1 else VF[(n+1) % 2]
            E(0); E(1)
            if not (first and q == 0):
                mfma(a, OACC[pq], pvb+4, PP[pq]+4, OACC[pq])
            E(2); E(3); E(4); C(0); E(5); C(1)
            if q == 0: a("s_waitcnt lgkmcnt(0)")
            if not last:
                mfma(a, nxt, KF+4*((n+1) % 2), QA[q], CNEG[q])
            if q == 1: kread(KF+4*(n % 2))
            E(6); E(7); E(8); C(2); E(9); C(3); E(10); E(11)
            mfma(a, OACC[q], vb, p, "0" if first else OACC[q])
            E(12); C(4); E(13); C(5); E(14); E(15)
            if q == 0: vread(VF[(n+1) % 2])
            C(6); C(7)
    a("s_cmp_lg_u32 s73, 0")
    a("s_cbranch_scc1 La_rolled")
    KA3, VA3 = 184, 185
    a(f"v_add_u32 v{KA3}, 0x10000, v{VKN}")
    a(f"v_add_u32 v{VA3}, 0x10000, v{VVN}")
    a("s_nop 7")
    def addr(t, kreg0, kreg1, kreg3):
        j, n = divmod(t, 8)
        if j == 0: return kreg0, n*2048
        if j == 3: return kreg3, n*2048
        return kreg1, (j-1)*32768 + n*2048
    a.raw(".p2align 6")
    for t in range(32):
        j, n = divmod(t, 8)
        if n == 0: st.l(3 + j)
        if t == 14 and os.environ.get("WOT", "0") == "1":
            a(f"v_lshlrev_b32 v186, 10, v1")
            a("s_lshl_b32 s64, s3, 16")
            a("s_lshl_b32 s65, s39, 7")
            a("s_add_u32 s64, s64, s65")
            a(f"buffer_load_dword v187, v186, s[{WOA}:{WOA+3}], s64 offen")
            a(f"buffer_load_dword v188, v186, s[{WOB}:{WOB+3}], s64 offen")
        if t == 17:
            a("s_cmp_lt_u32 s3, 4")
            a("s_cbranch_scc1 La_s17")
            a(f"buffer_load_dword v{T2}, v2, s[{WS}:{WS+3}], 0 offen sc1")
            a.label("La_s17")
        if t == 25:
            a("s_cmp_lt_u32 s3, 4")
            a("s_cbranch_scc1 La_s25")
            a(f"s_mov_b32 s67, {SPIN}")
            a.label("La_bspin")
            a("s_waitcnt vmcnt(0)")
            a(f"v_cmp_eq_u32 vcc, s{NONCE}, v{T2}")
            a("s_nop 4")
            a("s_cmp_eq_u64 vcc, -1")
            a("s_cbranch_scc1 La_bgot")
            a("s_sleep 1")
            a(f"buffer_load_dword v{T2}, v2, s[{WS}:{WS+3}], 0 offen sc1")
            a("s_sub_u32 s67, s67, 1")
            a("s_cmp_lg_u32 s67, 0")
            a("s_cbranch_scc1 La_bspin")
            a("s_waitcnt vmcnt(0)")
            a.label("La_bgot")
            b_loads(a, LIN, QBL)
            a.label("La_s25")
        if t == 27:
            wo_dma(WOA, 0, 0)
        if n == 5 and j < 3:
            a(f"s_waitcnt vmcnt({[0, 0, 2 if os.environ.get('WOT', '0') == '1' else 1][j]})")
            a("s_barrier")
            if j < 2: kv_dma(2 + j)
            if j == 0:
                a(f"v_mov_b32 v{T0}, {XCH + 512}")
                a(f"ds_read_b32 v{T0}, v{T0}")
                for r in range(4): a(f"v_mov_b32 v{188+r}, -1")
                a(f"s_lshl_b32 s68, s{S_H}, 16")
                a("s_lshl_b32 s69, s34, 10")
                a("s_add_u32 s68, s68, s69")
                a(f"s_add_u32 s68, s68, {O_BASE + O_PROB}")
                a(f"buffer_store_dwordx4 v[188:191], v{LIN}, s[{WS}:{WS+3}], s68 offen sc1")
                a("s_waitcnt lgkmcnt(0)")
                a(f"v_readfirstlane_b32 s{NONCE}, v{T0}")
                a("s_cmp_eq_u32 s3, 4")
                a("s_cbranch_scc0 La_nfb")
                a(f"s_add_u32 s56, s74, {FB}")
                a(f"v_mov_b32 v{T0}, s56")
                a(f"v_mov_b32 v{T1}, s{NONCE}")
                a("s_mov_b64 exec, 1")
                a(f"buffer_store_dword v{T1}, v{T0}, s[{WS}:{WS+3}], 0 offen sc1")
                a("s_mov_b64 exec, -1")
                a.label("La_nfb")
        def kread(buf, t=t):
            if t + 2 < 32:
                r, o = addr(t + 2, VKA, VKN, KA3)
                a(f"ds_read_b128 {vr(buf,4)}, v{r} offset:{o}")
        def vread(buf, t=t):
            if t + 1 < 32:
                r, o = addr(t + 1, VVA, VVN, VA3)
                read_v(buf, r, o)
            else:
                a("s_nop 0")
        tile_pair(n, kread, vread, last=(t == 31), first=(t == 0))
    a("s_branch La_post")
    a.label("La_rolled")
    for q in range(2):
        for r in range(16):
            a(f"v_mov_b32 v{OACC[q]+r}, 0")
    for r in range(4): a(f"v_mov_b32 v{PP[1]+4+r}, 0")
    a("s_mov_b32 s38, 0")
    a.label("La_loop")
    for n in range(U):
        def kread(buf, n=n):
            if n + 2 < U: a(f"ds_read_b128 {vr(buf,4)}, v{VKA} offset:{(n+2)*2048}")
            else: a(f"ds_read_b128 {vr(buf,4)}, v{VKN} offset:{(n+2-U)*2048}")
        def vread(buf, n=n):
            if n + 1 < U: read_v(buf, VVA, (n+1)*2048)
            else: read_v(buf, VVN, 0)
        tile_pair(n, kread, vread)
    a(f"v_mov_b32 v{VKA}, v{VKN}")
    a(f"v_mov_b32 v{VVA}, v{VVN}")
    a(f"v_add_u32 v{VKN}, 32768, v{VKN}")
    a(f"v_add_u32 v{VVN}, 32768, v{VVN}")
    a("s_add_u32 s38, s38, 1")
    a("s_cmp_lg_u32 s38, 4")
    a("s_cbranch_scc1 La_loop")
    a.label("La_post")
    a("s_nop 1")
    mfma(a, OACC[1], VF[1]+4, PP[1]+4, OACC[1])
    st(6)
    st.l(7)
    a("s_waitcnt lgkmcnt(0)")
    a("s_nop 15")
    a(f"v_mov_b32 v{TMP}, 0x5f800000")
    a(f"v_cmp_lt_f32 vcc, v{OACC[0]+8}, v{TMP}")
    a(f"v_cmp_lt_f32 s[58:59], v{OACC[1]+8}, v{TMP}")
    a("s_nop 4")
    a("s_and_b64 s[58:59], s[58:59], vcc")
    a("s_cmp_eq_u64 s[58:59], -1")
    a("s_cselect_b32 s64, 0, 1")
    a("s_cmp_lg_u32 s73, 0")
    a("s_cselect_b32 s64, 0, s64")
    a("s_lshl_b32 s65, s3, 2")
    a(f"s_add_u32 s65, s65, {XCH}")
    a(f"v_mov_b32 v{T0}, s65")
    a(f"v_mov_b32 v{T1}, s64")
    a(f"ds_write_b32 v{T0}, v{T1}")
    a("s_mul_i32 s65, s3, 2560")
    a(f"s_add_u32 s65, s65, {XCH + 1024}")
    a(f"v_add_u32 v{T0}, s65, v{LIN}")
    a(f"v_lshrrev_b32 v{T1}, 2, v{LIN}")
    a(f"v_add_u32 v{T1}, s65, v{T1}")
    a("s_cmp_eq_u32 s70, 0")
    a("s_cbranch_scc0 La_sendq0")
    for lab, qs in (("La_sendq1", 1), ("La_sendq0", 0)):
        if qs == 0: a.label(lab)
        a(f"ds_write_b128 v{T0}, {vr(OACC[qs],4)}")
        a(f"ds_write_b128 v{T0}, {vr(OACC[qs]+4,4)} offset:1024")
        a(f"ds_write_b32 v{T1}, v{OACC[qs]+8} offset:2048")
        if qs == 1:
            a("s_branch La_sent")
        else:
            for r in range(9):
                a(f"v_mov_b32 v{OACC[0]+r}, v{OACC[1]+r}")
    a.label("La_sent")
    a("s_waitcnt vmcnt(0) lgkmcnt(0)")
    a("s_barrier")
    a(f"v_and_b32 v{T2}, 7, v1")
    a(f"v_lshlrev_b32 v{T2}, 2, v{T2}")
    a(f"v_add_u32 v{T2}, {XCH}, v{T2}")
    a(f"ds_read_b32 v{T2}, v{T2}")
    a("s_xor_b32 s64, s3, 4")
    a("s_mul_i32 s65, s64, 2560")
    a(f"s_add_u32 s65, s65, {XCH + 1024}")
    a(f"v_add_u32 v{T0}, s65, v{LIN}")
    a(f"v_lshrrev_b32 v{T1}, 2, v{LIN}")
    a(f"v_add_u32 v{T1}, s65, v{T1}")
    a(f"ds_read_b128 {vr(SB[0][0],4)}, v{T0}")
    a(f"ds_read_b128 {vr(SB[0][0]+4,4)}, v{T0} offset:1024")
    a(f"ds_read_b32 v{SB[0][0]+8}, v{T1} offset:2048")
    a("s_lshl_b32 s37, s3, 11")
    a(f"s_add_u32 s37, s37, {BKV}")
    a("s_waitcnt lgkmcnt(0)")
    a(f"v_cmp_ne_u32 vcc, 0, v{T2}")
    a("s_nop 4")
    a("s_cmp_eq_u64 vcc, 0")
    a("s_cbranch_scc1 La_done")
    a("s_barrier")
    a("s_mov_b32 s73, 1")
    for u in range(4):
        a(f"s_add_u32 m0, s63, {BKV + (u&1)*8192 + (u>>1)*16384}")
        a(f"s_add_u32 s66, s62, {65536 + (u&1)*8192 + (u>>1)*65536}")
        a(f"buffer_load_dwordx4 v{LIN}, s[{WS}:{WS+3}], s66 offen sc1 lds")
    kv_dma(1)
    a("s_waitcnt vmcnt(0)")
    a("s_barrier")
    a(f"v_mov_b32 v{MX}, 0xff800000")
    a(f"v_mov_b32 v{MX1}, 0xff800000")
    a("s_mov_b32 s38, 0")
    a.label("La_fb")
    a("s_bfe_u32 s64, s38, 0x20003")
    a("s_sub_u32 s65, s64, 1")
    a("s_lshl_b32 s65, s65, 15")
    a("s_cmp_eq_u32 s64, 0")
    a(f"s_cselect_b32 s65, {BKV}, s65")
    a("s_lshr_b32 s64, s38, 5")
    a("s_lshl_b32 s64, s64, 14")
    a("s_add_u32 s65, s65, s64")
    a("s_and_b32 s64, s38, 7")
    a("s_lshl_b32 s64, s64, 11")
    a("s_add_u32 s65, s65, s64")
    a(f"v_add_u32 v{T0}, s65, v{LIN}")
    a(f"ds_read_b128 {vr(KF,4)}, v{T0}")
    a("s_waitcnt lgkmcnt(0)")
    mfma(a, SB[0][0], KF, QA[0], "0")
    mfma(a, SB[1][0], KF, QA[1], "0")
    a("s_nop 15")
    for q, m in ((0, MX), (1, MX1)):
        s = SB[q][0]
        for r in range(8):
            a(f"v_max3_f32 v{m}, v{s+2*r}, v{s+2*r+1}, v{m}")
    a("s_add_u32 s38, s38, 1")
    a("s_cmp_lg_u32 s38, 64")
    a("s_cbranch_scc1 La_fb")
    a(f"v_add_u32 v{VKN}, s71, v{LIN}")
    a(f"v_add_u32 v{VVN}, s71, v{VLO}")
    a(f"v_add_u32 v{VKA}, s72, v{LIN}")
    a(f"v_add_u32 v{VVA}, s72, v{VLO}")
    a("s_branch La_main")
    a.label("La_done")
    a("s_cmp_eq_u32 s73, 0")
    a("s_cbranch_scc1 La_bok")
    a("s_barrier")
    wo_dma(WOA, 0, 0)
    a("s_cmp_lt_u32 s3, 4")
    a("s_cbranch_scc1 La_brl")
    b_loads(a, LIN, QBL)
    a.label("La_brl")
    a("s_waitcnt vmcnt(0)")
    a("s_barrier")
    a.label("La_bok")
    a(f"v_add_u32 v{VKA}, s37, v{LIN}")
    a(f"v_add_u32 v{VVA}, s37, v{VLO}")
    a("s_lshl_b32 s64, s3, 10")
    a(f"s_add_u32 s64, s64, {QBL}")
    a(f"v_add_u32 v{T0}, s64, v{LIN}")
    a(f"ds_read_b128 {vr(QB,4)}, v{T0}")
    for i in range(8, -1, -1):
        a(f"ds_read_b128 {vr(KF+4*i,4)}, v{VKA} offset:{i*2048}")
    for r in range(9):
        a(f"v_add_f32 v{OACC[0]+r}, v{OACC[0]+r}, v{SB[0][0]+r}")
    a("s_and_b32 s64, s3, 3")
    a("s_lshl_b32 s64, s64, 1")
    a("s_add_u32 s64, s64, s70")
    a(f"s_lshl_b32 s65, s{S_QB}, 3")
    a("s_add_u32 s64, s64, s65")
    a("s_lshl_b32 s64, s64, 10")
    a(f"s_lshl_b32 s68, s{S_H}, 16")
    a("s_add_u32 s68, s68, s64")
    a(f"s_add_u32 s68, s68, {O_BASE}")
    def finish_o(o, lreg, soff):
        a(f"v_rcp_f32 v{TMP}, v{lreg}")
        a("s_nop 1")
        for r in range(8):
            a(f"v_mul_f32 v{o+r}, v{o+r}, v{TMP}")
        for r in range(4):
            a(f"v_cvt_pk_bf16_f32 v{PP[1]+r}, v{o+2*r}, v{o+2*r+1}")
        a(f"buffer_store_dwordx4 {vr(PP[1],4)}, v{LIN}, s[{WS}:{WS+3}], {soff} offen sc1")
    def o_flag(p):
        a("s_lshl_b32 s56, s2, 3")
        a("s_add_u32 s56, s56, s3")
        a("s_lshl_b32 s56, s56, 7")
        a(f"s_add_u32 s56, s56, {FO + p*262144}")
        a(f"v_mov_b32 v{T0}, s56")
        a(f"v_mov_b32 v{T1}, s{NONCE}")
        a("s_mov_b64 exec, 1")
        a(f"buffer_store_dword v{T1}, v{T0}, s[{WS}:{WS+3}], 0 offen sc1")
        a("s_mov_b64 exec, -1")
    a("s_waitcnt lgkmcnt(6)")
    SP = [80, 96, 112, 128]
    def qk1(i):
        c = MHI if i == 8 else (MLO if i == 0 else "0")
        mfma(a, SP[(8-i) % 4], KF+4*i, QB, c)
    qk1(8); qk1(7); qk1(6)
    finish_o(OACC[0], OACC[0]+8, "s68")
    st(7)
    st.l(8)
    a("s_waitcnt lgkmcnt(0)")
    a("s_barrier")
    read_v(VF[0], VVA, 8*2048)
    a("s_nop 0")
    a("s_mov_b32 s38, s35")
    for i in range(8, -1, -1):
        s = SP[(8-i) % 4]
        if i == 8:
            a(f"v_max_f32 v{MX}, v{s}, v{s+1}")
            for r in range(1, 8):
                a(f"v_max3_f32 v{MX}, v{s+2*r}, v{s+2*r+1}, v{MX}")
        else:
            for r in range(8):
                a(f"v_max3_f32 v{MX}, v{s+2*r}, v{s+2*r+1}, v{MX}")
        if i > 0:
            a("s_cmp_eq_u32 s38, 0")
            a("s_cbranch_scc1 Lb_p1_done")
            a("s_sub_u32 s38, s38, 1")
        if i - 3 >= 0:
            qk1(i - 3)
    a.label("Lb_p1_done")
    halves_max(MX, TMP)
    st(8)
    st.l(9)
    a("s_waitcnt vmcnt(0)")
    o_flag(0)
    a("s_mov_b32 s43, 0")
    for r in range(16):
        a(f"v_sub_f32 v{MHI+r}, v{MHI+r}, v{MX}")
    a("s_nop 1")
    mfma(a, SP[0], KF+4*8, QB, MHI)
    for r in range(16):
        a(f"v_sub_f32 v{CNEG[0]+r}, 0, v{MX}")
        a(f"v_sub_f32 v{MLO+r}, v{MLO+r}, v{MX}")
        a(f"v_mov_b32 v{OACC[0]+r}, 0")
    a("s_lshr_b32 s52, s3, 2")
    a("s_and_b32 s53, s3, 1")
    a("s_bfe_u32 s54, s3, 0x10001")
    a("s_lshl_b32 s55, s75, 1")
    a("s_add_u32 s55, s55, s53")
    a("s_lshl_b32 s56, s53, 2")
    a("s_add_u32 s56, s56, s75")
    a("s_cmp_eq_u32 s52, 0")
    a("s_cselect_b32 s56, s56, s55")
    a(f"s_lshl_b32 s57, s{S_QB}, 5")
    a("s_lshl_b32 s58, s54, 4")
    a("s_add_u32 s57, s57, s58")
    a("s_lshl_b32 s57, s57, 3")
    a("s_add_u32 s57, s57, s56")
    a("s_lshl_b32 s57, s57, 7")
    a(f"s_add_u32 s57, s57, {FO}")
    a(f"v_and_b32 v{T2}, 15, v1")
    a(f"v_lshlrev_b32 v{T2}, 10, v{T2}")
    a(f"v_add_u32 v{T2}, s57, v{T2}")
    a("s_mov_b32 s44, 0")
    WG = [(WOA, 1, 32768), (WOB, 0, 65536), (WOB, 1, 98304)]
    wo_dma(*WG[0])
    a("s_mov_b32 s43, 1")
    a("s_mov_b32 s38, s35")
    for n, i in enumerate(range(8, -1, -1)):
        cur, nxt = SP[n % 2], SP[(n+1) % 2]
        vb = VF[n % 2]
        if i > 0:
            cn = MLO if i - 1 == 0 else CNEG[0]
            step(cur, PP[0], OACC[0],
                 lambda: read_v(VF[(n+1) % 2], VVA, (i-1)*2048),
                 lambda: mfma(a, nxt, KF+4*(i-1), QB, cn),
                 lambda: a("s_waitcnt lgkmcnt(2)"),
                 lambda: a("s_nop 1"), nop, vb)
            if n in (1, 3):
                wo_dma(*WG[1 if n == 1 else 2])
                a(f"s_mov_b32 s43, {2 if n == 1 else 3}")
            if n == 5 and os.environ.get("EPOLL", "0") == "1":
                a(f"buffer_load_dword v{T3}, v{T2}, s[{WS}:{WS+3}], 0 offen sc1")
                a("s_mov_b32 s44, 1")
            a("s_cmp_eq_u32 s38, 0")
            a("s_cbranch_scc1 Lb_p2_done")
            a("s_sub_u32 s38, s38, 1")
        else:
            step(cur, PP[0], OACC[0], nop, nop,
                 lambda: a("s_waitcnt lgkmcnt(0)"),
                 lambda: a("s_nop 1"), nop, vb)
    a.label("Lb_p2_done")
    st(9)
    st.l(10)
    st.t(1)
    a("s_cmp_ge_u32 s43, 2")
    a("s_cbranch_scc1 Lb_g1")
    wo_dma(*WG[1])
    a.label("Lb_g1")
    a("s_cmp_ge_u32 s43, 3")
    a("s_cbranch_scc1 Lb_g2")
    wo_dma(*WG[2])
    a.label("Lb_g2")
    a("s_cmp_eq_u32 s44, 1")
    a("s_cbranch_scc1 Lb_g3")
    a(f"buffer_load_dword v{T3}, v{T2}, s[{WS}:{WS+3}], 0 offen sc1")
    a.label("Lb_g3")
    a("s_nop 15")
    a(f"s_lshl_b32 s68, s{S_H}, 16")
    a("s_lshl_b32 s69, s34, 10")
    a("s_add_u32 s68, s68, s69")
    a(f"s_add_u32 s68, s68, {O_BASE + O_PROB}")
    finish_o(OACC[0], OACC[0]+8, "s68")
    OF, ACC2, WF2 = 16, 208, 112
    a(f"s_lshl_b32 s59, s{S_QB}, 3")
    a("s_add_u32 s59, s59, s55")
    a("s_lshl_b32 s60, s59, 10")
    a(f"s_mul_i32 s61, s52, {O_PROB}")
    a("s_add_u32 s60, s60, s61")
    a(f"s_add_u32 s60, s60, {O_BASE}")
    a("s_bfe_u32 s61, s2, 0x20003")
    a("s_lshl_b32 s61, s61, 2")
    a(f"v_lshrrev_b32 v{T0}, 5, v1")
    a(f"v_lshlrev_b32 v{T1}, 2, v{T0}")
    a(f"v_bfe_u32 v{TMP}, v1, 2, 2")
    a(f"v_add_u32 v{T1}, v{T1}, v{TMP}")
    a(f"v_lshlrev_b32 v{T1}, 7, v{T1}")
    a(f"v_bfe_u32 v{TMP}, v1, 4, 1")
    a(f"v_lshlrev_b32 v{TMP}, 5, v{TMP}")
    a(f"v_add_u32 v{T1}, v{T1}, v{TMP}")
    a(f"v_and_b32 v{TMP}, 3, v1")
    a(f"v_lshlrev_b32 v{TMP}, 3, v{TMP}")
    a(f"v_add_u32 v{T1}, v{T1}, v{TMP}")
    a(f"v_bfe_u32 v{TMP}, v1, 3, 1")
    a(f"v_lshlrev_b32 v{TMP}, 6, v{TMP}")
    a("s_lshl_b32 s62, s52, 16")
    a("s_lshl_b32 s63, s54, 15")
    a("s_add_u32 s62, s62, s63")
    a(f"v_add_u32 v{T1}, s62, v{T1}")
    a(f"v_add_u32 v{VKA}, v{T1}, v{TMP}")
    a(f"v_xor_b32 v{TMP}, 64, v{TMP}")
    a(f"v_add_u32 v{VVA}, v{T1}, v{TMP}")
    a(f"v_and_b32 v{VKN}, 31, v1")
    a(f"v_lshlrev_b32 v{VKN}, 11, v{VKN}")
    a(f"v_lshlrev_b32 v{T0}, 4, v{T0}")
    a(f"v_add_u32 v{VKN}, v{VKN}, v{T0}")
    st.t(2)
    st(10)
    a("s_lshl_b32 s63, s54, 20")
    a("s_add_u32 s60, s60, s63")
    a("s_waitcnt vmcnt(2)")
    a("s_barrier")
    WFA = 80
    for hh in range(16):
        for ct, reg in ((0, VKA), (1, VVA)):
            b = WFA + 8*hh + 4*ct
            a(f"ds_read_b64_tr_b16 {vr(b,2)}, v{reg} offset:{hh*2048}")
            a(f"ds_read_b64_tr_b16 {vr(b+2,2)}, v{reg} offset:{hh*2048+1024}")
        if hh % 3 == 2: a("s_waitcnt lgkmcnt(8)")
    st.t(3)
    a(f"s_mov_b32 s67, {SPIN}")
    a("s_waitcnt vmcnt(1)")
    a.label("Lo_spin")
    a(f"v_cmp_eq_u32 vcc, s{NONCE}, v{T3}")
    a("s_nop 4")
    a("s_cmp_eq_u64 vcc, -1")
    a("s_cbranch_scc1 Lo_got")
    a("s_sleep 1")
    a(f"buffer_load_dword v{T3}, v{T2}, s[{WS}:{WS+3}], 0 offen sc1")
    a("s_waitcnt vmcnt(0)")
    a("s_sub_u32 s67, s67, 1")
    a("s_cmp_lg_u32 s67, 0")
    a("s_cbranch_scc1 Lo_spin")
    a.label("Lo_got")
    st.t(4)
    a(f"s_mov_b32 s67, {SPIN}")
    a.label("Lo_ld")
    for hh in range(16):
        a(f"s_add_u32 s64, s60, {hh*65536}")
        a(f"buffer_load_dwordx4 {vr(OF+4*hh,4)}, v{LIN}, s[{WS}:{WS+3}], s64 offen sc1")
    a("s_cmp_eq_u32 s52, 0")
    a("s_cbranch_scc1 Lo_rdy")
    a("s_waitcnt vmcnt(0)")
    a(f"v_max_u32 v{T3}, v{OF}, v{OF+1}")
    for r in range(1, 32):
        a(f"v_max3_u32 v{T3}, v{OF+2*r}, v{OF+2*r+1}, v{T3}")
    a(f"v_cmp_eq_u32 vcc, -1, v{T3}")
    a("s_nop 4")
    a("s_cmp_eq_u64 vcc, 0")
    a("s_cbranch_scc1 Lo_rdy")
    a("s_sub_u32 s67, s67, 1")
    a("s_cmp_lg_u32 s67, 0")
    a("s_cbranch_scc1 Lo_ld")
    a.label("Lo_rdy")
    st.t(5)
    a("s_waitcnt lgkmcnt(0)")
    for hh in range(16):
        a(f"s_waitcnt vmcnt({15-hh})")
        for ct in range(2):
            acc = ACC2 + 16*ct
            mfma(a, acc, WFA+8*hh+4*ct, OF+4*hh, "0" if hh == 0 else acc)
    st.t(6)
    a("s_lshl_b32 s64, s3, 12")
    a(f"s_add_u32 s64, s64, {BKV}")
    a(f"v_add_u32 v{T0}, s64, v{LIN}")
    a("s_xor_b32 s65, s3, 2")
    a("s_lshl_b32 s65, s65, 12")
    a(f"s_add_u32 s65, s65, {BKV}")
    a(f"v_add_u32 v{T1}, s65, v{LIN}")
    a("s_nop 15")
    a("s_cmp_eq_u32 s54, 0")
    a("s_cbranch_scc0 Lo_send0")
    for r in range(4):
        a(f"ds_write_b128 v{T0}, {vr(ACC2+16+4*r,4)} offset:{r*1024}")
    a("s_branch Lo_sent")
    a.label("Lo_send0")
    for r in range(4):
        a(f"ds_write_b128 v{T0}, {vr(ACC2+4*r,4)} offset:{r*1024}")
    for r in range(16):
        a(f"v_mov_b32 v{ACC2+r}, v{ACC2+16+r}")
    a.label("Lo_sent")
    a("s_waitcnt lgkmcnt(0)")
    a("s_barrier")
    st.t(7)
    for r in range(4):
        a(f"ds_read_b128 {vr(OF+4*r,4)}, v{T1} offset:{r*1024}")
    a("s_lshl_b32 s64, s59, 16")
    a("s_lshl_b32 s65, s52, 10")
    a("s_add_u32 s64, s64, s65")
    a("s_lshl_b32 s65, s39, 7")
    a("s_add_u32 s64, s64, s65")
    a("s_lshl_b32 s65, s54, 6")
    a("s_add_u32 s64, s64, s65")
    a("s_waitcnt lgkmcnt(0)")
    for r in range(16):
        a(f"v_add_f32 v{ACC2+r}, v{ACC2+r}, v{OF+r}")
    for pr in range(2):
        b = ACC2 + 8*pr
        pk = WF2 + 4*pr
        for r in range(4):
            a(f"v_cvt_pk_bf16_f32 v{pk+r}, v{b+2*r}, v{b+2*r+1}")
        a("s_nop 1")
        a(f"v_permlane32_swap_b32 v{pk}, v{pk+2}")
        a(f"v_permlane32_swap_b32 v{pk+1}, v{pk+3}")
        a("s_nop 1")
        a(f"buffer_store_dwordx4 {vr(pk,4)}, v{VKN}, s[{OUT}:{OUT+3}], s64 offen offset:{pr*32} {os.environ.get('OUTF','')}")
    st.t(8)
    if st.ft: a("s_waitcnt vmcnt(0)")
    st.t(9); st.t(10)
    st(11)
    st.p(11)
    st.flush(8, 12)
    a.label("Lfa_end")
    a("s_endpgm")

def b_loads(a, LIN, QBL):
    a("s_sub_u32 s51, s3, 4")
    a("s_lshl_b32 s51, s51, 10")
    a(f"s_lshl_b32 s50, s{S_QB}, 14")
    a("s_add_u32 s50, s50, s51")
    a("s_sub_u32 s50, s50, 16384")
    for u in range(8):
        a(f"s_add_u32 m0, s51, {BKV + u*4096}")
        a(f"s_add_u32 s54, s50, {u*4096}")
        a("s_max_i32 s54, s54, 0")
        a("s_add_u32 s54, s54, s36")
        a("s_add_u32 s54, s54, 65536")
        a(f"buffer_load_dwordx4 v{LIN}, s[{WS}:{WS+3}], s54 offen sc1 lds")
    a(f"s_lshl_b32 s50, s{S_QB}, 13")
    a("s_add_u32 s50, s50, s36")
    a("s_add_u32 s50, s50, s51")
    for u in range(2):
        a(f"s_add_u32 m0, s51, {QBL + u*4096}")
        a(f"s_add_u32 s54, s50, {u*4096}")
        a(f"buffer_load_dwordx4 v{LIN}, s[{WS}:{WS+3}], s54 offen sc1 lds")

def gen_oproj(a):
    a.raw(".p2align 8")
    a.raw(".type oproj_kernel,@function")
    a.label("oproj_kernel")
    a("s_cmp_ge_u32 s2, 256")
    a("s_cbranch_scc1 Lop_end")
    st = Stamper(a, "oproj", 1, "s20")
    st()
    a("s_load_dwordx2 s[4:5], s[0:1], 16")
    a("s_load_dwordx2 s[26:27], s[0:1], 40")
    a("s_load_dwordx2 s[28:29], s[0:1], 48")
    a("s_load_dwordx2 s[30:31], s[0:1], 64")
    a("s_and_b32 s32, s2, 7")
    a("s_lshr_b32 s33, s2, 3")
    a("s_lshr_b32 s23, s32, 2")
    a("s_and_b32 s34, s32, 3")
    a("s_lshl_b32 s34, s34, 2")
    a("s_and_b32 s35, s33, 3")
    a("s_add_u32 s24, s34, s35")
    a("s_lshr_b32 s25, s33, 2")
    a("v_and_b32 v1, 63, v0")
    a("v_lshrrev_b32 v2, 6, v0")
    a("s_nop 0")
    a("v_readfirstlane_b32 s20, v2")
    a("v_lshrrev_b32 v2, 3, v1")
    a("v_lshlrev_b32 v2, 10, v2")
    a("v_bfe_u32 v3, v1, 4, 1")
    a("v_lshlrev_b32 v3, 2, v3")
    a("v_and_b32 v5, 7, v1")
    a("v_xor_b32 v3, v3, v5")
    a("v_lshlrev_b32 v3, 4, v3")
    a("v_add_u32 v4, v2, v3")
    a("v_lshlrev_b32 v5, 4, v1")
    a("s_waitcnt lgkmcnt(0)")
    a("s_cmp_eq_u32 s23, 0")
    a("s_cselect_b32 s4, s4, s26")
    a("s_cselect_b32 s5, s5, s27")
    srd(a, 8, 4, 5, 512*1024)
    a(f"s_mul_i32 s36, s23, {O_PROB}")
    a(f"s_add_u32 s36, s36, {O_BASE}")
    a("s_add_u32 s30, s30, s36")
    a("s_addc_u32 s31, s31, 0")
    srd(a, 12, 30, 31, O_PROB)
    a("s_lshl_b32 s40, s20, 13")
    a("s_lshl_b32 s36, s25, 7")
    a("s_add_u32 s40, s40, s36")
    a("s_lshl_b32 s41, s20, 10")
    OF = 64
    a("s_lshl_b32 s42, s24, 2")
    a("s_add_u32 s42, s42, s20")
    a("s_lshl_b32 s43, s42, 10")
    a("s_lshl_b32 s49, s25, 2")
    a("s_and_b32 s47, s24, 3")
    a("s_lshl_b32 s47, s47, 3")
    a("s_add_u32 s49, s49, s47")
    a("s_lshl_b32 s46, s49, 4")
    a("s_lshl_b32 s47, s20, 3")
    a("s_add_u32 s46, s46, s47")
    a("s_lshl_b32 s48, s25, 7")
    def wdma(u):
        a(f"s_add_u32 m0, s41, {u*4096}")
        a(f"s_add_u32 s44, s46, {u*32}")
        a("s_and_b32 s44, s44, 511")
        a("s_lshl_b32 s44, s44, 10")
        a("s_add_u32 s44, s44, s48")
        a("buffer_load_dwordx4 v4, s[8:11], s44 offen lds")
    def oload(H):
        a(f"s_add_u32 s44, s49, {H}")
        a("s_and_b32 s44, s44, 31")
        a("s_lshl_b32 s44, s44, 16")
        a("s_add_u32 s44, s44, s43")
        a(f"buffer_load_dwordx4 {vr(OF+4*H,4)}, v5, s[12:15], s44 offen")
    for q in range(4):
        for u in range(4): wdma(4*q+u)
        for H in range(8): oload(8*q+H)
    srd(a, 16, 28, 29, 2048*2048)
    a("v_lshrrev_b32 v2, 5, v1")
    a("v_lshlrev_b32 v3, 2, v2")
    a("v_bfe_u32 v8, v1, 2, 2")
    a("v_add_u32 v3, v3, v8")
    a("v_lshlrev_b32 v3, 7, v3")
    a("v_bfe_u32 v8, v1, 4, 1")
    a("v_lshlrev_b32 v8, 5, v8")
    a("v_add_u32 v3, v3, v8")
    a("v_and_b32 v8, 3, v1")
    a("v_lshlrev_b32 v8, 3, v8")
    a("v_add_u32 v3, v3, v8")
    a("v_bfe_u32 v8, v1, 3, 1")
    a("v_lshlrev_b32 v8, 6, v8")
    a("v_add_u32 v6, v3, v8")
    a("v_xor_b32 v8, 64, v8")
    a("v_add_u32 v7, v3, v8")
    a("v_and_b32 v8, 31, v1")
    a("v_lshlrev_b32 v8, 11, v8")
    a("v_lshlrev_b32 v9, 4, v2")
    a("v_add_u32 v8, v8, v9")
    ACC = 16
    st()
    WF = [48, 56]
    def rd(H, buf):
        for ct in range(2):
            a(f"ds_read_b64_tr_b16 {vr(WF[buf]+4*ct,2)}, v{6+ct} offset:{H*2048}")
            a(f"ds_read_b64_tr_b16 {vr(WF[buf]+4*ct+2,2)}, v{6+ct} offset:{H*2048+1024}")
    for q in range(4):
        a(f"s_waitcnt vmcnt({8 + 12*(3-q)})")
        a("s_barrier")
        rd(8*q, 0)
        for hh in range(8):
            H = 8*q + hh
            buf = hh % 2
            if hh < 7:
                rd(H+1, buf ^ 1)
                a(f"s_waitcnt vmcnt({7-hh + 12*(3-q)}) lgkmcnt(4)")
            else:
                a(f"s_waitcnt vmcnt({12*(3-q)}) lgkmcnt(0)")
            for ct in range(2):
                acc = ACC+16*ct
                mfma(a, acc, WF[buf]+4*ct, OF+4*H, "0" if H == 0 else acc)
    a("s_nop 15")
    st()
    a("s_lshl_b32 s44, s42, 16")
    a("s_lshl_b32 s45, s23, 10")
    a("s_add_u32 s44, s44, s45")
    a("s_lshl_b32 s45, s25, 7")
    a("s_add_u32 s44, s44, s45")
    for ct in range(2):
        for pr in range(2):
            b = ACC + 16*ct + 8*pr
            pk = 48 + (ct*2+pr)*4
            for r in range(4):
                a(f"v_cvt_pk_bf16_f32 v{pk+r}, v{b+2*r}, v{b+2*r+1}")
            a("s_nop 1")
            a(f"v_permlane32_swap_b32 v{pk}, v{pk+2}")
            a(f"v_permlane32_swap_b32 v{pk+1}, v{pk+3}")
            a("s_nop 1")
            a(f"buffer_store_dwordx4 {vr(pk,4)}, v8, s[16:19], s44 offen offset:{ct*64+pr*32}")
    st()
    st.flush(4)
    a.label("Lop_end")
    a("s_endpgm")

def kd(name, vgpr, sgpr=102):
    acc = (vgpr + 3)//4*4
    return f""".section .rodata,"a"
.p2align 6
.amdhsa_kernel {name}
  .amdhsa_next_free_vgpr {vgpr}
  .amdhsa_next_free_sgpr {sgpr}
  .amdhsa_accum_offset {acc}
  .amdhsa_group_segment_fixed_size 0
  .amdhsa_kernarg_size 72
  .amdhsa_user_sgpr_count 2
  .amdhsa_user_sgpr_kernarg_segment_ptr 1
  .amdhsa_system_sgpr_workgroup_id_x 1
.end_amdhsa_kernel
"""

HEADER = """; Kernarg layout for this problem (72 bytes, ptrs only, base s[0:1]):
;   offset   0: d_in[0] A_x  shape=(1, 2048, 512) dtype=bfloat16
;   offset   8: d_in[1] A_wqkv  shape=(512, 1536) dtype=bfloat16
;   offset  16: d_in[2] A_wo  shape=(512, 512) dtype=bfloat16
;   offset  24: d_in[3] B_x  shape=(1, 2048, 512) dtype=bfloat16
;   offset  32: d_in[4] B_wqkv  shape=(512, 1536) dtype=bfloat16
;   offset  40: d_in[5] B_wo  shape=(512, 512) dtype=bfloat16
;   offset  48: d_out     shape=(1, 2048, 1024) dtype=bfloat16
;   offset  56: d_debug   256 bytes
;   offset  64: d_ws      268435456 bytes workspace
;            written as MFMA-ready fragments to d_ws with write-through stores and published through per-workgroup flags
;            (flag value = per-launch nonce handed out through the zeroed d_debug word).
;            m is a stand-in (true max over the first key tile); a run-time check (row sum < 2^64) falls back to the
;   phase 4: output projections (fragments exchanged through d_ws, flags / sentinel polling).
; @launch grid=(256,1,1) block=(512,1,1) lds=163840
.amdgcn_target "amdgcn-amd-amdhsa--gfx950"
.text
.globl concat_heads__softmax_full_mha__sliding_block__prompt_kernel
"""

def main(path):
    a = Asm()
    gen_fused(a)
    txt = HEADER + a.text() + kd("concat_heads__softmax_full_mha__sliding_block__prompt_kernel", 256)
    open(path, "w").write(txt)

if __name__ == "__main__":
    main(sys.argv[1] if len(sys.argv) > 1 else f"cdna_kernels/{NAME}.s")
```
